```python
import torch

def _softmax(x, axis=-1):
    return torch.softmax(x, dim=axis)
def _gelu(x):
    return torch.nn.functional.gelu(x, approximate="tanh")
def _silu(x):
    return torch.nn.functional.silu(x)
def _sigmoid(x):
    return torch.sigmoid(x)
def _layernorm(x, axis=-1, eps=1e-5):
    m = x.mean(dim=axis, keepdim=True)
    v = x.var(dim=axis, keepdim=True, unbiased=False)
    return (x - m) / torch.sqrt(v + eps)
def _scatter_add(tgt, idx, src, axis=0):
    return tgt.clone().index_add_(axis, idx, src)
def _segment_sum(src, seg, n):
    out = torch.zeros((n,) + src.shape[1:], dtype=src.dtype)
    return out.index_add_(0, seg, src)
def _pad(x, pw):
    flat = tuple(v for pair in reversed(pw) for v in pair)
    return torch.nn.functional.pad(x, flat)

kernel_name = 'interleave_layers__spectral_gfnet__ssm_conv_s5__prompt'

def setup_inputs():

    _w = (lambda a: (lambda t: t.to(torch.bfloat16) if t.is_floating_point() else t)(torch.as_tensor(a)))
    def _A_setup():
        B, S, D = 1, 2048, 448
        Df = D // 2 + 1
        return {
            "x": _w((lambda *s: torch.randn(*s, dtype=torch.bfloat16) * 0.05)(B, S, D)),
            "w_r": _w((lambda *s: torch.randn(*s, dtype=torch.bfloat16) * 1.6)(S, Df) * 0.02),
            "w_i": _w((lambda *s: torch.randn(*s, dtype=torch.bfloat16) * 1.6)(S, Df) * 0.02),
        }
    _A_in = _A_setup()

    def _B_setup():
        B, S, D = 1, 2048, 448
        P = D
        Lambda_re = -0.5 * (lambda _x: torch.exp(torch.as_tensor(_x)))((lambda *s: torch.randn(*s, dtype=torch.bfloat16) * 0.2)(P))
        Lambda_im = (lambda *s: torch.randn(*s, dtype=torch.bfloat16) * 0.8)(P) * 1.0
        B_re = (lambda *s: torch.randn(*s, dtype=torch.bfloat16) * 0.2)(P, D) * (D ** -0.5)
        B_im = (lambda *s: torch.randn(*s, dtype=torch.bfloat16) * 0.2)(P, D) * (D ** -0.5)
        C_re = (lambda *s: torch.randn(*s, dtype=torch.bfloat16) * 0.2)(D, P) * (P ** -0.5)
        C_im = (lambda *s: torch.randn(*s, dtype=torch.bfloat16) * 0.2)(D, P) * (P ** -0.5)
        log_dt = (lambda *s: torch.randn(*s, dtype=torch.bfloat16) * 0.2)(P) * 0.3 - 2.0
        Dskip = (lambda *s: torch.randn(*s, dtype=torch.bfloat16) * 0.05)(D)
        return {
            "x": _w((lambda *s: torch.randn(*s, dtype=torch.bfloat16) * 0.05)(B, S, D)),
            "Lambda_re": _w(Lambda_re),
            "Lambda_im": _w(Lambda_im),
            "B_re": _w(B_re),
            "B_im": _w(B_im),
            "C_re": _w(C_re),
            "C_im": _w(C_im),
            "log_dt": _w(log_dt),
            "Dskip": _w(Dskip),
        }
    _B_in = _B_setup()

    return {
        "A_x": _A_in["x"],
        "A_w_r": _A_in["w_r"],
        "A_w_i": _A_in["w_i"],
        "B_x": _B_in["x"],
        "B_Lambda_re": _B_in["Lambda_re"],
        "B_Lambda_im": _B_in["Lambda_im"],
        "B_B_re": _B_in["B_re"],
        "B_B_im": _B_in["B_im"],
        "B_C_re": _B_in["C_re"],
        "B_C_im": _B_in["C_im"],
        "B_log_dt": _B_in["log_dt"],
        "B_Dskip": _B_in["Dskip"],
    }

def reference(A_x, A_w_r, A_w_i, B_x, B_Lambda_re, B_Lambda_im, B_B_re, B_B_im, B_C_re, B_C_im, B_log_dt, B_Dskip):
    def _A_ref(x, w_r, w_i):
        B, S, D = x.shape
        X = (lambda x, axes=(-2,-1): torch.fft.rfft2(x.float(), dim=axes))(x, axes=(-2, -1))
        W = w_r + 1j * w_i
        X = X * W
        y = (lambda x, s, axes=(-2,-1): torch.fft.irfft2(x, s=s, dim=axes).to(torch.bfloat16))(X, (S, D), axes=(-2, -1))
        return y

    def _B_ref(x, Lambda_re, Lambda_im, B_re, B_im, C_re, C_im, log_dt, Dskip):
        Bsz, L, H = x.shape
        Lam = Lambda_re + 1j * Lambda_im
        Bmat = B_re + 1j * B_im
        Cmat = C_re + 1j * C_im
        dt = torch.exp(log_dt)
        Lam_bar = torch.exp(dt * Lam)
        B_bar = ((Lam_bar - 1.0) / Lam)[:, None] * Bmat
        Bu = torch.einsum("bld,pd->blp", x + 0j, B_bar)
        h = torch.zeros_like(Bu[:, 0, :])
        hs = []
        for t in range(L):
            h = Lam_bar[None, :] * h + Bu[:, t, :]
            hs.append(h)
        hseq = torch.stack(hs, 1)
        y = 2.0 * torch.einsum("blp,dp->bld", hseq, Cmat).real + x * Dskip[None, None, :]
        return y

    x = A_x
    x = x + _A_ref(_layernorm(x, axis=-1), A_w_r, A_w_i)
    x = x + _B_ref(_layernorm(x, axis=-1), B_Lambda_re, B_Lambda_im, B_B_re, B_B_im, B_C_re, B_C_im, B_log_dt, B_Dskip)
    x = x + _A_ref(_layernorm(x, axis=-1), A_w_r, A_w_i)
    x = x + _B_ref(_layernorm(x, axis=-1), B_Lambda_re, B_Lambda_im, B_B_re, B_B_im, B_C_re, B_C_im, B_log_dt, B_Dskip)
    return x
```

```python
import sys
NAME = 'interleave_layers__spectral_gfnet__ssm_conv_s5__prompt'
extra_empty = int(sys.argv[1]) if len(sys.argv) > 1 else 0
scale = float(sys.argv[2]) if len(sys.argv) > 2 else 1.0
outp = sys.argv[3] if len(sys.argv) > 3 else 'dev/naive.s'
import struct
def f2u(f): return '0x%08x' % struct.unpack('<I', struct.pack('<f', f))[0]
XR, U, X1, X2, BU = 0, 4 << 20, 8 << 20, 12 << 20, 16 << 20
kern = {}
def srd(d, slot, size, off=0):
    s = ''
    if off: s += f's_add_u32 s{d}, s{d}, {off}\ns_addc_u32 s{d+1}, s{d+1}, 0\n'
    s += f's_mov_b32 s{d+2}, {size}\ns_mov_b32 s{d+3}, 0x20000\n'
    return s
def pro(bufs, nwg):
    s = f's_cmp_ge_u32 s2, {nwg}\ns_cbranch_scc1 9f\n'
    for d, slot, size, off in bufs: s += f's_load_dwordx2 s[{d}:{d+1}], s[0:1], {slot*8}\n'
    s += 's_waitcnt lgkmcnt(0)\n'
    for d, slot, size, off in bufs: s += srd(d, slot, size, off)
    return s
WS = 14; OUT = 12
N = 2048 * 448
kern['cvt'] = (N // 256, pro([(4, 0, N * 2, 0), (8, WS, N * 4, XR)], N // 256) + '''
s_lshl_b32 s3, s2, 8
v_add_u32 v1, s3, v0
v_lshlrev_b32 v2, 1, v1
v_lshlrev_b32 v3, 2, v1
buffer_load_ushort v4, v2, s[4:7], 0 offen
s_waitcnt vmcnt(0)
v_lshlrev_b32 v4, 16, v4
buffer_store_dword v4, v3, s[8:11], 0 offen
''')
kern['ln'] = (8, pro([(4, WS, N * 4, XR), (8, WS, N * 4, U)], 8) + f'''
s_lshl_b32 s3, s2, 8
v_add_u32 v1, s3, v0
s_mov_b32 s12, 1792
v_mul_lo_u32 v1, v1, s12
v_mov_b32 v5, 0
s_mov_b32 s13, 0
1:
buffer_load_dword v4, v1, s[4:7], s13 offen
s_waitcnt vmcnt(0)
v_add_f32 v5, v5, v4
s_add_u32 s13, s13, 4
s_cmp_lt_u32 s13, 1792
s_cbranch_scc1 1b
v_mul_f32 v5, {f2u(1/448)}, v5
v_mov_b32 v6, 0
s_mov_b32 s13, 0
2:
buffer_load_dword v4, v1, s[4:7], s13 offen
s_waitcnt vmcnt(0)
v_sub_f32 v4, v4, v5
v_fmac_f32 v6, v4, v4
s_add_u32 s13, s13, 4
s_cmp_lt_u32 s13, 1792
s_cbranch_scc1 2b
v_mul_f32 v6, {f2u(1/448)}, v6
v_add_f32 v6, {f2u(1e-5)}, v6
v_rsq_f32 v6, v6
s_mov_b32 s13, 0
3:
buffer_load_dword v4, v1, s[4:7], s13 offen
s_waitcnt vmcnt(0)
v_sub_f32 v4, v4, v5
v_mul_f32 v4, v4, v6
buffer_store_dword v4, v1, s[8:11], s13 offen
s_add_u32 s13, s13, 4
s_cmp_lt_u32 s13, 1792
s_cbranch_scc1 3b
''')
kern['dftd'] = (2048, pro([(4, WS, N * 4, U), (8, WS, 2048 * 2048, X1)], 2048) + f'''
s_mul_i32 s12, s2, 1792
s_lshl_b32 s14, s2, 11
v_mov_b32 v5, 0
v_mov_b32 v6, 0
v_mov_b32 v7, 0
v_mov_b32 v1, 0
s_mov_b32 s13, 0
1:
s_add_u32 s15, s12, s13
buffer_load_dword v4, v1, s[4:7], s15 offen
v_cvt_f32_u32 v8, v7
v_mul_f32 v8, {f2u(1/448)}, v8
v_cos_f32 v9, v8
v_sin_f32 v10, v8
v_add_u32 v7, v7, v0
v_subrev_u32 v11, 448, v7
v_min_u32 v7, v7, v11
s_waitcnt vmcnt(0)
v_fmac_f32 v5, v4, v9
v_fma_f32 v6, -v4, v10, v6
s_add_u32 s13, s13, 4
s_cmp_lt_u32 s13, 1792
s_cbranch_scc1 1b
v_lshlrev_b32 v1, 3, v0
v_mov_b32 v12, v5
v_mov_b32 v13, v6
buffer_store_dwordx2 v[12:13], v1, s[8:11], s14 offen
''')
def dfts(src, dst, sign, useW):
    bufs = [(4, WS, 2048 * 2048, src), (8, WS, 2048 * 2048, dst)]
    if useW: bufs += [(16, 1, 2048 * 450, 0), (20, 2, 2048 * 450, 0)]
    s = pro(bufs, 2048) + f'''
s_lshl_b32 s14, s2, 11
v_lshlrev_b32 v1, 3, v0
v_mov_b32 v12, 0
v_mov_b32 v13, 0
s_mov_b32 s12, 0
s_mov_b32 s13, 0
1:
buffer_load_dwordx2 v[4:5], v1, s[4:7], s13 offen
v_cvt_f32_u32 v8, s12
v_mul_f32 v8, {f2u(sign/2048)}, v8
v_cos_f32 v9, v8
v_sin_f32 v10, v8
s_add_u32 s12, s12, s2
s_and_b32 s12, s12, 2047
s_waitcnt vmcnt(0)
v_fmac_f32 v12, v4, v9
v_fma_f32 v12, -v5, v10, v12
v_fmac_f32 v13, v4, v10
v_fmac_f32 v13, v5, v9
s_add_u32 s13, s13, 2048
s_cmp_lt_u32 s13, {2048*2048}
s_cbranch_scc1 1b
'''
    if useW:
        s += f'''
s_mul_i32 s15, s2, 450
v_lshlrev_b32 v2, 1, v0
buffer_load_ushort v4, v2, s[16:19], s15 offen
buffer_load_ushort v5, v2, s[20:23], s15 offen
s_waitcnt vmcnt(0)
v_lshlrev_b32 v4, 16, v4
v_lshlrev_b32 v5, 16, v5
v_mul_f32 v6, v12, v4
v_fma_f32 v6, -v13, v5, v6
v_mul_f32 v7, v12, v5
v_fmac_f32 v7, v13, v4
v_mul_f32 v12, {f2u(1/2048)}, v6
v_mul_f32 v13, {f2u(1/2048)}, v7
'''
    s += 'buffer_store_dwordx2 v[12:13], v1, s[8:11], s14 offen\n'
    return (2048, s)
kern['dftsf'] = dfts(X1, X2, -1.0, True)
kern['dftsi'] = dfts(X2, X1, 1.0, False)
def rowthr():
    return '''
s_lshr_b32 s3, s2, 1
s_and_b32 s24, s2, 1
s_lshl_b32 s24, s24, 8
v_add_u32 v0, s24, v0
v_cmp_gt_u32 vcc, 448, v0
s_and_saveexec_b64 s[26:27], vcc
s_cbranch_execz 9f
'''
kern['idftd'] = (4096, pro([(4, WS, 2048 * 2048, X1), (8, WS, N * 4, XR)], 4096) + rowthr() + f'''
s_lshl_b32 s12, s3, 11
v_mov_b32 v1, 0
v_mov_b32 v7, 0
v_mov_b32 v12, 0
s_mov_b32 s13, 0
1:
s_lshl_b32 s15, s13, 3
s_add_u32 s15, s15, s12
buffer_load_dwordx2 v[4:5], v1, s[4:7], s15 offen
v_cvt_f32_u32 v8, v7
v_mul_f32 v8, {f2u(1/448)}, v8
v_cos_f32 v9, v8
v_sin_f32 v10, v8
v_add_u32 v7, v7, v0
v_subrev_u32 v11, 448, v7
v_min_u32 v7, v7, v11
s_mov_b32 s16, {f2u(2/448)}
s_cmp_eq_u32 s13, 0
s_cselect_b32 s16, {f2u(1/448)}, s16
s_cselect_b32 s17, 0, s16
s_cmp_eq_u32 s13, 224
s_cselect_b32 s16, {f2u(1/448)}, s16
s_cselect_b32 s17, 0, s17
v_mul_f32 v9, s16, v9
v_mul_f32 v10, s17, v10
s_waitcnt vmcnt(0)
v_fmac_f32 v12, v4, v9
v_fma_f32 v12, -v5, v10, v12
s_add_u32 s13, s13, 1
s_cmp_lt_u32 s13, 225
s_cbranch_scc1 1b
s_mul_i32 s14, s3, 1792
v_lshlrev_b32 v1, 2, v0
buffer_load_dword v4, v1, s[8:11], s14 offen
s_waitcnt vmcnt(0)
v_add_f32 v4, v4, v12
buffer_store_dword v4, v1, s[8:11], s14 offen
''')
kern['bu'] = (4096, pro([(4, WS, N * 4, U), (8, WS, N * 8, BU), (16, 6, 448 * 896, 0), (20, 7, 448 * 896, 0)], 4096) + rowthr() + f'''
s_mul_i32 s12, s3, 1792
v_mov_b32 v1, 0
v_mul_u32_u24 v2, 896, v0
v_mov_b32 v12, 0
v_mov_b32 v13, 0
s_mov_b32 s13, 0
1:
s_lshl_b32 s15, s13, 1
s_add_u32 s15, s15, s12
buffer_load_dword v4, v1, s[4:7], s15 offen
buffer_load_ushort v5, v2, s[16:19], s13 offen
buffer_load_ushort v6, v2, s[20:23], s13 offen
s_waitcnt vmcnt(0)
v_lshlrev_b32 v5, 16, v5
v_lshlrev_b32 v6, 16, v6
v_fmac_f32 v12, v4, v5
v_fmac_f32 v13, v4, v6
s_add_u32 s13, s13, 2
s_cmp_lt_u32 s13, 896
s_cbranch_scc1 1b
s_mul_i32 s14, s3, 3584
v_lshlrev_b32 v1, 3, v0
buffer_store_dwordx2 v[12:13], v1, s[8:11], s14 offen
''')
kern['scan'] = (2, pro([(8, WS, N * 8, BU), (16, 4, 896, 0), (20, 5, 896, 0), (28, 10, 896, 0)], 2) + rowthr() + f'''
v_lshlrev_b32 v2, 1, v0
buffer_load_ushort v4, v2, s[16:19], 0 offen
buffer_load_ushort v5, v2, s[20:23], 0 offen
buffer_load_ushort v6, v2, s[28:31], 0 offen
s_waitcnt vmcnt(0)
v_lshlrev_b32 v4, 16, v4
v_lshlrev_b32 v5, 16, v5
v_lshlrev_b32 v6, 16, v6
v_mul_f32 v6, {f2u(1.4426950408889634)}, v6
v_exp_f32 v6, v6
s_nop 1
v_cvt_pk_bf16_f32 v6, v6, v6
v_lshlrev_b32 v6, 16, v6
v_mul_f32 v7, v6, v4
v_mul_f32 v7, {f2u(1.4426950408889634)}, v7
v_exp_f32 v7, v7
v_mul_f32 v8, v6, v5
v_mul_f32 v8, {f2u(0.15915494309189535)}, v8
v_fract_f32 v8, v8
v_cos_f32 v9, v8
v_sin_f32 v10, v8
s_nop 1
v_mul_f32 v9, v9, v7
v_mul_f32 v10, v10, v7
; g = (Lb-1)/Lam = (Lb-1)*conj(Lam)/|Lam|^2
v_subrev_f32 v11, 1.0, v9
v_mul_f32 v14, v4, v4
v_fmac_f32 v14, v5, v5
v_rcp_f32 v14, v14
v_mul_f32 v15, v11, v4
v_fmac_f32 v15, v10, v5
v_mul_f32 v16, v10, v4
v_fma_f32 v16, -v11, v5, v16
v_mul_f32 v15, v15, v14
v_mul_f32 v16, v16, v14
v_lshlrev_b32 v1, 3, v0
v_mov_b32 v12, 0
v_mov_b32 v13, 0
s_mov_b32 s13, 0
1:
buffer_load_dwordx2 v[20:21], v1, s[8:11], s13 offen
v_mul_f32 v18, v9, v12
v_fma_f32 v18, -v10, v13, v18
v_mul_f32 v19, v9, v13
v_fmac_f32 v19, v10, v12
s_waitcnt vmcnt(0)
v_fmac_f32 v18, v15, v20
v_fma_f32 v18, -v16, v21, v18
v_fmac_f32 v19, v15, v21
v_fmac_f32 v19, v16, v20
v_mov_b32 v12, v18
v_mov_b32 v13, v19
buffer_store_dwordx2 v[12:13], v1, s[8:11], s13 offen
s_waitcnt vmcnt(0)
s_add_u32 s13, s13, 3584
s_cmp_lt_u32 s13, {N*8}
s_cbranch_scc1 1b
''')
kern['cproj'] = (4096, pro([(4, WS, N * 8, BU), (8, WS, N * 4, XR), (16, 8, 448 * 896, 0), (20, 9, 448 * 896, 0), (28, WS, N * 4, U), (32, 11, 896, 0), (36, OUT, N * 4, 0)], 4096) + rowthr() + f'''
s_mul_i32 s12, s3, 3584
v_mov_b32 v1, 0
v_mul_u32_u24 v2, 896, v0
v_mov_b32 v12, 0
s_mov_b32 s13, 0
1:
s_lshl_b32 s15, s13, 2
s_add_u32 s15, s15, s12
buffer_load_dwordx2 v[4:5], v1, s[4:7], s15 offen
buffer_load_ushort v6, v2, s[16:19], s13 offen
buffer_load_ushort v7, v2, s[20:23], s13 offen
s_waitcnt vmcnt(0)
v_lshlrev_b32 v6, 16, v6
v_lshlrev_b32 v7, 16, v7
v_fmac_f32 v12, v4, v6
v_fma_f32 v12, -v5, v7, v12
s_add_u32 s13, s13, 2
s_cmp_lt_u32 s13, 896
s_cbranch_scc1 1b
s_mul_i32 s14, s3, 1792
v_lshlrev_b32 v1, 2, v0
v_lshlrev_b32 v2, 1, v0
buffer_load_dword v4, v1, s[8:11], s14 offen
buffer_load_dword v5, v1, s[28:31], s14 offen
buffer_load_ushort v6, v2, s[32:35], 0 offen
s_waitcnt vmcnt(0)
v_lshlrev_b32 v6, 16, v6
v_fmac_f32 v4, 2.0, v12
v_fmac_f32 v4, v5, v6
buffer_store_dword v4, v1, s[8:11], s14 offen
v_mul_f32 v4, {f2u(scale)}, v4
buffer_store_dword v4, v1, s[36:39], s14 offen
''')
kern['empty'] = (256, '')
seq = ['cvt'] + ['ln', 'dftd', 'dftsf', 'dftsi', 'idftd', 'ln', 'bu', 'scan', 'cproj'] * 2 + ['empty'] * extra_empty
s = ''
for k in seq: s += f'; @launch kernel={k}_kernel grid=({kern[k][0]},1,1) block=(256,1,1) lds=0\n'
s += '.amdgcn_target "amdgcn-amd-amdhsa--gfx950"\n'
for k in dict.fromkeys(seq):
    s += f'.text\n.globl {k}_kernel\n.p2align 8\n.type {k}_kernel,@function\n{k}_kernel:\n' + kern[k][1] + '9:\ns_endpgm\n'
    s += f'''.section .rodata,"a"
.p2align 6
.amdhsa_kernel {k}_kernel
  .amdhsa_next_free_vgpr 32
  .amdhsa_next_free_sgpr 48
  .amdhsa_accum_offset 32
  .amdhsa_group_segment_fixed_size 0
  .amdhsa_kernarg_size 120
  .amdhsa_user_sgpr_count 2
  .amdhsa_user_sgpr_kernarg_segment_ptr 1
  .amdhsa_system_sgpr_workgroup_id_x 1
  .amdhsa_float_denorm_mode_32 3
.end_amdhsa_kernel
'''
open(outp, 'w').write(s)
```

```python
import re, struct

def f2u(f):
    return '0x%08x' % struct.unpack('<I', struct.pack('<f', f))[0]

def v(i, n=1):
    return 'v%d' % i if n == 1 else 'v[%d:%d]' % (i, i + n - 1)
def a(i, n=1):
    return 'a%d' % i if n == 1 else 'a[%d:%d]' % (i, i + n - 1)
def s(i, n=1):
    return 's%d' % i if n == 1 else 's[%d:%d]' % (i, i + n - 1)

_REG = re.compile(r'^(-|abs\(|\|)?\s*([vas])(?:(\d+)|\[(\d+):(\d+)\])')
TRANS = ('v_exp_f32', 'v_log_f32', 'v_rcp_f32', 'v_rsq_f32', 'v_sqrt_f32', 'v_sin_f32', 'v_cos_f32', 'v_rcp_iflag_f32')

def regs_of(op):
    op = op.strip()
    if op in ('vcc', 'exec', 'm0', 'scc'):
        return {(op, 0)}
    if op in ('vcc_lo', 'vcc_hi'):
        return {('vcc', 0)}
    if op in ('exec_lo', 'exec_hi'):
        return {('exec', 0)}
    m = _REG.match(op)
    if not m:
        return set()
    k = m.group(2)
    if m.group(3) is not None:
        return {(k, int(m.group(3)))}
    return {(k, i) for i in range(int(m.group(4)), int(m.group(5)) + 1)}

def split_ops(rest):
    ops, depth, cur = [], 0, ''
    for ch in rest:
        if ch in '[(':
            depth += 1
        if ch in '])':
            depth -= 1
        if ch == ',' and depth == 0:
            ops.append(cur); cur = ''
        else:
            cur += ch
    if cur.strip():
        ops.append(cur)
    return [o.strip() for o in ops]

class Ins:
    __slots__ = ('text', 'mn', 'wr', 'rd', 'kind', 'srcc', 'passes', 'states', 'dpp', 'wide_store', 'data', 'lanesel')
    def __init__(self, text):
        self.text = text
        t = text.split(';')[0].strip()
        parts = t.split(None, 1)
        mn = parts[0]; self.mn = mn
        rest = parts[1] if len(parts) > 1 else ''
        ops = split_ops(rest)
        mods = ''
        if ops:
            last = ops[-1].split(None, 1)
            ops[-1] = last[0]
            mods = last[1] if len(last) > 1 else ''
        self.wr, self.rd = set(), set()
        self.srcc = set(); self.passes = 0; self.states = 1
        self.dpp = ('_dpp' in mn) or ('row_' in mods) or ('quad_perm' in mods)
        self.wide_store = False; self.data = set(); self.lanesel = set()
        R = [regs_of(o) for o in ops]
        def allr(l):
            r = set()
            for x in l: r |= x
            return r
        if mn == 's_nop':
            self.kind = 'nop'; self.states = int(ops[0], 0) + 1
        elif mn.startswith('v_mfma'):
            self.kind = 'mfma'
            self.wr = R[0]; self.rd = R[1] | R[2] | R[3]; self.srcc = R[3]
            self.passes = 8 if '32x32x16' in mn else 4 if '16x16x32' in mn else 16
        elif mn.startswith('v_cmp'):
            self.kind = 'valu'; self.wr = set(R[0]); self.rd = allr(R[1:])
            if mn.startswith('v_cmpx'): self.wr |= {('exec', 0)}
        elif mn.startswith('v_readfirstlane') or mn.startswith('v_readlane'):
            self.kind = 'valu'; self.wr = R[0]; self.rd = allr(R[1:])
            if len(R) > 2: self.lanesel = R[2]
        elif mn.startswith('v_permlane') and 'swap' in mn:
            self.kind = 'valu'; self.wr = R[0] | R[1]; self.rd = R[0] | R[1]
        elif mn.startswith('v_'):
            self.kind = 'valu'
            if re.match(r'v_(add|sub|subrev|addc|subb)_co_u32', mn) or mn.startswith('v_mad_u64') or mn.startswith('v_div_scale'):
                self.wr = R[0] | R[1]; self.rd = allr(R[2:])
            else:
                self.wr = set(R[0]); self.rd = allr(R[1:])
            if re.match(r'v_(fmac|mac|dot2c|pk_fmac)', mn) or mn.startswith('v_writelane') or self.dpp or 'sdwa' in mn:
                self.rd |= R[0]
            if mn.startswith('v_cndmask') and len(ops) == 3:
                self.rd |= {('vcc', 0)}
        elif mn.startswith('ds_'):
            self.kind = 'ds'
            if mn.startswith('ds_read') or mn.startswith('ds_bpermute') or mn.startswith('ds_permute') or mn.startswith('ds_swizzle'):
                self.wr = R[0]; self.rd = allr(R[1:])
                if 'd16' in mn: self.rd |= R[0]
            else:
                self.rd = allr(R)
        elif mn.startswith('buffer_') or mn.startswith('global_'):
            self.kind = 'vmem'
            islds = re.search(r'\blds\b', mods) is not None or 'load_lds' in mn
            if mn in ('buffer_wbl2', 'buffer_inv'):
                pass
            elif islds:
                self.rd = allr(R) | {('m0', 0)}
            elif 'load' in mn:
                self.wr = R[0]; self.rd = allr(R[1:])
                if 'd16' in mn: self.rd |= R[0]
            else:
                self.rd = allr(R)
                dat = R[0] if mn.startswith('buffer_') else R[1]
                self.data = dat
                if 'x3' in mn or 'x4' in mn: self.wide_store = True
                if 'atomic' in mn and 'sc0' in mods: self.wr = dat
        elif mn.startswith('s_'):
            self.kind = 'salu'
            if mn.startswith('s_cmp') or mn.startswith('s_cbranch') or mn in ('s_branch', 's_waitcnt', 's_barrier', 's_endpgm', 's_sleep', 's_setprio', 's_bitcmp1_b32', 's_bitcmp0_b32'):
                self.rd = allr(R)
            else:
                self.wr = set(R[0]) if R else set(); self.rd = allr(R[1:])
                if 'saveexec' in mn: self.wr |= {('exec', 0)}
        else:
            raise ValueError('unknown instruction: ' + text)

def need(prod, cons):
    n = 0
    vw = {r for r in prod.wr if r[0] in 'va'}
    sw = {r for r in prod.wr if r[0] in ('s', 'vcc')}
    if prod.kind == 'valu':
        if cons.kind == 'mfma' and (vw & cons.rd): n = max(n, 2)
        if cons.kind == 'valu':
            if cons.dpp and (vw & cons.rd): n = max(n, 2)
            if cons.mn.startswith('v_permlane') and (vw & cons.rd): n = max(n, 2)
            if (cons.mn.startswith('v_readfirstlane') or cons.mn.startswith('v_readlane')) and (vw & cons.rd): n = max(n, 1)
            if sw & cons.rd: n = max(n, 2)
            if sw & cons.lanesel: n = max(n, 4)
            if prod.mn.split('_e32')[0].split('_e64')[0] in TRANS and (vw & cons.rd): n = max(n, 1)
            if ('sdwa' in prod.mn or 'op_sel' in prod.text) and (vw & (cons.rd | cons.wr)): n = max(n, 1)
            if ('exec', 0) in prod.wr:
                if cons.dpp: n = max(n, 5)
                if cons.mn.startswith('v_read') or cons.mn.startswith('v_permlane') or cons.mn.startswith('v_writelane'): n = max(n, 4)
        if cons.kind == 'mfma' and ('exec', 0) in prod.wr: n = max(n, 4)
        if cons.kind == 'vmem' and (sw & cons.rd): n = max(n, 5)
        if cons.kind == 'salu' and (sw & cons.rd) and not cons.mn.startswith('s_cbranch'): n = max(n, 1)
        if prod.mn.split('_e32')[0] in TRANS and cons.kind in ('vmem', 'ds', 'mfma') and (vw & cons.rd): n = max(n, 2)
    if prod.kind == 'salu':
        if ('m0', 0) in prod.wr and ('m0', 0) in cons.rd: n = max(n, 1)
    if prod.kind == 'vmem' and prod.wide_store:
        if prod.data & cons.wr: n = max(n, 2 if cons.kind == 'valu' else 1)
    if prod.kind == 'mfma':
        big = {4: 8, 8: 12, 16: 20}[prod.passes]
        if cons.kind == 'mfma':
            ab = cons.rd - cons.srcc
            if prod.wr & ab: n = max(n, big)
            elif prod.wr & cons.srcc:
                if prod.wr == cons.srcc and prod.passes == cons.passes: pass
                else: n = max(n, big - 2)
            elif prod.wr & cons.wr: n = max(n, big)
        else:
            if prod.wr & (cons.rd | cons.wr): n = max(n, big)
        if cons.kind == 'valu' and (prod.srcc & cons.wr):
            n = max(n, {4: 3, 8: 7, 16: 15}[prod.passes])
        if cons.kind in ('vmem', 'ds') and (prod.srcc & cons.wr):
            n = max(n, {4: 3, 8: 7, 16: 15}[prod.passes])
    return n

class Asm:
    def __init__(self):
        self.lines = []
        self.nlabel = 0
    def __call__(self, text):
        for ln in text.split('\n'):
            t = ln.split(';')[0].strip()
            if not t:
                continue
            if t.endswith(':') or t.startswith('.'):
                self.lines.append(('l', t))
            else:
                self.lines.append(('i', Ins(ln.strip())))
    def label(self, base='L'):
        self.nlabel += 1
        return '%s_%d' % (base, self.nlabel)
    def render(self):
        L = self.lines
        labels = {t[1][:-1]: i for i, t in enumerate(L) if t[0] == 'l' and t[1].endswith(':')}
        pads = [0] * (len(L) + 1)
        def walk_back(i, budget, acc, seen):
            dist = 0
            j = i - 1
            dist += pads[i]
            while j >= -1 and dist < budget:
                if j >= 0 and L[j][0] == 'l':
                    if L[j][1].endswith(':'):
                        name = L[j][1][:-1]
                        for b in self._branches.get(name, []):
                            if (b, dist) not in seen:
                                seen.add((b, dist))
                                sub = []
                                walk_back(b, budget - dist - 1, sub, seen)
                                acc.extend((p, d + dist + 1) for p, d in sub)
                    dist += pads[j]
                    j -= 1
                    continue
                if j < 0: break
                ins = L[j][1]
                if ins.mn in ('s_branch', 's_endpgm'):
                    break
                acc.append((ins, dist))
                dist += ins.states + pads[j]
                j -= 1
        self._branches = {}
        for i, t in enumerate(L):
            if t[0] == 'i' and (t[1].mn.startswith('s_cbranch') or t[1].mn == 's_branch'):
                tgt = t[1].text.split(';')[0].split()[1]
                self._branches.setdefault(tgt, []).append(i)
        for _ in range(3):
            changed = False
            for i, t in enumerate(L):
                if t[0] != 'i': continue
                acc = []
                walk_back(i, 21, acc, set())
                short = 0
                for p, d in acc:
                    n = need(p, t[1])
                    if n > d: short = max(short, n - d)
                if short:
                    pads[i] += short; changed = True
            if not changed: break
        out = []
        for i, t in enumerate(L):
            k = pads[i]
            while k > 0:
                m = min(k, 16); out.append('s_nop %d' % (m - 1)); k -= m
            out.append(t[1] if t[0] == 'l' else t[1].text)
        return '\n'.join(out) + '\n'

def kernel_text(name, body, vgpr, agpr=0, sgpr=96):
    acc = (vgpr + 3) // 4 * 4
    nfv = acc + agpr if agpr else vgpr
    return f'''.text
.globl {name}
.p2align 8
.type {name},@function
{name}:
{body}''', f'''.section .rodata,"a"
.p2align 6
.amdhsa_kernel {name}
  .amdhsa_next_free_vgpr {nfv}
  .amdhsa_next_free_sgpr {sgpr}
  .amdhsa_accum_offset {acc}
  .amdhsa_group_segment_fixed_size 0
  .amdhsa_kernarg_size 120
  .amdhsa_user_sgpr_count 2
  .amdhsa_user_sgpr_kernarg_segment_ptr 1
  .amdhsa_system_sgpr_workgroup_id_x 1
  .amdhsa_float_denorm_mode_32 3
.end_amdhsa_kernel
'''
```

```python
import sys, math
sys.path.insert(0, 'dev')
from asmgen import *

S, D = 2048, 448
A_X, A_WR, A_WI, _BX, L_RE, L_IM, B_RE, B_IM, C_RE, C_IM, LOGDT, DSKIP, OUT, DBG, WS = range(15)
MB = 1 << 20
ZC, SSQ, ZB, HB, ZMID, WF = 0, 2 * MB, 3 * MB, 5 * MB, 9 * MB, 13 * MB
WM1, WSK, WC, AGG = 15 * MB, 16 * MB, 17 * MB, 19 * MB
WSK_L = 401408; WC_L = 802816; AGG_L = 32 * 448 * 8
WS_SIZE = 26 * MB
LOG2E = 1.4426950408889634
INV448 = 1.0 / 448

import os
STAMPS = int(os.environ.get('STAMPS', '0'))
STAMP = 24 * MB
def stamp(A, i):
    if STAMPS: A(f's_memrealtime {s(80+2*i,2)}')
def stamp_out(A, kidx, sw):
    if not STAMPS: return
    A(f's_memrealtime {s(94,2)}\ns_waitcnt lgkmcnt(0)')
    for i in range(8): A(f'v_mov_b32 {v(240+i)}, {s(80+2*i)}')
    A(f'''v_lshrrev_b32 v248, 6, v0
v_lshlrev_b32 v248, 5, v248
s_lshl_b32 s80, s2, 7
{('s_add_u32 s80, s80, %d' % (STAMP + kidx * 131072)) if isinstance(kidx, int) else ('s_lshl_b32 s81, %s, 17' % kidx + chr(10) + 's_add_u32 s80, s80, s81' + chr(10) + 's_add_u32 s80, s80, %d' % STAMP)}
buffer_store_dwordx4 v[240:243], v248, {s(sw,4)}, s80 offen
buffer_store_dwordx4 v[244:247], v248, {s(sw,4)}, s80 offen offset:16''')

def srd_ws(A, r, off=None):
    A(f's_mov_b32 {s(r+2)}, {WS_SIZE}\ns_mov_b32 {s(r+3)}, 0x20000')

def srd(A, r, size):
    A(f's_mov_b32 {s(r+2)}, {size}\ns_mov_b32 {s(r+3)}, 0x20000')

def ld_ptr(A, r, slot):
    A(f's_load_dwordx2 {s(r,2)}, s[0:1], {slot*8}')

def div7(A, q, rem, x, tmp):
    A(f's_mul_i32 {s(q)}, {s(x)}, 9363\ns_lshr_b32 {s(q)}, {s(q)}, 16\ns_mul_i32 {s(tmp)}, {s(q)}, 7\ns_sub_u32 {s(rem)}, {s(x)}, {s(tmp)}')

def tile_ids(A, rt, sl, tmp):
    A(f's_lshr_b32 {s(tmp)}, s2, 3')
    div7(A, rt, sl, tmp, tmp + 1)
    A(f's_and_b32 {s(tmp)}, s2, 7\ns_lshl_b32 {s(tmp)}, {s(tmp)}, 2\ns_add_u32 {s(rt)}, {s(rt)}, {s(tmp)}')

def cos_reduced(A, dst, t, ph, amp, tq, sinv, s448):
    A(f'v_mul_f32 {v(tq)}, {s(sinv)}, {v(t)}')
    A(f'v_rndne_f32 {v(tq)}, {v(tq)}')
    A(f'v_fma_f32 {v(tq)}, -{v(tq)}, {s(s448)}, {v(t)}')
    if ph is not None:
        A(f'v_fma_f32 {v(tq)}, {v(tq)}, {s(sinv)}, {v(ph)}')
    else:
        A(f'v_mul_f32 {v(tq)}, {s(sinv)}, {v(tq)}')
    A(f'v_cos_f32 {v(dst)}, {v(tq)}')
    if amp is not None:
        A(f'v_mul_f32 {v(dst)}, {amp}, {v(dst)}')

def gen_q(A, dst, vj, vd0f, dc_amp, ch, tmp, sinv, s448, dreg=None, scale=1.0):
    cf, ph, amp, t, tq, two, c16, u = range(tmp, tmp + 8)
    a2 = scale * math.sqrt(2.0 / 448); a1 = scale * math.sqrt(1.0 / 448)
    A(f'''v_lshrrev_b32 {v(cf)}, 1, {v(vj)}
v_and_b32 {v(ph)}, 1, {v(vj)}
v_cvt_f32_u32 {v(cf)}, {v(cf)}
v_cvt_f32_u32 {v(ph)}, {v(ph)}
v_mul_f32 {v(ph)}, 0x3e800000, {v(ph)}
v_mov_b32 {v(amp)}, {f2u(a2)}
v_mov_b32 {v(t)}, {f2u(224.0)}
v_mov_b32 {v(tq)}, {f2u(a1)}
v_cmp_eq_u32 vcc, 0, {v(vj)}
v_cndmask_b32 {v(cf)}, {v(cf)}, {v(t)}, vcc
v_cndmask_b32 {v(amp)}, {v(amp)}, {v(tq)}, vcc
v_mov_b32 {v(tq)}, {f2u(dc_amp)}
v_cmp_eq_u32 vcc, 1, {v(vj)}
v_cndmask_b32 {v(ph)}, {v(ph)}, 0, vcc
v_cndmask_b32 {v(amp)}, {v(amp)}, {v(tq)}, vcc
v_mul_f32 {v(c16)}, {f2u(16.0)}, {v(cf)}
v_add_f32 {v(t)}, {f2u(96.0)}, {v(vd0f)}
v_mul_f32 {v(t)}, {v(t)}, {v(cf)}''')
    X, Y, W, Z = ch, ch + 8, ch + 16, ch + 24
    cos_reduced(A, two, c16, None, None, tq, sinv, s448)
    A(f'v_add_f32 {v(two)}, {v(two)}, {v(two)}')
    for e in range(8):
        cos_reduced(A, X + e, t, ph, v(amp), tq, sinv, s448)
        A(f'v_add_f32 {v(u)}, {v(t)}, {v(c16)}')
        cos_reduced(A, Y + e, u, ph, v(amp), tq, sinv, s448)
        if e < 7: A(f'v_add_f32 {v(t)}, {v(t)}, {v(cf)}')
    def emit(k, r):
        for e in range(0, 8, 2):
            if dreg is None:
                A(f'v_cvt_pk_bf16_f32 {v(dst+4*k+e//2)}, {v(r+e)}, {v(r+e+1)}')
            else:
                d = dreg + 4 * k + e // 2
                A(f'''v_lshlrev_b32 {v(t)}, 16, {v(d)}
v_and_b32 {v(u)}, 0xffff0000, {v(d)}
v_mul_f32 {v(t)}, {v(t)}, {v(r+e)}
v_mul_f32 {v(u)}, {v(u)}, {v(r+e+1)}
v_cvt_pk_bf16_f32 {v(dst+4*k+e//2)}, {v(t)}, {v(u)}''')
    emit(6, X); emit(7, Y)
    for e in range(8):
        A(f'v_fma_f32 {v(W+e)}, {v(two)}, {v(X+e)}, -{v(Y+e)}')
        A(f'v_fma_f32 {v(Z+e)}, {v(two)}, {v(Y+e)}, -{v(X+e)}')
    emit(5, W); emit(8, Z)
    up = [Y, Z]; dn = [X, W]
    for i in range(5):
        o, c = up[i % 2], up[(i + 1) % 2]
        o2, c2 = dn[i % 2], dn[(i + 1) % 2]
        for e in range(8):
            A(f'v_fma_f32 {v(o+e)}, {v(two)}, {v(c+e)}, -{v(o+e)}')
            A(f'v_fma_f32 {v(o2+e)}, {v(two)}, {v(c2+e)}, -{v(o2+e)}')
        emit(9 + i, o); emit(4 - i, o2)

def lam_calc(A, vre, vim, vdt, lr, li, t0, t1):
    A(f'''v_lshlrev_b32 {v(vre)}, 16, {v(vre)}
v_lshlrev_b32 {v(vim)}, 16, {v(vim)}
v_lshlrev_b32 {v(vdt)}, 16, {v(vdt)}
v_mul_f32 {v(vdt)}, {f2u(LOG2E)}, {v(vdt)}
v_exp_f32 {v(vdt)}, {v(vdt)}
v_cvt_pk_bf16_f32 {v(vdt)}, {v(vdt)}, {v(vdt)}
v_lshlrev_b32 {v(vdt)}, 16, {v(vdt)}
v_mul_f32 {v(t0)}, {v(vdt)}, {v(vre)}
v_mul_f32 {v(t0)}, {f2u(LOG2E)}, {v(t0)}
v_exp_f32 {v(t0)}, {v(t0)}
v_mul_f32 {v(t1)}, {v(vdt)}, {v(vim)}
v_mul_f32 {v(t1)}, {f2u(1/(2*math.pi))}, {v(t1)}
v_fract_f32 {v(t1)}, {v(t1)}
v_cos_f32 {v(lr)}, {v(t1)}
v_sin_f32 {v(li)}, {v(t1)}
v_mul_f32 {v(lr)}, {v(lr)}, {v(t0)}
v_mul_f32 {v(li)}, {v(li)}, {v(t0)}''')

def prefetch_code(A, start, nbytes, vtmp, stmp, dst):
    A(f's_getpc_b64 {s(stmp,2)}')
    A(f's_add_u32 {s(stmp)}, {s(stmp)}, {start}@rel32@lo+4')
    A(f's_addc_u32 {s(stmp+1)}, {s(stmp+1)}, {start}@rel32@hi+12')
    A(f'v_lshlrev_b32 {v(vtmp)}, 4, v0')
    n = (nbytes + 4095) // 4096
    for i in range(n):
        A(f'global_load_dwordx4 {v(dst,4)}, {v(vtmp)}, {s(stmp,2)}')
        if i < n - 1: A(f'v_add_u32 {v(vtmp)}, 4096, {v(vtmp)}')

RED = 65536

def ksplit_reduce(A, T0, T1, vaddr_w, vaddr_r, tmp):
    stamp(A, 4)
    for i, r in enumerate((T0 + 4, T0 + 12, T1 + 4, T1 + 12)):
        A(f'ds_write_b128 {v(vaddr_w)}, {v(r,4)} offset:{i*1024}')
    A('s_waitcnt lgkmcnt(0)\ns_barrier')
    for i in range(4):
        A(f'ds_read_b128 {v(tmp+4*i,4)}, {v(vaddr_r)} offset:{i*1024}')
    for i, r in enumerate((T0, T0 + 8, T1, T1 + 8)):
        A(f's_waitcnt lgkmcnt({3-i})')
        for e in range(4):
            A(f'v_add_f32 {v(r+e)}, {v(r+e)}, {v(tmp+4*i+e)}')
    stamp(A, 5)

def zc_epilogue(A, T0, T1, lane, tmp, s_ws, s_rt, s_sl, s_kh, s_wm, s_t, wave, ssq_lds):
    va, s0, s1, vl, pk = tmp, tmp + 1, tmp + 2, tmp + 3, tmp + 4
    A(f'''v_lshrrev_b32 {v(va)}, 5, {v(lane)}
v_lshlrev_b32 {v(va)}, 14, {v(va)}
v_and_b32 {v(s0)}, 31, {v(lane)}
v_lshl_add_u32 {v(va)}, {v(s0)}, 2, {v(va)}
s_lshl_b32 {s(s_t)}, {s(s_sl)}, 5
s_lshl_b32 {s(s_t+1)}, {s(s_wm)}, 4
s_add_u32 {s(s_t)}, {s(s_t)}, {s(s_t+1)}
s_lshl_b32 {s(s_t+1)}, {s(s_kh)}, 2
s_add_u32 {s(s_t)}, {s(s_t)}, {s(s_t+1)}
s_lshl_b32 {s(s_t)}, {s(s_t)}, 13
s_lshl_b32 {s(s_t+1)}, {s(s_rt)}, 8
s_add_u32 {s(s_t)}, {s(s_t)}, {s(s_t+1)}
s_add_u32 {s(s_t)}, {s(s_t)}, {ZC}
s_add_u32 {s(s_t+1)}, {s(s_t)}, 8192
s_add_u32 {s(s_t+2)}, {s(s_t)}, {8*8192}
s_add_u32 {s(s_t+3)}, {s(s_t)}, {9*8192}''')
    k = 0
    for nt, T in enumerate((T0, T1)):
        for qi, q in enumerate((0, 2)):
            for ip in range(2):
                r = T + 4 * q + 2 * ip
                A(f'v_cvt_pk_bf16_f32 {v(pk+k)}, {v(r)}, {v(r+1)}')
                A(f'buffer_store_dword {v(pk+k)}, {v(va)}, {s(s_ws,4)}, {s(s_t+2*qi+ip)} offen offset:{nt*128}')
                k += 1
    lab = A.label('nodc')
    A(f'''s_or_b32 {s(s_t+4)}, {s(s_sl)}, {s(wave)}
s_cmp_lg_u32 {s(s_t+4)}, 0
s_cbranch_scc1 {lab}
v_cmp_gt_u32 vcc, 32, {v(lane)}
v_cndmask_b32 {v(T0+1)}, {v(T0+1)}, 0, vcc
v_cndmask_b32 {v(T1+1)}, {v(T1+1)}, 0, vcc
{lab}:''')
    for sreg, T in ((s0, T0), (s1, T1)):
        A(f'v_mul_f32 {v(sreg)}, {v(T)}, {v(T)}')
    for r in (1, 2, 3, 8, 9, 10, 11):
        for sreg, T in ((s0, T0), (s1, T1)):
            A(f'v_fmac_f32 {v(sreg)}, {v(T+r)}, {v(T+r)}')
    A(f'''v_permlane32_swap_b32 {v(s0)}, {v(s1)}
v_add_f32 {v(s0)}, {v(s0)}, {v(s1)}
v_lshlrev_b32 {v(vl)}, 2, {v(lane)}
s_lshl_b32 {s(s_t+4)}, {s(wave)}, 8
v_add_u32 {v(s1)}, {s(s_t+4)}, {v(vl)}
ds_write_b32 {v(s1)}, {v(s0)} offset:{ssq_lds}
s_waitcnt lgkmcnt(0)
s_barrier
s_cmp_lg_u32 {s(wave)}, 0
s_cbranch_scc1 L_end
ds_read2st64_b32 {v(pk,2)}, {v(vl)} offset0:{ssq_lds//256} offset1:{ssq_lds//256+1}
ds_read2st64_b32 {v(pk+2,2)}, {v(vl)} offset0:{ssq_lds//256+2} offset1:{ssq_lds//256+3}
s_lshl_b32 {s(s_t)}, {s(s_sl)}, 13
s_lshl_b32 {s(s_t+1)}, {s(s_rt)}, 8
s_add_u32 {s(s_t)}, {s(s_t)}, {s(s_t+1)}
s_add_u32 {s(s_t)}, {s(s_t)}, {SSQ}
s_waitcnt lgkmcnt(0)
v_add_f32 {v(pk)}, {v(pk)}, {v(pk+1)}
v_add_f32 {v(pk+2)}, {v(pk+2)}, {v(pk+3)}
v_add_f32 {v(pk)}, {v(pk)}, {v(pk+2)}
buffer_store_dword {v(pk)}, {v(vl)}, {s(s_ws,4)}, {s(s_t)} offen''')

def k0():
    A = Asm()
    lane = 1
    QA, T0, T1, BF, B0, CH, TM = 16, 72, 88, 104, 160, 216, 248
    sW = 4
    sI = 8
    sI2 = 12
    wave, kh, wm, rt, sl = 20, 21, 22, 23, 24
    sinv, s448 = 25, 26
    st = 28
    stamp(A, 0)
    prefetch_code(A, 'k0_kernel', K0_BYTES, 2, 40, 72)
    ld_ptr(A, sW, WS)
    A(f'''v_and_b32 {v(lane)}, 63, v0
v_lshrrev_b32 v2, 6, v0
v_readfirstlane_b32 {s(wave)}, v2
s_and_b32 {s(kh)}, {s(wave)}, 1
s_lshr_b32 {s(wm)}, {s(wave)}, 1
s_mov_b32 {s(sinv)}, {f2u(INV448)}
s_mov_b32 {s(s448)}, {f2u(448.0)}
s_cmp_lt_u32 s2, 224
s_cbranch_scc1 R_x
s_cmp_lt_u32 s2, 256
s_cbranch_scc1 R_wt
s_cmp_lt_u32 s2, 354
s_cbranch_scc1 R_m1
s_cmp_lt_u32 s2, 452
s_cbranch_scc1 R_m2b
s_cmp_lt_u32 s2, 501
s_cbranch_scc1 R_m2a
s_endpgm''')

    def stage_rows(rowbase_s):
        A(f's_lshl_b32 {s(st)}, {s(wave)}, 14\ns_mov_b32 m0, {s(st)}\nv_lshlrev_b32 v2, 4, {v(lane)}')
        for r in range(16):
            if r: A(f'v_xor_b32 v3, {16*r}, v2')
            A(f'buffer_load_dwordx4 {v(3 if r else 2)}, {s(sI,4)}, {s(rowbase_s)} offen lds')
            if r < 15: A(f's_add_u32 m0, m0, 1024\ns_add_u32 {s(rowbase_s)}, {s(rowbase_s)}, 896')

    def q_setup(xor8):
        A(f'''v_and_b32 v4, 31, {v(lane)}
s_lshl_b32 {s(st)}, {s(sl)}, 6
s_lshl_b32 {s(st+1)}, {s(wm)}, 5
s_add_u32 {s(st)}, {s(st)}, {s(st+1)}''')
        if xor8:
            A(f's_lshl_b32 {s(st+1)}, {s(kh)}, 3\nv_xor_b32 v4, {s(st+1)}, v4')
        A(f'''v_add_u32 v4, {s(st)}, v4
v_lshrrev_b32 v5, 5, {v(lane)}
v_lshlrev_b32 v5, 3, v5
s_mul_i32 {s(st)}, {s(kh)}, 224
v_add_u32 v5, {s(st)}, v5
v_cvt_f32_u32 v5, v5''')

    def red_addr():
        A(f'''s_lshl_b32 {s(st)}, {s(wave)}, 12
s_add_u32 {s(st)}, {s(st)}, {RED}
s_xor_b32 {s(st+1)}, {s(st)}, 4096
v_lshlrev_b32 v7, 4, {v(lane)}
v_add_u32 v6, {s(st)}, v7
v_add_u32 v7, {s(st+1)}, v7''')

    def gemm_rows():
        A(f'''v_and_b32 v8, 31, {v(lane)}
v_lshrrev_b32 v9, 5, {v(lane)}
v_and_b32 v10, 15, {v(lane)}
v_xor_b32 v9, v9, v10
v_lshlrev_b32 v9, 4, v9
v_lshl_add_u32 v8, v8, 10, v9
s_mul_i32 {s(st)}, {s(kh)}, 448''')
        stamp(A, 2)
        A('s_waitcnt vmcnt(0)\ns_barrier')
        stamp(A, 3)
        def rd(k):
            b = BF + 8 * (k % 4)
            A(f'v_xor_b32 v9, {s(st)}, v8\ns_add_u32 {s(st)}, {s(st)}, 32')
            A(f'ds_read_b128 {v(b,4)}, v9\nds_read_b128 {v(b+4,4)}, v9 offset:32768')
        for k in range(3): rd(k)
        for k in range(14):
            if k + 3 < 14: rd(k + 3)
            out = min(3, 13 - k)
            A(f's_waitcnt lgkmcnt({2*out})')
            b = BF + 8 * (k % 4)
            c0 = v(T0, 16) if k else '0'; c1 = v(T1, 16) if k else '0'
            A(f'v_mfma_f32_32x32x16_bf16 {v(T0,16)}, {v(QA+4*k,4)}, {v(b,4)}, {c0}')
            A(f'v_mfma_f32_32x32x16_bf16 {v(T1,16)}, {v(QA+4*k,4)}, {v(b+4,4)}, {c1}')

    A('R_x:')
    ld_ptr(A, sI, A_X)
    tile_ids(A, rt, sl, st)
    A(f's_lshl_b32 {s(st+2)}, {s(rt)}, 2\ns_add_u32 {s(st+2)}, {s(st+2)}, {s(wave)}\ns_mul_i32 {s(st+2)}, {s(st+2)}, {16*896}')
    A('s_waitcnt lgkmcnt(0)')
    srd(A, sI, S * D * 2); srd_ws(A, sW); stamp(A, 1)
    stage_rows(st + 2)
    q_setup(True); red_addr()
    gen_q(A, QA, 4, 5, math.sqrt(1.0 / 448), CH, TM, sinv, s448)
    gemm_rows()
    ksplit_reduce(A, T0, T1, 6, 7, BF)
    zc_epilogue(A, T0, T1, lane, BF + 16, sW, rt, sl, kh, wm, st, wave, 0)
    A('s_branch L_end')

    A('R_m1:')
    pb = rt
    ld_ptr(A, sI, B_RE); ld_ptr(A, sI2, B_IM)
    ld_ptr(A, 40, L_RE); ld_ptr(A, 44, L_IM); ld_ptr(A, 48, LOGDT)
    A(f's_sub_u32 {s(st+2)}, s2, 256')
    div7(A, pb, sl, st + 2, st)
    A(f'''s_lshl_b32 {s(st+2)}, {s(pb)}, 1
s_add_u32 {s(st+2)}, {s(st+2)}, {s(kh)}
s_mul_i32 {s(st+2)}, {s(st+2)}, {16*896}
s_waitcnt lgkmcnt(0)
s_cmp_eq_u32 {s(wm)}, 0
s_cselect_b32 {s(sI)}, {s(sI)}, {s(sI2)}
s_cselect_b32 {s(sI+1)}, {s(sI+1)}, {s(sI2+1)}''')
    srd(A, sI, D * D * 2); srd_ws(A, sW); stamp(A, 1)
    for r in (40, 44, 48): srd(A, r, D * 2)
    stage_rows(st + 2)
    A(f'''v_and_b32 v11, 31, {v(lane)}
v_lshlrev_b32 v11, 1, v11
s_lshl_b32 {s(st+2)}, {s(pb)}, 6
buffer_load_ushort v12, v11, s[40:43], {s(st+2)} offen
buffer_load_ushort v13, v11, s[44:47], {s(st+2)} offen
buffer_load_ushort v14, v11, s[48:51], {s(st+2)} offen''')
    q_setup(True); red_addr()
    gen_q(A, QA, 4, 5, 0.0, CH, TM, sinv, s448)
    gemm_rows()
    lr, li, t0, t1, gr, gi = CH, CH + 1, CH + 2, CH + 3, CH + 4, CH + 5
    lam_calc(A, 12, 13, 14, lr, li, t0, t1)
    A(f'''v_subrev_f32 {v(lr)}, 1.0, {v(lr)}
v_mul_f32 {v(t0)}, v12, v12
v_fmac_f32 {v(t0)}, v13, v13
v_rcp_f32 {v(t0)}, {v(t0)}
v_mul_f32 {v(gr)}, {v(lr)}, v12
v_fmac_f32 {v(gr)}, {v(li)}, v13
v_mul_f32 {v(gi)}, {v(li)}, v12
v_fma_f32 {v(gi)}, -{v(lr)}, v13, {v(gi)}
v_mul_f32 {v(gr)}, {v(gr)}, {v(t0)}
v_mul_f32 {v(gi)}, {v(gi)}, {v(t0)}''')
    ksplit_reduce(A, T0, T1, 6, 7, BF)
    o = BF + 16
    for i, r in enumerate((0, 1, 2, 3, 8, 9, 10, 11)):
        A(f'''v_mul_f32 {v(o+i)}, {v(gr)}, {v(T0+r)}
v_mul_f32 {v(o+8+i)}, {v(gr)}, {v(T1+r)}
v_fma_f32 {v(o+i)}, -{v(gi)}, {v(T1+r)}, {v(o+i)}
v_fmac_f32 {v(o+8+i)}, {v(gi)}, {v(T0+r)}''')
    for i in range(8):
        A(f'v_cvt_pk_bf16_f32 {v(BF+i)}, {v(o+2*i)}, {v(o+2*i+1)}')
    A(f'''v_bfe_u32 v8, {v(lane)}, 4, 1
v_mul_u32_u24 v8, {28*1024}, v8
v_lshrrev_b32 v9, 5, {v(lane)}
v_lshl_add_u32 v8, v9, 8, v8
v_and_b32 v9, 15, {v(lane)}
v_lshl_add_u32 v8, v9, 4, v8
s_mul_i32 {s(st)}, {s(pb)}, 28
s_lshl_b32 {s(st+1)}, {s(sl)}, 1
s_add_u32 {s(st)}, {s(st)}, {s(st+1)}
s_add_u32 {s(st)}, {s(st)}, {s(wm)}
s_lshl_b32 {s(st)}, {s(st)}, 11
s_lshl_b32 {s(st+1)}, {s(kh)}, 9
s_add_u32 {s(st)}, {s(st)}, {s(st+1)}
s_add_u32 {s(st)}, {s(st)}, {WM1}
buffer_store_dwordx4 {v(BF,4)}, v8, {s(sW,4)}, {s(st)} offen
buffer_store_dwordx4 {v(BF+4,4)}, v8, {s(sW,4)}, {s(st)} offen offset:1024
s_branch L_end''')

    A('R_m2b:')
    arr, pblk = 27, rt
    ld_ptr(A, sI, C_RE); ld_ptr(A, sI2, C_IM)
    A(f's_sub_u32 {s(st+2)}, s2, 354')
    div7(A, st + 3, sl, st + 2, st)
    A(f'''s_cmp_ge_u32 {s(st+3)}, 7
s_cselect_b32 {s(arr)}, 1, 0
s_mul_i32 {s(st)}, {s(arr)}, 7
s_sub_u32 {s(pblk)}, {s(st+3)}, {s(st)}
s_mul_i32 {s(st+2)}, {s(wave)}, {14*7168}
s_lshl_b32 {s(st)}, {s(pblk)}, 7
s_add_u32 {s(st+2)}, {s(st+2)}, {s(st)}
v_lshrrev_b32 v2, 3, {v(lane)}
v_mul_u32_u24 v2, 896, v2
v_and_b32 v3, 7, {v(lane)}
v_bfe_u32 v4, {v(lane)}, 4, 1
v_lshlrev_b32 v4, 2, v4
v_xor_b32 v3, v3, v4
v_lshl_add_u32 v2, v3, 4, v2
s_mul_i32 {s(st)}, {s(wave)}, {14*1024}
s_mov_b32 m0, {s(st)}
s_waitcnt lgkmcnt(0)
s_cmp_eq_u32 {s(arr)}, 0
s_cselect_b32 {s(sI)}, {s(sI)}, {s(sI2)}
s_cselect_b32 {s(sI+1)}, {s(sI+1)}, {s(sI2+1)}''')
    srd(A, sI, D * D * 2); srd_ws(A, sW); stamp(A, 1)
    for i in range(14):
        A(f'buffer_load_dwordx4 v2, {s(sI,4)}, {s(st+2)} offen lds')
        if i < 13: A(f's_add_u32 m0, m0, 1024\ns_add_u32 {s(st+2)}, {s(st+2)}, 7168')
    q_setup(False); red_addr()
    gen_q(A, QA, 4, 5, math.sqrt(1.0 / 448), CH, TM, sinv, s448)
    A(f'''v_bfe_u32 v8, {v(lane)}, 2, 2
v_lshrrev_b32 v9, 5, {v(lane)}
v_lshl_add_u32 v9, v9, 3, v8
v_lshlrev_b32 v9, 7, v9
v_lshrrev_b32 v8, 1, v8
v_lshl_add_u32 v9, v8, 6, v9
v_bfe_u32 v8, {v(lane)}, 1, 1
v_xor_b32 v8, {s(kh)}, v8
v_lshl_add_u32 v9, v8, 5, v9
v_bfe_u32 v8, {v(lane)}, 4, 1
v_lshl_add_u32 v9, v8, 4, v9
v_and_b32 v8, 1, {v(lane)}
v_lshl_add_u32 v9, v8, 3, v9
s_mul_i32 {s(st)}, {s(kh)}, {224*128}
v_add_u32 v8, {s(st)}, v9
v_xor_b32 v9, 64, v8''')
    stamp(A, 2)
    A('s_waitcnt vmcnt(0)\ns_barrier')
    stamp(A, 3)
    def rd2(k):
        b = BF + 8 * (k % 4)
        for mt in range(2):
            for hf in range(2):
                A(f'ds_read_b64_tr_b16 {v(b+4*mt+2*hf,2)}, {v(8+mt)} offset:{k*2048+hf*512}')
    for k in range(3): rd2(k)
    for k in range(14):
        if k + 3 < 14: rd2(k + 3)
        A(f's_waitcnt lgkmcnt({4*min(3, 13-k)})')
        b = BF + 8 * (k % 4)
        c0 = v(T0, 16) if k else '0'; c1 = v(T1, 16) if k else '0'
        A(f'v_mfma_f32_32x32x16_bf16 {v(T0,16)}, {v(b,4)}, {v(QA+4*k,4)}, {c0}')
        A(f'v_mfma_f32_32x32x16_bf16 {v(T1,16)}, {v(b+4,4)}, {v(QA+4*k,4)}, {c1}')
    ksplit_reduce(A, T0, T1, 6, 7, BF)
    for mt, T in enumerate((T0, T1)):
        for i, r in enumerate((0, 2, 8, 10)):
            A(f'v_cvt_pk_bf16_f32 {v(BF+16+4*mt+i)}, {v(T+r)}, {v(T+r+1)}')
    A(f'''v_lshlrev_b32 v8, 4, {v(lane)}
s_lshl_b32 {s(st)}, {s(sl)}, 1
s_add_u32 {s(st)}, {s(st)}, {s(arr)}
s_lshl_b32 {s(st)}, {s(st)}, 1
s_add_u32 {s(st)}, {s(st)}, {s(wm)}
s_mul_i32 {s(st)}, {s(st)}, 28
s_lshl_b32 {s(st+1)}, {s(pblk)}, 2
s_add_u32 {s(st)}, {s(st)}, {s(st+1)}
s_add_u32 {s(st)}, {s(st)}, {s(kh)}
s_lshl_b32 {s(st)}, {s(st)}, 10
s_add_u32 {s(st)}, {s(st)}, {WC}
buffer_store_dwordx4 {v(BF+16,4)}, v8, {s(sW,4)}, {s(st)} offen
buffer_store_dwordx4 {v(BF+20,4)}, v8, {s(sW,4)}, {s(st)} offen offset:2048
s_branch L_end''')

    A('R_m2a:')
    sp = rt
    ld_ptr(A, sI, DSKIP)
    A(f's_sub_u32 {s(st+2)}, s2, 452')
    div7(A, sp, sl, st + 2, st)
    A(f'''v_lshrrev_b32 v2, 5, {v(lane)}
v_lshlrev_b32 v2, 4, v2
s_mul_i32 {s(st+2)}, {s(kh)}, 448
s_waitcnt lgkmcnt(0)''')
    srd(A, sI, D * 2); srd_ws(A, sW); stamp(A, 1)
    for k in range(14):
        A(f'buffer_load_dwordx4 {v(BF+4*k,4)}, v2, {s(sI,4)}, {s(st+2)} offen offset:{32*k}')
    q_setup(True); red_addr()
    A(f'v_and_b32 v10, 31, {v(lane)}\ns_lshl_b32 {s(st)}, {s(sp)}, 6\nv_add_u32 v10, {s(st)}, v10')
    gen_q(A, B0, 10, 5, math.sqrt(1.0 / 448), CH, TM, sinv, s448)
    A('s_waitcnt vmcnt(0)')
    gen_q(A, QA, 4, 5, 0.0, CH, TM, sinv, s448, dreg=BF, scale=0.5)
    A('v_add_u32 v10, 32, v10')
    gen_q(A, BF, 10, 5, math.sqrt(1.0 / 448), CH, TM, sinv, s448)
    for k in range(14):
        c0 = v(T0, 16) if k else '0'; c1 = v(T1, 16) if k else '0'
        A(f'v_mfma_f32_32x32x16_bf16 {v(T0,16)}, {v(QA+4*k,4)}, {v(B0+4*k,4)}, {c0}')
        A(f'v_mfma_f32_32x32x16_bf16 {v(T1,16)}, {v(QA+4*k,4)}, {v(BF+4*k,4)}, {c1}')
    ksplit_reduce(A, T0, T1, 6, 7, B0)
    for nt, T in enumerate((T0, T1)):
        for i, r in enumerate((0, 2, 8, 10)):
            A(f'v_cvt_pk_bf16_f32 {v(B0+16+4*nt+i)}, {v(T+r)}, {v(T+r+1)}')
    A(f'''v_bfe_u32 v8, {v(lane)}, 4, 1
v_mul_u32_u24 v8, {14*1024}, v8
v_lshrrev_b32 v9, 5, {v(lane)}
v_lshl_add_u32 v8, v9, 8, v8
v_and_b32 v9, 15, {v(lane)}
v_lshl_add_u32 v8, v9, 4, v8
s_mul_i32 {s(st)}, {s(sp)}, 56
s_lshl_b32 {s(st+1)}, {s(sl)}, 1
s_add_u32 {s(st)}, {s(st)}, {s(st+1)}
s_add_u32 {s(st)}, {s(st)}, {s(wm)}
s_lshl_b32 {s(st)}, {s(st)}, 10
s_lshl_b32 {s(st+1)}, {s(kh)}, 9
s_add_u32 {s(st)}, {s(st)}, {s(st+1)}
s_add_u32 {s(st)}, {s(st)}, {WSK}
s_add_u32 {s(st+1)}, {s(st)}, {28*1024}
buffer_store_dwordx4 {v(B0+16,4)}, v8, {s(sW,4)}, {s(st)} offen
buffer_store_dwordx4 {v(B0+20,4)}, v8, {s(sW,4)}, {s(st+1)} offen
s_branch L_end''')

    A('R_wt:')
    ld_ptr(A, sI, A_WR); ld_ptr(A, sI2, A_WI)
    prefetch_code(A, 'k1_kernel', REST_BYTES, 2, 40, 72)
    arr, w4, g = 27, rt, sl
    A(f'''s_sub_u32 {s(st)}, s2, 224
s_and_b32 {s(arr)}, {s(st)}, 1
s_lshr_b32 {s(w4)}, {s(st)}, 1
s_and_b32 {s(w4)}, {s(w4)}, 3
s_lshr_b32 {s(g)}, {s(st)}, 3
s_lshl_b32 {s(st)}, {s(g)}, 3
s_lshl_b32 {s(st+1)}, {s(wave)}, 1
s_add_u32 {s(st)}, {s(st)}, {s(st+1)}
s_lshl_b32 {s(st)}, {s(st)}, 2
s_add_u32 {s(st)}, {s(st)}, {s(w4)}
s_mul_i32 {s(st+2)}, {s(st)}, 7200
s_lshl_b32 {s(st)}, {s(wave)}, 14
s_mov_b32 m0, {s(st)}
v_lshlrev_b32 v2, 4, {v(lane)}
s_waitcnt lgkmcnt(0)
s_cmp_eq_u32 {s(arr)}, 0
s_cselect_b32 {s(sI)}, {s(sI)}, {s(sI2)}
s_cselect_b32 {s(sI+1)}, {s(sI+1)}, {s(sI2+1)}''')
    srd(A, sI, S * 450); srd_ws(A, sW); stamp(A, 1)
    for e in range(2):
        for hb in range(2):
            for i in range(4):
                A(f'buffer_load_dwordx4 v2, {s(sI,4)}, {s(st+2)} offen offset:{i*1024} lds')
            if not (e == 1 and hb == 1):
                A(f's_add_u32 m0, m0, 4096\ns_add_u32 {s(st+2)}, {s(st+2)}, {4096 if hb == 0 else 4*7200-4096}')
    A(f'''v_and_b32 v3, 15, {v(lane)}
v_mul_u32_u24 v4, 450, v3
v_lshrrev_b32 v5, 4, v0
v_lshl_add_u32 v4, v5, 1, v4
v_add_u32 v6, 448, v4
v_cmp_eq_u32 vcc, 0, v5
v_cndmask_b32 v6, v4, v6, vcc
v_lshlrev_b32 v5, 13, v5
v_lshl_add_u32 v5, v3, 4, v5
s_lshl_b32 {s(st)}, {s(w4)}, 1
s_add_u32 {s(st)}, {s(st)}, {s(arr)}
s_lshl_b32 {s(st)}, {s(st)}, 10
s_lshl_b32 {s(st+1)}, {s(g)}, 8
s_add_u32 {s(st)}, {s(st)}, {s(st+1)}
s_add_u32 {s(st)}, {s(st)}, {WF}''')
    stamp(A, 2)
    A('s_waitcnt vmcnt(0)\ns_barrier')
    stamp(A, 3)
    def wt_fin(it):
        b = 16 + 8 * (it % 2)
        o = 32 + 4 * it
        for i in range(4):
            A(f'v_or_b32 {v(o+i)}, {v(b+2*i)}, {v(b+2*i+1)}')
        A(f'buffer_store_dwordx4 {v(o,4)}, v5, {s(sW,4)}, {s(st)} offen\ns_add_u32 {s(st)}, {s(st)}, {16*8192}')
    for it in range(14):
        b = 16 + 8 * (it % 2)
        for e in range(8):
            A(f'ds_read_u16{"_d16_hi" if e & 1 else ""} {v(b+e)}, {v(6 if it == 0 else 4)} offset:{e*8192+it*32}')
        if it >= 1:
            A('s_waitcnt lgkmcnt(8)')
            wt_fin(it - 1)
    A('s_waitcnt lgkmcnt(0)')
    wt_fin(13)
    A('L_end:')
    stamp_out(A, 0, sW)
    A('s_endpgm')
    return A.render().replace('L_end', 'k0_end')

K0_BYTES = 24576
REST_BYTES = 28672

def build(kernels, launches):
    out = ''
    for k, g, lds in launches:
        out += f'; @launch kernel={k}_kernel grid=({g},1,1) block=(256,1,1) lds={lds}\n'
    out += '.amdgcn_target "amdgcn-amd-amdhsa--gfx950"\n'
    descs = ''
    for name, body, vg, ag in kernels:
        t, d = kernel_text(name + '_kernel', body, vg, ag)
        if body is not None: out += t
        else: out += f'.globl {name}_kernel\n.type {name}_kernel,@function\n'
        descs += d
    out += '.text\n.p2align 8\ncode_end:\n.fill 2048, 4, 0xbf800000\n' + descs
    return out

if __name__ == '__main__':
    import gen_rest
    gen_rest.main()
```

```python
import sys
sys.path.insert(0, 'dev')
from gen import *
import gen

def wave_id(A, lane, wave):
    A(f'''v_and_b32 {v(lane)}, 63, v0
v_lshrrev_b32 v2, 6, v0
v_readfirstlane_b32 {s(wave)}, v2''')

def cmul(A, dr, di, ar, ai, br, bi):
    A(f'''v_mul_f32 {v(dr)}, {v(ar)}, {v(br)}
v_mul_f32 {v(di)}, {v(ar)}, {v(bi)}
v_fma_f32 {v(dr)}, -{v(ai)}, {v(bi)}, {v(dr)}
v_fmac_f32 {v(di)}, {v(ai)}, {v(br)}''')

def cfma(A, dr, di, ar, ai, br, bi):
    A(f'''v_fmac_f32 {v(dr)}, {v(ar)}, {v(br)}
v_fmac_f32 {v(di)}, {v(ar)}, {v(bi)}
v_fma_f32 {v(dr)}, -{v(ai)}, {v(bi)}, {v(dr)}
v_fmac_f32 {v(di)}, {v(ai)}, {v(br)}''')

def kcol():
    A = Asm()
    lane, l15, g = 1, 3, 4
    sW, wave, st, sim, kidx = 4, 20, 28, 21, 22
    ZI, SQ, WW = 8, 16, 72
    C64, S64, N64, C32, S32, N32, TC, TS = 80, 88, 96, 104, 112, 120, 128, 136
    ZR, ZM = 144, 152
    XA = 16
    DR, DI = 48, 56
    BR, BI = 64, 68
    T = 160
    A('s_mov_b32 s22, 1\ns_cmp_ge_u32 s2, 224\ns_cbranch_scc1 K1_aux\ns_branch K1_col')
    A('.p2align 8\nk4_kernel:\ns_mov_b32 s22, 4\ns_cmp_ge_u32 s2, 224\ns_cbranch_scc1 K1_exit')
    A('K1_col:')
    stamp(A, 0)
    ld_ptr(A, sW, WS)
    wave_id(A, lane, wave)
    A(f'''v_and_b32 {v(l15)}, 15, {v(lane)}
v_lshrrev_b32 {v(g)}, 4, {v(lane)}
v_lshlrev_b32 v5, 7, {v(l15)}
v_lshl_add_u32 v5, {v(g)}, 4, v5
s_lshl_b32 {s(st)}, {s(wave)}, 11
v_add_u32 v5, {s(st)}, v5
v_lshlrev_b32 v6, 4, {v(lane)}
v_add_u32 v6, {s(st)}, v6
s_lshl_b32 {s(st+1)}, s2, 13
s_add_u32 {s(st+2)}, {s(st+1)}, {WF}
s_cmp_eq_u32 s2, 0
s_cselect_b32 {s(sim)}, 0, 1.0''')
    nf, ang, dl = T, T + 1, T + 2
    A(f'''s_lshl_b32 {s(st)}, {s(wave)}, 4
v_add_u32 v7, {s(st)}, {v(l15)}
v_cvt_f32_u32 {v(nf)}, v7
v_cvt_f32_u32 {v(T+3)}, {v(g)}''')
    gf = T + 3
    A(f'''v_mul_f32 {v(dl)}, {f2u(1/64)}, {v(nf)}
v_mul_f32 {v(ang)}, 4.0, {v(gf)}
v_mul_f32 {v(ang)}, {v(ang)}, {v(dl)}
v_mul_f32 {v(T+4)}, {f2u(13.0)}, {v(dl)}''')
    cs = T + 8
    for e in range(8):
        A(f'v_cos_f32 {v(cs+e)}, {v(ang)}\nv_sin_f32 {v(cs+8+e)}, {v(ang)}')
        if e < 7: A(f'v_add_f32 {v(ang)}, {v(ang)}, {v(T+4 if e == 3 else dl)}')
    A('s_waitcnt lgkmcnt(0)')
    srd_ws(A, sW)
    stamp(A, 1)
    A(f'buffer_load_dwordx4 {v(ZI,4)}, v5, {s(sW,4)}, {s(st+1)} offen')
    A(f'buffer_load_dwordx4 {v(ZI+4,4)}, v5, {s(sW,4)}, {s(st+1)} offen offset:64')
    for p in range(7):
        A(f's_mov_b32 {s(st)}, {SSQ + p*8192}')
        A(f'buffer_load_dwordx4 {v(SQ+8*p,4)}, v5, {s(sW,4)}, {s(st)} offen')
        A(f'buffer_load_dwordx4 {v(SQ+8*p+4,4)}, v5, {s(sW,4)}, {s(st)} offen offset:64')
    A(f'buffer_load_dwordx4 {v(WW,4)}, v6, {s(sW,4)}, {s(st+2)} offen')
    A(f'buffer_load_dwordx4 {v(WW+4,4)}, v6, {s(sW,4)}, {s(st+2)} offen offset:1024')
    A(f'v_and_b32 v7, 1, v7\nv_lshlrev_b32 v7, 15, v7\nv_lshl_or_b32 v7, v7, 16, v7\ns_mov_b32 {s(st)}, 0x80008000')
    for i in range(4):
        A(f'v_cvt_pk_bf16_f32 {v(C64+i)}, {v(cs+2*i)}, {v(cs+2*i+1)}')
        A(f'v_cvt_pk_bf16_f32 {v(S64+i)}, {v(cs+8+2*i)}, {v(cs+9+2*i)}')
    for i in range(4):
        A(f'v_xor_b32 {v(C64+4+i)}, v7, {v(C64+i)}\nv_xor_b32 {v(S64+4+i)}, v7, {v(S64+i)}')
    for i in range(8):
        A(f'v_xor_b32 {v(N64+i)}, {s(st)}, {v(S64+i)}')
    for mu in range(2):
        A(f'''v_lshrrev_b32 v7, 2, {v(l15)}
v_lshlrev_b32 v7, 3, v7
v_and_or_b32 v7, {v(l15)}, 3, v7
v_add_u32 v7, {4*mu}, v7
v_cvt_f32_u32 {v(dl)}, v7
v_mul_f32 {v(dl)}, {f2u(1/32)}, {v(dl)}
v_mul_f32 {v(ang)}, {f2u(8.0)}, {v(gf)}
v_mul_f32 {v(ang)}, {v(ang)}, {v(dl)}''')
        for e in range(8):
            A(f'v_cos_f32 {v(cs+e)}, {v(ang)}\nv_sin_f32 {v(cs+8+e)}, {v(ang)}')
            if e < 7: A(f'v_add_f32 {v(ang)}, {v(ang)}, {v(dl)}')
        for i in range(4):
            A(f'v_cvt_pk_bf16_f32 {v(C32+4*mu+i)}, {v(cs+2*i)}, {v(cs+2*i+1)}')
            A(f'v_cvt_pk_bf16_f32 {v(S32+4*mu+i)}, {v(cs+8+2*i)}, {v(cs+9+2*i)}')
    for i in range(8):
        A(f'v_xor_b32 {v(N32+i)}, {s(st)}, {v(S32+i)}')
    A(f'''v_mul_f32 {v(dl)}, {f2u(1/2048)}, {v(nf)}
v_mul_f32 {v(ang)}, {f2u(8.0)}, {v(gf)}
v_mul_f32 {v(ang)}, {v(ang)}, {v(dl)}''')
    for e in range(8):
        A(f'v_cos_f32 {v(TC+e)}, {v(ang)}\nv_sin_f32 {v(TS+e)}, {v(ang)}')
        if e < 7: A(f'v_add_f32 {v(ang)}, {v(ang)}, {v(dl)}')
    wa0, wa1, wb, ra0, ra1, t1, t2 = 5, 6, 7, T, T + 1, T + 2, T + 3
    A(f'''v_bfe_u32 {v(t1)}, {v(l15)}, 1, 2
s_lshl_b32 {s(st+1)}, {s(wave)}, 10
v_lshlrev_b32 {v(t2)}, 6, {v(l15)}
v_add_u32 {v(t2)}, {s(st+1)}, {v(t2)}
v_xor_b32 {v(wb)}, {v(g)}, {v(t1)}
v_lshl_add_u32 {v(wb)}, {v(wb)}, 4, {v(t2)}
v_and_b32 {v(wa0)}, 1, {v(g)}
v_lshlrev_b32 {v(wa0)}, 1, {v(wa0)}
v_xor_b32 {v(wa0)}, {v(wa0)}, {v(t1)}
v_lshl_add_u32 {v(wa0)}, {v(wa0)}, 4, {v(t2)}
v_lshrrev_b32 {v(t1)}, 1, {v(g)}
v_lshl_add_u32 {v(wa0)}, {v(t1)}, 3, {v(wa0)}
v_xor_b32 {v(wa1)}, 16, {v(wa0)}
v_lshrrev_b32 {v(t1)}, 2, {v(lane)}
v_lshlrev_b32 {v(ra0)}, 6, {v(t1)}
v_bfe_u32 {v(t1)}, {v(lane)}, 3, 2
v_bfe_u32 {v(t2)}, {v(lane)}, 1, 1
v_xor_b32 {v(t1)}, {v(t1)}, {v(t2)}
v_lshl_add_u32 {v(ra0)}, {v(t1)}, 4, {v(ra0)}
v_and_b32 {v(t1)}, 1, {v(lane)}
v_lshl_add_u32 {v(ra0)}, {v(t1)}, 3, {v(ra0)}
v_xor_b32 {v(ra1)}, 32, {v(ra0)}
s_mov_b32 {s(st+1)}, {f2u(2048.0*2048.0/448)}
v_mov_b32 {v(t1)}, {f2u(1e-5*2048.0*2048.0)}''')
    stamp(A, 2)
    A('s_waitcnt vmcnt(14)')
    for i in range(8):
        A(f'v_lshlrev_b32 {v(ZR+i)}, 16, {v(ZI+i)}\nv_and_b32 {v(ZM+i)}, 0xffff0000, {v(ZI+i)}')
    for p in range(1, 7):
        A(f's_waitcnt vmcnt({14-2*p})')
        for i in range(8):
            A(f'v_add_f32 {v(SQ+i)}, {v(SQ+i)}, {v(SQ+8*p+i)}')
    stamp(A, 3)
    for i in range(8):
        A(f'v_fma_f32 {v(SQ+i)}, {v(SQ+i)}, {s(st+1)}, {v(t1)}')
    for i in range(8):
        A(f'v_rsq_f32 {v(SQ+i)}, {v(SQ+i)}')
    for i in range(8):
        A(f'v_mul_f32 {v(SQ+8+i)}, {v(SQ+i)}, {v(ZR+i)}\nv_mul_f32 {v(SQ+16+i)}, {v(SQ+i)}, {v(ZM+i)}')
    for i in range(4):
        A(f'v_cvt_pk_bf16_f32 {v(BR+i)}, {v(SQ+8+2*i)}, {v(SQ+9+2*i)}\nv_cvt_pk_bf16_f32 {v(BI+i)}, {v(SQ+16+2*i)}, {v(SQ+17+2*i)}')
    A('s_cmp_lg_u32 s2, 0\ns_cbranch_scc1 K1_nz')
    for i in range(4): A(f'v_mov_b32 {v(BI+i)}, 0')
    A('K1_nz:')
    A(f'''ds_write_b64 {v(wa0)}, {v(BR,2)}
ds_write_b64 {v(wa1)}, {v(BR+2,2)}
ds_write_b64 {v(wa0)}, {v(BI,2)} offset:4096
ds_write_b64 {v(wa1)}, {v(BI+2,2)} offset:4096
s_waitcnt lgkmcnt(0)
s_barrier''')
    def big_stage(base, tab_ri, tab_ir):
        def xa(pl, mu, ks): return XA + 4 * (ks * 4 + pl * 2 + mu)
        for ks in range(2):
            for pl in range(2):
                for mu in range(2):
                    for hf in range(2):
                        A(f'ds_read_b64_tr_b16 {v(xa(pl,mu,ks)+2*hf,2)}, {v(ra0+mu)} offset:{base+pl*4096+ks*2048+hf*1024}')
        for ks in range(2):
            A(f's_waitcnt lgkmcnt({12-8*ks})')
            for mu in range(2):
                c = v(DR + 4 * mu, 4) if ks else '0'
                A(f'v_mfma_f32_16x16x32_bf16 {v(DR+4*mu,4)}, {v(xa(0,mu,ks),4)}, {v(C64+4*ks,4)}, {c}')
                c = v(DI + 4 * mu, 4) if ks else '0'
                A(f'v_mfma_f32_16x16x32_bf16 {v(DI+4*mu,4)}, {v(xa(0,mu,ks),4)}, {v(tab_ri+4*ks,4)}, {c}')
            A(f's_waitcnt lgkmcnt({8-8*ks})')
            for mu in range(2):
                A(f'v_mfma_f32_16x16x32_bf16 {v(DR+4*mu,4)}, {v(xa(1,mu,ks),4)}, {v(tab_ir+4*ks,4)}, {v(DR+4*mu,4)}')
                A(f'v_mfma_f32_16x16x32_bf16 {v(DI+4*mu,4)}, {v(xa(1,mu,ks),4)}, {v(C64+4*ks,4)}, {v(DI+4*mu,4)}')
    def small_stage(tab_ri, tab_ir):
        for mu in range(2):
            A(f'v_mfma_f32_16x16x32_bf16 {v(DR+4*mu,4)}, {v(C32+4*mu,4)}, {v(BR,4)}, 0')
            A(f'v_mfma_f32_16x16x32_bf16 {v(DI+4*mu,4)}, {v(C32+4*mu,4)}, {v(BI,4)}, 0')
        for mu in range(2):
            A(f'v_mfma_f32_16x16x32_bf16 {v(DR+4*mu,4)}, {v(tab_ir+4*mu,4)}, {v(BI,4)}, {v(DR+4*mu,4)}')
            A(f'v_mfma_f32_16x16x32_bf16 {v(DI+4*mu,4)}, {v(tab_ri+4*mu,4)}, {v(BR,4)}, {v(DI+4*mu,4)}')
    U = T + 8
    def rot(cr, ci, sign):
        n1, n2 = ('-', '') if sign > 0 else ('', '-')
        for e in range(8):
            A(f'''v_mul_f32 {v(U+e)}, {v(DR+e)}, {v(cr+e)}
v_mul_f32 {v(U+8+e)}, {v(DI+e)}, {v(cr+e)}
v_fma_f32 {v(U+e)}, {n1}{v(DI+e)}, {v(ci+e)}, {v(U+e)}
v_fma_f32 {v(U+8+e)}, {n2}{v(DR+e)}, {v(ci+e)}, {v(U+8+e)}''')
            if e & 1:
                A(f'v_cvt_pk_bf16_f32 {v(BR+e//2)}, {v(U+e-1)}, {v(U+e)}\nv_cvt_pk_bf16_f32 {v(BI+e//2)}, {v(U+7+e)}, {v(U+8+e)}')
    big_stage(0, N64, S64)
    rot(TC, TS, -1)
    small_stage(N32, S32)
    WR, WI = XA, XA + 8
    A('s_waitcnt vmcnt(0)')
    for i in range(4):
        A(f'''v_lshlrev_b32 {v(WR+2*i)}, 16, {v(WW+i)}
v_and_b32 {v(WR+2*i+1)}, 0xffff0000, {v(WW+i)}
v_lshlrev_b32 {v(WI+2*i)}, 16, {v(WW+4+i)}
v_and_b32 {v(WI+2*i+1)}, 0xffff0000, {v(WW+4+i)}''')
    rot(WR, WI, 1)
    small_stage(S32, N32)
    rot(TC, TS, 1)
    A(f'''ds_write_b128 {v(wb)}, {v(BR,4)} offset:8192
ds_write_b128 {v(wb)}, {v(BI,4)} offset:12288''')
    A(f'''v_lshrrev_b32 {v(t1)}, 1, {v(l15)}
v_mul_u32_u24 {v(t1)}, 57344, {v(t1)}
v_and_b32 {v(t2)}, 1, {v(l15)}
v_lshl_add_u32 {v(t2)}, {v(g)}, 1, {v(t2)}
s_and_b32 {s(st)}, s2, 3
s_lshl_b32 {s(st)}, {s(st)}, 1
v_xor_b32 {v(t2)}, {s(st)}, {v(t2)}
v_lshl_add_u32 {v(t1)}, {v(t2)}, 4, {v(t1)}
s_mul_i32 {s(st)}, {s(wave)}, {8*57344}
s_lshl_b32 {s(st+1)}, s2, 8
s_add_u32 {s(st)}, {s(st)}, {s(st+1)}
s_add_u32 {s(st)}, {s(st)}, {ZB}
s_waitcnt lgkmcnt(0)
s_barrier''')
    stamp(A, 4)
    big_stage(8192, S64, N64)
    for e in range(8):
        A(f'v_add_f32 {v(ZR+e)}, {v(ZR+e)}, {v(DR+e)}\nv_fma_f32 {v(ZM+e)}, {v(DI+e)}, {s(sim)}, {v(ZM+e)}')
    for i in range(4):
        A(f'v_cvt_pk_bf16_f32 {v(BR+i)}, {v(ZR+2*i)}, {v(ZR+2*i+1)}\nv_cvt_pk_bf16_f32 {v(BI+i)}, {v(ZM+2*i)}, {v(ZM+2*i+1)}')
    A(f'buffer_store_dwordx4 {v(BR,4)}, {v(t1)}, {s(sW,4)}, {s(st)} offen')
    A(f'buffer_store_dwordx4 {v(BI,4)}, {v(t1)}, {s(sW,4)}, {s(st)} offen offset:128')
    A('K1_end:')
    stamp_out(A, 's22', sW)
    A('K1_exit:\ns_endpgm')

    A('K1_aux:')
    stamp(A, 0)
    ld_ptr(A, sW, WS)
    ld_ptr(A, 8, C_RE); ld_ptr(A, 12, C_IM)
    wave_id(A, lane, wave)
    A('s_cmp_lt_u32 s2, 231\ns_cbranch_scc1 K1_qt\ns_cmp_lt_u32 s2, 245\ns_cbranch_scc1 K1_cf\ns_cmp_ge_u32 s2, 253\ns_cbranch_scc1 K1_exit')
    A(f'''s_sub_u32 {s(st)}, s2, 245
s_mul_i32 {s(st)}, {s(st)}, {7*4096}
s_add_u32 {s(st)}, {s(st)}, {AGG}
v_lshlrev_b32 v5, 4, v0
v_mov_b32 v8, -1
v_mov_b32 v9, -1
v_mov_b32 v10, -1
v_mov_b32 v11, -1
s_waitcnt lgkmcnt(0)''')
    srd_ws(A, sW)
    for i in range(7):
        A(f'buffer_store_dwordx4 v[8:11], v5, {s(sW,4)}, {s(st)} offen\ns_add_u32 {s(st)}, {s(st)}, 4096')
    A('s_branch K1_end')
    A('K1_cf:')
    A(f'''s_sub_u32 {s(st)}, s2, 231
s_and_b32 {s(st+1)}, {s(st)}, 1
s_lshr_b32 {s(st+2)}, {s(wave)}, 1
s_and_b32 {s(st+3)}, {s(wave)}, 1
s_andn2_b32 {s(st+4)}, {s(st)}, 1
s_add_u32 {s(st+4)}, {s(st+4)}, {s(st+2)}
s_mul_i32 {s(st+4)}, {s(st+4)}, {32*896}
s_mul_i32 {s(st+5)}, {s(st+3)}, {14*32}
s_add_u32 {s(st+4)}, {s(st+4)}, {s(st+5)}
s_lshl_b32 {s(st+5)}, {s(st)}, 1
s_add_u32 {s(st+5)}, {s(st+5)}, {s(st+2)}
s_lshl_b32 {s(st+5)}, {s(st+5)}, 1
s_add_u32 {s(st+5)}, {s(st+5)}, {s(st+3)}
s_mul_i32 {s(st+5)}, {s(st+5)}, {14*1024}
s_add_u32 {s(st+5)}, {s(st+5)}, {WC + WC_L}
v_and_b32 v5, 31, {v(lane)}
v_mul_u32_u24 v5, 896, v5
v_lshrrev_b32 v6, 5, {v(lane)}
v_lshl_add_u32 v5, v6, 4, v5
v_lshlrev_b32 v6, 4, {v(lane)}
s_waitcnt lgkmcnt(0)
s_cmp_eq_u32 {s(st+1)}, 0
s_cselect_b32 s8, s8, s12
s_cselect_b32 s9, s9, s13''')
    srd(A, 8, D * D * 2); srd_ws(A, sW)
    for k in range(14):
        A(f'buffer_load_dwordx4 {v(8+4*k,4)}, v5, s[8:11], {s(st+4)} offen offset:{32*k}')
    for k in range(14):
        A(f's_waitcnt vmcnt(13)\nbuffer_store_dwordx4 {v(8+4*k,4)}, v6, {s(sW,4)}, {s(st+5)} offen\ns_add_u32 {s(st+5)}, {s(st+5)}, 1024')
    A('s_branch K1_end')
    A('K1_qt:')
    sinv, s448 = 25, 26
    df, tq, two, c16, t, ph, amp = 5, 6, 7, 8, 9, 10, 11
    X, Y, Wc, Z, O = 16, 24, 32, 40, 48
    a2 = math.sqrt(2.0 / 448); a1 = math.sqrt(1.0 / 448)
    A(f'''s_mov_b32 {s(sinv)}, {f2u(INV448)}
s_mov_b32 {s(s448)}, {f2u(448.0)}
s_sub_u32 {s(st)}, s2, 224
s_lshl_b32 {s(st)}, {s(st)}, 2
s_add_u32 {s(st)}, {s(st)}, {s(wave)}
s_lshl_b32 {s(st+1)}, {s(st)}, 4
s_mul_i32 {s(st)}, {s(st)}, {14*1024}
s_add_u32 {s(st)}, {s(st)}, {WSK + WSK_L}
v_and_b32 v12, 15, {v(lane)}
v_add_u32 v12, {s(st+1)}, v12
v_cvt_f32_u32 {v(df)}, v12
v_lshrrev_b32 v13, 4, {v(lane)}
v_lshlrev_b32 v14, 1, v13
v_cvt_f32_u32 v14, v14
v_mul_f32 {v(c16)}, {f2u(16.0)}, {v(df)}
v_mov_b32 {v(ph)}, 0x3e800000
v_mov_b32 {v(amp)}, {f2u(a2)}''')
    cos_reduced(A, two, c16, None, None, tq, sinv, s448)
    A(f'v_add_f32 {v(two)}, {v(two)}, {v(two)}')
    for e in range(8):
        A(f'v_add_f32 {v(t)}, {f2u(96.0 + 8*(e>>2) + ((e&3)>>1))}, v14\nv_mul_f32 {v(t)}, {v(t)}, {v(df)}')
        cos_reduced(A, X + e, t, ph if e & 1 else None, v(amp), tq, sinv, s448)
        A(f'v_add_f32 {v(t)}, {v(t)}, {v(c16)}')
        cos_reduced(A, Y + e, t, ph if e & 1 else None, v(amp), tq, sinv, s448)
    def emit(k, r):
        for e in range(0, 8, 2):
            A(f'v_cvt_pk_bf16_f32 {v(O+4*k+e//2)}, {v(r+e)}, {v(r+e+1)}')
    emit(6, X); emit(7, Y)
    for e in range(8):
        A(f'v_fma_f32 {v(Wc+e)}, {v(two)}, {v(X+e)}, -{v(Y+e)}')
        A(f'v_fma_f32 {v(Z+e)}, {v(two)}, {v(Y+e)}, -{v(X+e)}')
    emit(5, Wc); emit(8, Z)
    up = [Y, Z]; dn = [X, Wc]
    for i in range(5):
        o, c = up[i % 2], up[(i + 1) % 2]
        o2, c2 = dn[i % 2], dn[(i + 1) % 2]
        for e in range(8):
            A(f'v_fma_f32 {v(o+e)}, {v(two)}, {v(c+e)}, -{v(o+e)}')
            A(f'v_fma_f32 {v(o2+e)}, {v(two)}, {v(c2+e)}, -{v(o2+e)}')
        emit(9 + i, o); emit(4 - i, o2)
    A(f'''v_mov_b32 {v(t)}, {f2u(a1)}
v_cvt_pk_bf16_f32 {v(t)}, {v(t)}, {v(t)}
v_and_b32 v12, 1, v12
v_lshlrev_b32 v12, 15, v12
v_xor_b32 {v(t)}, {v(t)}, v12
v_cmp_eq_u32 vcc, 0, v13
v_cndmask_b32 {v(O)}, {v(O)}, {v(t)}, vcc
v_lshlrev_b32 v6, 4, {v(lane)}
s_waitcnt lgkmcnt(0)''')
    srd_ws(A, sW)
    for k in range(14):
        A(f'buffer_store_dwordx4 {v(O+4*k,4)}, v6, {s(sW,4)}, {s(st)} offen\ns_add_u32 {s(st)}, {s(st)}, 1024')
    A('s_branch K1_end')
    return A.render()

def kscan():
    A = Asm()
    lane, l15, g = 1, 3, 4
    sW, wave, rt, sl, lay, st = 4, 20, 21, 23, 24, 28
    AR, AI, AS, GR = 8, 24, 40, 56
    FA = 60
    PR, PI = 100, 116
    RA = 132
    R2, MM = 140, 156
    LB = 172
    mgr, mgi, Lgr, Lgi, L4r, L4i, cgr, cgi, hd = range(188, 197)
    T = 200
    RX = 57344
    A('s_mov_b32 s22, 2\ns_mov_b32 s24, 0\ns_branch K2_go')
    A('.p2align 8\nk5_kernel:\ns_mov_b32 s22, 5\ns_mov_b32 s24, 1')
    A('K2_go:\ns_cmp_ge_u32 s2, 224\ns_cbranch_scc1 K2_exit')
    stamp(A, 0)
    ld_ptr(A, sW, WS); ld_ptr(A, 8, L_RE); ld_ptr(A, 12, L_IM); ld_ptr(A, 16, LOGDT); ld_ptr(A, 40, DSKIP)
    wave_id(A, lane, wave)
    tile_ids(A, rt, sl, st)
    sz, sm, sk = st + 2, st + 3, st + 4
    A(f'''v_and_b32 {v(l15)}, 15, {v(lane)}
v_lshrrev_b32 {v(g)}, 4, {v(lane)}
v_lshlrev_b32 v5, 4, {v(lane)}
v_lshlrev_b32 v6, 1, {v(l15)}
s_lshl_b32 {s(st)}, {s(sl)}, 2
s_add_u32 {s(st)}, {s(st)}, {s(wave)}
s_mul_i32 {s(sm)}, {s(st)}, {28*1024}
s_add_u32 {s(sm)}, {s(sm)}, {WM1}
s_mul_i32 {s(sk)}, {s(st)}, {14*1024}
s_mul_i32 {s(st+1)}, {s(lay)}, {WSK_L}
s_add_u32 {s(sk)}, {s(sk)}, {s(st+1)}
s_add_u32 {s(sk)}, {s(sk)}, {WSK}
s_lshl_b32 {s(st)}, {s(st)}, 5
s_lshl_b32 {s(st+1)}, {s(wave)}, 10
s_mov_b32 m0, {s(st+1)}
s_mul_i32 {s(sz)}, {s(rt)}, 57344
s_add_u32 {s(sz)}, {s(sz)}, {s(st+1)}
s_add_u32 {s(sz)}, {s(sz)}, {ZB}
s_waitcnt lgkmcnt(0)''')
    srd_ws(A, sW)
    for r in (8, 12, 16, 40): srd(A, r, D * 2)
    stamp(A, 1)
    lre, lim, ldt = T, T + 1, T + 2
    A(f'''buffer_load_ushort {v(lre)}, v6, s[8:11], {s(st)} offen
buffer_load_ushort {v(lim)}, v6, s[12:15], {s(st)} offen
buffer_load_ushort {v(ldt)}, v6, s[16:19], {s(st)} offen
buffer_load_ushort {v(hd)}, v6, s[40:43], {s(st)} offen''')
    for ks in range(14):
        A(f'buffer_load_dwordx4 v5, {s(sW,4)}, {s(sz)} offen lds')
        o = (ks & 1) * 2048
        A(f'buffer_load_dwordx4 {a(8*ks,4)}, v5, {s(sW,4)}, {s(sm)} offen offset:{o}')
        A(f'buffer_load_dwordx4 {a(8*ks+4,4)}, v5, {s(sW,4)}, {s(sm)} offen offset:{o+1024}')
        if ks < 13:
            A(f's_add_u32 m0, m0, 4096\ns_add_u32 {s(sz)}, {s(sz)}, 4096')
            if ks & 1: A(f's_add_u32 {s(sm)}, {s(sm)}, 4096')
    for ks in range(14):
        A(f'buffer_load_dwordx4 {a(112+4*ks,4)}, v5, {s(sW,4)}, {s(sk)} offen offset:{(ks&3)*1024}')
        if (ks & 3) == 3: A(f's_add_u32 {s(sk)}, {s(sk)}, 4096')
    t1, t2 = T + 3, T + 4
    A(f'''v_lshrrev_b32 {v(t1)}, 2, {v(lane)}
v_lshlrev_b32 {v(RA)}, 7, {v(t1)}
v_bfe_u32 {v(t1)}, {v(lane)}, 3, 2
v_lshl_add_u32 {v(RA)}, {v(t1)}, 5, {v(RA)}
v_and_b32 {v(t1)}, 3, {v(lane)}
v_lshl_add_u32 {v(RA)}, {v(t1)}, 3, {v(RA)}
v_xor_b32 {v(RA+1)}, 32, {v(RA)}
v_xor_b32 {v(RA+2)}, 64, {v(RA)}
v_xor_b32 {v(RA+3)}, 0x60, {v(RA)}
s_lshl_b32 {s(st)}, {s(wave)}, 5
v_xor_b32 {v(RA+4)}, {s(st)}, {v(RA)}
s_waitcnt vmcnt(56)''')
    lam_calc(A, lre, lim, ldt, PR, PI, t1, t2)
    A(f'v_lshlrev_b32 {v(hd)}, 16, {v(hd)}\nv_mul_f32 {v(hd)}, 0.5, {v(hd)}')
    for t in range(1, 16):
        x, y = (t - 1) // 2, t - 1 - (t - 1) // 2
        cmul(A, PR + t, PI + t, PR + x, PI + x, PR + y, PI + y)
    m1r, m1i = PR + 15, PI + 15
    m2r, m2i, m3r, m3i, L1r, L1i, L2r, L2i, L3r, L3i = range(T + 5, T + 15)
    cmul(A, m2r, m2i, m1r, m1i, m1r, m1i)
    cmul(A, m3r, m3i, m2r, m2i, m1r, m1i)
    cmul(A, L1r, L1i, m2r, m2i, m2r, m2i)
    cmul(A, L2r, L2i, L1r, L1i, L1r, L1i)
    cmul(A, L3r, L3i, L2r, L2i, L1r, L1i)
    cmul(A, L4r, L4i, L2r, L2i, L2r, L2i)
    A(f'''v_cmp_eq_u32 s[44:45], 1, {v(g)}
v_cmp_eq_u32 s[46:47], 2, {v(g)}
v_cmp_eq_u32 s[48:49], 3, {v(g)}''')
    def sel4(d, c0, x1, x2, x3):
        A(f'''v_cndmask_b32 {v(d)}, {c0}, {v(x1)}, s[44:45]
v_cndmask_b32 {v(d)}, {v(d)}, {v(x2)}, s[46:47]
v_cndmask_b32 {v(d)}, {v(d)}, {v(x3)}, s[48:49]''')
    sel4(mgr, '1.0', m1r, m2r, m3r); sel4(mgi, '0', m1i, m2i, m3i)
    sel4(Lgr, '1.0', L1r, L2r, L3r); sel4(Lgi, '0', L1i, L2i, L3i)
    stamp(A, 2)
    def rd(ks, gram=True):
        b = FA + 20 * (ks & 1)
        for mt in range(5 if gram else 4):
            for hf in range(2):
                A(f'ds_read_b64_tr_b16 {v(b+4*mt+2*hf,2)}, {v(RA+mt)} offset:{ks*4096+hf*2048}')
    groups = [(0, 4), (4, 9), (9, 14)]
    for lo, hi in groups:
        A(f's_waitcnt vmcnt({14 + 3*(14-hi)})\ns_barrier')
        rd(lo)
        for ks in range(lo, hi):
            if ks + 1 < hi:
                rd(ks + 1); A('s_waitcnt lgkmcnt(10)')
            else:
                A('s_waitcnt lgkmcnt(0)')
            b = FA + 20 * (ks & 1)
            for mt in range(4):
                c = v(AR + 4 * mt, 4) if ks else '0'
                A(f'v_mfma_f32_16x16x32_bf16 {v(AR+4*mt,4)}, {v(b+4*mt,4)}, {a(8*ks,4)}, {c}')
                c = v(AI + 4 * mt, 4) if ks else '0'
                A(f'v_mfma_f32_16x16x32_bf16 {v(AI+4*mt,4)}, {v(b+4*mt,4)}, {a(8*ks+4,4)}, {c}')
            c = v(GR, 4) if ks else '0'
            A(f'v_mfma_f32_16x16x32_bf16 {v(GR,4)}, {v(b+16,4)}, {v(b+16,4)}, {c}')
    stamp(A, 3)
    dc, sq, ad = T, T + 1, T + 2
    A(f'''v_and_b32 {v(t1)}, 3, {v(lane)}
v_lshlrev_b32 {v(ad)}, 3, {v(g)}
v_lshl_add_u32 {v(ad)}, {v(t1)}, 1, {v(ad)}
s_lshl_b32 {s(st)}, {s(wave)}, 5
v_add_u32 {v(ad)}, {s(st)}, {v(ad)}
ds_read_u16 {v(dc)}, {v(ad)} offset:128
v_cmp_eq_u32 s[50:51], 1, {v(t1)}
v_cmp_eq_u32 s[52:53], 2, {v(t1)}
v_cmp_eq_u32 s[54:55], 3, {v(t1)}
v_lshlrev_b32 {v(ad)}, 6, {v(g)}
v_lshl_add_u32 {v(ad)}, {v(t1)}, 2, {v(ad)}
s_lshl_b32 {s(st)}, {s(wave)}, 4
v_add_u32 {v(ad)}, {s(st)}, {v(ad)}
v_lshrrev_b32 {v(t2)}, 2, {v(l15)}
v_cmp_eq_u32 vcc, {v(t2)}, {v(g)}
v_cndmask_b32 {v(sq)}, {v(GR)}, {v(GR+1)}, s[50:51]
v_cndmask_b32 {v(sq)}, {v(sq)}, {v(GR+2)}, s[52:53]
v_cndmask_b32 {v(sq)}, {v(sq)}, {v(GR+3)}, s[54:55]
s_waitcnt lgkmcnt(0)
v_lshlrev_b32 {v(dc)}, 16, {v(dc)}
v_fma_f32 {v(sq)}, -{v(dc)}, {v(dc)}, {v(sq)}
v_max_f32 {v(sq)}, 0, {v(sq)}
v_mov_b32 {v(t2)}, {f2u(0.25e-5)}
v_fmac_f32 {v(t2)}, {f2u(0.25/448)}, {v(sq)}
v_rsq_f32 {v(t2)}, {v(t2)}
v_mul_f32 {v(dc)}, {f2u(math.sqrt(1.0/448))}, {v(dc)}
s_and_saveexec_b64 s[56:57], vcc
ds_write2st64_b32 {v(ad)}, {v(t2)}, {v(dc)} offset0:{RX//256} offset1:{RX//256+1}
s_mov_b64 exec, s[56:57]
v_lshlrev_b32 {v(ad)}, 6, {v(g)}
s_waitcnt lgkmcnt(0)
s_barrier''')
    for i in range(4):
        A(f'ds_read_b128 {v(R2+4*i,4)}, {v(ad)} offset:{RX+16*i}')
    for i in range(4):
        A(f'ds_read_b128 {v(MM+4*i,4)}, {v(ad)} offset:{RX+256+16*i}')
    for i in range(4):
        A(f's_waitcnt lgkmcnt({7-i})')
        for e in range(4):
            t = 4 * i + e
            A(f'v_mul_f32 {v(AR+t)}, {v(AR+t)}, {v(R2+t)}\nv_mul_f32 {v(AI+t)}, {v(AI+t)}, {v(R2+t)}')
            if t: cfma(A, AR + t, AI + t, PR, PI, AR + t - 1, AI + t - 1)
    e0r, e1r, e2r, e3r, e0i, e1i, e2i, e3i = range(T, T + 8)
    for (x0, x1, x2, x3, src) in ((e0r, e1r, e2r, e3r, AR + 15), (e0i, e1i, e2i, e3i, AI + 15)):
        A(f'v_mov_b32 {v(x0)}, {v(src)}\nv_mov_b32 {v(x1)}, {v(src)}')
    A(f'v_permlane16_swap_b32 {v(e0r)}, {v(e1r)}\nv_permlane16_swap_b32 {v(e0i)}, {v(e1i)}')
    A(f'v_mov_b32 {v(e2r)}, {v(e0r)}\nv_mov_b32 {v(e3r)}, {v(e1r)}\nv_mov_b32 {v(e2i)}, {v(e0i)}\nv_mov_b32 {v(e3i)}, {v(e1i)}')
    A(f'v_permlane32_swap_b32 {v(e0r)}, {v(e2r)}\nv_permlane32_swap_b32 {v(e1r)}, {v(e3r)}')
    A(f'v_permlane32_swap_b32 {v(e0i)}, {v(e2i)}\nv_permlane32_swap_b32 {v(e1i)}, {v(e3i)}')
    cfma(A, e1r, e1i, m1r, m1i, e0r, e0i)
    cfma(A, e2r, e2i, m1r, m1i, e1r, e1i)
    cfma(A, e3r, e3i, m1r, m1i, e2r, e2i)
    pub = T + 8
    sag = st + 5
    A(f'''v_mov_b32 {v(pub)}, {v(e3r)}
v_mov_b32 {v(pub+1)}, {v(e3i)}
s_mul_i32 {s(st)}, {s(lay)}, {AGG_L}
s_add_u32 s8, s4, {s(st)}
s_addc_u32 s9, s5, 0
s_add_u32 s8, s8, {AGG}
s_addc_u32 s9, s9, 0
s_mov_b32 s10, {AGG_L}
s_lshl_b32 {s(st)}, {s(sl)}, 2
s_add_u32 {s(st)}, {s(st)}, {s(wave)}
s_lshl_b32 {s(st)}, {s(st)}, 7
s_mul_i32 {s(sag)}, {s(rt)}, 3584
s_add_u32 {s(sag)}, {s(sag)}, {s(st)}
v_lshlrev_b32 {v(pub+2)}, 3, {v(l15)}
v_cmp_gt_u32 vcc, 16, {v(lane)}
s_and_saveexec_b64 s[56:57], vcc
buffer_store_dwordx2 {v(pub,2)}, {v(pub+2)}, s[8:11], {s(sag)} offen sc1
s_mov_b64 exec, s[56:57]''')
    stamp(A, 4)
    sel4(cgr, '0', e0r, e1r, e2r); sel4(cgi, '0', e0i, e1i, e2i)
    LA = T + 12
    A(f'''v_mul_u32_u24 {v(t1)}, 3584, {v(g)}
v_sub_u32 {v(LA)}, {v(pub+2)}, {v(t1)}
s_sub_u32 {s(sag)}, {s(sag)}, 3584
v_add_u32 {v(LA)}, {s(sag)}, {v(LA)}''')
    for i in range(1, 8):
        A(f'v_subrev_u32 {v(LA+i)}, {4*3584*i}, {v(LA)}')
    def lb_issue():
        for i in range(8):
            A(f'buffer_load_dwordx2 {v(LB+2*i,2)}, {v(LA+i)}, s[8:11], 0 offen sc1')
    lb_issue()
    A('s_waitcnt vmcnt(9)')
    rd(0, False)
    for ks in range(14):
        if ks + 1 < 14:
            rd(ks + 1, False); A('s_waitcnt lgkmcnt(8)')
        else:
            A('s_waitcnt lgkmcnt(0)')
        b = FA + 20 * (ks & 1)
        for mt in range(4):
            c = v(AS + 4 * mt, 4) if ks else '0'
            A(f'v_mfma_f32_16x16x32_bf16 {v(AS+4*mt,4)}, {v(b+4*mt,4)}, {a(112+4*ks,4)}, {c}')
    szm = st + 6
    A(f'''s_mul_i32 {s(szm)}, {s(rt)}, 7
s_add_u32 {s(szm)}, {s(szm)}, {s(sl)}
s_lshl_b32 {s(szm)}, {s(szm)}, 14
s_add_u32 {s(szm)}, {s(szm)}, {ZMID}
s_cmp_eq_u32 {s(lay)}, 1
s_cbranch_scc1 K2_skip5''')
    zb = FA
    A(f'''s_lshl_b32 {s(st)}, {s(sl)}, 2
s_add_u32 {s(st)}, {s(st)}, {s(wave)}
s_lshl_b32 {s(st)}, {s(st)}, 11
v_lshlrev_b32 {v(t1)}, 7, {v(l15)}
v_add_u32 {v(t1)}, {s(st)}, {v(t1)}
v_bfe_u32 {v(t2)}, {v(l15)}, 1, 2
v_lshl_add_u32 {v(t1)}, {v(t2)}, 5, {v(t1)}
v_lshl_add_u32 {v(t1)}, {v(g)}, 3, {v(t1)}''')
    for mt in range(4):
        if mt: A(f'v_xor_b32 {v(t2)}, {32*mt}, {v(t1)}')
        A(f'ds_read_b64 {v(zb+2*mt,2)}, {v(t2 if mt else t1)}')
    A(f'''v_lshlrev_b32 {v(t1)}, 12, {v(g)}
v_lshl_add_u32 {v(t1)}, {v(l15)}, 2, {v(t1)}
s_lshl_b32 {s(st)}, {s(wave)}, 6
s_add_u32 {s(szm)}, {s(szm)}, {s(st)}
s_waitcnt lgkmcnt(0)''')
    for t in range(16):
        d = zb + 8 + t
        src = zb + t // 2
        A(f'v_and_b32 {v(d)}, 0xffff0000, {v(src)}' if t & 1 else f'v_lshlrev_b32 {v(d)}, 16, {v(src)}')
        A(f'v_fmac_f32 {v(d)}, {v(R2+t)}, {v(AS+t)}')
        A(f'buffer_store_dword {v(d)}, {v(t1)}, {s(sW,4)}, {s(szm)} offen offset:{256*t}')
    A('s_waitcnt vmcnt(16)\ns_branch K2_lb')
    A('K2_skip5:')
    A(f'''v_lshlrev_b32 {v(t1)}, 8, {v(l15)}
v_lshl_add_u32 {v(t1)}, {v(g)}, 6, {v(t1)}
s_lshl_b32 {s(st)}, {s(wave)}, 12
s_add_u32 {s(szm)}, {s(szm)}, {s(st)}''')
    for t in range(16):
        A(f'''v_sub_f32 {v(MM+t)}, {v(AS+t)}, {v(MM+t)}
v_mul_f32 {v(R2+t)}, {v(R2+t)}, {v(hd)}
v_fmac_f32 {v(AS+t)}, {v(R2+t)}, {v(MM+t)}''')
        if (t & 3) == 3:
            A(f'buffer_store_dwordx4 {v(AS+t-3,4)}, {v(t1)}, {s(sW,4)}, {s(szm)} offen offset:{4*(t-3)}')
    A('s_waitcnt vmcnt(4)')
    A('K2_lb:')
    stamp(A, 5)
    A(f's_mov_b32 {s(st)}, 0')
    A('K2_poll:')
    mx = T
    A(f'v_max3_u32 {v(mx)}, {v(LB)}, {v(LB+1)}, {v(LB+2)}')
    for i in range(3, 15, 2):
        A(f'v_max3_u32 {v(mx)}, {v(mx)}, {v(LB+i)}, {v(LB+i+1)}')
    A(f'''v_max_u32 {v(mx)}, {v(mx)}, {v(LB+15)}
v_cmp_eq_u32 vcc, -1, {v(mx)}
s_cbranch_vccz K2_ready
s_add_u32 {s(st)}, {s(st)}, 1
s_cmp_gt_u32 {s(st)}, 0x8000
s_cbranch_scc1 K2_ready''')
    lb_issue()
    A('s_waitcnt vmcnt(0)\ns_branch K2_poll')
    A('K2_ready:')
    stamp(A, 6)
    for i in range(6, -1, -1):
        cfma(A, LB + 2 * i, LB + 2 * i + 1, L4r, L4i, LB + 2 * i + 2, LB + 2 * i + 3)
    cr, ci, xr, xi = T, T + 1, T + 2, T + 3
    cmul(A, cr, ci, Lgr, Lgi, LB, LB + 1)
    for sw in ('16', '32'):
        A(f'''v_mov_b32 {v(xr)}, {v(cr)}
v_mov_b32 {v(xi)}, {v(ci)}
v_permlane{sw}_swap_b32 {v(cr)}, {v(xr)}
v_permlane{sw}_swap_b32 {v(ci)}, {v(xi)}
v_add_f32 {v(cr)}, {v(cr)}, {v(xr)}
v_add_f32 {v(ci)}, {v(ci)}, {v(xi)}''')
    cfma(A, cgr, cgi, mgr, mgi, cr, ci)
    ha = T + 4
    A(f'''v_bfe_u32 {v(xr)}, {v(l15)}, 1, 1
v_lshlrev_b32 {v(xr)}, 1, {v(xr)}
v_xor_b32 {v(xr)}, {v(xr)}, {v(g)}
v_lshlrev_b32 {v(ha)}, 7, {v(l15)}
v_lshl_add_u32 {v(ha)}, {v(xr)}, 5, {v(ha)}
s_lshl_b32 {s(st)}, {s(sl)}, 2
s_add_u32 {s(st)}, {s(st)}, {s(wave)}
s_lshl_b32 {s(st)}, {s(st)}, 11
s_mul_i32 {s(st+1)}, {s(rt)}, 114688
s_add_u32 {s(st)}, {s(st)}, {s(st+1)}
s_add_u32 {s(st)}, {s(st)}, {HB}
s_add_u32 {s(st+1)}, {s(st)}, 57344''')
    o = FA
    for hh in range(2):
        for t in range(8 * hh, 8 * hh + 8):
            cfma(A, AR + t, AI + t, PR + t, PI + t, cgr, cgi)
            if t & 1:
                A(f'v_cvt_pk_bf16_f32 {v(o+t//2)}, {v(AR+t-1)}, {v(AR+t)}')
                A(f'v_cvt_pk_bf16_f32 {v(o+8+t//2)}, -{v(AI+t-1)}, -{v(AI+t)}')
        A(f'buffer_store_dwordx4 {v(o+4*hh,4)}, {v(ha)}, {s(sW,4)}, {s(st)} offen offset:{16*hh}')
        A(f'buffer_store_dwordx4 {v(o+8+4*hh,4)}, {v(ha)}, {s(sW,4)}, {s(st+1)} offen offset:{16*hh}')
    stamp_out(A, 's22', sW)
    A('K2_exit:\ns_endpgm')
    return A.render()

def kproj(last):
    A = Asm()
    nm = 'K6' if last else 'K3'
    lane = 1
    sW, wave, kh, wm, rt, sl, st = 4, 20, 21, 22, 23, 24, 28
    T0, T1, BF, T = 8, 24, 40, 72
    REDP = 114688
    A(f's_cmp_ge_u32 s2, 224\ns_cbranch_scc1 {nm}_exit')
    stamp(A, 0)
    ld_ptr(A, sW, WS)
    if last: ld_ptr(A, 8, OUT)
    wave_id(A, lane, wave)
    tile_ids(A, rt, sl, st)
    sh, sw_, sz = st + 2, st + 3, st + 4
    A(f'''s_and_b32 {s(kh)}, {s(wave)}, 1
s_lshr_b32 {s(wm)}, {s(wave)}, 1
v_lshlrev_b32 v5, 4, {v(lane)}
s_mul_i32 {s(st)}, {s(wm)}, 57344
s_lshl_b32 {s(st+1)}, {s(kh)}, 10
s_add_u32 {s(st)}, {s(st)}, {s(st+1)}
s_mov_b32 m0, {s(st)}
s_mul_i32 {s(sh)}, {s(rt)}, 114688
s_add_u32 {s(sh)}, {s(sh)}, {s(st)}
s_add_u32 {s(sh)}, {s(sh)}, {HB}
s_lshl_b32 {s(sw_)}, {s(sl)}, 1
s_add_u32 {s(sw_)}, {s(sw_)}, {s(kh)}
s_lshl_b32 {s(sw_)}, {s(sw_)}, 1
s_add_u32 {s(sw_)}, {s(sw_)}, {s(wm)}
s_mul_i32 {s(sw_)}, {s(sw_)}, {28*1024}
s_add_u32 {s(sw_)}, {s(sw_)}, {WC + (WC_L if last else 0)}
s_mul_i32 {s(sz)}, {s(rt)}, 7
s_add_u32 {s(sz)}, {s(sz)}, {s(sl)}
s_lshl_b32 {s(sz)}, {s(sz)}, 14
s_add_u32 {s(sz)}, {s(sz)}, {ZMID}
s_lshl_b32 {s(st)}, {s(kh)}, 5
s_add_u32 {s(sz)}, {s(sz)}, {s(st)}
s_lshl_b32 {s(st)}, {s(wm)}, {13 if last else 7}
s_add_u32 {s(sz)}, {s(sz)}, {s(st)}
s_add_u32 {s(st+5)}, {s(sz)}, {128 if last else 8192}
v_and_b32 v7, 31, {v(lane)}
v_lshlrev_b32 v7, 8, v7
v_lshrrev_b32 v2, 5, {v(lane)}
v_lshl_add_u32 v7, v2, 4, v7''')
    if last:
        A('v_mov_b32 v6, v5')
    else:
        A(f's_lshl_b32 {s(st)}, {s(kh)}, 7\nv_xor_b32 v6, {s(st)}, v5')
    A('s_waitcnt lgkmcnt(0)')
    srd_ws(A, sW)
    if last: srd(A, 8, S * D * 4)
    stamp(A, 1)
    for nt, Tn in enumerate((T0, T1)):
        for q in (0, 2):
            A(f'buffer_load_dwordx4 {v(Tn+4*q,4)}, v7, {s(sW,4)}, {s(st+5 if nt else sz)} offen offset:{32*q}')
    for k in range(28):
        A(f'buffer_load_dwordx4 v5, {s(sW,4)}, {s(sh)} offen lds')
        A(f'buffer_load_dwordx4 {a(4*k,4)}, v6, {s(sW,4)}, {s(sw_)} offen offset:{(k&3)*1024}')
        if k < 27:
            A(f's_add_u32 m0, m0, 2048\ns_add_u32 {s(sh)}, {s(sh)}, 2048')
            if (k & 3) == 3: A(f's_add_u32 {s(sw_)}, {s(sw_)}, 4096')
    for Tn in (T0, T1):
        for q in (1, 3):
            for i in range(4): A(f'v_mov_b32 {v(Tn+4*q+i)}, 0')
    ra0, ra1, rw, rr, t1, t2 = range(T, T + 6)
    A(f'''v_bfe_u32 {v(t1)}, {v(lane)}, 2, 2
v_lshrrev_b32 {v(t2)}, 5, {v(lane)}
v_lshl_add_u32 {v(ra0)}, {v(t2)}, {3 if last else 2}, {v(t1)}
v_lshlrev_b32 {v(ra0)}, 7, {v(ra0)}
v_lshrrev_b32 {v(t1)}, 1, {v(t1)}
v_lshl_add_u32 {v(ra0)}, {v(t1)}, 6, {v(ra0)}
v_bfe_u32 {v(t1)}, {v(lane)}, 4, 1
v_lshl_add_u32 {v(ra0)}, {v(t1)}, 5, {v(ra0)}
v_and_b32 {v(t1)}, 3, {v(lane)}''')
    if last:
        A(f's_lshl_b32 {s(st)}, {s(kh)}, 1\nv_xor_b32 {v(t1)}, {s(st)}, {v(t1)}')
    A(f'''v_lshl_add_u32 {v(ra0)}, {v(t1)}, 3, {v(ra0)}
s_mul_i32 {s(st)}, {s(kh)}, 57344
v_add_u32 {v(ra0)}, {s(st)}, {v(ra0)}
v_xor_b32 {v(ra1)}, 64, {v(ra0)}
s_lshl_b32 {s(st)}, {s(wave)}, 12
s_add_u32 {s(st)}, {s(st)}, {REDP}
s_xor_b32 {s(st+1)}, {s(st)}, 4096
v_add_u32 {v(rw)}, {s(st)}, v5
v_add_u32 {v(rr)}, {s(st+1)}, v5''')
    stamp(A, 2)
    hoff = 512 if last else 1024
    def rd(k):
        b = BF + 8 * (k % 4)
        for nt in range(2):
            for hf in range(2):
                A(f'ds_read_b64_tr_b16 {v(b+4*nt+2*hf,2)}, {v(ra0+nt)} offset:{k*2048+hf*hoff}')
    for lo in range(0, 28, 7):
        hi = lo + 7
        A(f's_waitcnt vmcnt({2*(28-hi)})\ns_barrier')
        for k in range(lo, lo + 3): rd(k)
        for k in range(lo, hi):
            if k + 3 < hi: rd(k + 3)
            A(f's_waitcnt lgkmcnt({4*min(3, hi-1-k)})')
            b = BF + 8 * (k % 4)
            for nt, Tn in enumerate((T0, T1)):
                x, y = a(4 * k, 4), v(b + 4 * nt, 4)
                if last: x, y = y, x
                A(f'v_mfma_f32_32x32x16_bf16 {v(Tn,16)}, {x}, {y}, {v(Tn,16)}')
    stamp(A, 3)
    ksplit_reduce(A, T0, T1, rw, rr, BF)
    if not last:
        zc_epilogue(A, T0, T1, lane, BF + 16, sW, rt, sl, kh, wm, st, wave, 0)
    else:
        A(f'''v_lshrrev_b32 {v(t1)}, 5, {v(lane)}
v_mul_u32_u24 {v(t1)}, {4*1792}, {v(t1)}
v_and_b32 {v(t2)}, 31, {v(lane)}
v_lshl_add_u32 {v(t1)}, {v(t2)}, 2, {v(t1)}
v_add_u32 {v(t2)}, 3584, {v(t1)}
s_lshl_b32 {s(st)}, {s(rt)}, 3
s_add_u32 {s(st)}, {s(st)}, {s(kh)}
s_mul_i32 {s(st)}, {s(st)}, {8*1792}
s_lshl_b32 {s(st+1)}, {s(sl)}, 8
s_add_u32 {s(st)}, {s(st)}, {s(st+1)}
s_lshl_b32 {s(st+1)}, {s(wm)}, 7
s_add_u32 {s(st)}, {s(st)}, {s(st+1)}''')
        for mt, Tn in enumerate((T0, T1)):
            for q in (0, 2):
                for i in range(4):
                    A(f'buffer_store_dword {v(Tn+4*q+i)}, {v(t1 if i < 2 else t2)}, s[8:11], {s(st)} offen offset:{1792*(i&1)}')
                if not (mt == 1 and q == 2): A(f's_add_u32 {s(st)}, {s(st)}, {16*1792}')
    A('L_end:')
    stamp_out(A, 6 if last else 3, sW)
    A(f'{nm}_exit:\ns_endpgm')
    return A.render().replace('L_end', nm + '_end').replace('nodc_', nm + '_nodc_')

def main():
    big = 256 if STAMPS else 0
    ks = [('k0', k0(), 256, 0), ('k1', kcol(), max(184, big), 0), ('k4', None, max(184, big), 0),
          ('k2', kscan(), max(224, big), 168), ('k5', None, max(224, big), 168),
          ('k3', kproj(False), max(80, big), 112), ('k6', kproj(True), max(80, big), 112)]
    n = int(sys.argv[2]) if len(sys.argv) > 2 else 7
    launches = [('k0', 501, 81920), ('k1', 253, 16384), ('k2', 224, 57856), ('k3', 224, 131072), ('k4', 224, 16384), ('k5', 224, 57856), ('k6', 224, 131072)][:n]
    txt = build(ks, launches)
    open(sys.argv[1] if len(sys.argv) > 1 else 'k.s', 'w').write(txt)

if __name__ == '__main__':
    main()
```

```python
import sys, math
sys.path.insert(0, 'dev')
from asmgen import *

S, D = 2048, 448
A_X, A_WR, A_WI, _BX, L_RE, L_IM, B_RE, B_IM, C_RE, C_IM, LOGDT, DSKIP, OUT, DBG, WS = range(15)
MB = 1 << 20
ZC, SSQ, ZB, HB, ZMID, WF = 0, 2 * MB, 3 * MB, 5 * MB, 9 * MB, 13 * MB
WM1, WSK, WC, AGG = 15 * MB, 16 * MB, 17 * MB, 19 * MB
WSK_L = 401408; WC_L = 802816; AGG_L = 32 * 448 * 8
WS_SIZE = 26 * MB
LOG2E = 1.4426950408889634
INV448 = 1.0 / 448

import os
STAMPS = int(os.environ.get('STAMPS', '0'))
STAMP = 24 * MB
def stamp(A, i):
    if STAMPS == 1 or (STAMPS == 2 and i == 0): A(f's_memrealtime {s(80+2*i,2)}')
def stamp_out(A, kidx, sw):
    if not STAMPS: return
    if STAMPS == 2:
        lab = A.label('dbg%d' % id(A))
        A(f's_cmp_lg_u32 s2, {os.environ.get("DBGWG", "0")}\ns_cbranch_scc1 {lab}')
        A(f's_load_dwordx2 s[76:77], s[0:1], {DBG*8}\ns_memrealtime {s(94,2)}\ns_waitcnt lgkmcnt(0)')
        A(f's_mul_i32 s78, {kidx}, 504\ns_sub_u32 s78, 3072, s78\ns_add_u32 s76, s76, s78\ns_addc_u32 s77, s77, 0')
        A('v_mov_b32 v240, s80\nv_mov_b32 v241, s94\nv_mov_b32 v242, 0\nglobal_store_dwordx2 v242, v[240:241], s[76:77]')
        A(f'{lab}:')
        return
    A(f's_memrealtime {s(94,2)}\ns_waitcnt lgkmcnt(0)')
    for i in range(8): A(f'v_mov_b32 {v(240+i)}, {s(80+2*i)}')
    A(f'''v_lshrrev_b32 v248, 6, v0
v_lshlrev_b32 v248, 5, v248
s_lshl_b32 s80, s2, 7
{('s_add_u32 s80, s80, %d' % (STAMP + kidx * 131072)) if isinstance(kidx, int) else ('s_lshl_b32 s81, %s, 17' % kidx + chr(10) + 's_add_u32 s80, s80, s81' + chr(10) + 's_add_u32 s80, s80, %d' % STAMP)}
buffer_store_dwordx4 v[240:243], v248, {s(sw,4)}, s80 offen
buffer_store_dwordx4 v[244:247], v248, {s(sw,4)}, s80 offen offset:16''')

def srd_ws(A, r, off=None):
    A(f's_mov_b32 {s(r+2)}, {WS_SIZE}\ns_mov_b32 {s(r+3)}, 0x20000')

def srd(A, r, size):
    A(f's_mov_b32 {s(r+2)}, {size}\ns_mov_b32 {s(r+3)}, 0x20000')

def ld_ptr(A, r, slot):
    A(f's_load_dwordx2 {s(r,2)}, s[0:1], {slot*8}')

def div7(A, q, rem, x, tmp):
    A(f's_mul_i32 {s(q)}, {s(x)}, 9363\ns_lshr_b32 {s(q)}, {s(q)}, 16\ns_mul_i32 {s(tmp)}, {s(q)}, 7\ns_sub_u32 {s(rem)}, {s(x)}, {s(tmp)}')

def tile_ids(A, rt, sl, tmp):
    A(f's_lshr_b32 {s(tmp)}, s2, 3')
    div7(A, rt, sl, tmp, tmp + 1)
    A(f's_and_b32 {s(tmp)}, s2, 7\ns_lshl_b32 {s(tmp)}, {s(tmp)}, 2\ns_add_u32 {s(rt)}, {s(rt)}, {s(tmp)}')

def cos_reduced(A, dst, t, ph, amp, tq, sinv, s448):
    A(f'v_mul_f32 {v(tq)}, {s(sinv)}, {v(t)}')
    A(f'v_rndne_f32 {v(tq)}, {v(tq)}')
    A(f'v_fma_f32 {v(tq)}, -{v(tq)}, {s(s448)}, {v(t)}')
    if ph is not None:
        A(f'v_fma_f32 {v(tq)}, {v(tq)}, {s(sinv)}, {v(ph)}')
    else:
        A(f'v_mul_f32 {v(tq)}, {s(sinv)}, {v(tq)}')
    A(f'v_cos_f32 {v(dst)}, {v(tq)}')
    if amp is not None:
        A(f'v_mul_f32 {v(dst)}, {amp}, {v(dst)}')

def gen_q(A, dst, vj, vd0f, dc_amp, ch, tmp, sinv, s448, dreg=None, scale=1.0):
    cf, ph, amp, t, tq, two, c16, u = range(tmp, tmp + 8)
    a2 = scale * math.sqrt(2.0 / 448); a1 = scale * math.sqrt(1.0 / 448)
    A(f'''v_lshrrev_b32 {v(cf)}, 1, {v(vj)}
v_and_b32 {v(ph)}, 1, {v(vj)}
v_cvt_f32_u32 {v(cf)}, {v(cf)}
v_cvt_f32_u32 {v(ph)}, {v(ph)}
v_mul_f32 {v(ph)}, 0x3e800000, {v(ph)}
v_mov_b32 {v(amp)}, {f2u(a2)}
v_mov_b32 {v(t)}, {f2u(224.0)}
v_mov_b32 {v(tq)}, {f2u(a1)}
v_cmp_eq_u32 vcc, 0, {v(vj)}
v_cndmask_b32 {v(cf)}, {v(cf)}, {v(t)}, vcc
v_cndmask_b32 {v(amp)}, {v(amp)}, {v(tq)}, vcc
v_mov_b32 {v(tq)}, {f2u(dc_amp)}
v_cmp_eq_u32 vcc, 1, {v(vj)}
v_cndmask_b32 {v(ph)}, {v(ph)}, 0, vcc
v_cndmask_b32 {v(amp)}, {v(amp)}, {v(tq)}, vcc
v_mul_f32 {v(c16)}, {f2u(16.0)}, {v(cf)}
v_add_f32 {v(t)}, {f2u(96.0)}, {v(vd0f)}
v_mul_f32 {v(t)}, {v(t)}, {v(cf)}''')
    X, Y, W, Z = ch, ch + 8, ch + 16, ch + 24
    cos_reduced(A, two, c16, None, None, tq, sinv, s448)
    A(f'v_add_f32 {v(two)}, {v(two)}, {v(two)}')
    for e in range(8):
        cos_reduced(A, X + e, t, ph, v(amp), tq, sinv, s448)
        A(f'v_add_f32 {v(u)}, {v(t)}, {v(c16)}')
        cos_reduced(A, Y + e, u, ph, v(amp), tq, sinv, s448)
        if e < 7: A(f'v_add_f32 {v(t)}, {v(t)}, {v(cf)}')
    def emit(k, r):
        for e in range(0, 8, 2):
            if dreg is None:
                A(f'v_cvt_pk_bf16_f32 {v(dst+4*k+e//2)}, {v(r+e)}, {v(r+e+1)}')
            else:
                d = dreg + 4 * k + e // 2
                A(f'''v_lshlrev_b32 {v(t)}, 16, {v(d)}
v_and_b32 {v(u)}, 0xffff0000, {v(d)}
v_mul_f32 {v(t)}, {v(t)}, {v(r+e)}
v_mul_f32 {v(u)}, {v(u)}, {v(r+e+1)}
v_cvt_pk_bf16_f32 {v(dst+4*k+e//2)}, {v(t)}, {v(u)}''')
    emit(6, X); emit(7, Y)
    for e in range(8):
        A(f'v_fma_f32 {v(W+e)}, {v(two)}, {v(X+e)}, -{v(Y+e)}')
        A(f'v_fma_f32 {v(Z+e)}, {v(two)}, {v(Y+e)}, -{v(X+e)}')
    emit(5, W); emit(8, Z)
    up = [Y, Z]; dn = [X, W]
    for i in range(5):
        o, c = up[i % 2], up[(i + 1) % 2]
        o2, c2 = dn[i % 2], dn[(i + 1) % 2]
        for e in range(8):
            A(f'v_fma_f32 {v(o+e)}, {v(two)}, {v(c+e)}, -{v(o+e)}')
            A(f'v_fma_f32 {v(o2+e)}, {v(two)}, {v(c2+e)}, -{v(o2+e)}')
        emit(9 + i, o); emit(4 - i, o2)

def lam_calc(A, vre, vim, vdt, lr, li, t0, t1):
    A(f'''v_lshlrev_b32 {v(vre)}, 16, {v(vre)}
v_lshlrev_b32 {v(vim)}, 16, {v(vim)}
v_lshlrev_b32 {v(vdt)}, 16, {v(vdt)}
v_mul_f32 {v(vdt)}, {f2u(LOG2E)}, {v(vdt)}
v_exp_f32 {v(vdt)}, {v(vdt)}
v_cvt_pk_bf16_f32 {v(vdt)}, {v(vdt)}, {v(vdt)}
v_lshlrev_b32 {v(vdt)}, 16, {v(vdt)}
v_mul_f32 {v(t0)}, {v(vdt)}, {v(vre)}
v_mul_f32 {v(t0)}, {f2u(LOG2E)}, {v(t0)}
v_exp_f32 {v(t0)}, {v(t0)}
v_mul_f32 {v(t1)}, {v(vdt)}, {v(vim)}
v_mul_f32 {v(t1)}, {f2u(1/(2*math.pi))}, {v(t1)}
v_fract_f32 {v(t1)}, {v(t1)}
v_cos_f32 {v(lr)}, {v(t1)}
v_sin_f32 {v(li)}, {v(t1)}
v_mul_f32 {v(lr)}, {v(lr)}, {v(t0)}
v_mul_f32 {v(li)}, {v(li)}, {v(t0)}''')

def prefetch_code(A, start, nbytes, vtmp, stmp, dst):
    A(f's_getpc_b64 {s(stmp,2)}')
    A(f's_add_u32 {s(stmp)}, {s(stmp)}, {start}@rel32@lo+4')
    A(f's_addc_u32 {s(stmp+1)}, {s(stmp+1)}, {start}@rel32@hi+12')
    A(f'v_lshlrev_b32 {v(vtmp)}, 4, v0')
    n = (nbytes + 4095) // 4096
    for i in range(n):
        A(f'global_load_dwordx4 {v(dst,4)}, {v(vtmp)}, {s(stmp,2)}')
        if i < n - 1: A(f'v_add_u32 {v(vtmp)}, 4096, {v(vtmp)}')

RED = 65536

def ksplit_reduce(A, T0, T1, vaddr_w, vaddr_r, tmp):
    stamp(A, 4)
    for i, r in enumerate((T0 + 4, T0 + 12, T1 + 4, T1 + 12)):
        A(f'ds_write_b128 {v(vaddr_w)}, {v(r,4)} offset:{i*1024}')
    A('s_waitcnt lgkmcnt(0)\ns_barrier')
    for i in range(4):
        A(f'ds_read_b128 {v(tmp+4*i,4)}, {v(vaddr_r)} offset:{i*1024}')
    for i, r in enumerate((T0, T0 + 8, T1, T1 + 8)):
        A(f's_waitcnt lgkmcnt({3-i})')
        for e in range(4):
            A(f'v_add_f32 {v(r+e)}, {v(r+e)}, {v(tmp+4*i+e)}')
    stamp(A, 5)

def zc_epilogue(A, T0, T1, lane, tmp, s_ws, s_rt, s_sl, s_kh, s_wm, s_t, wave, ssq_lds):
    va, s0, s1, vl, pk = tmp, tmp + 1, tmp + 2, tmp + 3, tmp + 4
    A(f'''v_lshrrev_b32 {v(va)}, 5, {v(lane)}
v_lshlrev_b32 {v(va)}, 14, {v(va)}
v_and_b32 {v(s0)}, 31, {v(lane)}
v_lshl_add_u32 {v(va)}, {v(s0)}, 2, {v(va)}
s_lshl_b32 {s(s_t)}, {s(s_sl)}, 5
s_lshl_b32 {s(s_t+1)}, {s(s_wm)}, 4
s_add_u32 {s(s_t)}, {s(s_t)}, {s(s_t+1)}
s_lshl_b32 {s(s_t+1)}, {s(s_kh)}, 2
s_add_u32 {s(s_t)}, {s(s_t)}, {s(s_t+1)}
s_lshl_b32 {s(s_t)}, {s(s_t)}, 13
s_lshl_b32 {s(s_t+1)}, {s(s_rt)}, 8
s_add_u32 {s(s_t)}, {s(s_t)}, {s(s_t+1)}
s_add_u32 {s(s_t)}, {s(s_t)}, {ZC}
s_add_u32 {s(s_t+1)}, {s(s_t)}, 8192
s_add_u32 {s(s_t+2)}, {s(s_t)}, {8*8192}
s_add_u32 {s(s_t+3)}, {s(s_t)}, {9*8192}''')
    k = 0
    for nt, T in enumerate((T0, T1)):
        for qi, q in enumerate((0, 2)):
            for ip in range(2):
                r = T + 4 * q + 2 * ip
                A(f'v_cvt_pk_bf16_f32 {v(pk+k)}, {v(r)}, {v(r+1)}')
                A(f'buffer_store_dword {v(pk+k)}, {v(va)}, {s(s_ws,4)}, {s(s_t+2*qi+ip)} offen offset:{nt*128}')
                k += 1
    lab = A.label('nodc')
    A(f'''s_or_b32 {s(s_t+4)}, {s(s_sl)}, {s(wave)}
s_cmp_lg_u32 {s(s_t+4)}, 0
s_cbranch_scc1 {lab}
v_cmp_gt_u32 vcc, 32, {v(lane)}
v_cndmask_b32 {v(T0+1)}, {v(T0+1)}, 0, vcc
v_cndmask_b32 {v(T1+1)}, {v(T1+1)}, 0, vcc
{lab}:''')
    for sreg, T in ((s0, T0), (s1, T1)):
        A(f'v_mul_f32 {v(sreg)}, {v(T)}, {v(T)}')
    for r in (1, 2, 3, 8, 9, 10, 11):
        for sreg, T in ((s0, T0), (s1, T1)):
            A(f'v_fmac_f32 {v(sreg)}, {v(T+r)}, {v(T+r)}')
    A(f'''v_permlane32_swap_b32 {v(s0)}, {v(s1)}
v_add_f32 {v(s0)}, {v(s0)}, {v(s1)}
v_lshlrev_b32 {v(vl)}, 2, {v(lane)}
s_lshl_b32 {s(s_t+4)}, {s(wave)}, 8
v_add_u32 {v(s1)}, {s(s_t+4)}, {v(vl)}
ds_write_b32 {v(s1)}, {v(s0)} offset:{ssq_lds}
s_waitcnt lgkmcnt(0)
s_barrier
s_cmp_lg_u32 {s(wave)}, 0
s_cbranch_scc1 L_end
ds_read2st64_b32 {v(pk,2)}, {v(vl)} offset0:{ssq_lds//256} offset1:{ssq_lds//256+1}
ds_read2st64_b32 {v(pk+2,2)}, {v(vl)} offset0:{ssq_lds//256+2} offset1:{ssq_lds//256+3}
s_lshl_b32 {s(s_t)}, {s(s_sl)}, 13
s_lshl_b32 {s(s_t+1)}, {s(s_rt)}, 8
s_add_u32 {s(s_t)}, {s(s_t)}, {s(s_t+1)}
s_add_u32 {s(s_t)}, {s(s_t)}, {SSQ}
s_waitcnt lgkmcnt(0)
v_add_f32 {v(pk)}, {v(pk)}, {v(pk+1)}
v_add_f32 {v(pk+2)}, {v(pk+2)}, {v(pk+3)}
v_add_f32 {v(pk)}, {v(pk)}, {v(pk+2)}
buffer_store_dword {v(pk)}, {v(vl)}, {s(s_ws,4)}, {s(s_t)} offen''')

def k0():
    A = Asm()
    lane = 1
    QA, T0, T1, BF, B0, CH, TM = 16, 72, 88, 104, 160, 216, 248
    sW = 4
    sI = 8
    sI2 = 12
    wave, kh, wm, rt, sl = 20, 21, 22, 23, 24
    sinv, s448 = 25, 26
    st = 28
    stamp(A, 0)
    prefetch_code(A, 'k0_kernel', K0_BYTES, 2, 40, 72)
    ld_ptr(A, sW, WS)
    A(f'''v_and_b32 {v(lane)}, 63, v0
v_lshrrev_b32 v2, 6, v0
v_readfirstlane_b32 {s(wave)}, v2
s_and_b32 {s(kh)}, {s(wave)}, 1
s_lshr_b32 {s(wm)}, {s(wave)}, 1
s_mov_b32 {s(sinv)}, {f2u(INV448)}
s_mov_b32 {s(s448)}, {f2u(448.0)}
s_cmp_lt_u32 s2, 224
s_cbranch_scc1 R_x
s_cmp_lt_u32 s2, 256
s_cbranch_scc1 R_wt
s_cmp_lt_u32 s2, 354
s_cbranch_scc1 R_m1
s_cmp_lt_u32 s2, 452
s_cbranch_scc1 R_m2b
s_cmp_lt_u32 s2, 501
s_cbranch_scc1 R_m2a
s_endpgm''')

    def stage_rows(rowbase_s):
        A(f's_lshl_b32 {s(st)}, {s(wave)}, 14\ns_mov_b32 m0, {s(st)}\nv_lshlrev_b32 v2, 4, {v(lane)}')
        for r in range(16):
            if r: A(f'v_xor_b32 v3, {16*r}, v2')
            A(f'buffer_load_dwordx4 {v(3 if r else 2)}, {s(sI,4)}, {s(rowbase_s)} offen lds')
            if r < 15: A(f's_add_u32 m0, m0, 1024\ns_add_u32 {s(rowbase_s)}, {s(rowbase_s)}, 896')

    def q_setup(xor8):
        A(f'''v_and_b32 v4, 31, {v(lane)}
s_lshl_b32 {s(st)}, {s(sl)}, 6
s_lshl_b32 {s(st+1)}, {s(wm)}, 5
s_add_u32 {s(st)}, {s(st)}, {s(st+1)}''')
        if xor8:
            A(f's_lshl_b32 {s(st+1)}, {s(kh)}, 3\nv_xor_b32 v4, {s(st+1)}, v4')
        A(f'''v_add_u32 v4, {s(st)}, v4
v_lshrrev_b32 v5, 5, {v(lane)}
v_lshlrev_b32 v5, 3, v5
s_mul_i32 {s(st)}, {s(kh)}, 224
v_add_u32 v5, {s(st)}, v5
v_cvt_f32_u32 v5, v5''')

    def red_addr():
        A(f'''s_lshl_b32 {s(st)}, {s(wave)}, 12
s_add_u32 {s(st)}, {s(st)}, {RED}
s_xor_b32 {s(st+1)}, {s(st)}, 4096
v_lshlrev_b32 v7, 4, {v(lane)}
v_add_u32 v6, {s(st)}, v7
v_add_u32 v7, {s(st+1)}, v7''')

    def gemm_rows():
        A(f'''v_and_b32 v8, 31, {v(lane)}
v_lshrrev_b32 v9, 5, {v(lane)}
v_and_b32 v10, 15, {v(lane)}
v_xor_b32 v9, v9, v10
v_lshlrev_b32 v9, 4, v9
v_lshl_add_u32 v8, v8, 10, v9
s_mul_i32 {s(st)}, {s(kh)}, 448''')
        stamp(A, 2)
        A('s_waitcnt vmcnt(0)\ns_barrier')
        stamp(A, 3)
        def rd(k):
            b = BF + 8 * (k % 4)
            A(f'v_xor_b32 v9, {s(st)}, v8\ns_add_u32 {s(st)}, {s(st)}, 32')
            A(f'ds_read_b128 {v(b,4)}, v9\nds_read_b128 {v(b+4,4)}, v9 offset:32768')
        for k in range(3): rd(k)
        for k in range(14):
            if k + 3 < 14: rd(k + 3)
            out = min(3, 13 - k)
            A(f's_waitcnt lgkmcnt({2*out})')
            b = BF + 8 * (k % 4)
            c0 = v(T0, 16) if k else '0'; c1 = v(T1, 16) if k else '0'
            A(f'v_mfma_f32_32x32x16_bf16 {v(T0,16)}, {v(QA+4*k,4)}, {v(b,4)}, {c0}')
            A(f'v_mfma_f32_32x32x16_bf16 {v(T1,16)}, {v(QA+4*k,4)}, {v(b+4,4)}, {c1}')

    A('R_x:')
    ld_ptr(A, sI, A_X)
    tile_ids(A, rt, sl, st)
    A(f's_lshl_b32 {s(st+2)}, {s(rt)}, 2\ns_add_u32 {s(st+2)}, {s(st+2)}, {s(wave)}\ns_mul_i32 {s(st+2)}, {s(st+2)}, {16*896}')
    A('s_waitcnt lgkmcnt(0)')
    srd(A, sI, S * D * 2); srd_ws(A, sW); stamp(A, 1)
    stage_rows(st + 2)
    q_setup(True); red_addr()
    gen_q(A, QA, 4, 5, math.sqrt(1.0 / 448), CH, TM, sinv, s448)
    gemm_rows()
    ksplit_reduce(A, T0, T1, 6, 7, BF)
    zc_epilogue(A, T0, T1, lane, BF + 16, sW, rt, sl, kh, wm, st, wave, 0)
    A('s_branch L_end')

    A('R_m1:')
    pb = rt
    ld_ptr(A, sI, B_RE); ld_ptr(A, sI2, B_IM)
    ld_ptr(A, 40, L_RE); ld_ptr(A, 44, L_IM); ld_ptr(A, 48, LOGDT)
    A(f's_sub_u32 {s(st+2)}, s2, 256')
    div7(A, pb, sl, st + 2, st)
    A(f'''s_lshl_b32 {s(st+2)}, {s(pb)}, 1
s_add_u32 {s(st+2)}, {s(st+2)}, {s(kh)}
s_mul_i32 {s(st+2)}, {s(st+2)}, {16*896}
s_waitcnt lgkmcnt(0)
s_cmp_eq_u32 {s(wm)}, 0
s_cselect_b32 {s(sI)}, {s(sI)}, {s(sI2)}
s_cselect_b32 {s(sI+1)}, {s(sI+1)}, {s(sI2+1)}''')
    srd(A, sI, D * D * 2); srd_ws(A, sW); stamp(A, 1)
    for r in (40, 44, 48): srd(A, r, D * 2)
    stage_rows(st + 2)
    A(f'''v_and_b32 v11, 31, {v(lane)}
v_lshlrev_b32 v11, 1, v11
s_lshl_b32 {s(st+2)}, {s(pb)}, 6
buffer_load_ushort v12, v11, s[40:43], {s(st+2)} offen
buffer_load_ushort v13, v11, s[44:47], {s(st+2)} offen
buffer_load_ushort v14, v11, s[48:51], {s(st+2)} offen''')
    q_setup(True); red_addr()
    gen_q(A, QA, 4, 5, 0.0, CH, TM, sinv, s448)
    gemm_rows()
    lr, li, t0, t1, gr, gi = CH, CH + 1, CH + 2, CH + 3, CH + 4, CH + 5
    lam_calc(A, 12, 13, 14, lr, li, t0, t1)
    A(f'''v_subrev_f32 {v(lr)}, 1.0, {v(lr)}
v_mul_f32 {v(t0)}, v12, v12
v_fmac_f32 {v(t0)}, v13, v13
v_rcp_f32 {v(t0)}, {v(t0)}
v_mul_f32 {v(gr)}, {v(lr)}, v12
v_fmac_f32 {v(gr)}, {v(li)}, v13
v_mul_f32 {v(gi)}, {v(li)}, v12
v_fma_f32 {v(gi)}, -{v(lr)}, v13, {v(gi)}
v_mul_f32 {v(gr)}, {v(gr)}, {v(t0)}
v_mul_f32 {v(gi)}, {v(gi)}, {v(t0)}''')
    ksplit_reduce(A, T0, T1, 6, 7, BF)
    o = BF + 16
    for i, r in enumerate((0, 1, 2, 3, 8, 9, 10, 11)):
        A(f'''v_mul_f32 {v(o+i)}, {v(gr)}, {v(T0+r)}
v_mul_f32 {v(o+8+i)}, {v(gr)}, {v(T1+r)}
v_fma_f32 {v(o+i)}, -{v(gi)}, {v(T1+r)}, {v(o+i)}
v_fmac_f32 {v(o+8+i)}, {v(gi)}, {v(T0+r)}''')
    for i in range(8):
        A(f'v_cvt_pk_bf16_f32 {v(BF+i)}, {v(o+2*i)}, {v(o+2*i+1)}')
    A(f'''v_bfe_u32 v8, {v(lane)}, 4, 1
v_mul_u32_u24 v8, {28*1024}, v8
v_lshrrev_b32 v9, 5, {v(lane)}
v_lshl_add_u32 v8, v9, 8, v8
v_and_b32 v9, 15, {v(lane)}
v_lshl_add_u32 v8, v9, 4, v8
s_mul_i32 {s(st)}, {s(pb)}, 28
s_lshl_b32 {s(st+1)}, {s(sl)}, 1
s_add_u32 {s(st)}, {s(st)}, {s(st+1)}
s_add_u32 {s(st)}, {s(st)}, {s(wm)}
s_lshl_b32 {s(st)}, {s(st)}, 11
s_lshl_b32 {s(st+1)}, {s(kh)}, 9
s_add_u32 {s(st)}, {s(st)}, {s(st+1)}
s_add_u32 {s(st)}, {s(st)}, {WM1}
buffer_store_dwordx4 {v(BF,4)}, v8, {s(sW,4)}, {s(st)} offen
buffer_store_dwordx4 {v(BF+4,4)}, v8, {s(sW,4)}, {s(st)} offen offset:1024
s_branch L_end''')

    A('R_m2b:')
    arr, pblk = 27, rt
    ld_ptr(A, sI, C_RE); ld_ptr(A, sI2, C_IM)
    A(f's_sub_u32 {s(st+2)}, s2, 354')
    div7(A, st + 3, sl, st + 2, st)
    A(f'''s_cmp_ge_u32 {s(st+3)}, 7
s_cselect_b32 {s(arr)}, 1, 0
s_mul_i32 {s(st)}, {s(arr)}, 7
s_sub_u32 {s(pblk)}, {s(st+3)}, {s(st)}
s_mul_i32 {s(st+2)}, {s(wave)}, {14*7168}
s_lshl_b32 {s(st)}, {s(pblk)}, 7
s_add_u32 {s(st+2)}, {s(st+2)}, {s(st)}
v_lshrrev_b32 v2, 3, {v(lane)}
v_mul_u32_u24 v2, 896, v2
v_and_b32 v3, 7, {v(lane)}
v_bfe_u32 v4, {v(lane)}, 4, 1
v_lshlrev_b32 v4, 2, v4
v_xor_b32 v3, v3, v4
v_lshl_add_u32 v2, v3, 4, v2
s_mul_i32 {s(st)}, {s(wave)}, {14*1024}
s_mov_b32 m0, {s(st)}
s_waitcnt lgkmcnt(0)
s_cmp_eq_u32 {s(arr)}, 0
s_cselect_b32 {s(sI)}, {s(sI)}, {s(sI2)}
s_cselect_b32 {s(sI+1)}, {s(sI+1)}, {s(sI2+1)}''')
    srd(A, sI, D * D * 2); srd_ws(A, sW); stamp(A, 1)
    for i in range(14):
        A(f'buffer_load_dwordx4 v2, {s(sI,4)}, {s(st+2)} offen lds')
        if i < 13: A(f's_add_u32 m0, m0, 1024\ns_add_u32 {s(st+2)}, {s(st+2)}, 7168')
    q_setup(False); red_addr()
    gen_q(A, QA, 4, 5, math.sqrt(1.0 / 448), CH, TM, sinv, s448)
    A(f'''v_bfe_u32 v8, {v(lane)}, 2, 2
v_lshrrev_b32 v9, 5, {v(lane)}
v_lshl_add_u32 v9, v9, 3, v8
v_lshlrev_b32 v9, 7, v9
v_lshrrev_b32 v8, 1, v8
v_lshl_add_u32 v9, v8, 6, v9
v_bfe_u32 v8, {v(lane)}, 1, 1
v_xor_b32 v8, {s(kh)}, v8
v_lshl_add_u32 v9, v8, 5, v9
v_bfe_u32 v8, {v(lane)}, 4, 1
v_lshl_add_u32 v9, v8, 4, v9
v_and_b32 v8, 1, {v(lane)}
v_lshl_add_u32 v9, v8, 3, v9
s_mul_i32 {s(st)}, {s(kh)}, {224*128}
v_add_u32 v8, {s(st)}, v9
v_xor_b32 v9, 64, v8''')
    stamp(A, 2)
    A('s_waitcnt vmcnt(0)\ns_barrier')
    stamp(A, 3)
    def rd2(k):
        b = BF + 8 * (k % 4)
        for mt in range(2):
            for hf in range(2):
                A(f'ds_read_b64_tr_b16 {v(b+4*mt+2*hf,2)}, {v(8+mt)} offset:{k*2048+hf*512}')
    for k in range(3): rd2(k)
    for k in range(14):
        if k + 3 < 14: rd2(k + 3)
        A(f's_waitcnt lgkmcnt({4*min(3, 13-k)})')
        b = BF + 8 * (k % 4)
        c0 = v(T0, 16) if k else '0'; c1 = v(T1, 16) if k else '0'
        A(f'v_mfma_f32_32x32x16_bf16 {v(T0,16)}, {v(b,4)}, {v(QA+4*k,4)}, {c0}')
        A(f'v_mfma_f32_32x32x16_bf16 {v(T1,16)}, {v(b+4,4)}, {v(QA+4*k,4)}, {c1}')
    ksplit_reduce(A, T0, T1, 6, 7, BF)
    for mt, T in enumerate((T0, T1)):
        for i, r in enumerate((0, 2, 8, 10)):
            A(f'v_cvt_pk_bf16_f32 {v(BF+16+4*mt+i)}, {v(T+r)}, {v(T+r+1)}')
    A(f'''v_lshlrev_b32 v8, 4, {v(lane)}
s_lshl_b32 {s(st)}, {s(sl)}, 1
s_add_u32 {s(st)}, {s(st)}, {s(arr)}
s_lshl_b32 {s(st)}, {s(st)}, 1
s_add_u32 {s(st)}, {s(st)}, {s(wm)}
s_mul_i32 {s(st)}, {s(st)}, 28
s_lshl_b32 {s(st+1)}, {s(pblk)}, 2
s_add_u32 {s(st)}, {s(st)}, {s(st+1)}
s_add_u32 {s(st)}, {s(st)}, {s(kh)}
s_lshl_b32 {s(st)}, {s(st)}, 10
s_add_u32 {s(st)}, {s(st)}, {WC}
buffer_store_dwordx4 {v(BF+16,4)}, v8, {s(sW,4)}, {s(st)} offen
buffer_store_dwordx4 {v(BF+20,4)}, v8, {s(sW,4)}, {s(st)} offen offset:2048
s_branch L_end''')

    A('R_m2a:')
    sp = rt
    ld_ptr(A, sI, DSKIP)
    A(f's_sub_u32 {s(st+2)}, s2, 452')
    div7(A, sp, sl, st + 2, st)
    A(f'''v_lshrrev_b32 v2, 5, {v(lane)}
v_lshlrev_b32 v2, 4, v2
s_mul_i32 {s(st+2)}, {s(kh)}, 448
s_waitcnt lgkmcnt(0)''')
    srd(A, sI, D * 2); srd_ws(A, sW); stamp(A, 1)
    for k in range(14):
        A(f'buffer_load_dwordx4 {v(BF+4*k,4)}, v2, {s(sI,4)}, {s(st+2)} offen offset:{32*k}')
    q_setup(True); red_addr()
    A(f'v_and_b32 v10, 31, {v(lane)}\ns_lshl_b32 {s(st)}, {s(sp)}, 6\nv_add_u32 v10, {s(st)}, v10')
    gen_q(A, B0, 10, 5, math.sqrt(1.0 / 448), CH, TM, sinv, s448)
    A('s_waitcnt vmcnt(0)')
    gen_q(A, QA, 4, 5, 0.0, CH, TM, sinv, s448, dreg=BF, scale=0.5)
    A('v_add_u32 v10, 32, v10')
    gen_q(A, BF, 10, 5, math.sqrt(1.0 / 448), CH, TM, sinv, s448)
    for k in range(14):
        c0 = v(T0, 16) if k else '0'; c1 = v(T1, 16) if k else '0'
        A(f'v_mfma_f32_32x32x16_bf16 {v(T0,16)}, {v(QA+4*k,4)}, {v(B0+4*k,4)}, {c0}')
        A(f'v_mfma_f32_32x32x16_bf16 {v(T1,16)}, {v(QA+4*k,4)}, {v(BF+4*k,4)}, {c1}')
    ksplit_reduce(A, T0, T1, 6, 7, B0)
    for nt, T in enumerate((T0, T1)):
        for i, r in enumerate((0, 2, 8, 10)):
            A(f'v_cvt_pk_bf16_f32 {v(B0+16+4*nt+i)}, {v(T+r)}, {v(T+r+1)}')
    A(f'''v_bfe_u32 v8, {v(lane)}, 4, 1
v_mul_u32_u24 v8, {14*1024}, v8
v_lshrrev_b32 v9, 5, {v(lane)}
v_lshl_add_u32 v8, v9, 8, v8
v_and_b32 v9, 15, {v(lane)}
v_lshl_add_u32 v8, v9, 4, v8
s_mul_i32 {s(st)}, {s(sp)}, 56
s_lshl_b32 {s(st+1)}, {s(sl)}, 1
s_add_u32 {s(st)}, {s(st)}, {s(st+1)}
s_add_u32 {s(st)}, {s(st)}, {s(wm)}
s_lshl_b32 {s(st)}, {s(st)}, 10
s_lshl_b32 {s(st+1)}, {s(kh)}, 9
s_add_u32 {s(st)}, {s(st)}, {s(st+1)}
s_add_u32 {s(st)}, {s(st)}, {WSK}
s_add_u32 {s(st+1)}, {s(st)}, {28*1024}
buffer_store_dwordx4 {v(B0+16,4)}, v8, {s(sW,4)}, {s(st)} offen
buffer_store_dwordx4 {v(B0+20,4)}, v8, {s(sW,4)}, {s(st+1)} offen
s_branch L_end''')

    A('R_wt:')
    ld_ptr(A, sI, A_WR); ld_ptr(A, sI2, A_WI)
    prefetch_code(A, 'k1_kernel', REST_BYTES, 2, 40, 72)
    arr, w4, g = 27, rt, sl
    A(f'''s_sub_u32 {s(st)}, s2, 224
s_and_b32 {s(arr)}, {s(st)}, 1
s_lshr_b32 {s(w4)}, {s(st)}, 1
s_and_b32 {s(w4)}, {s(w4)}, 3
s_lshr_b32 {s(g)}, {s(st)}, 3
s_lshl_b32 {s(st)}, {s(g)}, 3
s_lshl_b32 {s(st+1)}, {s(wave)}, 1
s_add_u32 {s(st)}, {s(st)}, {s(st+1)}
s_lshl_b32 {s(st)}, {s(st)}, 2
s_add_u32 {s(st)}, {s(st)}, {s(w4)}
s_mul_i32 {s(st+2)}, {s(st)}, 7200
s_lshl_b32 {s(st)}, {s(wave)}, 14
s_mov_b32 m0, {s(st)}
v_lshlrev_b32 v2, 4, {v(lane)}
s_waitcnt lgkmcnt(0)
s_cmp_eq_u32 {s(arr)}, 0
s_cselect_b32 {s(sI)}, {s(sI)}, {s(sI2)}
s_cselect_b32 {s(sI+1)}, {s(sI+1)}, {s(sI2+1)}''')
    srd(A, sI, S * 450); srd_ws(A, sW); stamp(A, 1)
    for e in range(2):
        for hb in range(2):
            for i in range(4):
                A(f'buffer_load_dwordx4 v2, {s(sI,4)}, {s(st+2)} offen offset:{i*1024} lds')
            if not (e == 1 and hb == 1):
                A(f's_add_u32 m0, m0, 4096\ns_add_u32 {s(st+2)}, {s(st+2)}, {4096 if hb == 0 else 4*7200-4096}')
    A(f'''v_and_b32 v3, 15, {v(lane)}
v_mul_u32_u24 v4, 450, v3
v_lshrrev_b32 v5, 4, v0
v_lshl_add_u32 v4, v5, 1, v4
v_add_u32 v6, 448, v4
v_cmp_eq_u32 vcc, 0, v5
v_cndmask_b32 v6, v4, v6, vcc
v_lshlrev_b32 v5, 13, v5
v_lshl_add_u32 v5, v3, 4, v5
s_lshl_b32 {s(st)}, {s(w4)}, 1
s_add_u32 {s(st)}, {s(st)}, {s(arr)}
s_lshl_b32 {s(st)}, {s(st)}, 10
s_lshl_b32 {s(st+1)}, {s(g)}, 8
s_add_u32 {s(st)}, {s(st)}, {s(st+1)}
s_add_u32 {s(st)}, {s(st)}, {WF}''')
    stamp(A, 2)
    A('s_waitcnt vmcnt(0)\ns_barrier')
    stamp(A, 3)
    def wt_fin(it):
        b = 16 + 8 * (it % 2)
        o = 32 + 4 * it
        for i in range(4):
            A(f'v_or_b32 {v(o+i)}, {v(b+2*i)}, {v(b+2*i+1)}')
        A(f'buffer_store_dwordx4 {v(o,4)}, v5, {s(sW,4)}, {s(st)} offen\ns_add_u32 {s(st)}, {s(st)}, {16*8192}')
    for it in range(14):
        b = 16 + 8 * (it % 2)
        for e in range(8):
            A(f'ds_read_u16{"_d16_hi" if e & 1 else ""} {v(b+e)}, {v(6 if it == 0 else 4)} offset:{e*8192+it*32}')
        if it >= 1:
            A('s_waitcnt lgkmcnt(8)')
            wt_fin(it - 1)
    A('s_waitcnt lgkmcnt(0)')
    wt_fin(13)
    A('L_end:')
    stamp_out(A, 0, sW)
    A('s_endpgm')
    return A.render().replace('L_end', 'k0_end')

K0_BYTES = 24576
REST_BYTES = 28672

def build(kernels, launches):
    out = ''
    for k, g, lds in launches:
        out += f'; @launch kernel={k}_kernel grid=({g},1,1) block=(256,1,1) lds={lds}\n'
    out += '.amdgcn_target "amdgcn-amd-amdhsa--gfx950"\n'
    descs = ''
    for name, body, vg, ag in kernels:
        t, d = kernel_text(name + '_kernel', body, vg, ag)
        if body is not None: out += t
        else: out += f'.globl {name}_kernel\n.type {name}_kernel,@function\n'
        descs += d
    out += '.text\n.p2align 8\ncode_end:\n.fill 2048, 4, 0xbf800000\n' + descs
    return out

if __name__ == '__main__':
    import gen_rest
    gen_rest.main()
```

```python
import re, struct

def f2u(f):
    return '0x%08x' % struct.unpack('<I', struct.pack('<f', f))[0]

def v(i, n=1):
    return 'v%d' % i if n == 1 else 'v[%d:%d]' % (i, i + n - 1)
def a(i, n=1):
    return 'a%d' % i if n == 1 else 'a[%d:%d]' % (i, i + n - 1)
def s(i, n=1):
    return 's%d' % i if n == 1 else 's[%d:%d]' % (i, i + n - 1)

_REG = re.compile(r'^(-|abs\(|\|)?\s*([vas])(?:(\d+)|\[(\d+):(\d+)\])')
TRANS = ('v_exp_f32', 'v_log_f32', 'v_rcp_f32', 'v_rsq_f32', 'v_sqrt_f32', 'v_sin_f32', 'v_cos_f32', 'v_rcp_iflag_f32')

def regs_of(op):
    op = op.strip()
    if op in ('vcc', 'exec', 'm0', 'scc'):
        return {(op, 0)}
    if op in ('vcc_lo', 'vcc_hi'):
        return {('vcc', 0)}
    if op in ('exec_lo', 'exec_hi'):
        return {('exec', 0)}
    m = _REG.match(op)
    if not m:
        return set()
    k = m.group(2)
    if m.group(3) is not None:
        return {(k, int(m.group(3)))}
    return {(k, i) for i in range(int(m.group(4)), int(m.group(5)) + 1)}

def split_ops(rest):
    ops, depth, cur = [], 0, ''
    for ch in rest:
        if ch in '[(':
            depth += 1
        if ch in '])':
            depth -= 1
        if ch == ',' and depth == 0:
            ops.append(cur); cur = ''
        else:
            cur += ch
    if cur.strip():
        ops.append(cur)
    return [o.strip() for o in ops]

class Ins:
    __slots__ = ('text', 'mn', 'wr', 'rd', 'kind', 'srcc', 'passes', 'states', 'dpp', 'wide_store', 'data', 'lanesel')
    def __init__(self, text):
        self.text = text
        t = text.split(';')[0].strip()
        parts = t.split(None, 1)
        mn = parts[0]; self.mn = mn
        rest = parts[1] if len(parts) > 1 else ''
        ops = split_ops(rest)
        mods = ''
        if ops:
            last = ops[-1].split(None, 1)
            ops[-1] = last[0]
            mods = last[1] if len(last) > 1 else ''
        self.wr, self.rd = set(), set()
        self.srcc = set(); self.passes = 0; self.states = 1
        self.dpp = ('_dpp' in mn) or ('row_' in mods) or ('quad_perm' in mods)
        self.wide_store = False; self.data = set(); self.lanesel = set()
        R = [regs_of(o) for o in ops]
        def allr(l):
            r = set()
            for x in l: r |= x
            return r
        if mn == 's_nop':
            self.kind = 'nop'; self.states = int(ops[0], 0) + 1
        elif mn.startswith('v_mfma'):
            self.kind = 'mfma'
            self.wr = R[0]; self.rd = R[1] | R[2] | R[3]; self.srcc = R[3]
            self.passes = 8 if '32x32x16' in mn else 4 if '16x16x32' in mn else 16
        elif mn.startswith('v_cmp'):
            self.kind = 'valu'; self.wr = set(R[0]); self.rd = allr(R[1:])
            if mn.startswith('v_cmpx'): self.wr |= {('exec', 0)}
        elif mn.startswith('v_readfirstlane') or mn.startswith('v_readlane'):
            self.kind = 'valu'; self.wr = R[0]; self.rd = allr(R[1:])
            if len(R) > 2: self.lanesel = R[2]
        elif mn.startswith('v_permlane') and 'swap' in mn:
            self.kind = 'valu'; self.wr = R[0] | R[1]; self.rd = R[0] | R[1]
        elif mn.startswith('v_'):
            self.kind = 'valu'
            if re.match(r'v_(add|sub|subrev|addc|subb)_co_u32', mn) or mn.startswith('v_mad_u64') or mn.startswith('v_div_scale'):
                self.wr = R[0] | R[1]; self.rd = allr(R[2:])
            else:
                self.wr = set(R[0]); self.rd = allr(R[1:])
            if re.match(r'v_(fmac|mac|dot2c|pk_fmac)', mn) or mn.startswith('v_writelane') or self.dpp or 'sdwa' in mn:
                self.rd |= R[0]
            if mn.startswith('v_cndmask') and len(ops) == 3:
                self.rd |= {('vcc', 0)}
        elif mn.startswith('ds_'):
            self.kind = 'ds'
            if mn.startswith('ds_read') or mn.startswith('ds_bpermute') or mn.startswith('ds_permute') or mn.startswith('ds_swizzle'):
                self.wr = R[0]; self.rd = allr(R[1:])
                if 'd16' in mn: self.rd |= R[0]
            else:
                self.rd = allr(R)
        elif mn.startswith('buffer_') or mn.startswith('global_'):
            self.kind = 'vmem'
            islds = re.search(r'\blds\b', mods) is not None or 'load_lds' in mn
            if mn in ('buffer_wbl2', 'buffer_inv'):
                pass
            elif islds:
                self.rd = allr(R) | {('m0', 0)}
            elif 'load' in mn:
                self.wr = R[0]; self.rd = allr(R[1:])
                if 'd16' in mn: self.rd |= R[0]
            else:
                self.rd = allr(R)
                dat = R[0] if mn.startswith('buffer_') else R[1]
                self.data = dat
                if 'x3' in mn or 'x4' in mn: self.wide_store = True
                if 'atomic' in mn and 'sc0' in mods: self.wr = dat
        elif mn.startswith('s_'):
            self.kind = 'salu'
            if mn.startswith('s_cmp') or mn.startswith('s_cbranch') or mn in ('s_branch', 's_waitcnt', 's_barrier', 's_endpgm', 's_sleep', 's_setprio', 's_bitcmp1_b32', 's_bitcmp0_b32'):
                self.rd = allr(R)
            else:
                self.wr = set(R[0]) if R else set(); self.rd = allr(R[1:])
                if 'saveexec' in mn: self.wr |= {('exec', 0)}
        else:
            raise ValueError('unknown instruction: ' + text)

def need(prod, cons):
    n = 0
    vw = {r for r in prod.wr if r[0] in 'va'}
    sw = {r for r in prod.wr if r[0] in ('s', 'vcc')}
    if prod.kind == 'valu':
        if cons.kind == 'mfma' and (vw & cons.rd): n = max(n, 2)
        if cons.kind == 'valu':
            if cons.dpp and (vw & cons.rd): n = max(n, 2)
            if cons.mn.startswith('v_permlane') and (vw & cons.rd): n = max(n, 2)
            if (cons.mn.startswith('v_readfirstlane') or cons.mn.startswith('v_readlane')) and (vw & cons.rd): n = max(n, 1)
            if sw & cons.rd: n = max(n, 2)
            if sw & cons.lanesel: n = max(n, 4)
            if prod.mn.split('_e32')[0].split('_e64')[0] in TRANS and (vw & cons.rd): n = max(n, 1)
            if ('sdwa' in prod.mn or ('op_sel' in prod.text and not prod.mn.startswith('v_pk_'))) and (vw & (cons.rd | cons.wr)): n = max(n, 1)
            if ('exec', 0) in prod.wr:
                if cons.dpp: n = max(n, 5)
                if cons.mn.startswith('v_read') or cons.mn.startswith('v_permlane') or cons.mn.startswith('v_writelane'): n = max(n, 4)
        if cons.kind == 'mfma' and ('exec', 0) in prod.wr: n = max(n, 4)
        if cons.kind == 'vmem' and (sw & cons.rd): n = max(n, 5)
        if cons.kind == 'salu' and (sw & cons.rd) and not cons.mn.startswith('s_cbranch'): n = max(n, 1)
        if prod.mn.split('_e32')[0] in TRANS and cons.kind in ('vmem', 'ds', 'mfma') and (vw & cons.rd): n = max(n, 2)
    if prod.kind == 'salu':
        if ('m0', 0) in prod.wr and ('m0', 0) in cons.rd: n = max(n, 1)
    if prod.kind == 'vmem' and prod.wide_store:
        if prod.data & cons.wr: n = max(n, 2 if cons.kind == 'valu' else 1)
    if prod.kind == 'mfma':
        big = {4: 8, 8: 12, 16: 20}[prod.passes]
        if cons.kind == 'mfma':
            ab = cons.rd - cons.srcc
            if prod.wr & ab: n = max(n, big)
            elif prod.wr & cons.srcc:
                if prod.wr == cons.srcc and prod.passes == cons.passes: pass
                else: n = max(n, big - 2)
            elif prod.wr & cons.wr: n = max(n, big)
        else:
            if prod.wr & (cons.rd | cons.wr): n = max(n, big)
        if cons.kind == 'valu' and (prod.srcc & cons.wr):
            n = max(n, {4: 3, 8: 7, 16: 15}[prod.passes])
        if cons.kind in ('vmem', 'ds') and (prod.srcc & cons.wr):
            n = max(n, {4: 3, 8: 7, 16: 15}[prod.passes])
    return n

class Asm:
    def __init__(self):
        self.lines = []
        self.nlabel = 0
        self.vm = []
        self.tag = None
        self.track = True
        self.bgq = []
    def __call__(self, text):
        for ln in text.split('\n'):
            t = ln.split(';')[0].strip()
            if not t:
                continue
            if t.endswith(':') or t.startswith('.'):
                self.lines.append(('l', t))
            else:
                ins = Ins(ln.strip())
                self.lines.append(('i', ins))
                if ins.kind == 'vmem' and self.track:
                    self.vm.append(self.tag)
    def wait_vm(self, tag=None):
        if tag is None:
            n = 0
        else:
            idx = [i for i, t in enumerate(self.vm) if t == tag]
            if not idx:
                return
            n = len(self.vm) - 1 - idx[-1]
        n = min(n, 63)
        self('s_waitcnt vmcnt(%d)' % n)
        self.vm = self.vm[len(self.vm) - n:] if n else []
    def t(self, tag, text):
        old = self.tag; self.tag = tag; self(text); self.tag = old
    def bg(self, n=1):
        for _ in range(n):
            if self.bgq:
                tag, text = self.bgq.pop(0)
                self.t(tag, text)
    def label(self, base='L'):
        self.nlabel += 1
        return '%s_%d' % (base, self.nlabel)
    def render(self):
        L = self.lines
        labels = {t[1][:-1]: i for i, t in enumerate(L) if t[0] == 'l' and t[1].endswith(':')}
        pads = [0] * (len(L) + 1)
        def walk_back(i, budget, acc, seen):
            dist = 0
            j = i - 1
            dist += pads[i]
            while j >= -1 and dist < budget:
                if j >= 0 and L[j][0] == 'l':
                    if L[j][1].endswith(':'):
                        name = L[j][1][:-1]
                        for b in self._branches.get(name, []):
                            if (b, dist) not in seen:
                                seen.add((b, dist))
                                sub = []
                                walk_back(b, budget - dist - 1, sub, seen)
                                acc.extend((p, d + dist + 1) for p, d in sub)
                    dist += pads[j]
                    j -= 1
                    continue
                if j < 0: break
                ins = L[j][1]
                if ins.mn in ('s_branch', 's_endpgm'):
                    break
                acc.append((ins, dist))
                dist += ins.states + pads[j]
                j -= 1
        self._branches = {}
        for i, t in enumerate(L):
            if t[0] == 'i' and (t[1].mn.startswith('s_cbranch') or t[1].mn == 's_branch'):
                tgt = t[1].text.split(';')[0].split()[1]
                self._branches.setdefault(tgt, []).append(i)
        for _ in range(3):
            changed = False
            for i, t in enumerate(L):
                if t[0] != 'i': continue
                acc = []
                walk_back(i, 21, acc, set())
                short = 0
                for p, d in acc:
                    n = need(p, t[1])
                    if n > d: short = max(short, n - d)
                if short:
                    pads[i] += short; changed = True
            if not changed: break
        out = []
        for i, t in enumerate(L):
            k = pads[i]
            while k > 0:
                m = min(k, 16); out.append('s_nop %d' % (m - 1)); k -= m
            out.append(t[1] if t[0] == 'l' else t[1].text)
        return '\n'.join(out) + '\n'

def kernel_text(name, body, vgpr, agpr=0, sgpr=96):
    acc = (vgpr + 3) // 4 * 4
    nfv = acc + agpr if agpr else vgpr
    return f'''.text
.globl {name}
.p2align 8
.type {name},@function
{name}:
{body}''', f'''.section .rodata,"a"
.p2align 6
.amdhsa_kernel {name}
  .amdhsa_next_free_vgpr {nfv}
  .amdhsa_next_free_sgpr {sgpr}
  .amdhsa_accum_offset {acc}
  .amdhsa_group_segment_fixed_size 0
  .amdhsa_kernarg_size 120
  .amdhsa_user_sgpr_count 2
  .amdhsa_user_sgpr_kernarg_segment_ptr 1
  .amdhsa_system_sgpr_workgroup_id_x 1
  .amdhsa_float_denorm_mode_32 3
.end_amdhsa_kernel
'''
```

```python
import sys, math
sys.path.insert(0, 'dev')
from asmgen import *

S, D = 2048, 448
A_X, A_WR, A_WI, _BX, L_RE, L_IM, B_RE, B_IM, C_RE, C_IM, LOGDT, DSKIP, OUT, DBG, WS = range(15)
MB = 1 << 20
ZC, SSQ, ZB, HB, ZMID, WF = 0, 2 * MB, 3 * MB, 5 * MB, 9 * MB, 13 * MB
ZC2, ZB3, HB2, FLAGS = 9 * MB, 11 * MB, 20 * MB, 19 * MB + 524288
SSQ2 = FLAGS + 65536
R0 = SSQ
QF = 2 * MB + 65536
ZD = 2 * MB + 32768
WM1, WSK, WC, AGG = 15 * MB, 16 * MB, 17 * MB, 19 * MB
WSK_L = 401408; WC_L = 802816; AGG_L = 32 * 448 * 8
WS_SIZE = 26 * MB
LOG2E = 1.4426950408889634
INV448 = 1.0 / 448

import os
STAMPS = int(os.environ.get('STAMPS', '0'))
STAMP = 24 * MB
KSTAMP = True
def stamp(A, i):
    if not KSTAMP: return
    if STAMPS == 1 or (STAMPS >= 2 and i == 0): A(f's_memrealtime {s(80+2*i,2)}')
def stamp_out(A, kidx, sw):
    if not STAMPS: return
    if STAMPS == 3:
        lab = A.label('dbg%d' % id(A))
        A(f's_cmp_lg_u32 s2, {os.environ.get("DBGWG", "0")}\ns_cbranch_scc1 {lab}')
        A(f's_memrealtime {s(94,2)}\ns_waitcnt lgkmcnt(0)')
        A(f's_mul_i32 s78, {kidx}, 8\ns_add_u32 s78, s78, {STAMP}')
        A(f'v_mov_b32 v240, s80\nv_mov_b32 v241, s94\nv_mov_b32 v242, 0\nbuffer_store_dwordx2 v[240:241], v242, {s(sw,4)}, s78 offen sc1')
        if kidx == 6:
            i, j = [int(x) for x in os.environ['PROBE'].split(',')]
            A(f's_waitcnt vmcnt(0)\ns_mov_b32 s78, {STAMP}')
            A(f'buffer_load_dword v240, v242, {s(sw,4)}, s78 offen offset:{4*i} sc1\nbuffer_load_dword v241, v242, {s(sw,4)}, s78 offen offset:{4*j} sc1')
            A(f's_waitcnt vmcnt(0)\nv_sub_u32 v240, v241, v240\nv_min_u32 v240, 10000, v240\nv_readfirstlane_b32 s78, v240\ns_mul_i32 s78, s78, 20')
            A(f'{lab}_s:\ns_memrealtime s[76:77]\ns_waitcnt lgkmcnt(0)\ns_sub_u32 s76, s76, s94\ns_cmp_lt_u32 s76, s78\ns_cbranch_scc1 {lab}_s')
        A(f'{lab}:')
        return
    if STAMPS == 2:
        lab = A.label('dbg%d' % id(A))
        A(f's_cmp_lg_u32 s2, {os.environ.get("DBGWG", "0")}\ns_cbranch_scc1 {lab}')
        A(f's_load_dwordx2 s[76:77], s[0:1], {DBG*8}\ns_memrealtime {s(94,2)}\ns_waitcnt lgkmcnt(0)')
        A(f's_mul_i32 s78, {kidx}, 504\ns_sub_u32 s78, 3072, s78\ns_add_u32 s76, s76, s78\ns_addc_u32 s77, s77, 0')
        A('v_mov_b32 v240, s80\nv_mov_b32 v241, s94\nv_mov_b32 v242, 0\nglobal_store_dwordx2 v242, v[240:241], s[76:77]')
        A(f'{lab}:')
        return
    A(f's_memrealtime {s(94,2)}\ns_waitcnt lgkmcnt(0)')
    for i in range(8): A(f'v_mov_b32 {v(240+i)}, {s(80+2*i)}')
    A(f'''v_lshrrev_b32 v248, 6, v0
v_lshlrev_b32 v248, 5, v248
s_lshl_b32 s80, s2, 7
{('s_add_u32 s80, s80, %d' % (STAMP + kidx * 131072)) if isinstance(kidx, int) else ('s_lshl_b32 s81, %s, 17' % kidx + chr(10) + 's_add_u32 s80, s80, s81' + chr(10) + 's_add_u32 s80, s80, %d' % STAMP)}
buffer_store_dwordx4 v[240:243], v248, {s(sw,4)}, s80 offen
buffer_store_dwordx4 v[244:247], v248, {s(sw,4)}, s80 offen offset:16''')

def srd_ws(A, r, off=None):
    A(f's_mov_b32 {s(r+2)}, {WS_SIZE}\ns_mov_b32 {s(r+3)}, 0x20000')

def srd(A, r, size):
    A(f's_mov_b32 {s(r+2)}, {size}\ns_mov_b32 {s(r+3)}, 0x20000')

def ld_ptr(A, r, slot):
    A(f's_load_dwordx2 {s(r,2)}, s[0:1], {slot*8}')

def div7(A, q, rem, x, tmp):
    A(f's_mul_i32 {s(q)}, {s(x)}, 9363\ns_lshr_b32 {s(q)}, {s(q)}, 16\ns_mul_i32 {s(tmp)}, {s(q)}, 7\ns_sub_u32 {s(rem)}, {s(x)}, {s(tmp)}')

def tile_ids(A, rt, sl, tmp):
    A(f's_lshr_b32 {s(tmp)}, s2, 3')
    div7(A, rt, sl, tmp, tmp + 1)
    A(f's_and_b32 {s(tmp)}, s2, 7\ns_lshl_b32 {s(tmp)}, {s(tmp)}, 2\ns_add_u32 {s(rt)}, {s(rt)}, {s(tmp)}')

def cos_reduced(A, dst, t, ph, amp, tq, sinv, s448):
    A(f'v_mul_f32 {v(tq)}, {s(sinv)}, {v(t)}')
    A(f'v_rndne_f32 {v(tq)}, {v(tq)}')
    A(f'v_fma_f32 {v(tq)}, -{v(tq)}, {s(s448)}, {v(t)}')
    if ph is not None:
        A(f'v_fma_f32 {v(tq)}, {v(tq)}, {s(sinv)}, {v(ph)}')
    else:
        A(f'v_mul_f32 {v(tq)}, {s(sinv)}, {v(tq)}')
    A(f'v_cos_f32 {v(dst)}, {v(tq)}')
    if amp is not None:
        A(f'v_mul_f32 {v(dst)}, {amp}, {v(dst)}')

def gen_q(A, dst, vj, vd0f, dc_amp, ch, tmp, sinv, s448, dreg=None, scale=1.0):
    amp, cf, two, ph, t, tq, dl, u = range(tmp, tmp + 8)
    a2 = scale * math.sqrt(2.0 / 448); a1 = scale * math.sqrt(1.0 / 448)
    A(f'''v_lshrrev_b32 {v(cf)}, 1, {v(vj)}
v_and_b32 {v(ph)}, 1, {v(vj)}
v_cvt_f32_u32 {v(cf)}, {v(cf)}
v_cvt_f32_u32 {v(ph)}, {v(ph)}
v_cmp_eq_u32 vcc, 0, {v(vj)}
v_mul_f32 {v(ph)}, 0x3e800000, {v(ph)}
v_mov_b32 {v(amp)}, {f2u(a2)}
v_mov_b32 {v(t)}, {f2u(224.0)}
v_mov_b32 {v(tq)}, {f2u(a1)}
v_cndmask_b32 {v(cf)}, {v(cf)}, {v(t)}, vcc
v_cndmask_b32 {v(amp)}, {v(amp)}, {v(tq)}, vcc
v_cmp_eq_u32 vcc, 1, {v(vj)}
v_mov_b32 {v(tq)}, {f2u(dc_amp)}
v_add_f32 {v(t)}, {f2u(96.0)}, {v(vd0f)}
v_cndmask_b32 {v(ph)}, {v(ph)}, 0, vcc
v_cndmask_b32 {v(amp)}, {v(amp)}, {v(tq)}, vcc
v_mul_f32 {v(t)}, {v(t)}, {v(cf)}
v_mul_f32 {v(u)}, {f2u(16.0)}, {v(cf)}
v_mul_f32 {v(tq)}, {s(sinv)}, {v(t)}
v_mul_f32 {v(dl)}, {s(sinv)}, {v(u)}
v_rndne_f32 {v(tq)}, {v(tq)}
v_rndne_f32 {v(dl)}, {v(dl)}
v_fma_f32 {v(t)}, -{v(tq)}, {s(s448)}, {v(t)}
v_fma_f32 {v(u)}, -{v(dl)}, {s(s448)}, {v(u)}
v_fma_f32 {v(t)}, {v(t)}, {s(sinv)}, {v(ph)}
v_mul_f32 {v(u)}, {s(sinv)}, {v(u)}
v_mul_f32 {v(dl)}, {s(sinv)}, {v(cf)}
v_cos_f32 {v(two)}, {v(u)}
v_add_f32 {v(u)}, {v(u)}, {v(t)}''')
    cheb(A, dst, ch, t, u, [dl] * 7, amp, two, ph, tq, dreg)

def cheb(A, dst, ch, t, u, steps, amp, two, x0, x1, dreg=None):
    X, Y, W, Z = ch, ch + 8, ch + 16, ch + 24
    for e in range(8):
        A(f'v_cos_f32 {v(X+e)}, {v(t)}')
        if e < 7: A(f'v_add_f32 {v(t)}, {v(t)}, {v(steps[e])}')
        A(f'v_cos_f32 {v(Y+e)}, {v(u)}')
        if e < 7: A(f'v_add_f32 {v(u)}, {v(u)}, {v(steps[e])}')
    A(f'v_add_f32 {v(two)}, {v(two)}, {v(two)}')
    for e in range(0, 16, 2):
        A(f'v_pk_mul_f32 {v(X+e,2)}, {v(X+e,2)}, {v(amp,2)} op_sel_hi:[1,0]')
    def emit(k, r):
        for e in range(0, 8, 2):
            if dreg is None:
                A(f'v_cvt_pk_bf16_f32 {v(dst+4*k+e//2)}, {v(r+e)}, {v(r+e+1)}')
            else:
                d = dreg + 4 * k + e // 2
                A(f'''v_lshlrev_b32 {v(x0)}, 16, {v(d)}
v_and_b32 {v(x1)}, 0xffff0000, {v(d)}
v_mul_f32 {v(x0)}, {v(x0)}, {v(r+e)}
v_mul_f32 {v(x1)}, {v(x1)}, {v(r+e+1)}
v_cvt_pk_bf16_f32 {v(dst+4*k+e//2)}, {v(x0)}, {v(x1)}''')
    def step(d, c, o):
        for e in range(0, 8, 2):
            A(f'v_pk_fma_f32 {v(d+e,2)}, {v(two,2)}, {v(c+e,2)}, {v(o+e,2)} op_sel_hi:[0,1,1] neg_lo:[0,0,1] neg_hi:[0,0,1]')
    step(W, X, Y); step(Z, Y, X)
    emit(6, X); emit(7, Y)
    up = [Y, Z]; dn = [X, W]
    for i in range(5):
        o, c = up[i % 2], up[(i + 1) % 2]
        o2, c2 = dn[i % 2], dn[(i + 1) % 2]
        step(o, c, o); step(o2, c2, o2)
        emit(8 + i, c); emit(5 - i, c2)
    emit(13, up[0]); emit(0, dn[0])

def lam_calc(A, vre, vim, vdt, lr, li, t0, t1):
    A(f'''v_lshlrev_b32 {v(vre)}, 16, {v(vre)}
v_lshlrev_b32 {v(vim)}, 16, {v(vim)}
v_lshlrev_b32 {v(vdt)}, 16, {v(vdt)}
v_mul_f32 {v(vdt)}, {f2u(LOG2E)}, {v(vdt)}
v_exp_f32 {v(vdt)}, {v(vdt)}
v_cvt_pk_bf16_f32 {v(vdt)}, {v(vdt)}, {v(vdt)}
v_lshlrev_b32 {v(vdt)}, 16, {v(vdt)}
v_mul_f32 {v(t0)}, {v(vdt)}, {v(vre)}
v_mul_f32 {v(t0)}, {f2u(LOG2E)}, {v(t0)}
v_exp_f32 {v(t0)}, {v(t0)}
v_mul_f32 {v(t1)}, {v(vdt)}, {v(vim)}
v_mul_f32 {v(t1)}, {f2u(1/(2*math.pi))}, {v(t1)}
v_fract_f32 {v(t1)}, {v(t1)}
v_cos_f32 {v(lr)}, {v(t1)}
v_sin_f32 {v(li)}, {v(t1)}
v_mul_f32 {v(lr)}, {v(lr)}, {v(t0)}
v_mul_f32 {v(li)}, {v(li)}, {v(t0)}''')

def prefetch_code(A, start, nbytes, vtmp, stmp, dst):
    A(f's_getpc_b64 {s(stmp,2)}')
    A(f's_add_u32 {s(stmp)}, {s(stmp)}, {start}@rel32@lo+4')
    A(f's_addc_u32 {s(stmp+1)}, {s(stmp+1)}, {start}@rel32@hi+12')
    A(f'v_lshlrev_b32 {v(vtmp)}, 4, v0')
    n = (nbytes + 4095) // 4096
    for i in range(n):
        A(f'global_load_dwordx4 {v(dst,4)}, {v(vtmp)}, {s(stmp,2)}')
        if i < n - 1: A(f'v_add_u32 {v(vtmp)}, 4096, {v(vtmp)}')

RED = 65536

def ksplit_reduce(A, T0, T1, vaddr_w, vaddr_r, tmp):
    stamp(A, 4)
    for i, r in enumerate((T0 + 4, T0 + 12, T1 + 4, T1 + 12)):
        A(f'ds_write_b128 {v(vaddr_w)}, {v(r,4)} offset:{i*1024}')
    A('s_waitcnt lgkmcnt(0)\ns_barrier')
    for i in range(4):
        A(f'ds_read_b128 {v(tmp+4*i,4)}, {v(vaddr_r)} offset:{i*1024}')
    for i, r in enumerate((T0, T0 + 8, T1, T1 + 8)):
        A(f's_waitcnt lgkmcnt({3-i})')
        for e in range(4):
            A(f'v_add_f32 {v(r+e)}, {v(r+e)}, {v(tmp+4*i+e)}')
    stamp(A, 5)

def zc_store(A, T0, T1, lane, tmp, s_ws, s_rt, s_sl, s_kh, s_wm, s_t, sc=''):
    va, s0, s1, vl, pk = tmp, tmp + 1, tmp + 2, tmp + 3, tmp + 4
    A(f'''v_lshrrev_b32 {v(va)}, 5, {v(lane)}
v_lshlrev_b32 {v(va)}, 14, {v(va)}
v_and_b32 {v(s0)}, 31, {v(lane)}
v_lshl_add_u32 {v(va)}, {v(s0)}, 2, {v(va)}
s_lshl_b32 {s(s_t)}, {s(s_sl)}, 5
s_lshl_b32 {s(s_t+1)}, {s(s_wm)}, 4
s_add_u32 {s(s_t)}, {s(s_t)}, {s(s_t+1)}
s_lshl_b32 {s(s_t+1)}, {s(s_kh)}, 2
s_add_u32 {s(s_t)}, {s(s_t)}, {s(s_t+1)}
s_lshl_b32 {s(s_t)}, {s(s_t)}, 13
s_lshl_b32 {s(s_t+1)}, {s(s_rt)}, 8
s_add_u32 {s(s_t)}, {s(s_t)}, {s(s_t+1)}
s_add_u32 {s(s_t)}, {s(s_t)}, {ZC}
s_add_u32 {s(s_t+1)}, {s(s_t)}, 8192
s_add_u32 {s(s_t+2)}, {s(s_t)}, {8*8192}
s_add_u32 {s(s_t+3)}, {s(s_t)}, {9*8192}''')
    k = 0
    for nt, T in enumerate((T0, T1)):
        for qi, q in enumerate((0, 2)):
            for ip in range(2):
                r = T + 4 * q + 2 * ip
                A(f'v_cvt_pk_bf16_f32 {v(pk+k)}, {v(r)}, {v(r+1)}')
                A(f'buffer_store_dword {v(pk+k)}, {v(va)}, {s(s_ws,4)}, {s(s_t+2*qi+ip)} offen offset:{nt*128}{sc}')
                k += 1

def zc_epilogue(A, T0, T1, lane, tmp, s_ws, s_rt, s_sl, s_kh, s_wm, s_t, wave, ssq_lds, ZC=ZC, SSQ=SSQ, sc='', endlab='L_end'):
    va, s0, s1, vl, pk = tmp, tmp + 1, tmp + 2, tmp + 3, tmp + 4
    A(f'''v_lshrrev_b32 {v(va)}, 5, {v(lane)}
v_lshlrev_b32 {v(va)}, 14, {v(va)}
v_and_b32 {v(s0)}, 31, {v(lane)}
v_lshl_add_u32 {v(va)}, {v(s0)}, 2, {v(va)}
s_lshl_b32 {s(s_t)}, {s(s_sl)}, 5
s_lshl_b32 {s(s_t+1)}, {s(s_wm)}, 4
s_add_u32 {s(s_t)}, {s(s_t)}, {s(s_t+1)}
s_lshl_b32 {s(s_t+1)}, {s(s_kh)}, 2
s_add_u32 {s(s_t)}, {s(s_t)}, {s(s_t+1)}
s_lshl_b32 {s(s_t)}, {s(s_t)}, 13
s_lshl_b32 {s(s_t+1)}, {s(s_rt)}, 8
s_add_u32 {s(s_t)}, {s(s_t)}, {s(s_t+1)}
s_add_u32 {s(s_t)}, {s(s_t)}, {ZC}
s_add_u32 {s(s_t+1)}, {s(s_t)}, 8192
s_add_u32 {s(s_t+2)}, {s(s_t)}, {8*8192}
s_add_u32 {s(s_t+3)}, {s(s_t)}, {9*8192}''')
    k = 0
    for nt, T in enumerate((T0, T1)):
        for qi, q in enumerate((0, 2)):
            for ip in range(2):
                r = T + 4 * q + 2 * ip
                A(f'v_cvt_pk_bf16_f32 {v(pk+k)}, {v(r)}, {v(r+1)}')
                A(f'buffer_store_dword {v(pk+k)}, {v(va)}, {s(s_ws,4)}, {s(s_t+2*qi+ip)} offen offset:{nt*128}{sc}')
                k += 1
    lab = A.label('nodc')
    A(f'''s_or_b32 {s(s_t+4)}, {s(s_sl)}, {s(wave)}
s_cmp_lg_u32 {s(s_t+4)}, 0
s_cbranch_scc1 {lab}
v_cmp_gt_u32 vcc, 32, {v(lane)}
v_cndmask_b32 {v(T0+1)}, {v(T0+1)}, 0, vcc
v_cndmask_b32 {v(T1+1)}, {v(T1+1)}, 0, vcc
{lab}:''')
    for sreg, T in ((s0, T0), (s1, T1)):
        A(f'v_mul_f32 {v(sreg)}, {v(T)}, {v(T)}')
    for r in (1, 2, 3, 8, 9, 10, 11):
        for sreg, T in ((s0, T0), (s1, T1)):
            A(f'v_fmac_f32 {v(sreg)}, {v(T+r)}, {v(T+r)}')
    A(f'''v_permlane32_swap_b32 {v(s0)}, {v(s1)}
v_add_f32 {v(s0)}, {v(s0)}, {v(s1)}
v_lshlrev_b32 {v(vl)}, 2, {v(lane)}
s_lshl_b32 {s(s_t+4)}, {s(wave)}, 8
v_add_u32 {v(s1)}, {s(s_t+4)}, {v(vl)}
ds_write_b32 {v(s1)}, {v(s0)} offset:{ssq_lds}
s_waitcnt lgkmcnt(0)
s_barrier
s_cmp_lg_u32 {s(wave)}, 0
s_cbranch_scc1 {endlab}
ds_read2st64_b32 {v(pk,2)}, {v(vl)} offset0:{ssq_lds//256} offset1:{ssq_lds//256+1}
ds_read2st64_b32 {v(pk+2,2)}, {v(vl)} offset0:{ssq_lds//256+2} offset1:{ssq_lds//256+3}
s_lshl_b32 {s(s_t)}, {s(s_sl)}, 13
s_lshl_b32 {s(s_t+1)}, {s(s_rt)}, 8
s_add_u32 {s(s_t)}, {s(s_t)}, {s(s_t+1)}
s_add_u32 {s(s_t)}, {s(s_t)}, {SSQ}
s_waitcnt lgkmcnt(0)
v_add_f32 {v(pk)}, {v(pk)}, {v(pk+1)}
v_add_f32 {v(pk+2)}, {v(pk+2)}, {v(pk+3)}
v_add_f32 {v(pk)}, {v(pk)}, {v(pk+2)}
buffer_store_dword {v(pk)}, {v(vl)}, {s(s_ws,4)}, {s(s_t)} offen{sc}''')

def k0():
    A = Asm()
    lane = 1
    QA, T0, T1, BF, B0, CH, TM = 16, 72, 88, 104, 160, 216, 248
    sW = 4
    sI = 8
    sI2 = 12
    wave, kh, wm, rt, sl = 20, 21, 22, 23, 24
    sinv, s448 = 25, 26
    st = 28
    stamp(A, 0)
    if os.environ.get('PROBE'): A('s_memrealtime s[80:81]')
    ld_ptr(A, sW, WS)
    A('s_cmp_ge_u32 s2, 16\ns_cbranch_scc1 K0_nopf')
    prefetch_code(A, 'k0_kernel', K0_BYTES, 2, 40, 72)
    A(f'''K0_nopf:
v_and_b32 {v(lane)}, 63, v0
v_lshrrev_b32 v2, 6, v0
v_readfirstlane_b32 {s(wave)}, v2
s_and_b32 {s(kh)}, {s(wave)}, 1
s_lshr_b32 {s(wm)}, {s(wave)}, 1
s_mov_b32 {s(sinv)}, {f2u(INV448)}
s_mov_b32 {s(s448)}, {f2u(448.0)}
s_cmp_lt_u32 s2, 224
s_cbranch_scc1 R_x
s_sub_u32 s27, s2, 224
s_cmp_lt_u32 s2, 256
s_cbranch_scc1 R_wt
s_cmp_lt_u32 s2, 354
s_cbranch_scc1 R_m1
s_cmp_lt_u32 s2, 452
s_cbranch_scc1 R_m2b
s_sub_u32 s27, s2, 420
s_cmp_lt_u32 s2, 484
s_cbranch_scc1 R_wt
s_cmp_lt_u32 s2, 491
s_cbranch_scc1 R_d
s_endpgm''')

    def stage_rows(rowbase_s):
        A(f's_lshl_b32 {s(st)}, {s(wave)}, 14\ns_mov_b32 m0, {s(st)}\nv_lshlrev_b32 v2, 4, {v(lane)}')
        for r in range(16):
            if r: A(f'v_xor_b32 v3, {16*r}, v2')
            A(f'buffer_load_dwordx4 {v(3 if r else 2)}, {s(sI,4)}, {s(rowbase_s)} offen lds')
            if r < 15: A(f's_add_u32 m0, m0, 1024\ns_add_u32 {s(rowbase_s)}, {s(rowbase_s)}, 896')

    def q_setup(xor8):
        A(f'''v_and_b32 v4, 31, {v(lane)}
s_lshl_b32 {s(st)}, {s(sl)}, 6
s_lshl_b32 {s(st+1)}, {s(wm)}, 5
s_add_u32 {s(st)}, {s(st)}, {s(st+1)}''')
        if xor8:
            A(f's_lshl_b32 {s(st+1)}, {s(kh)}, 3\nv_xor_b32 v4, {s(st+1)}, v4')
        A(f'''v_add_u32 v4, {s(st)}, v4
v_lshrrev_b32 v5, 5, {v(lane)}
v_lshlrev_b32 v5, 3, v5
s_mul_i32 {s(st)}, {s(kh)}, 224
v_add_u32 v5, {s(st)}, v5
v_cvt_f32_u32 v5, v5''')

    def red_addr():
        A(f'''s_lshl_b32 {s(st)}, {s(wave)}, 12
s_add_u32 {s(st)}, {s(st)}, {RED}
s_xor_b32 {s(st+1)}, {s(st)}, 4096
v_lshlrev_b32 v7, 4, {v(lane)}
v_add_u32 v6, {s(st)}, v7
v_add_u32 v7, {s(st+1)}, v7''')

    def gemm_rows():
        A(f'''v_and_b32 v8, 31, {v(lane)}
v_lshrrev_b32 v9, 5, {v(lane)}
v_and_b32 v10, 15, {v(lane)}
v_xor_b32 v9, v9, v10
v_lshlrev_b32 v9, 4, v9
v_lshl_add_u32 v8, v8, 10, v9
s_mul_i32 {s(st)}, {s(kh)}, 448''')
        stamp(A, 2)
        A('s_waitcnt vmcnt(0)\ns_barrier')
        stamp(A, 3)
        def rd(k):
            b = BF + 8 * (k % 4)
            A(f'v_xor_b32 v9, {s(st)}, v8\ns_add_u32 {s(st)}, {s(st)}, 32')
            A(f'ds_read_b128 {v(b,4)}, v9\nds_read_b128 {v(b+4,4)}, v9 offset:32768')
        for k in range(3): rd(k)
        for k in range(14):
            if k + 3 < 14: rd(k + 3)
            out = min(3, 13 - k)
            A(f's_waitcnt lgkmcnt({2*out})')
            b = BF + 8 * (k % 4)
            c0 = v(T0, 16) if k else '0'; c1 = v(T1, 16) if k else '0'
            A(f'v_mfma_f32_32x32x16_bf16 {v(T0,16)}, {v(QA+4*k,4)}, {v(b,4)}, {c0}')
            A(f'v_mfma_f32_32x32x16_bf16 {v(T1,16)}, {v(QA+4*k,4)}, {v(b+4,4)}, {c1}')

    A('R_x:')
    ld_ptr(A, sI, A_X)
    tile_ids(A, rt, sl, st)
    A(f's_lshl_b32 {s(st+2)}, {s(rt)}, 2\ns_add_u32 {s(st+2)}, {s(st+2)}, {s(wave)}\ns_mul_i32 {s(st+2)}, {s(st+2)}, {16*896}')
    A('s_waitcnt lgkmcnt(0)')
    srd(A, sI, S * D * 2); srd_ws(A, sW); stamp(A, 1)
    stage_rows(st + 2)
    A(f'v_lshlrev_b32 v2, 2, v0\nv_mov_b32 v3, -1\ns_lshl_b32 {s(st)}, s2, 10\ns_add_u32 {s(st)}, {s(st)}, {AGG}\nbuffer_store_dword v3, v2, {s(sW,4)}, {s(st)} offen')
    q_setup(True); red_addr()
    gen_q(A, QA, 4, 5, math.sqrt(1.0 / 448), CH, TM, sinv, s448)
    gemm_rows()
    X0 = CH
    A(f'''s_cmp_ge_u32 {s(sl)}, 4
s_cbranch_scc1 X_nostat
v_lshrrev_b32 v10, 4, v0
v_and_b32 v11, 15, v0
s_lshl_b32 {s(st)}, {s(sl)}, 14
v_lshlrev_b32 v12, 10, v10
v_lshl_add_u32 v12, v11, 4, v12
v_add_u32 v12, {s(st)}, v12
ds_read_b128 {v(X0,4)}, v12
ds_read_b128 {v(X0+4,4)}, v12 offset:256
ds_read_b128 {v(X0+8,4)}, v12 offset:512
ds_read_b128 {v(X0+12,4)}, v12 offset:768
v_xor_b32 v13, v10, v11
v_cmp_gt_u32 vcc, 8, v13
s_mov_b32 {s(st+1)}, 0x3f803f80
v_mov_b32 v13, 0
v_mov_b32 v14, 0
s_waitcnt lgkmcnt(0)''')
    for i in range(4): A(f'v_cndmask_b32 {v(X0+12+i)}, 0, {v(X0+12+i)}, vcc')
    for i in range(16):
        A(f'v_dot2_f32_bf16 v13, {v(X0+i)}, {v(X0+i)}, v13\nv_dot2_f32_bf16 v14, {v(X0+i)}, {s(st+1)}, v14')
    for sh in (8, 4, 2, 1):
        A(f's_nop 1\nv_add_f32_dpp v13, v13, v13 row_ror:{sh} row_mask:0xf bank_mask:0xf\nv_add_f32_dpp v14, v14, v14 row_ror:{sh} row_mask:0xf bank_mask:0xf')
    A(f'''v_mul_f32 v14, v14, v14
v_fmac_f32 v13, {f2u(-1.0/448)}, v14
v_max_f32 v13, 0, v13
v_mov_b32 v14, {f2u(1e-5*2048.0*2048.0)}
v_fmac_f32 v14, {f2u(2048.0*2048.0/448)}, v13
v_rsq_f32 v14, v14
v_lshlrev_b32 v10, 2, v10
s_lshl_b32 {s(st)}, {s(rt)}, 8
s_lshl_b32 {s(st+1)}, {s(sl)}, 6
s_add_u32 {s(st)}, {s(st)}, {s(st+1)}
s_add_u32 {s(st)}, {s(st)}, {R0}
v_cmp_eq_u32 vcc, 0, v11
s_and_saveexec_b64 s[40:41], vcc
buffer_store_dword v14, v10, {s(sW,4)}, {s(st)} offen
s_mov_b64 exec, s[40:41]
X_nostat:''')
    ksplit_reduce(A, T0, T1, 6, 7, BF)
    zc_store(A, T0, T1, lane, BF + 16, sW, rt, sl, kh, wm, st)
    A('s_branch L_end')

    A('R_d:')
    ld_ptr(A, sI, DSKIP)
    A(f's_sub_u32 {s(sl)}, s2, 484\ns_mov_b32 m0, 0\nv_lshlrev_b32 v2, 4, {v(lane)}\ns_waitcnt lgkmcnt(0)')
    srd(A, sI, D * 2); srd_ws(A, sW); stamp(A, 1)
    A(f'buffer_load_dwordx4 v2, {s(sI,4)}, 0 offen lds')
    q_setup(True); red_addr()
    gen_q(A, QA, 4, 5, math.sqrt(1.0 / 448), CH, TM, sinv, s448)
    gemm_rows()
    ksplit_reduce(A, T0, T1, 6, 7, BF)
    A(f'''v_lshrrev_b32 v8, 1, {v(lane)}
s_lshl_b32 {s(st)}, {s(sl)}, 8
s_lshl_b32 {s(st+1)}, {s(wm)}, 7
s_add_u32 {s(st)}, {s(st)}, {s(st+1)}
s_lshl_b32 {s(st+1)}, {s(kh)}, 5
s_add_u32 {s(st)}, {s(st)}, {s(st+1)}
s_add_u32 {s(st)}, {s(st)}, {ZD}
s_mov_b32 exec_lo, 1
s_mov_b32 exec_hi, 1
buffer_store_dwordx4 {v(T0,4)}, v8, {s(sW,4)}, {s(st)} offen
buffer_store_dwordx4 {v(T0+8,4)}, v8, {s(sW,4)}, {s(st)} offen offset:64
s_mov_b64 exec, -1
s_branch L_end''')

    A('R_m1:')
    pb = rt
    ld_ptr(A, sI, B_RE); ld_ptr(A, sI2, B_IM)
    ld_ptr(A, 40, L_RE); ld_ptr(A, 44, L_IM); ld_ptr(A, 48, LOGDT)
    A(f's_sub_u32 {s(st+2)}, s2, 256')
    div7(A, pb, sl, st + 2, st)
    A(f'''s_lshl_b32 {s(st+2)}, {s(pb)}, 1
s_add_u32 {s(st+2)}, {s(st+2)}, {s(kh)}
s_mul_i32 {s(st+2)}, {s(st+2)}, {16*896}
s_waitcnt lgkmcnt(0)
s_cmp_eq_u32 {s(wm)}, 0
s_cselect_b32 {s(sI)}, {s(sI)}, {s(sI2)}
s_cselect_b32 {s(sI+1)}, {s(sI+1)}, {s(sI2+1)}''')
    srd(A, sI, D * D * 2); srd_ws(A, sW); stamp(A, 1)
    for r in (40, 44, 48): srd(A, r, D * 2)
    stage_rows(st + 2)
    A(f'''v_and_b32 v11, 31, {v(lane)}
v_lshlrev_b32 v11, 1, v11
s_lshl_b32 {s(st+2)}, {s(pb)}, 6
buffer_load_ushort v12, v11, s[40:43], {s(st+2)} offen
buffer_load_ushort v13, v11, s[44:47], {s(st+2)} offen
buffer_load_ushort v14, v11, s[48:51], {s(st+2)} offen''')
    q_setup(True); red_addr()
    gen_q(A, QA, 4, 5, 0.0, CH, TM, sinv, s448)
    gemm_rows()
    lr, li, t0, t1, gr, gi = CH, CH + 1, CH + 2, CH + 3, CH + 4, CH + 5
    lam_calc(A, 12, 13, 14, lr, li, t0, t1)
    A(f'''v_subrev_f32 {v(lr)}, 1.0, {v(lr)}
v_mul_f32 {v(t0)}, v12, v12
v_fmac_f32 {v(t0)}, v13, v13
v_rcp_f32 {v(t0)}, {v(t0)}
v_mul_f32 {v(gr)}, {v(lr)}, v12
v_fmac_f32 {v(gr)}, {v(li)}, v13
v_mul_f32 {v(gi)}, {v(li)}, v12
v_fma_f32 {v(gi)}, -{v(lr)}, v13, {v(gi)}
v_mul_f32 {v(gr)}, {v(gr)}, {v(t0)}
v_mul_f32 {v(gi)}, {v(gi)}, {v(t0)}''')
    ksplit_reduce(A, T0, T1, 6, 7, BF)
    o = BF + 16
    for i, r in enumerate((0, 1, 2, 3, 8, 9, 10, 11)):
        A(f'''v_mul_f32 {v(o+i)}, {v(gr)}, {v(T0+r)}
v_mul_f32 {v(o+8+i)}, {v(gr)}, {v(T1+r)}
v_fma_f32 {v(o+i)}, -{v(gi)}, {v(T1+r)}, {v(o+i)}
v_fmac_f32 {v(o+8+i)}, {v(gi)}, {v(T0+r)}''')
    for i in range(8):
        A(f'v_cvt_pk_bf16_f32 {v(BF+i)}, {v(o+2*i)}, {v(o+2*i+1)}')
    A(f'''v_bfe_u32 v8, {v(lane)}, 4, 1
v_mul_u32_u24 v8, {28*1024}, v8
v_lshrrev_b32 v9, 5, {v(lane)}
v_lshl_add_u32 v8, v9, 8, v8
v_and_b32 v9, 15, {v(lane)}
v_lshl_add_u32 v8, v9, 4, v8
s_mul_i32 {s(st)}, {s(pb)}, 28
s_lshl_b32 {s(st+1)}, {s(sl)}, 1
s_add_u32 {s(st)}, {s(st)}, {s(st+1)}
s_add_u32 {s(st)}, {s(st)}, {s(wm)}
s_lshl_b32 {s(st)}, {s(st)}, 11
s_lshl_b32 {s(st+1)}, {s(kh)}, 9
s_add_u32 {s(st)}, {s(st)}, {s(st+1)}
s_add_u32 {s(st)}, {s(st)}, {WM1}
buffer_store_dwordx4 {v(BF,4)}, v8, {s(sW,4)}, {s(st)} offen
buffer_store_dwordx4 {v(BF+4,4)}, v8, {s(sW,4)}, {s(st)} offen offset:1024
s_branch L_end''')

    A('R_m2b:')
    arr, pblk = 27, rt
    ld_ptr(A, sI, C_RE); ld_ptr(A, sI2, C_IM)
    A(f's_sub_u32 {s(st+2)}, s2, 354')
    div7(A, st + 3, sl, st + 2, st)
    A(f'''s_cmp_ge_u32 {s(st+3)}, 7
s_cselect_b32 {s(arr)}, 1, 0
s_mul_i32 {s(st)}, {s(arr)}, 7
s_sub_u32 {s(pblk)}, {s(st+3)}, {s(st)}
s_mul_i32 {s(st+2)}, {s(wave)}, {14*7168}
s_lshl_b32 {s(st)}, {s(pblk)}, 7
s_add_u32 {s(st+2)}, {s(st+2)}, {s(st)}
v_lshrrev_b32 v2, 3, {v(lane)}
v_mul_u32_u24 v2, 896, v2
v_and_b32 v3, 7, {v(lane)}
v_bfe_u32 v4, {v(lane)}, 4, 1
v_lshlrev_b32 v4, 2, v4
v_xor_b32 v3, v3, v4
v_lshl_add_u32 v2, v3, 4, v2
s_mul_i32 {s(st)}, {s(wave)}, {14*1024}
s_mov_b32 m0, {s(st)}
s_waitcnt lgkmcnt(0)
s_cmp_eq_u32 {s(arr)}, 0
s_cselect_b32 {s(sI)}, {s(sI)}, {s(sI2)}
s_cselect_b32 {s(sI+1)}, {s(sI+1)}, {s(sI2+1)}''')
    srd(A, sI, D * D * 2); srd_ws(A, sW); stamp(A, 1)
    for i in range(14):
        A(f'buffer_load_dwordx4 v2, {s(sI,4)}, {s(st+2)} offen lds')
        if i < 13: A(f's_add_u32 m0, m0, 1024\ns_add_u32 {s(st+2)}, {s(st+2)}, 7168')
    q_setup(False); red_addr()
    gen_q(A, QA, 4, 5, math.sqrt(1.0 / 448), CH, TM, sinv, s448)
    A(f'''v_bfe_u32 v8, {v(lane)}, 2, 2
v_lshrrev_b32 v9, 5, {v(lane)}
v_lshl_add_u32 v9, v9, 3, v8
v_lshlrev_b32 v9, 7, v9
v_lshrrev_b32 v8, 1, v8
v_lshl_add_u32 v9, v8, 6, v9
v_bfe_u32 v8, {v(lane)}, 1, 1
v_xor_b32 v8, {s(kh)}, v8
v_lshl_add_u32 v9, v8, 5, v9
v_bfe_u32 v8, {v(lane)}, 4, 1
v_lshl_add_u32 v9, v8, 4, v9
v_and_b32 v8, 1, {v(lane)}
v_lshl_add_u32 v9, v8, 3, v9
s_mul_i32 {s(st)}, {s(kh)}, {224*128}
v_add_u32 v8, {s(st)}, v9
v_xor_b32 v9, 64, v8''')
    stamp(A, 2)
    A('s_waitcnt vmcnt(0)\ns_barrier')
    stamp(A, 3)
    def rd2(k):
        b = BF + 8 * (k % 4)
        for mt in range(2):
            for hf in range(2):
                A(f'ds_read_b64_tr_b16 {v(b+4*mt+2*hf,2)}, {v(8+mt)} offset:{k*2048+hf*512}')
    for k in range(3): rd2(k)
    for k in range(14):
        if k + 3 < 14: rd2(k + 3)
        A(f's_waitcnt lgkmcnt({4*min(3, 13-k)})')
        b = BF + 8 * (k % 4)
        c0 = v(T0, 16) if k else '0'; c1 = v(T1, 16) if k else '0'
        A(f'v_mfma_f32_32x32x16_bf16 {v(T0,16)}, {v(b,4)}, {v(QA+4*k,4)}, {c0}')
        A(f'v_mfma_f32_32x32x16_bf16 {v(T1,16)}, {v(b+4,4)}, {v(QA+4*k,4)}, {c1}')
    ksplit_reduce(A, T0, T1, 6, 7, BF)
    for mt, T in enumerate((T0, T1)):
        for i, r in enumerate((0, 2, 8, 10)):
            A(f'v_cvt_pk_bf16_f32 {v(BF+16+4*mt+i)}, {v(T+r)}, {v(T+r+1)}')
    A(f'''v_lshlrev_b32 v8, 4, {v(lane)}
s_lshl_b32 {s(st)}, {s(sl)}, 1
s_add_u32 {s(st)}, {s(st)}, {s(arr)}
s_lshl_b32 {s(st)}, {s(st)}, 1
s_add_u32 {s(st)}, {s(st)}, {s(wm)}
s_mul_i32 {s(st)}, {s(st)}, 28
s_lshl_b32 {s(st+1)}, {s(pblk)}, 2
s_add_u32 {s(st)}, {s(st)}, {s(st+1)}
s_add_u32 {s(st)}, {s(st)}, {s(kh)}
s_lshl_b32 {s(st)}, {s(st)}, 10
s_add_u32 {s(st)}, {s(st)}, {WC}
buffer_store_dwordx4 {v(BF+16,4)}, v8, {s(sW,4)}, {s(st)} offen
buffer_store_dwordx4 {v(BF+20,4)}, v8, {s(sW,4)}, {s(st)} offen offset:2048
s_branch L_end''')

    A('R_wt:')
    ld_ptr(A, sI, A_WR); ld_ptr(A, sI2, A_WI)
    arr, w4, g, hf = 41, rt, sl, 42
    A(f'''s_and_b32 {s(hf)}, s27, 1
s_bfe_u32 {s(arr)}, s27, 0x10001
s_bfe_u32 {s(w4)}, s27, 0x20002
s_lshr_b32 {s(g)}, s27, 4
s_lshl_b32 {s(st)}, {s(g)}, 3
s_lshl_b32 {s(st+1)}, {s(wave)}, 1
s_add_u32 {s(st)}, {s(st)}, {s(st+1)}
s_lshl_b32 {s(st)}, {s(st)}, 2
s_add_u32 {s(st)}, {s(st)}, {s(w4)}
s_lshl_b32 {s(st)}, {s(st)}, 1
s_add_u32 {s(st)}, {s(st)}, {s(hf)}
s_mul_i32 {s(st+2)}, {s(st)}, 3600
s_lshl_b32 {s(st)}, {s(wave)}, 13
s_mov_b32 m0, {s(st)}
v_lshlrev_b32 v2, 4, {v(lane)}
s_waitcnt lgkmcnt(0)
s_cmp_eq_u32 {s(arr)}, 0
s_cselect_b32 {s(sI)}, {s(sI)}, {s(sI2)}
s_cselect_b32 {s(sI+1)}, {s(sI+1)}, {s(sI2+1)}''')
    srd(A, sI, S * 450); srd_ws(A, sW); stamp(A, 1)
    for e in range(2):
        for i in range(4):
            A(f'buffer_load_dwordx4 v2, {s(sI,4)}, {s(st+2)} offen offset:{i*1024} lds')
        if e == 0:
            A(f's_add_u32 m0, m0, 4096\ns_add_u32 {s(st+2)}, {s(st+2)}, {4*7200}')
    A(f'v_lshlrev_b32 v2, 3, v0\nv_mov_b32 v8, 0\nv_mov_b32 v9, 0\ns_lshl_b32 {s(st)}, s27, 11\ns_add_u32 {s(st)}, {s(st)}, {FLAGS}\nbuffer_store_dwordx2 v[8:9], v2, {s(sW,4)}, {s(st)} offen')
    A('s_cmp_ge_u32 s27, 16\ns_cbranch_scc1 WT_nopf')
    prefetch_code(A, 'k1_kernel', REST_BYTES, 2, 44, 72)
    A(f'''WT_nopf:
v_and_b32 v3, 7, {v(lane)}
v_mul_u32_u24 v4, 450, v3
v_lshrrev_b32 v5, 3, v0
v_lshl_add_u32 v4, v5, 1, v4
v_add_u32 v6, 448, v4
v_cmp_eq_u32 vcc, 0, v5
v_cndmask_b32 v6, v4, v6, vcc
v_lshlrev_b32 v5, 13, v5
v_lshl_add_u32 v5, v3, 4, v5
s_lshl_b32 {s(st)}, {s(w4)}, 1
s_add_u32 {s(st)}, {s(st)}, {s(arr)}
s_lshl_b32 {s(st)}, {s(st)}, 10
s_lshl_b32 {s(st+1)}, {s(g)}, 8
s_add_u32 {s(st)}, {s(st)}, {s(st+1)}
s_lshl_b32 {s(st+1)}, {s(hf)}, 7
s_add_u32 {s(st)}, {s(st)}, {s(st+1)}
s_add_u32 {s(st)}, {s(st)}, {WF}''')
    stamp(A, 2)
    A('s_waitcnt vmcnt(0)\ns_barrier')
    stamp(A, 3)
    def wt_fin(it):
        b = 16 + 8 * (it % 2)
        o = 32 + 4 * it
        for i in range(4):
            A(f'v_or_b32 {v(o+i)}, {v(b+2*i)}, {v(b+2*i+1)}')
        A(f'buffer_store_dwordx4 {v(o,4)}, v5, {s(sW,4)}, {s(st)} offen\ns_add_u32 {s(st)}, {s(st)}, {32*8192}')
    for it in range(7):
        b = 16 + 8 * (it % 2)
        for e in range(8):
            A(f'ds_read_u16{"_d16_hi" if e & 1 else ""} {v(b+e)}, {v(6 if it == 0 else 4)} offset:{e*4096+it*64}')
        if it >= 1:
            A('s_waitcnt lgkmcnt(8)')
            wt_fin(it - 1)
    A('s_waitcnt lgkmcnt(0)')
    wt_fin(6)
    A('L_end:')
    if os.environ.get('PROBE'):
        A(f's_cmp_lg_u32 s2, 100\ns_cbranch_scc1 K0_np\nv_mov_b32 v2, 0\nv_mov_b32 v3, s80\ns_mov_b32 s82, {STAMP}\nbuffer_store_dword v3, v2, {s(sW,4)}, s82 offen\nK0_np:')
    stamp_out(A, 0, sW)
    A('s_endpgm')
    return A.render().replace('L_end', 'k0_end')

K0_BYTES = 24576
REST_BYTES = 28672

def build(kernels, launches):
    out = ''
    for k, g, lds in launches:
        out += f'; @launch kernel={k}_kernel grid=({g},1,1) block=(256,1,1) lds={lds}\n'
    out += '.amdgcn_target "amdgcn-amd-amdhsa--gfx950"\n'
    descs = ''
    for name, body, vg, ag in kernels:
        t, d = kernel_text(name + '_kernel', body, vg, ag)
        if body is not None: out += t
        else: out += f'.globl {name}_kernel\n.type {name}_kernel,@function\n'
        descs += d
    out += '.text\n.p2align 8\ncode_end:\n.fill 3072, 4, 0xbf800000\n' + descs
    return out

if __name__ == '__main__':
    import gen_rest
    gen_rest.main()
```

```python
import sys
sys.path.insert(0, 'dev')
from gen import *
import gen

F_CA = [FLAGS, FLAGS + 16384]
F_CC = FLAGS + 32768
F_CB = [FLAGS + 49152, FLAGS + 49152 + 4096]
F_CD = FLAGS + 57344
F_CE = FLAGS + 58368
NAUX = 21
SPIN = 0x8000
LBK = int(os.environ.get('LBK', '12'))

L_RX = 57344
L_RED = 114688
L_COL = 131072
LDS_BYTES = 147456

lane, l15, g = 1, 3, 4
VL16, VL16X = 231, 230
WCV = 232
PR, PI = 190, 206
mgr, mgi, Lgr, Lgi, L4r, L4i, hd = range(222, 229)
sW, sAG0, sAG1, sO = 4, 8, 12, 16
wave, kh, wm, rt, sl, sim = 20, 21, 22, 23, 24, 25
s_m1, s_sk, s_wc = 26, 27, 58
st = 28

NAMES = []
SKIP = int(os.environ.get('SSKIP', '0'))
_cnt = [0]
def pstamp(A, name):
    if STAMPS != 1: return
    _cnt[0] += 1
    if _cnt[0] > 1 and _cnt[0] <= SKIP + 1: return
    if len(NAMES) >= 20: return
    A(f's_memrealtime {s(60+2*len(NAMES),2)}'); NAMES.append(name)

def wc_reg(k):
    return a(168 + 4 * k, 4) if k < 22 else v(WCV + 4 * (k - 22), 4)

def cmul(A, dr, di, ar, ai, br, bi):
    A(f'''v_mul_f32 {v(dr)}, {v(ar)}, {v(br)}
v_mul_f32 {v(di)}, {v(ar)}, {v(bi)}
v_fma_f32 {v(dr)}, -{v(ai)}, {v(bi)}, {v(dr)}
v_fmac_f32 {v(di)}, {v(ai)}, {v(br)}''')

def cfma(A, dr, di, ar, ai, br, bi):
    A(f'''v_fmac_f32 {v(dr)}, {v(ar)}, {v(br)}
v_fmac_f32 {v(di)}, {v(ar)}, {v(bi)}
v_fma_f32 {v(dr)}, -{v(ai)}, {v(bi)}, {v(dr)}
v_fmac_f32 {v(di)}, {v(ai)}, {v(br)}''')

def q_m1(A):
    for ks in range(14):
        for nt in range(2):
            i = 2 * ks + nt
            txt = f'buffer_load_dwordx4 {a(4*i,4)}, {v(VL16)}, {s(sW,4)}, {s(s_m1)} offen offset:{(i&3)*1024}'
            if (i & 3) == 3: txt += f'\ns_add_u32 {s(s_m1)}, {s(s_m1)}, 4096'
            A.bgq.append(('m1', txt))

def q_sk(A, sc):
    for ks in range(14):
        txt = f'buffer_load_dwordx4 {a(112+4*ks,4)}, {v(VL16)}, {s(sW,4)}, {s(s_sk)} offen offset:{(ks&3)*1024}{sc}'
        if (ks & 3) == 3: txt += f'\ns_add_u32 {s(s_sk)}, {s(s_sk)}, 4096'
        A.bgq.append(('sk', txt))

def q_wc(A, va, sc):
    for k in range(28):
        txt = f'buffer_load_dwordx4 {wc_reg(k)}, {v(va)}, {s(sW,4)}, {s(s_wc)} offen offset:{(k&3)*1024}{sc}'
        if (k & 3) == 3: txt += f'\ns_add_u32 {s(s_wc)}, {s(s_wc)}, 4096'
        A.bgq.append(('wc', txt))

def signal(A, tag, addr_s, nrep=1, rstride=0):
    pstamp(A, 'stored')
    A.wait_vm(tag)
    pstamp(A, 'drained')
    lab = A.label('sig')
    A(f's_barrier\ns_cmp_lg_u32 {s(wave)}, 0\ns_cbranch_scc1 {lab}')
    A.track = False
    A(f'''v_mov_b32 v5, 1
v_mul_u32_u24 v6, {rstride}, {v(lane)}
s_mov_b64 exec, {(1 << nrep) - 1}
buffer_atomic_add v5, v6, {s(sW,4)}, {s(addr_s)} offen sc1
s_mov_b64 exec, -1''')
    A.track = True
    A(f'{lab}:')

def signal16(A, tag, base):
    A(f's_and_b32 {s(st+1)}, s2, 15\ns_lshl_b32 {s(st+1)}, {s(st+1)}, 7\ns_add_u32 {s(st+1)}, {s(st+1)}, {base}')
    signal(A, tag, st + 1, 8, 2048)

def poll(A, setup):
    pstamp(A, 'prepoll')
    lab = A.label('poll')
    A(f's_cmp_lg_u32 {s(wave)}, 0\ns_cbranch_scc1 {lab}_d')
    A.track = False
    A(setup)
    A(f'''s_mov_b32 {s(st)}, 0
{lab}:
buffer_load_dword v7, v5, {s(sW,4)}, 0 offen sc1
s_add_u32 {s(st)}, {s(st)}, 1
s_cmp_gt_u32 {s(st)}, {SPIN}
s_cbranch_scc1 {lab}_d
s_waitcnt vmcnt(0)
v_cmp_gt_u32 vcc, v6, v7
s_cbranch_vccnz {lab}''')
    A.track = True
    A(f'{lab}_d:\ns_barrier')
    pstamp(A, 'polled')

def poll16(base, extra=None):
    t = f'''s_and_b32 {s(st)}, s2, 7
s_lshl_b32 {s(st+1)}, {s(st)}, 11
s_add_u32 {s(st+1)}, {s(st+1)}, {base}
v_lshlrev_b32 v5, 7, {v(l15)}
v_add_u32 v5, {s(st+1)}, v5
v_mov_b32 v6, 14'''
    if extra: t += '\n' + poll_extra(*extra)
    return t

def poll_extra(base, target):
    return f'''s_lshl_b32 {s(st+1)}, {s(st)}, 7
s_add_u32 {s(st+1)}, {s(st+1)}, {base}
v_mov_b32 v7, {s(st+1)}
v_cmp_lt_u32 vcc, 15, {v(lane)}
v_cndmask_b32 v5, v5, v7, vcc
v_cndmask_b32 v6, v6, {target}, vcc'''

ZI, SQ, WW = 8, 16, 72
C64, S64, N64, C32, S32, N32, TC, TS = 80, 88, 96, 104, 112, 120, 128, 136
ZR, ZM = 144, 152
XA, DR, DI, BR, BI = 16, 48, 56, 64, 68
CT = 160

def col_tables1(A):
    T = CT; nf, ang, dl, gf = T, T + 1, T + 2, T + 3
    cs = T + 8
    A(f'''s_lshl_b32 {s(st)}, {s(wave)}, 4
v_add_u32 v7, {s(st)}, {v(l15)}
v_cvt_f32_u32 {v(nf)}, v7
v_cvt_f32_u32 {v(gf)}, {v(g)}
v_mul_f32 {v(dl)}, {f2u(1/64)}, {v(nf)}
v_mul_f32 {v(ang)}, 4.0, {v(gf)}
v_mul_f32 {v(ang)}, {v(ang)}, {v(dl)}
v_mul_f32 {v(T+4)}, {f2u(13.0)}, {v(dl)}''')
    for e in range(8):
        A(f'v_cos_f32 {v(cs+e)}, {v(ang)}\nv_sin_f32 {v(cs+8+e)}, {v(ang)}')
        if e < 7: A(f'v_add_f32 {v(ang)}, {v(ang)}, {v(T+4 if e == 3 else dl)}')
    A(f'v_and_b32 v7, 1, v7\nv_lshlrev_b32 v7, 15, v7\nv_lshl_or_b32 v7, v7, 16, v7')
    for i in range(4):
        A(f'v_cvt_pk_bf16_f32 {v(C64+i)}, {v(cs+2*i)}, {v(cs+2*i+1)}')
        A(f'v_cvt_pk_bf16_f32 {v(S64+i)}, {v(cs+8+2*i)}, {v(cs+9+2*i)}')
    for i in range(4):
        A(f'v_xor_b32 {v(C64+4+i)}, v7, {v(C64+i)}\nv_xor_b32 {v(S64+4+i)}, v7, {v(S64+i)}')
    for i in range(8):
        A(f'v_xor_b32 {v(N64+i)}, 0x80008000, {v(S64+i)}')

def col_tables2(A):
    T = CT; nf, ang, dl, gf = T, T + 1, T + 2, T + 3
    cs = T + 8
    for mu in range(2):
        A(f'''v_lshrrev_b32 v7, 2, {v(l15)}
v_lshlrev_b32 v7, 3, v7
v_and_or_b32 v7, {v(l15)}, 3, v7
v_add_u32 v7, {4*mu}, v7
v_cvt_f32_u32 {v(dl)}, v7
v_mul_f32 {v(dl)}, {f2u(1/32)}, {v(dl)}
v_mul_f32 {v(ang)}, {f2u(8.0)}, {v(gf)}
v_mul_f32 {v(ang)}, {v(ang)}, {v(dl)}''')
        for e in range(8):
            A(f'v_cos_f32 {v(cs+e)}, {v(ang)}\nv_sin_f32 {v(cs+8+e)}, {v(ang)}')
            if e < 7: A(f'v_add_f32 {v(ang)}, {v(ang)}, {v(dl)}')
            if e & 1: A.bg(1)
        for i in range(4):
            A(f'v_cvt_pk_bf16_f32 {v(C32+4*mu+i)}, {v(cs+2*i)}, {v(cs+2*i+1)}')
            A(f'v_cvt_pk_bf16_f32 {v(S32+4*mu+i)}, {v(cs+8+2*i)}, {v(cs+9+2*i)}')
    for i in range(8):
        A(f'v_xor_b32 {v(N32+i)}, 0x80008000, {v(S32+i)}')
    A(f'''v_mul_f32 {v(dl)}, {f2u(1/2048)}, {v(nf)}
v_mul_f32 {v(ang)}, {f2u(8.0)}, {v(gf)}
v_mul_f32 {v(ang)}, {v(ang)}, {v(dl)}''')
    for e in range(8):
        A(f'v_cos_f32 {v(TC+e)}, {v(ang)}\nv_sin_f32 {v(TS+e)}, {v(ang)}')
        if e < 7: A(f'v_add_f32 {v(ang)}, {v(ang)}, {v(dl)}')
        if e & 1: A.bg(1)
    wa0, wa1, wb, ra0, ra1, t1, t2, oa = 184, 185, 186, 187, 188, T + 2, T + 3, 189
    A(f'''v_bfe_u32 {v(t1)}, {v(l15)}, 1, 2
s_lshl_b32 {s(st)}, {s(wave)}, 10
s_add_u32 {s(st)}, {s(st)}, {L_COL}
v_lshlrev_b32 {v(t2)}, 6, {v(l15)}
v_add_u32 {v(t2)}, {s(st)}, {v(t2)}
v_xor_b32 {v(wb)}, {v(g)}, {v(t1)}
v_lshl_add_u32 {v(wb)}, {v(wb)}, 4, {v(t2)}
v_and_b32 {v(wa0)}, 1, {v(g)}
v_lshlrev_b32 {v(wa0)}, 1, {v(wa0)}
v_xor_b32 {v(wa0)}, {v(wa0)}, {v(t1)}
v_lshl_add_u32 {v(wa0)}, {v(wa0)}, 4, {v(t2)}
v_lshrrev_b32 {v(t1)}, 1, {v(g)}
v_lshl_add_u32 {v(wa0)}, {v(t1)}, 3, {v(wa0)}
v_xor_b32 {v(wa1)}, 16, {v(wa0)}
v_lshrrev_b32 {v(t1)}, 2, {v(lane)}
v_lshlrev_b32 {v(ra0)}, 6, {v(t1)}
v_bfe_u32 {v(t1)}, {v(lane)}, 3, 2
v_bfe_u32 {v(t2)}, {v(lane)}, 1, 1
v_xor_b32 {v(t1)}, {v(t1)}, {v(t2)}
v_lshl_add_u32 {v(ra0)}, {v(t1)}, 4, {v(ra0)}
v_and_b32 {v(t1)}, 1, {v(lane)}
v_lshl_add_u32 {v(ra0)}, {v(t1)}, 3, {v(ra0)}
v_add_u32 {v(ra0)}, {L_COL}, {v(ra0)}
v_xor_b32 {v(ra1)}, 32, {v(ra0)}
v_lshrrev_b32 {v(t1)}, 1, {v(l15)}
v_mul_u32_u24 {v(t1)}, 57344, {v(t1)}
v_and_b32 {v(t2)}, 1, {v(l15)}
v_lshl_add_u32 {v(t2)}, {v(g)}, 1, {v(t2)}
s_and_b32 {s(st)}, s2, 3
s_lshl_b32 {s(st)}, {s(st)}, 1
v_xor_b32 {v(t2)}, {s(st)}, {v(t2)}
v_lshl_add_u32 {v(oa)}, {v(t2)}, 4, {v(t1)}''')

def col_loads(A, zc, ssq, sc):
    A(f'''v_lshlrev_b32 v5, 7, {v(l15)}
v_lshl_add_u32 v5, {v(g)}, 4, v5
s_lshl_b32 {s(st)}, {s(wave)}, 11
v_add_u32 v5, {s(st)}, v5
s_lshl_b32 {s(st+1)}, s2, 13
s_add_u32 {s(st+1)}, {s(st+1)}, {zc}
s_mov_b32 {s(st)}, {ssq}''')
    A.t('q', f'buffer_load_dwordx4 {v(SQ,4)}, v5, {s(sW,4)}, {s(st)} offen{sc}')
    A.t('q', f'buffer_load_dwordx4 {v(SQ+4,4)}, v5, {s(sW,4)}, {s(st)} offen offset:64{sc}')
    A.t('z', f'buffer_load_dwordx4 {v(ZI,4)}, v5, {s(sW,4)}, {s(st+1)} offen{sc}')
    A.t('z', f'buffer_load_dwordx4 {v(ZI+4,4)}, v5, {s(sW,4)}, {s(st+1)} offen offset:64{sc}')

def col_wload(A):
    A(f'''s_lshl_b32 {s(st)}, {s(wave)}, 11
s_lshl_b32 {s(st+2)}, s2, 13
s_add_u32 {s(st+2)}, {s(st+2)}, {s(st)}
s_add_u32 {s(st+2)}, {s(st+2)}, {WF}''')
    A.t('w', f'buffer_load_dwordx4 {v(WW,4)}, {v(VL16)}, {s(sW,4)}, {s(st+2)} offen')
    A.t('w', f'buffer_load_dwordx4 {v(WW+4,4)}, {v(VL16)}, {s(sW,4)}, {s(st+2)} offen offset:1024')

def col_compute(A, zb, raw):
    T = CT
    wa0, wa1, wb, ra0, ra1, t1, oa = 184, 185, 186, 187, 188, T + 2, 189
    if raw:
        A(f's_mov_b32 {s(st+1)}, {f2u(2048.0*2048.0/448)}\nv_mov_b32 {v(t1)}, {f2u(1e-5*2048.0*2048.0)}')
        A.wait_vm('q')
        for i in range(8):
            A(f'v_fma_f32 {v(SQ+i)}, {v(SQ+i)}, {s(st+1)}, {v(t1)}')
        for i in range(8):
            A(f'v_rsq_f32 {v(SQ+i)}, {v(SQ+i)}')
    A.wait_vm('z')
    pstamp(A, 'coldata')
    for i in range(8):
        A(f'v_lshlrev_b32 {v(ZR+i)}, 16, {v(ZI+i)}\nv_and_b32 {v(ZM+i)}, 0xffff0000, {v(ZI+i)}')
    for i in range(0, 8, 2):
        A(f'v_pk_mul_f32 {v(SQ+8+i,2)}, {v(SQ+i,2)}, {v(ZR+i,2)}\nv_pk_mul_f32 {v(SQ+16+i,2)}, {v(SQ+i,2)}, {v(ZM+i,2)}')
    for i in range(4):
        A(f'v_cvt_pk_bf16_f32 {v(BR+i)}, {v(SQ+8+2*i)}, {v(SQ+9+2*i)}\nv_cvt_pk_bf16_f32 {v(BI+i)}, {v(SQ+16+2*i)}, {v(SQ+17+2*i)}')
    lab = A.label('nz')
    A(f's_cmp_lg_u32 s2, 0\ns_cbranch_scc1 {lab}')
    for i in range(4): A(f'v_mov_b32 {v(BI+i)}, 0')
    A(f'{lab}:')
    A(f'''ds_write_b64 {v(wa0)}, {v(BR,2)}
ds_write_b64 {v(wa1)}, {v(BR+2,2)}
ds_write_b64 {v(wa0)}, {v(BI,2)} offset:4096
ds_write_b64 {v(wa1)}, {v(BI+2,2)} offset:4096''')
    A('s_waitcnt lgkmcnt(0)\ns_barrier')
    def big_stage(base, tab_ri, tab_ir):
        def xa(pl, mu, ks): return XA + 4 * (ks * 4 + pl * 2 + mu)
        for ks in range(2):
            for pl in range(2):
                for mu in range(2):
                    for hf in range(2):
                        A(f'ds_read_b64_tr_b16 {v(xa(pl,mu,ks)+2*hf,2)}, {v(ra0+mu)} offset:{base+pl*4096+ks*2048+hf*1024}')
        for ks in range(2):
            A(f's_waitcnt lgkmcnt({12-8*ks})')
            for mu in range(2):
                c = v(DR + 4 * mu, 4) if ks else '0'
                A(f'v_mfma_f32_16x16x32_bf16 {v(DR+4*mu,4)}, {v(xa(0,mu,ks),4)}, {v(C64+4*ks,4)}, {c}')
                c = v(DI + 4 * mu, 4) if ks else '0'
                A(f'v_mfma_f32_16x16x32_bf16 {v(DI+4*mu,4)}, {v(xa(0,mu,ks),4)}, {v(tab_ri+4*ks,4)}, {c}')
            A(f's_waitcnt lgkmcnt({8-8*ks})')
            for mu in range(2):
                A(f'v_mfma_f32_16x16x32_bf16 {v(DR+4*mu,4)}, {v(xa(1,mu,ks),4)}, {v(tab_ir+4*ks,4)}, {v(DR+4*mu,4)}')
                A(f'v_mfma_f32_16x16x32_bf16 {v(DI+4*mu,4)}, {v(xa(1,mu,ks),4)}, {v(C64+4*ks,4)}, {v(DI+4*mu,4)}')
    def small_stage(tab_ri, tab_ir):
        for mu in range(2):
            A(f'v_mfma_f32_16x16x32_bf16 {v(DR+4*mu,4)}, {v(C32+4*mu,4)}, {v(BR,4)}, 0')
            A(f'v_mfma_f32_16x16x32_bf16 {v(DI+4*mu,4)}, {v(C32+4*mu,4)}, {v(BI,4)}, 0')
        for mu in range(2):
            A(f'v_mfma_f32_16x16x32_bf16 {v(DR+4*mu,4)}, {v(tab_ir+4*mu,4)}, {v(BI,4)}, {v(DR+4*mu,4)}')
            A(f'v_mfma_f32_16x16x32_bf16 {v(DI+4*mu,4)}, {v(tab_ri+4*mu,4)}, {v(BR,4)}, {v(DI+4*mu,4)}')
    U = T + 8
    def rot(cr, ci, sign):
        n1, n2 = ('[1,0,0]', '[0,0,0]') if sign > 0 else ('[0,0,0]', '[1,0,0]')
        for e in range(0, 8, 2):
            A(f'''v_pk_mul_f32 {v(U+e,2)}, {v(DR+e,2)}, {v(cr+e,2)}
v_pk_mul_f32 {v(U+8+e,2)}, {v(DI+e,2)}, {v(cr+e,2)}''')
        for e in range(0, 8, 2):
            A(f'''v_pk_fma_f32 {v(U+e,2)}, {v(DI+e,2)}, {v(ci+e,2)}, {v(U+e,2)} neg_lo:{n1} neg_hi:{n1}
v_pk_fma_f32 {v(U+8+e,2)}, {v(DR+e,2)}, {v(ci+e,2)}, {v(U+8+e,2)} neg_lo:{n2} neg_hi:{n2}''')
        for e in range(0, 8, 2):
            A(f'v_cvt_pk_bf16_f32 {v(BR+e//2)}, {v(U+e)}, {v(U+e+1)}\nv_cvt_pk_bf16_f32 {v(BI+e//2)}, {v(U+8+e)}, {v(U+9+e)}')
    WR, WI = 8, 176
    big_stage(0, N64, S64)
    rot(TC, TS, -1)
    small_stage(N32, S32)
    WR, WI = XA, XA + 8
    A.wait_vm('w')
    for i in range(4):
        A(f'''v_lshlrev_b32 {v(WR+2*i)}, 16, {v(WW+i)}
v_and_b32 {v(WR+2*i+1)}, 0xffff0000, {v(WW+i)}
v_lshlrev_b32 {v(WI+2*i)}, 16, {v(WW+4+i)}
v_and_b32 {v(WI+2*i+1)}, 0xffff0000, {v(WW+4+i)}''')
    rot(WR, WI, 1)
    small_stage(S32, N32)
    rot(TC, TS, 1)
    A(f'''ds_write_b128 {v(wb)}, {v(BR,4)} offset:8192
ds_write_b128 {v(wb)}, {v(BI,4)} offset:12288
s_mul_i32 {s(st)}, {s(wave)}, {8*57344}
s_lshl_b32 {s(st+1)}, s2, 8
s_add_u32 {s(st)}, {s(st)}, {s(st+1)}
s_add_u32 {s(st)}, {s(st)}, {zb}''')
    A('s_waitcnt lgkmcnt(0)\ns_barrier')
    big_stage(8192, S64, N64)
    for e in range(8):
        A(f'v_add_f32 {v(ZR+e)}, {v(ZR+e)}, {v(DR+e)}\nv_fma_f32 {v(ZM+e)}, {v(DI+e)}, {s(sim)}, {v(ZM+e)}')
    for i in range(4):
        A(f'v_cvt_pk_bf16_f32 {v(BR+i)}, {v(ZR+2*i)}, {v(ZR+2*i+1)}\nv_cvt_pk_bf16_f32 {v(BI+i)}, {v(ZM+2*i)}, {v(ZM+2*i+1)}')
    A.t('st', f'buffer_store_dwordx4 {v(BR,4)}, {v(oa)}, {s(sW,4)}, {s(st)} offen sc1')
    A.t('st', f'buffer_store_dwordx4 {v(BI,4)}, {v(oa)}, {s(sW,4)}, {s(st)} offen offset:128 sc1')

def lam_tables(A, lre, lim, ldt, T):
    t1, t2 = T, T + 1
    lam_calc(A, lre, lim, ldt, PR, PI, t1, t2)
    A(f'v_lshlrev_b32 {v(hd)}, 16, {v(hd)}\nv_mul_f32 {v(hd)}, 0.5, {v(hd)}')
    for t in range(1, 16):
        x, y = (t - 1) // 2, t - 1 - (t - 1) // 2
        cmul(A, PR + t, PI + t, PR + x, PI + x, PR + y, PI + y)
    m1r, m1i = PR + 15, PI + 15
    m2r, m2i, m3r, m3i, L1r, L1i, L2r, L2i, L3r, L3i = range(T + 2, T + 12)
    cmul(A, m2r, m2i, m1r, m1i, m1r, m1i)
    cmul(A, m3r, m3i, m2r, m2i, m1r, m1i)
    cmul(A, L1r, L1i, m2r, m2i, m2r, m2i)
    cmul(A, L2r, L2i, L1r, L1i, L1r, L1i)
    cmul(A, L3r, L3i, L2r, L2i, L1r, L1i)
    cmul(A, L4r, L4i, L2r, L2i, L2r, L2i)
    sel4(A, mgr, '1.0', m1r, m2r, m3r); sel4(A, mgi, '0', m1i, m2i, m3i)
    sel4(A, Lgr, '1.0', L1r, L2r, L3r); sel4(A, Lgi, '0', L1i, L2i, L3i)

def sel4(A, d, c0, x1, x2, x3):
    A(f'''v_cndmask_b32 {v(d)}, {c0}, {v(x1)}, s[44:45]
v_cndmask_b32 {v(d)}, {v(d)}, {v(x2)}, s[46:47]
v_cndmask_b32 {v(d)}, {v(d)}, {v(x3)}, s[48:49]''')

AR, AI, AS, GR, FA, RA, R2, MM, LB = 8, 24, 40, 56, 60, 100, 106, 122, 138
cgr, cgi = 154, 155
ST = 156

def scan_pre(A):
    t1 = ST
    A(f'''v_lshrrev_b32 {v(t1)}, 2, {v(lane)}
v_lshlrev_b32 {v(RA)}, 7, {v(t1)}
v_bfe_u32 {v(t1)}, {v(lane)}, 3, 2
v_lshl_add_u32 {v(RA)}, {v(t1)}, 5, {v(RA)}
v_and_b32 {v(t1)}, 3, {v(lane)}
v_lshl_add_u32 {v(RA)}, {v(t1)}, 3, {v(RA)}
v_xor_b32 {v(RA+1)}, 32, {v(RA)}
v_xor_b32 {v(RA+2)}, 64, {v(RA)}
v_xor_b32 {v(RA+3)}, 0x60, {v(RA)}
s_lshl_b32 {s(st+1)}, {s(wave)}, 5
v_xor_b32 {v(RA+4)}, {s(st+1)}, {v(RA)}''')

def scan_phase(A, lay, zb, hb, sAG, sb):
    T = ST; t1, t2 = T + 3, T + 4
    sz = st + 2
    A(f'''s_lshl_b32 {s(st+1)}, {s(wave)}, 10
s_mov_b32 m0, {s(st+1)}
s_mul_i32 {s(sz)}, {s(rt)}, 57344
s_add_u32 {s(sz)}, {s(sz)}, {s(st+1)}
s_add_u32 {s(sz)}, {s(sz)}, {zb}''')
    starts = [0, 2, 4, 9]
    grp = lambda ks: max(i for i, x in enumerate(starts) if x <= ks)
    for ks in range(14):
        A.t(f'z{grp(ks)}', f'buffer_load_dwordx4 {v(VL16)}, {s(sW,4)}, {s(sz)} offen sc1 lds')
        if ks < 13: A(f's_add_u32 m0, m0, 4096\ns_add_u32 {s(sz)}, {s(sz)}, 4096')
    def rd1(ks, mt, hf):
        A(f'ds_read_b64_tr_b16 {v(FA+20*(ks&1)+4*mt+2*hf,2)}, {v(RA+mt)} offset:{ks*4096+hf*2048}')
    A.wait_vm('z0')
    A('s_barrier')
    pstamp(A, 'grp0')
    for mt in range(5):
        rd1(0, mt, 0); rd1(0, mt, 1)
    for ks in range(14):
        nxt = ks + 1 < 14
        if ks + 1 in starts:
            A.wait_vm(f'z{grp(ks+1)}'); A('s_barrier')
        b = FA + 20 * (ks & 1)
        for mt in range(4):
            A(f's_waitcnt lgkmcnt({8 if nxt else 8-2*mt})')
            c = v(AR + 4 * mt, 4) if ks else '0'
            A(f'v_mfma_f32_16x16x32_bf16 {v(AR+4*mt,4)}, {v(b+4*mt,4)}, {a(8*ks,4)}, {c}')
            if nxt: rd1(ks + 1, mt, 0)
            c = v(AI + 4 * mt, 4) if ks else '0'
            A(f'v_mfma_f32_16x16x32_bf16 {v(AI+4*mt,4)}, {v(b+4*mt,4)}, {a(8*ks+4,4)}, {c}')
            if nxt: rd1(ks + 1, mt, 1)
            if ks >= 6 and (mt & 1): A.bg(1)
        A(f's_waitcnt lgkmcnt({8 if nxt else 0})')
        c = v(GR, 4) if ks else '0'
        A(f'v_mfma_f32_16x16x32_bf16 {v(GR,4)}, {v(b+16,4)}, {v(b+16,4)}, {c}')
        if nxt:
            rd1(ks + 1, 4, 0); rd1(ks + 1, 4, 1)
    pstamp(A, 'loopend')
    dc, sq, ad = T, T + 1, T + 2
    A(f'''v_and_b32 {v(t1)}, 3, {v(lane)}
v_lshlrev_b32 {v(ad)}, 3, {v(g)}
v_lshl_add_u32 {v(ad)}, {v(t1)}, 1, {v(ad)}
s_lshl_b32 {s(st)}, {s(wave)}, 5
v_add_u32 {v(ad)}, {s(st)}, {v(ad)}
ds_read_u16 {v(dc)}, {v(ad)} offset:128
v_cmp_eq_u32 s[50:51], 1, {v(t1)}
v_cmp_eq_u32 s[52:53], 2, {v(t1)}
v_cmp_eq_u32 s[54:55], 3, {v(t1)}
v_lshlrev_b32 {v(ad)}, 6, {v(g)}
v_lshl_add_u32 {v(ad)}, {v(t1)}, 2, {v(ad)}
s_lshl_b32 {s(st)}, {s(wave)}, 4
v_add_u32 {v(ad)}, {s(st)}, {v(ad)}
v_lshrrev_b32 {v(t2)}, 2, {v(l15)}
v_cmp_eq_u32 vcc, {v(t2)}, {v(g)}
v_cndmask_b32 {v(sq)}, {v(GR)}, {v(GR+1)}, s[50:51]
v_cndmask_b32 {v(sq)}, {v(sq)}, {v(GR+2)}, s[52:53]
v_cndmask_b32 {v(sq)}, {v(sq)}, {v(GR+3)}, s[54:55]
s_waitcnt lgkmcnt(0)
v_lshlrev_b32 {v(dc)}, 16, {v(dc)}
v_fma_f32 {v(sq)}, -{v(dc)}, {v(dc)}, {v(sq)}
v_max_f32 {v(sq)}, 0, {v(sq)}
v_mov_b32 {v(t2)}, {f2u(0.25e-5)}
v_fmac_f32 {v(t2)}, {f2u(0.25/448)}, {v(sq)}
v_rsq_f32 {v(t2)}, {v(t2)}
v_mul_f32 {v(dc)}, {f2u(math.sqrt(1.0/448))}, {v(dc)}
s_and_saveexec_b64 s[56:57], vcc
ds_write2st64_b32 {v(ad)}, {v(t2)}, {v(dc)} offset0:{L_RX//256} offset1:{L_RX//256+1}
s_mov_b64 exec, s[56:57]
v_lshlrev_b32 {v(ad)}, 6, {v(g)}
s_waitcnt lgkmcnt(0)
s_barrier''')
    for i in range(4):
        A(f'ds_read_b128 {v(R2+4*i,4)}, {v(ad)} offset:{L_RX+16*i}')
    if lay:
        for i in range(4):
            A(f'ds_read_b128 {v(MM+4*i,4)}, {v(ad)} offset:{L_RX+256+16*i}')
    for i in range(4):
        A(f's_waitcnt lgkmcnt({(7 if lay else 3)-i})')
        for e in range(0, 4, 2):
            t = 4 * i + e
            A(f'v_pk_mul_f32 {v(AR+t,2)}, {v(AR+t,2)}, {v(R2+t,2)}\nv_pk_mul_f32 {v(AI+t,2)}, {v(AI+t,2)}, {v(R2+t,2)}')
        for e in range(4):
            t = 4 * i + e
            if t: cfma(A, AR + t, AI + t, PR, PI, AR + t - 1, AI + t - 1)
    m1r, m1i = PR + 15, PI + 15
    e0r, e1r, e2r, e3r, e0i, e1i, e2i, e3i = T, T + 1, T + 2, T + 8, T + 4, T + 5, T + 6, T + 9
    for (x0, x1, src) in ((e0r, e1r, AR + 15), (e0i, e1i, AI + 15)):
        A(f'v_mov_b32 {v(x0)}, {v(src)}\nv_mov_b32 {v(x1)}, {v(src)}')
    pa = T + 10
    sag = st + 5
    A(f'''s_lshl_b32 {s(st)}, {s(sl)}, 2
s_add_u32 {s(st)}, {s(st)}, {s(wave)}
s_lshl_b32 {s(st)}, {s(st)}, 7
s_mul_i32 {s(sag)}, {s(rt)}, 3584
s_add_u32 {s(sag)}, {s(sag)}, {s(st)}''')
    A(f'v_permlane16_swap_b32 {v(e0r)}, {v(e1r)}\nv_permlane16_swap_b32 {v(e0i)}, {v(e1i)}')
    A(f'v_mov_b32 {v(e2r)}, {v(e0r)}\nv_mov_b32 {v(e3r)}, {v(e1r)}\nv_mov_b32 {v(e2i)}, {v(e0i)}\nv_mov_b32 {v(e3i)}, {v(e1i)}')
    A(f'v_lshlrev_b32 {v(pa)}, 3, {v(l15)}')
    A(f'v_permlane32_swap_b32 {v(e0r)}, {v(e2r)}\nv_permlane32_swap_b32 {v(e1r)}, {v(e3r)}')
    A(f'v_permlane32_swap_b32 {v(e0i)}, {v(e2i)}\nv_permlane32_swap_b32 {v(e1i)}, {v(e3i)}')
    cfma(A, e1r, e1i, m1r, m1i, e0r, e0i)
    cfma(A, e2r, e2i, m1r, m1i, e1r, e1i)
    cfma(A, e3r, e3i, m1r, m1i, e2r, e2i)
    A('s_mov_b64 exec, 0xffff')
    A.t('pub', f'buffer_store_dwordx2 {v(e3r,2)}, {v(pa)}, {s(sAG,4)}, {s(sag)} offen sc1')
    A('s_mov_b64 exec, -1')
    pstamp(A, 'pub')
    sel4(A, cgr, '0', e0r, e1r, e2r); sel4(A, cgi, '0', e0i, e1i, e2i)
    LA = T + 12
    A(f'''v_mul_u32_u24 {v(t1)}, 3584, {v(g)}
v_sub_u32 {v(LA)}, {v(pa)}, {v(t1)}
s_sub_u32 {s(sag)}, {s(sag)}, 3584
v_add_u32 {v(LA)}, {s(sag)}, {v(LA)}''')
    for i in range(1, 8):
        A(f'v_subrev_u32 {v(LA+i)}, {4*3584*i}, {v(LA)}')
    def lb_issue():
        for i in range(8):
            A.t('lb', f'buffer_load_dwordx2 {v(LB+2*i,2)}, {v(LA+i)}, {s(sAG,4)}, 0 offen sc1')
    A.wait_vm('sk')
    for mt in range(4):
        rd1(0, mt, 0); rd1(0, mt, 1)
    for ks in range(14):
        nxt = ks + 1 < 14
        b = FA + 20 * (ks & 1)
        for mt in range(4):
            A(f's_waitcnt lgkmcnt({6 if nxt else 6-2*mt})')
            c = v(AS + 4 * mt, 4) if ks else '0'
            A(f'v_mfma_f32_16x16x32_bf16 {v(AS+4*mt,4)}, {v(b+4*mt,4)}, {a(112+4*ks,4)}, {c}')
            if nxt:
                rd1(ks + 1, mt, 0); rd1(ks + 1, mt, 1)
        if ks < 7: A.bg(1)
        if ks == LBK: lb_issue()
    pstamp(A, 'skipend')
    zt = FA
    if lay == 0:
        A(f'''s_lshl_b32 {s(st)}, {s(sl)}, 2
s_add_u32 {s(st)}, {s(st)}, {s(wave)}
s_lshl_b32 {s(st)}, {s(st)}, 11
v_lshlrev_b32 {v(t1)}, 7, {v(l15)}
v_add_u32 {v(t1)}, {s(st)}, {v(t1)}
v_bfe_u32 {v(t2)}, {v(l15)}, 1, 2
v_lshl_add_u32 {v(t1)}, {v(t2)}, 5, {v(t1)}
v_lshl_add_u32 {v(t1)}, {v(g)}, 3, {v(t1)}''')
        for mt in range(4):
            if mt: A(f'v_xor_b32 {v(t2)}, {32*mt}, {v(t1)}')
            A(f'ds_read_b64 {v(zt+2*mt,2)}, {v(t2 if mt else t1)}')
        A(f'''v_lshlrev_b32 {v(t1)}, 12, {v(g)}
v_lshl_add_u32 {v(t1)}, {v(l15)}, 2, {v(t1)}
s_lshl_b32 {s(st)}, {s(wave)}, 6
s_add_u32 {s(st)}, {s(st)}, {L_RED}
v_add_u32 {v(t1)}, {s(st)}, {v(t1)}
s_waitcnt lgkmcnt(0)''')
        for t in range(16):
            d = zt + 8 + t
            src = zt + t // 2
            A(f'v_and_b32 {v(d)}, 0xffff0000, {v(src)}' if t & 1 else f'v_lshlrev_b32 {v(d)}, 16, {v(src)}')
            A(f'v_fmac_f32 {v(d)}, {v(R2+t)}, {v(AS+t)}')
            if t: A(f'v_xor_b32 {v(t2)}, {16*t}, {v(t1)}')
            A(f'ds_write_b32 {v(t2 if t else t1)}, {v(d)} offset:{256*t}')
    else:
        A(f'''v_lshlrev_b32 {v(t1)}, 2, {v(g)}
v_xor_b32 {v(t1)}, {v(t1)}, {v(l15)}
v_lshlrev_b32 {v(t1)}, 4, {v(t1)}
v_lshl_add_u32 {v(t1)}, {v(l15)}, 8, {v(t1)}
s_lshl_b32 {s(st)}, {s(wave)}, 12
s_add_u32 {s(st)}, {s(st)}, {L_RED}
v_add_u32 {v(t1)}, {s(st)}, {v(t1)}''')
        for t in range(16):
            A(f'''v_sub_f32 {v(MM+t)}, {v(AS+t)}, {v(MM+t)}
v_mul_f32 {v(R2+t)}, {v(R2+t)}, {v(hd)}
v_fmac_f32 {v(AS+t)}, {v(R2+t)}, {v(MM+t)}''')
            if (t & 3) == 3:
                mt = t // 4
                if mt: A(f'v_xor_b32 {v(t2)}, {16*mt}, {v(t1)}')
                A(f'ds_write_b128 {v(t2 if mt else t1)}, {v(AS+t-3,4)}')
    ha = T + 4
    xr, xi = T + 2, T + 3
    A(f'''v_lshlrev_b32 {v(ha)}, 6, {v(l15)}
v_lshl_add_u32 {v(ha)}, {v(g)}, 4, {v(ha)}
s_lshl_b32 {s(st+1)}, {s(sl)}, 2
s_add_u32 {s(st+1)}, {s(st+1)}, {s(wave)}
s_lshl_b32 {s(st+1)}, {s(st+1)}, 10
s_mul_i32 {s(st+2)}, {s(rt)}, 114688
s_add_u32 {s(st+1)}, {s(st+1)}, {s(st+2)}
s_add_u32 {s(st+1)}, {s(st+1)}, {hb}
s_add_u32 {s(st+2)}, {s(st+1)}, 28672
s_add_u32 {s(st+3)}, {s(st+1)}, 57344
s_add_u32 {s(st+4)}, {s(st+1)}, {57344+28672}
s_mov_b32 {s(st)}, 0''')
    A.wait_vm('lb')
    pstamp(A, 'lbw')
    lab = A.label('lb')
    A(f'{lab}:')
    mx = T
    A(f'v_max3_u32 {v(mx)}, {v(LB)}, {v(LB+1)}, {v(LB+2)}')
    for i in range(3, 15, 2):
        A(f'v_max3_u32 {v(mx)}, {v(mx)}, {v(LB+i)}, {v(LB+i+1)}')
    A(f'''v_max_u32 {v(mx)}, {v(mx)}, {v(LB+15)}
v_cmp_eq_u32 vcc, -1, {v(mx)}
s_cbranch_vccz {lab}_r
s_add_u32 {s(st)}, {s(st)}, 1
s_cmp_gt_u32 {s(st)}, {SPIN}
s_cbranch_scc1 {lab}_r''')
    A.track = False
    lb_issue()
    A.track = True
    A(f's_waitcnt vmcnt(0)\ns_branch {lab}')
    A(f'{lab}_r:')
    pstamp(A, 'lbr')
    for i in range(6, -1, -1):
        cfma(A, LB + 2 * i, LB + 2 * i + 1, L4r, L4i, LB + 2 * i + 2, LB + 2 * i + 3)
    cr, ci = T, T + 1
    cmul(A, cr, ci, Lgr, Lgi, LB, LB + 1)
    for sw in ('16', '32'):
        A(f'''v_mov_b32 {v(xr)}, {v(cr)}
v_mov_b32 {v(xi)}, {v(ci)}
v_permlane{sw}_swap_b32 {v(cr)}, {v(xr)}
v_permlane{sw}_swap_b32 {v(ci)}, {v(xi)}
v_add_f32 {v(cr)}, {v(cr)}, {v(xr)}
v_add_f32 {v(ci)}, {v(ci)}, {v(xi)}''')
    cfma(A, cgr, cgi, mgr, mgi, cr, ci)
    o = FA
    cg = v(cgr, 2)
    for hh in range(2):
        for t in range(8 * hh, 8 * hh + 8, 2):
            A(f'''v_pk_fma_f32 {v(AR+t,2)}, {v(PR+t,2)}, {cg}, {v(AR+t,2)} op_sel_hi:[1,0,1]
v_pk_fma_f32 {v(AI+t,2)}, {v(PR+t,2)}, {cg}, {v(AI+t,2)} op_sel:[0,1,0] op_sel_hi:[1,1,1]''')
        for t in range(8 * hh, 8 * hh + 8, 2):
            A(f'''v_pk_fma_f32 {v(AR+t,2)}, {v(PI+t,2)}, {cg}, {v(AR+t,2)} op_sel:[0,1,0] op_sel_hi:[1,1,1] neg_lo:[1,0,0] neg_hi:[1,0,0]
v_pk_fma_f32 {v(AI+t,2)}, {v(PI+t,2)}, {cg}, {v(AI+t,2)} op_sel_hi:[1,0,1]''')
        for t in range(8 * hh, 8 * hh + 8, 2):
            A(f'v_cvt_pk_bf16_f32 {v(o+t//2)}, {v(AR+t)}, {v(AR+t+1)}')
            A(f'v_cvt_pk_bf16_f32 {v(o+8+t//2)}, -{v(AI+t)}, -{v(AI+t+1)}')
        A.t('st', f'buffer_store_dwordx4 {v(o+4*hh,4)}, {v(ha)}, {s(sW,4)}, {s(st+1+2*hh)} offen sc1')
        A.t('st', f'buffer_store_dwordx4 {v(o+8+4*hh,4)}, {v(ha)}, {s(sW,4)}, {s(st+2+2*hh)} offen sc1')
    A('s_waitcnt lgkmcnt(0)')

T0, T1, BF, PT = 8, 24, 40, 72

def proj_pre(A, last):
    ra0, ra1, rw, rr, t1, t2, za = range(PT, PT + 7)
    A(f'''v_bfe_u32 {v(t1)}, {v(lane)}, 2, 2
v_lshrrev_b32 {v(t2)}, 5, {v(lane)}
v_lshl_add_u32 {v(ra0)}, {v(t2)}, {3 if last else 2}, {v(t1)}
v_lshlrev_b32 {v(ra0)}, 6, {v(ra0)}
v_bfe_u32 {v(t1)}, {v(lane)}, 4, 1
v_lshl_add_u32 {v(ra0)}, {v(t1)}, 5, {v(ra0)}
v_and_b32 {v(t1)}, 3, {v(lane)}''')
    if last:
        A(f's_lshl_b32 {s(st+1)}, {s(kh)}, 1\nv_xor_b32 {v(t1)}, {s(st+1)}, {v(t1)}')
    A(f'''v_lshl_add_u32 {v(ra0)}, {v(t1)}, 3, {v(ra0)}
s_mul_i32 {s(st+1)}, {s(kh)}, 28672
v_add_u32 {v(ra0)}, {s(st+1)}, {v(ra0)}
v_add_u32 {v(ra1)}, 57344, {v(ra0)}
s_lshl_b32 {s(st+1)}, {s(wave)}, 12
s_add_u32 {s(st+1)}, {s(st+1)}, {L_RED}
s_xor_b32 {s(st+2)}, {s(st+1)}, 4096
v_add_u32 {v(rw)}, {s(st+1)}, {v(VL16)}
v_add_u32 {v(rr)}, {s(st+2)}, {v(VL16)}''')
    if last:
        A(f'''s_lshl_b32 {s(st+1)}, {s(kh)}, 2
v_add_u32 {v(t2)}, {s(st+1)}, {v(t2)}
v_xor_b32 {v(t2)}, {v(t2)}, {v(l15)}
v_and_b32 {v(t1)}, 31, {v(lane)}
v_lshlrev_b32 {v(t1)}, 8, {v(t1)}
v_lshl_add_u32 {v(za)}, {v(t2)}, 4, {v(t1)}
s_lshl_b32 {s(st+1)}, {s(wm)}, 13
s_add_u32 {s(st+1)}, {s(st+1)}, {L_RED}
v_add_u32 {v(za)}, {s(st+1)}, {v(za)}''')
    else:
        A(f'''s_lshl_b32 {s(st+1)}, {s(kh)}, 1
s_lshl_b32 {s(st+2)}, {s(wm)}, 3
s_add_u32 {s(st+1)}, {s(st+1)}, {s(st+2)}
v_add_u32 {v(t2)}, {s(st+1)}, {v(t2)}
v_and_b32 {v(t1)}, 7, {v(lane)}
v_xor_b32 {v(t2)}, {v(t2)}, {v(t1)}
v_lshlrev_b32 {v(t1)}, 8, {v(t1)}
v_lshl_add_u32 {v(za)}, {v(t2)}, 4, {v(t1)}
v_bfe_u32 {v(t1)}, {v(lane)}, 3, 2
v_lshl_add_u32 {v(za)}, {v(t1)}, 12, {v(za)}
v_add_u32 {v(za)}, {L_RED}, {v(za)}''')
    for nt, Tn in enumerate((T0, T1)):
        for q in (0, 2):
            x = (64 * q + 32 * nt) if last else (32 * q + 128 * nt)
            off = 0 if last else 2048 * nt
            if x:
                A(f'v_xor_b32 {v(t1)}, {x}, {v(za)}\nds_read_b128 {v(Tn+4*q,4)}, {v(t1)} offset:{off}')
            else:
                A(f'ds_read_b128 {v(Tn+4*q,4)}, {v(za)} offset:{off}')
        for q in (1, 3):
            for i in range(4): A(f'v_mov_b32 {v(Tn+4*q+i)}, 0')
    A(f'''s_mul_i32 {s(st+4)}, {s(kh)}, 57344
s_mul_i32 {s(st+1)}, {s(wm)}, 28672
s_add_u32 {s(st+4)}, {s(st+4)}, {s(st+1)}
s_mov_b32 m0, {s(st+4)}
s_mul_i32 {s(st+1)}, {s(rt)}, 114688
s_add_u32 {s(st+4)}, {s(st+4)}, {s(st+1)}''')

NUP = int(os.environ.get('NUP', '17'))
def proj_phase(A, last, hb):
    ra0, ra1, rw, rr, t1, t2 = range(PT, PT + 6)
    sh = st + 4
    A(f's_add_u32 {s(sh)}, {s(sh)}, {hb}')
    def dma(k):
        A.t(f'h{k//4}', f'buffer_load_dwordx4 {v(VL16)}, {s(sW,4)}, {s(sh)} offen offset:{(k&3)*1024} sc1 lds')
        if (k & 3) == 3 and k < 27: A(f's_add_u32 m0, m0, 4096\ns_add_u32 {s(sh)}, {s(sh)}, 4096')
    hoff = 256 if last else 512
    def rd(k, nt):
        b = BF + 8 * (k % 4)
        for hf in range(2):
            A(f'ds_read_b64_tr_b16 {v(b+4*nt+2*hf,2)}, {v(ra0+nt)} offset:{k*1024+hf*hoff}')
    for k in range(NUP): dma(k)
    A.wait_vm('h0')
    A('s_barrier')
    pstamp(A, 'grp0')
    for k in range(2):
        rd(k, 0); rd(k, 1)
    for k in range(28):
        if (k & 3) == 2 and k + 2 < 28:
            A.wait_vm(f'h{(k+2)//4}'); A('s_barrier')
        b = BF + 8 * (k % 4)
        for nt, Tn in enumerate((T0, T1)):
            left = min(6, 4 * (27 - k) + 2 * (1 - nt))
            A(f's_waitcnt lgkmcnt({left})')
            x, y = wc_reg(k), v(b + 4 * nt, 4)
            if last: x, y = y, x
            A(f'v_mfma_f32_32x32x16_bf16 {v(Tn,16)}, {x}, {y}, {v(Tn,16)}')
            if k + 2 < 28: rd(k + 2, nt)
            if nt == 0:
                if k + NUP < 28: dma(k + NUP)
                else: A.bg(1)
    A.bg(64)
    pstamp(A, 'loopend')
    if last:
        A(f'''v_lshrrev_b32 {v(t1)}, 5, {v(lane)}
v_mul_u32_u24 {v(t1)}, {4*1792}, {v(t1)}
v_and_b32 {v(t2)}, 31, {v(lane)}
v_lshl_add_u32 {v(t1)}, {v(t2)}, 2, {v(t1)}
v_add_u32 {v(t2)}, 3584, {v(t1)}
s_lshl_b32 {s(st)}, {s(rt)}, 2
s_add_u32 {s(st)}, {s(st)}, {s(kh)}
s_mul_i32 {s(st)}, {s(st)}, {16*1792}
s_lshl_b32 {s(st+1)}, {s(sl)}, 8
s_add_u32 {s(st)}, {s(st)}, {s(st+1)}
s_lshl_b32 {s(st+1)}, {s(wm)}, 7
s_add_u32 {s(st)}, {s(st)}, {s(st+1)}
s_add_u32 {s(st+1)}, {s(st)}, {32*1792}
s_add_u32 {s(st+2)}, {s(st)}, {8*1792}
s_add_u32 {s(st+3)}, {s(st)}, {40*1792}''')
        ksplit_reduce(A, T0, T1, rw, rr, BF)
        for mt, Tn in enumerate((T0, T1)):
            for q in (0, 2):
                for i in range(4):
                    A(f'buffer_store_dword {v(Tn+4*q+i)}, {v(t1 if i < 2 else t2)}, {s(sO,4)}, {s(st+2*mt+q//2)} offen offset:{1792*(i&1)}')
        return
    ta, ia, ga, s0, s1, pk = PT + 6, PT + 7, PT + 8, PT + 10, PT + 11, BF + 16
    A(f'''v_and_b32 {v(ta)}, 7, {v(lane)}
v_bfe_u32 {v(t1)}, {v(lane)}, 3, 2
v_lshl_add_u32 {v(ta)}, {v(t1)}, 4, {v(ta)}
v_lshlrev_b32 {v(ta)}, 2, {v(ta)}
v_lshrrev_b32 {v(t1)}, 5, {v(lane)}
v_lshl_add_u32 {v(ia)}, {v(t1)}, 9, {v(ta)}
v_lshl_add_u32 {v(ta)}, {v(t1)}, 5, {v(ta)}
s_lshl_b32 {s(st)}, {s(wm)}, 12
s_lshl_b32 {s(st+1)}, {s(kh)}, 10
s_add_u32 {s(st)}, {s(st)}, {s(st+1)}
v_add_u32 {v(ia)}, {s(st)}, {v(ia)}
s_lshl_b32 {s(st)}, {s(wave)}, 8
v_add_u32 {v(ta)}, {s(st)}, {v(ta)}
v_lshlrev_b32 {v(ga)}, 13, {v(g)}
v_lshl_add_u32 {v(ga)}, {v(l15)}, 4, {v(ga)}
s_lshl_b32 {s(st)}, {s(wave)}, 11
v_add_u32 {v(t2)}, {s(st)}, {v(VL16)}
s_lshl_b32 {s(st)}, {s(sl)}, 2
s_add_u32 {s(st)}, {s(st)}, {s(wave)}
s_lshl_b32 {s(st)}, {s(st)}, 16
s_lshl_b32 {s(st+1)}, {s(rt)}, 8
s_add_u32 {s(st)}, {s(st)}, {s(st+1)}
s_add_u32 {s(st)}, {s(st)}, {ZC2}
s_add_u32 {s(st+2)}, {s(st)}, 32768
s_add_u32 {s(st+1)}, {s(st+1)}, {SSQ2}''')
    ksplit_reduce(A, T0, T1, rw, rr, BF)
    k = 0
    for nt, Tn in enumerate((T0, T1)):
        for q in (0, 2):
            for ip in range(2):
                r = Tn + 4 * q + 2 * ip
                A(f'v_cvt_pk_bf16_f32 {v(pk+k)}, {v(r)}, {v(r+1)}')
                A(f'ds_write_b32 {v(ia)}, {v(pk+k)} offset:{(4*q+ip)*256+32*nt}')
                k += 1
    lab = A.label('nodc')
    A(f'''s_or_b32 {s(st+3)}, {s(sl)}, {s(wave)}
s_cmp_lg_u32 {s(st+3)}, 0
s_cbranch_scc1 {lab}
v_cmp_gt_u32 vcc, 32, {v(lane)}
v_cndmask_b32 {v(T0+1)}, {v(T0+1)}, 0, vcc
v_cndmask_b32 {v(T1+1)}, {v(T1+1)}, 0, vcc
{lab}:''')
    for sreg, Tn in ((s0, T0), (s1, T1)):
        A(f'v_mul_f32 {v(sreg)}, {v(Tn)}, {v(Tn)}')
    for r in (1, 2, 3, 8, 9, 10, 11):
        for sreg, Tn in ((s0, T0), (s1, T1)):
            A(f'v_fmac_f32 {v(sreg)}, {v(Tn+r)}, {v(Tn+r)}')
    A(f'''v_permlane32_swap_b32 {v(s0)}, {v(s1)}
v_add_f32 {v(s0)}, {v(s0)}, {v(s1)}
ds_write_b32 {v(ta)}, {v(s0)} offset:8192
s_waitcnt lgkmcnt(0)
s_barrier
ds_read_b128 {v(T0,4)}, {v(t2)}
ds_read_b128 {v(T0+4,4)}, {v(t2)} offset:1024''')
    lab = A.label('ssq')
    A(f'''s_cmp_lg_u32 {s(wave)}, 1
s_cbranch_scc1 {lab}
v_lshlrev_b32 {v(ta)}, 2, {v(lane)}
ds_read2st64_b32 {v(pk,2)}, {v(ta)} offset0:32 offset1:33
ds_read2st64_b32 {v(pk+2,2)}, {v(ta)} offset0:34 offset1:35
s_waitcnt lgkmcnt(0)
v_add_f32 {v(pk)}, {v(pk)}, {v(pk+1)}
v_add_f32 {v(pk+2)}, {v(pk+2)}, {v(pk+3)}
v_add_f32 {v(pk)}, {v(pk)}, {v(pk+2)}''')
    A.track = False
    A(f'buffer_atomic_add_f32 {v(pk)}, {v(ta)}, {s(sW,4)}, {s(st+1)} offen')
    A.track = True
    A(f'{lab}:\ns_waitcnt lgkmcnt(1)')
    A.t('st', f'buffer_store_dwordx4 {v(T0,4)}, {v(ga)}, {s(sW,4)}, {s(st)} offen sc1')
    A('s_waitcnt lgkmcnt(0)')
    A.t('st', f'buffer_store_dwordx4 {v(T0+4,4)}, {v(ga)}, {s(sW,4)}, {s(st+2)} offen sc1')

def kp():
    A = Asm()
    gen.KSTAMP = False
    A(f's_cmp_ge_u32 s2, {224+NAUX}\ns_cbranch_scc1 KP_exit')
    pstamp(A, 'entry')
    ld_ptr(A, sW, WS)
    A('s_cmp_ge_u32 s2, 224\ns_cbranch_scc1 KP_aux')
    ld_ptr(A, sO, OUT); ld_ptr(A, 40, L_RE); ld_ptr(A, 44, L_IM); ld_ptr(A, 48, LOGDT); ld_ptr(A, 52, DSKIP)
    A(f'''v_and_b32 {v(lane)}, 63, v0
v_lshrrev_b32 v2, 6, v0
v_readfirstlane_b32 {s(wave)}, v2
v_and_b32 {v(l15)}, 15, {v(lane)}
v_lshrrev_b32 {v(g)}, 4, {v(lane)}
v_lshlrev_b32 {v(VL16)}, 4, {v(lane)}
s_and_b32 {s(kh)}, {s(wave)}, 1
s_lshr_b32 {s(wm)}, {s(wave)}, 1
s_lshl_b32 {s(st)}, {s(kh)}, 7
v_xor_b32 {v(VL16X)}, {s(st)}, {v(VL16)}
s_cmp_eq_u32 s2, 0
s_cselect_b32 {s(sim)}, 0, 1.0''')
    tile_ids(A, rt, sl, st)
    A(f'''s_lshl_b32 {s(st+3)}, {s(sl)}, 2
s_add_u32 {s(st+3)}, {s(st+3)}, {s(wave)}
s_mul_i32 {s(s_m1)}, {s(st+3)}, {28*1024}
s_add_u32 {s(s_m1)}, {s(s_m1)}, {WM1}
s_mul_i32 {s(s_sk)}, {s(st+3)}, {14*1024}
s_add_u32 {s(s_sk)}, {s(s_sk)}, {WSK}
s_lshl_b32 {s(st+3)}, {s(st+3)}, 5
s_lshl_b32 {s(s_wc)}, {s(sl)}, 1
s_add_u32 {s(s_wc)}, {s(s_wc)}, {s(kh)}
s_lshl_b32 {s(s_wc)}, {s(s_wc)}, 1
s_add_u32 {s(s_wc)}, {s(s_wc)}, {s(wm)}
s_mul_i32 {s(s_wc)}, {s(s_wc)}, {28*1024}
s_add_u32 {s(s_wc)}, {s(s_wc)}, {WC}''')
    col_tables1(A)
    A('s_waitcnt lgkmcnt(0)')
    srd_ws(A, sW); srd(A, sO, S * D * 4)
    for r in (40, 44, 48, 52): srd(A, r, D * 2)
    pstamp(A, 'karg')
    col_loads(A, ZC, R0, '')
    col_wload(A)
    lre, lim, ldt = PR + 1, PR + 2, PR + 3
    A(f'v_lshlrev_b32 v6, 1, {v(l15)}')
    for r, sr in ((lre, 40), (lim, 44), (ldt, 48), (hd, 52)):
        A.t('lam', f'buffer_load_ushort {v(r)}, v6, {s(sr,4)}, {s(st+3)} offen')
    for i, r in enumerate((sAG0, sAG1)):
        A(f's_add_u32 {s(r)}, s4, {AGG + i*AGG_L}\ns_addc_u32 {s(r+1)}, s5, 0')
        srd(A, r, AGG_L)
    A(f'''v_cmp_eq_u32 s[44:45], 1, {v(g)}
v_cmp_eq_u32 s[46:47], 2, {v(g)}
v_cmp_eq_u32 s[48:49], 3, {v(g)}''')
    q_m1(A)
    col_tables2(A)
    col_compute(A, ZB, False)
    signal16(A, 'st', F_CA[0])
    A.bg(64)
    A.wait_vm('lam')
    A(f'v_mov_b32 v8, {v(lre)}\nv_mov_b32 v9, {v(lim)}\nv_mov_b32 v10, {v(ldt)}')
    lam_tables(A, 8, 9, 10, 12)
    for lay in range(2):
        scan_pre(A)
        A.wait_vm('m1')
        poll(A, poll16(F_CA[lay], (F_CE, 7) if lay == 0 else None))
        if lay == 0:
            q_sk(A, ' sc1'); q_wc(A, VL16X, '')
        scan_phase(A, lay, (ZB, ZB3)[lay], (HB, HB2)[lay], (sAG0, sAG1)[lay], 0)
        A(f's_lshl_b32 {s(st+3)}, {s(rt)}, 7\ns_add_u32 {s(st+3)}, {s(st+3)}, {F_CB[lay]}')
        signal(A, 'st', st + 3)
        A.bg(64)
        proj_pre(A, lay == 1)
        A.wait_vm('wc')
        pt = f'v_mov_b32 v5, {s(st+3)}\nv_mov_b32 v6, 7'
        if lay == 0: pt += f'\ns_and_b32 {s(st)}, s2, 7\n' + poll_extra(F_CD, NAUX)
        poll(A, pt)
        if lay == 0:
            A(f's_add_u32 {s(s_sk)}, {s(s_sk)}, {WSK_L - 12288}')
            q_sk(A, ' sc1')
        proj_phase(A, lay == 1, (HB, HB2)[lay])
        if lay == 0:
            signal16(A, 'st', F_CC)
            A(f's_add_u32 {s(s_wc)}, {s(s_wc)}, {WC_L - 28672}')
            col_wload(A)
            q_wc(A, VL16, ' sc1')
            A.bg(8)
            col_tables1(A)
            A.bg(8)
            col_tables2(A)
            A.bg(64)
            poll(A, poll16(F_CC))
            col_loads(A, ZC2, SSQ2, ' sc1')
            col_compute(A, ZB3, True)
            signal16(A, 'st', F_CA[1])
    A('KP_end:')
    if STAMPS == 1:
        A('s_memrealtime s[100:101]\ns_waitcnt lgkmcnt(0)')
        for i in range(21): A(f'v_mov_b32 {v(8+i)}, {s(60+2*i)}')
        A(f'''v_lshrrev_b32 v5, 6, v0
v_lshlrev_b32 v5, 7, v5
s_lshl_b32 s60, s2, 9
s_add_u32 s60, s60, {STAMP + 131072}''')
        for i in range(6): A(f'buffer_store_dwordx4 {v(8+4*i,4)}, v5, {s(sW,4)}, s60 offen offset:{16*i}')
    A('KP_exit:\ns_endpgm')

    A('KP_aux:')
    A.track = False
    ld_ptr(A, 8, C_RE); ld_ptr(A, 12, C_IM)
    A(f'''v_and_b32 {v(lane)}, 63, v0
v_lshrrev_b32 v2, 6, v0
v_readfirstlane_b32 {s(wave)}, v2
s_cmp_lt_u32 s2, 231
s_cbranch_scc1 KP_qt
s_sub_u32 {s(st)}, s2, 231
s_and_b32 {s(st+1)}, {s(st)}, 1
s_lshr_b32 {s(st+2)}, {s(wave)}, 1
s_and_b32 {s(st+3)}, {s(wave)}, 1
s_andn2_b32 {s(st+4)}, {s(st)}, 1
s_add_u32 {s(st+4)}, {s(st+4)}, {s(st+2)}
s_mul_i32 {s(st+4)}, {s(st+4)}, {32*896}
s_mul_i32 {s(st+5)}, {s(st+3)}, {14*32}
s_add_u32 {s(st+4)}, {s(st+4)}, {s(st+5)}
s_lshl_b32 {s(st+5)}, {s(st)}, 1
s_add_u32 {s(st+5)}, {s(st+5)}, {s(st+2)}
s_lshl_b32 {s(st+5)}, {s(st+5)}, 1
s_add_u32 {s(st+5)}, {s(st+5)}, {s(st+3)}
s_mul_i32 {s(st+5)}, {s(st+5)}, {14*1024}
s_add_u32 {s(st+5)}, {s(st+5)}, {WC + WC_L}
v_and_b32 v5, 31, {v(lane)}
v_mul_u32_u24 v5, 896, v5
v_lshrrev_b32 v6, 5, {v(lane)}
v_lshl_add_u32 v5, v6, 4, v5
v_lshlrev_b32 v6, 4, {v(lane)}
s_waitcnt lgkmcnt(0)
s_cmp_eq_u32 {s(st+1)}, 0
s_cselect_b32 s8, s8, s12
s_cselect_b32 s9, s9, s13''')
    srd(A, 8, D * D * 2); srd_ws(A, sW)
    for k in range(14):
        A(f'buffer_load_dwordx4 {v(8+4*k,4)}, v5, s[8:11], {s(st+4)} offen offset:{32*k}')
    for k in range(14):
        A(f's_waitcnt vmcnt(13)\nbuffer_store_dwordx4 {v(8+4*k,4)}, v6, {s(sW,4)}, {s(st+5)} offen sc1\ns_add_u32 {s(st+5)}, {s(st+5)}, 1024')
    A('s_branch KP_auxsig')
    A('KP_qt:')
    TS_ = 5392
    sc_ = 0.25 * math.sqrt(2.0 / 448)
    A('s_waitcnt lgkmcnt(0)')
    srd_ws(A, sW)
    A(f's_mov_b32 {s(st)}, {ZD}')
    for i in range(3):
        x, c, sg = 16 + 8 * i, 17 + 8 * i, 18 + 8 * i
        A(f'''v_add_u32 {v(x)}, {256*i}, v0
v_subrev_u32 {v(c)}, 224, {v(x)}
v_sub_u32 {v(sg)}, 224, {v(x)}
v_max_i32 {v(c)}, {v(c)}, {v(sg)}
v_sub_u32 {v(sg)}, 448, {v(c)}
v_min_i32 {v(c)}, {v(c)}, {v(sg)}
v_lshlrev_b32 {v(sg)}, 3, {v(c)}
v_cmp_eq_u32 vcc, 224, {v(c)}
v_cndmask_b32 {v(sg)}, {v(sg)}, 0, vcc
buffer_load_dwordx2 {v(x+4,2)}, {v(sg)}, {s(sW,4)}, {s(st)} offen''')
    for i in range(3):
        x, c, sg, cc, cs, nn = 16 + 8 * i, 17 + 8 * i, 18 + 8 * i, 20 + 8 * i, 21 + 8 * i, 19 + 8 * i
        A(f'''s_waitcnt vmcnt({2-i})
v_cmp_eq_u32 vcc, 0, {v(c)}
v_cndmask_b32 {v(cc)}, {v(cc)}, {v(cs)}, vcc
v_cmp_eq_u32 s[40:41], 0, {v(c)}
v_cmp_eq_u32 vcc, 224, {v(c)}
s_or_b64 vcc, vcc, s[40:41]
v_mov_b32 {v(sg)}, {f2u(sc_)}
v_mov_b32 {v(nn)}, {f2u(sc_*math.sqrt(2.0))}
v_cndmask_b32 {v(nn)}, {v(sg)}, {v(nn)}, vcc
v_cndmask_b32 {v(cs)}, {v(cs)}, 0, vcc
v_mul_f32 {v(cc)}, {v(cc)}, {v(nn)}
v_mul_f32 {v(cs)}, {v(cs)}, {v(sg)}
v_cmp_gt_u32 vcc, 224, {v(x)}
s_mov_b64 s[40:41], vcc
v_cmp_lt_u32 vcc, 448, {v(x)}
s_or_b64 vcc, vcc, s[40:41]
v_xor_b32 {v(nn)}, 0x80000000, {v(cs)}
v_cndmask_b32 {v(cs)}, {v(cs)}, {v(nn)}, vcc
v_xor_b32 {v(nn+3)}, 0x80000000, {v(cs)}
v_mov_b32 {v(nn+4)}, {v(cc)}
v_xor_b32 {v(nn)}, 0x80000000, {v(cc)}
v_mov_b32 {v(sg)}, {v(cs)}
v_lshlrev_b32 {v(c)}, 3, {v(x)}
v_cmp_gt_u32 vcc, 673, {v(x)}
s_and_saveexec_b64 s[40:41], vcc
ds_write_b64 {v(c)}, {v(cc,2)}
ds_write_b64 {v(c)}, {v(nn+3,2)} offset:{TS_}
ds_write_b64 {v(c)}, {v(cc,2)} offset:{2*TS_}
ds_write_b64 {v(c)}, {v(sg,2)} offset:{3*TS_}
s_mov_b64 exec, s[40:41]''')
    jp, cp, pr, am, ap, fa = 5, 6, 7, 8, 9, 10
    A(f'''s_sub_u32 {s(st)}, s2, 224
s_lshl_b32 {s(st)}, {s(st)}, 2
s_add_u32 {s(st)}, {s(st)}, {s(wave)}
s_lshl_b32 {s(st+1)}, {s(st)}, 4
s_mul_i32 {s(st)}, {s(st)}, {14*1024}
s_add_u32 {s(st)}, {s(st)}, {WSK}
v_and_b32 {v(jp)}, 15, {v(lane)}
v_add_u32 {v(jp)}, {s(st+1)}, {v(jp)}
v_lshrrev_b32 {v(cp)}, 1, {v(jp)}
v_and_b32 {v(pr)}, 1, {v(jp)}
v_mov_b32 v12, 224
v_cmp_eq_u32 vcc, 0, {v(jp)}
v_cndmask_b32 {v(cp)}, {v(cp)}, v12, vcc
v_cmp_gt_u32 vcc, 2, {v(jp)}
v_cndmask_b32 {v(pr)}, {v(pr)}, 0, vcc
v_mov_b32 v12, {f2u(math.sqrt(0.5))}
v_cndmask_b32 {v(fa)}, 1.0, v12, vcc
v_mul_u32_u24 {v(pr)}, {TS_}, {v(pr)}
v_lshrrev_b32 v13, 4, {v(lane)}
v_lshlrev_b32 v14, 1, v13
v_sub_u32 {v(am)}, 224, {v(cp)}
v_add_u32 {v(ap)}, 224, {v(cp)}
v_lshl_add_u32 v15, {v(am)}, 3, {v(pr)}
v_lshl_add_u32 v12, {v(ap)}, 3, {v(pr)}
v_add_u32 {v(am)}, {v(am)}, v14
v_add_u32 {v(ap)}, {v(ap)}, v14
v_lshl_add_u32 {v(am)}, {v(am)}, 3, {v(pr)}
v_lshl_add_u32 {v(ap)}, {v(ap)}, 3, {v(pr)}
s_waitcnt lgkmcnt(0)
s_barrier
ds_read_b32 v40, v15 offset:{224*8}
ds_read_b32 v41, v12 offset:{224*8+2*TS_}''')
    O = 48
    def m2rd(ks):
        b = 16 + 16 * (ks & 1) if False else (112 + 16 * (ks & 1))
        for p in range(4):
            off = 8 * (16 * ks + 8 * (p >> 1) + (p & 1))
            A(f'ds_read_b64 {v(b+4*p,2)}, {v(am)} offset:{off}\nds_read_b64 {v(b+4*p+2,2)}, {v(ap)} offset:{off+2*TS_}')
    m2rd(0)
    for ks in range(14):
        if ks < 13:
            m2rd(ks + 1); A('s_waitcnt lgkmcnt(8)')
        else:
            A('s_waitcnt lgkmcnt(0)')
        b = 112 + 16 * (ks & 1)
        for p in range(4):
            A(f'v_pk_add_f32 {v(b+4*p,2)}, {v(b+4*p,2)}, {v(b+4*p+2,2)}')
        if ks == 0:
            A(f'''v_add_f32 v40, v40, v41
v_mul_f32 v40, {f2u(math.sqrt(0.5))}, v40
v_cmp_eq_u32 vcc, 0, v13
v_cndmask_b32 {v(b)}, {v(b)}, v40, vcc
v_cndmask_b32 {v(b+1)}, {v(b+1)}, 0, vcc''')
        for p in range(4):
            A(f'v_pk_mul_f32 {v(b+4*p,2)}, {v(b+4*p,2)}, {v(fa,2)} op_sel_hi:[1,0]')
        for p in range(4):
            A(f'v_cvt_pk_bf16_f32 {v(O+4*ks+p)}, {v(b+4*p)}, {v(b+4*p+1)}')
    A(f'v_lshlrev_b32 v6, 4, {v(lane)}')
    for k in range(14):
        A(f'buffer_store_dwordx4 {v(O+4*k,4)}, v6, {s(sW,4)}, {s(st)} offen sc1\ns_add_u32 {s(st)}, {s(st)}, 1024')
    A(f's_mov_b32 {s(st+1)}, {F_CE}')
    signal(A, None, st + 1, 8, 128)
    A.track = False
    sinv, s448 = 25, 26
    amp, df, two, c16, t, u, d0, d1, d2, tq = 6, 7, 8, 9, 10, 11, 112, 113, 114, 115
    O = 48
    a2 = math.sqrt(2.0 / 448); a1 = math.sqrt(1.0 / 448)
    A(f'''s_mov_b32 {s(sinv)}, {f2u(INV448)}
s_mov_b32 {s(s448)}, {f2u(448.0)}
s_sub_u32 {s(st)}, s2, 224
s_lshl_b32 {s(st)}, {s(st)}, 2
s_add_u32 {s(st)}, {s(st)}, {s(wave)}
s_lshl_b32 {s(st+1)}, {s(st)}, 4
s_mul_i32 {s(st)}, {s(st)}, {14*1024}
s_add_u32 {s(st)}, {s(st)}, {WSK + WSK_L}
v_and_b32 v12, 15, {v(lane)}
v_add_u32 v12, {s(st+1)}, v12
v_cvt_f32_u32 {v(df)}, v12
v_lshrrev_b32 v13, 4, {v(lane)}
v_lshlrev_b32 v14, 1, v13
v_cvt_f32_u32 v14, v14
v_add_f32 {v(t)}, {f2u(96.0)}, v14
v_mul_f32 {v(t)}, {v(t)}, {v(df)}
v_mul_f32 {v(c16)}, {f2u(16.0)}, {v(df)}
v_mul_f32 {v(d2)}, {f2u(7.0)}, {v(df)}
v_mov_b32 {v(amp)}, {f2u(a2)}''')
    for r in (t, c16, d2):
        A(f'''v_mul_f32 {v(tq)}, {s(sinv)}, {v(r)}
v_rndne_f32 {v(tq)}, {v(tq)}
v_fma_f32 {v(r)}, -{v(tq)}, {s(s448)}, {v(r)}
v_mul_f32 {v(r)}, {s(sinv)}, {v(r)}''')
    A(f'''v_cos_f32 {v(two)}, {v(c16)}
v_add_f32 {v(u)}, {v(t)}, {v(c16)}
v_mov_b32 {v(d0)}, 0x3e800000
v_mul_f32 {v(d1)}, {s(sinv)}, {v(df)}
v_subrev_f32 {v(d1)}, 0x3e800000, {v(d1)}
v_subrev_f32 {v(d2)}, 0x3e800000, {v(d2)}''')
    cheb(A, O, 16, t, u, [d0, d1, d0, d2, d0, d1, d0], amp, two, None, None)
    A(f'''v_mov_b32 {v(t)}, {f2u(a1)}
v_cvt_pk_bf16_f32 {v(t)}, {v(t)}, {v(t)}
v_and_b32 v12, 1, v12
v_lshlrev_b32 v12, 15, v12
v_xor_b32 {v(t)}, {v(t)}, v12
v_cmp_eq_u32 vcc, 0, v13
v_cndmask_b32 {v(O)}, {v(O)}, {v(t)}, vcc
v_lshlrev_b32 v6, 4, {v(lane)}
s_waitcnt lgkmcnt(0)''')
    srd_ws(A, sW)
    for k in range(14):
        A(f'buffer_store_dwordx4 {v(O+4*k,4)}, v6, {s(sW,4)}, {s(st)} offen sc1\ns_add_u32 {s(st)}, {s(st)}, 1024')
    A('KP_auxsig:')
    A(f's_mov_b32 {s(st+1)}, {F_CD}')
    signal(A, None, st + 1, 8, 128)
    A('s_endpgm')
    return A.render()

def main():
    gen.REST_BYTES = 40960; gen.K0_BYTES = 12288
    txt = build([('k0', k0(), 256, 0), ('k1', kp(), 256, 256)], [('k0', 491, 81920), ('k1', 224 + NAUX, LDS_BYTES)])
    txt = txt.replace('.amdhsa_next_free_sgpr 96', '.amdhsa_next_free_sgpr 102')
    open(sys.argv[1] if len(sys.argv) > 1 else 'k.s', 'w').write(txt)
    if STAMPS == 1: open((sys.argv[1] if len(sys.argv) > 1 else 'k.s') + '.names', 'w').write(' '.join(NAMES))

if __name__ == '__main__':
    main()
```

```python
import sys
sys.path.insert(0, 'dev')
from gen import *
import gen

F_CA = [FLAGS, FLAGS + 16384]
F_CC = FLAGS + 32768
F_CB = [FLAGS + 49152, FLAGS + 49152 + 4096]
F_CD = FLAGS + 57344
F_CE = FLAGS + 58368
NAUX = 21
SPIN = 0x8000
LBK = int(os.environ.get('LBK', '12'))

L_RX = 57344
L_RED = 114688
L_COL = 131072
LDS_BYTES = 147456

lane, l15, g = 1, 3, 4
VL16, VL16X = 231, 230
WCV = 232
PR, PI = 190, 206
mgr, mgi, Lgr, Lgi, L4r, L4i, hd = range(222, 229)
sW, sAG0, sAG1, sO = 4, 8, 12, 16
wave, kh, wm, rt, sl, sim = 20, 21, 22, 23, 24, 25
s_m1, s_sk, s_wc = 26, 27, 58
st = 28

NAMES = []
SKIP = int(os.environ.get('SSKIP', '0'))
_cnt = [0]
PROBE = os.environ.get('PROBE')
_pc = [0]
def pstamp(A, name):
    if PROBE:
        i, j = [int(x) for x in PROBE.split(',')]
        if _pc[0] == i: A('s_memrealtime s[60:61]')
        if _pc[0] == j: A('s_memrealtime s[62:63]')
        NAMES.append(name); _pc[0] += 1
        return
    if STAMPS != 1: return
    _cnt[0] += 1
    if _cnt[0] > 1 and _cnt[0] <= SKIP + 1: return
    if len(NAMES) >= 20: return
    A(f's_memrealtime {s(60+2*len(NAMES),2)}'); NAMES.append(name)

def wc_reg(k):
    return a(168 + 4 * k, 4) if k < 22 else v(WCV + 4 * (k - 22), 4)

def cmul(A, dr, di, ar, ai, br, bi):
    A(f'''v_mul_f32 {v(dr)}, {v(ar)}, {v(br)}
v_mul_f32 {v(di)}, {v(ar)}, {v(bi)}
v_fma_f32 {v(dr)}, -{v(ai)}, {v(bi)}, {v(dr)}
v_fmac_f32 {v(di)}, {v(ai)}, {v(br)}''')

def cfma(A, dr, di, ar, ai, br, bi):
    A(f'''v_fmac_f32 {v(dr)}, {v(ar)}, {v(br)}
v_fmac_f32 {v(di)}, {v(ar)}, {v(bi)}
v_fma_f32 {v(dr)}, -{v(ai)}, {v(bi)}, {v(dr)}
v_fmac_f32 {v(di)}, {v(ai)}, {v(br)}''')

def q_m1(A):
    for ks in range(14):
        for nt in range(2):
            i = 2 * ks + nt
            txt = f'buffer_load_dwordx4 {a(4*i,4)}, {v(VL16)}, {s(sW,4)}, {s(s_m1)} offen offset:{(i&3)*1024}'
            if (i & 3) == 3: txt += f'\ns_add_u32 {s(s_m1)}, {s(s_m1)}, 4096'
            A.bgq.append(('m1', txt))

def q_sk(A, sc):
    for ks in range(14):
        txt = f'buffer_load_dwordx4 {a(112+4*ks,4)}, {v(VL16)}, {s(sW,4)}, {s(s_sk)} offen offset:{(ks&3)*1024}{sc}'
        if (ks & 3) == 3: txt += f'\ns_add_u32 {s(s_sk)}, {s(s_sk)}, 4096'
        A.bgq.append(('sk', txt))

def q_wc(A, va, sc):
    for k in range(28):
        txt = f'buffer_load_dwordx4 {wc_reg(k)}, {v(va)}, {s(sW,4)}, {s(s_wc)} offen offset:{(k&3)*1024}{sc}'
        if (k & 3) == 3: txt += f'\ns_add_u32 {s(s_wc)}, {s(s_wc)}, 4096'
        A.bgq.append(('wc', txt))

def signal(A, tag, addr_s, nrep=1, rstride=0):
    pstamp(A, 'stored')
    A.wait_vm(tag)
    pstamp(A, 'drained')
    lab = A.label('sig')
    A(f's_barrier\ns_cmp_lg_u32 {s(wave)}, 0\ns_cbranch_scc1 {lab}')
    A.track = False
    A(f'''v_mov_b32 v5, 1
v_mul_u32_u24 v6, {rstride}, {v(lane)}
s_mov_b64 exec, {(1 << nrep) - 1}
buffer_atomic_add v5, v6, {s(sW,4)}, {s(addr_s)} offen sc1
s_mov_b64 exec, -1''')
    A.track = True
    A(f'{lab}:')

def signal16(A, tag, base):
    A(f's_and_b32 {s(st+1)}, s2, 15\ns_lshl_b32 {s(st+1)}, {s(st+1)}, 7\ns_add_u32 {s(st+1)}, {s(st+1)}, {base}')
    signal(A, tag, st + 1, 8, 2048)

def poll(A, setup):
    pstamp(A, 'prepoll')
    lab = A.label('poll')
    A(f's_cmp_lg_u32 {s(wave)}, 0\ns_cbranch_scc1 {lab}_d')
    A.track = False
    A(setup)
    A(f'''s_mov_b32 {s(st)}, 0
{lab}:
buffer_load_dword v7, v5, {s(sW,4)}, 0 offen sc1
s_add_u32 {s(st)}, {s(st)}, 1
s_cmp_gt_u32 {s(st)}, {SPIN}
s_cbranch_scc1 {lab}_d
s_waitcnt vmcnt(0)
v_cmp_gt_u32 vcc, v6, v7
s_cbranch_vccnz {lab}''')
    A.track = True
    A(f'{lab}_d:\ns_barrier')
    pstamp(A, 'polled')

def poll16(base, extra=None):
    t = f'''s_and_b32 {s(st)}, s2, 7
s_lshl_b32 {s(st+1)}, {s(st)}, 11
s_add_u32 {s(st+1)}, {s(st+1)}, {base}
v_lshlrev_b32 v5, 7, {v(l15)}
v_add_u32 v5, {s(st+1)}, v5
v_mov_b32 v6, 14'''
    if extra: t += '\n' + poll_extra(*extra)
    return t

def poll_extra(base, target):
    return f'''s_lshl_b32 {s(st+1)}, {s(st)}, 7
s_add_u32 {s(st+1)}, {s(st+1)}, {base}
v_mov_b32 v7, {s(st+1)}
v_cmp_lt_u32 vcc, 15, {v(lane)}
v_cndmask_b32 v5, v5, v7, vcc
v_cndmask_b32 v6, v6, {target}, vcc'''

ZI, SQ, WW = 8, 16, 72
C64, S64, N64, C32, S32, N32, TC, TS = 80, 88, 96, 104, 112, 120, 128, 136
ZR, ZM = 144, 152
XA, DR, DI, BR, BI = 16, 48, 56, 64, 68
CT = 160

def col_tables1(A):
    T = CT; nf, ang, dl, gf = T, T + 1, T + 2, T + 3
    cs = T + 8
    A(f'''s_lshl_b32 {s(st)}, {s(wave)}, 4
v_add_u32 v7, {s(st)}, {v(l15)}
v_cvt_f32_u32 {v(nf)}, v7
v_cvt_f32_u32 {v(gf)}, {v(g)}
v_mul_f32 {v(dl)}, {f2u(1/64)}, {v(nf)}
v_mul_f32 {v(ang)}, 4.0, {v(gf)}
v_mul_f32 {v(ang)}, {v(ang)}, {v(dl)}
v_mul_f32 {v(T+4)}, {f2u(13.0)}, {v(dl)}''')
    for e in range(8):
        A(f'v_cos_f32 {v(cs+e)}, {v(ang)}\nv_sin_f32 {v(cs+8+e)}, {v(ang)}')
        if e < 7: A(f'v_add_f32 {v(ang)}, {v(ang)}, {v(T+4 if e == 3 else dl)}')
    A(f'v_and_b32 v7, 1, v7\nv_lshlrev_b32 v7, 15, v7\nv_lshl_or_b32 v7, v7, 16, v7')
    for i in range(4):
        A(f'v_cvt_pk_bf16_f32 {v(C64+i)}, {v(cs+2*i)}, {v(cs+2*i+1)}')
        A(f'v_cvt_pk_bf16_f32 {v(S64+i)}, {v(cs+8+2*i)}, {v(cs+9+2*i)}')
    for i in range(4):
        A(f'v_xor_b32 {v(C64+4+i)}, v7, {v(C64+i)}\nv_xor_b32 {v(S64+4+i)}, v7, {v(S64+i)}')
    for i in range(8):
        A(f'v_xor_b32 {v(N64+i)}, 0x80008000, {v(S64+i)}')

def col_tables2(A):
    T = CT; nf, ang, dl, gf = T, T + 1, T + 2, T + 3
    cs = T + 8
    for mu in range(2):
        A(f'''v_lshrrev_b32 v7, 2, {v(l15)}
v_lshlrev_b32 v7, 3, v7
v_and_or_b32 v7, {v(l15)}, 3, v7
v_add_u32 v7, {4*mu}, v7
v_cvt_f32_u32 {v(dl)}, v7
v_mul_f32 {v(dl)}, {f2u(1/32)}, {v(dl)}
v_mul_f32 {v(ang)}, {f2u(8.0)}, {v(gf)}
v_mul_f32 {v(ang)}, {v(ang)}, {v(dl)}''')
        for e in range(8):
            A(f'v_cos_f32 {v(cs+e)}, {v(ang)}\nv_sin_f32 {v(cs+8+e)}, {v(ang)}')
            if e < 7: A(f'v_add_f32 {v(ang)}, {v(ang)}, {v(dl)}')
            if e & 1: A.bg(1)
        for i in range(4):
            A(f'v_cvt_pk_bf16_f32 {v(C32+4*mu+i)}, {v(cs+2*i)}, {v(cs+2*i+1)}')
            A(f'v_cvt_pk_bf16_f32 {v(S32+4*mu+i)}, {v(cs+8+2*i)}, {v(cs+9+2*i)}')
    for i in range(8):
        A(f'v_xor_b32 {v(N32+i)}, 0x80008000, {v(S32+i)}')
    A(f'''v_mul_f32 {v(dl)}, {f2u(1/2048)}, {v(nf)}
v_mul_f32 {v(ang)}, {f2u(8.0)}, {v(gf)}
v_mul_f32 {v(ang)}, {v(ang)}, {v(dl)}''')
    for e in range(8):
        A(f'v_cos_f32 {v(TC+e)}, {v(ang)}\nv_sin_f32 {v(TS+e)}, {v(ang)}')
        if e < 7: A(f'v_add_f32 {v(ang)}, {v(ang)}, {v(dl)}')
        if e & 1: A.bg(1)
    wa0, wa1, wb, ra0, ra1, t1, t2, oa = 184, 185, 186, 187, 188, T + 2, T + 3, 189
    A(f'''v_bfe_u32 {v(t1)}, {v(l15)}, 1, 2
s_lshl_b32 {s(st)}, {s(wave)}, 10
s_add_u32 {s(st)}, {s(st)}, {L_COL}
v_lshlrev_b32 {v(t2)}, 6, {v(l15)}
v_add_u32 {v(t2)}, {s(st)}, {v(t2)}
v_xor_b32 {v(wb)}, {v(g)}, {v(t1)}
v_lshl_add_u32 {v(wb)}, {v(wb)}, 4, {v(t2)}
v_and_b32 {v(wa0)}, 1, {v(g)}
v_lshlrev_b32 {v(wa0)}, 1, {v(wa0)}
v_xor_b32 {v(wa0)}, {v(wa0)}, {v(t1)}
v_lshl_add_u32 {v(wa0)}, {v(wa0)}, 4, {v(t2)}
v_lshrrev_b32 {v(t1)}, 1, {v(g)}
v_lshl_add_u32 {v(wa0)}, {v(t1)}, 3, {v(wa0)}
v_xor_b32 {v(wa1)}, 16, {v(wa0)}
v_lshrrev_b32 {v(t1)}, 2, {v(lane)}
v_lshlrev_b32 {v(ra0)}, 6, {v(t1)}
v_bfe_u32 {v(t1)}, {v(lane)}, 3, 2
v_bfe_u32 {v(t2)}, {v(lane)}, 1, 1
v_xor_b32 {v(t1)}, {v(t1)}, {v(t2)}
v_lshl_add_u32 {v(ra0)}, {v(t1)}, 4, {v(ra0)}
v_and_b32 {v(t1)}, 1, {v(lane)}
v_lshl_add_u32 {v(ra0)}, {v(t1)}, 3, {v(ra0)}
v_add_u32 {v(ra0)}, {L_COL}, {v(ra0)}
v_xor_b32 {v(ra1)}, 32, {v(ra0)}
v_lshrrev_b32 {v(t1)}, 1, {v(l15)}
v_mul_u32_u24 {v(t1)}, 57344, {v(t1)}
v_and_b32 {v(t2)}, 1, {v(l15)}
v_lshl_add_u32 {v(t2)}, {v(g)}, 1, {v(t2)}
s_and_b32 {s(st)}, s2, 3
s_lshl_b32 {s(st)}, {s(st)}, 1
v_xor_b32 {v(t2)}, {s(st)}, {v(t2)}
v_lshl_add_u32 {v(oa)}, {v(t2)}, 4, {v(t1)}''')

def col_loads(A, zc, ssq, sc):
    A(f'''v_lshlrev_b32 v5, 7, {v(l15)}
v_lshl_add_u32 v5, {v(g)}, 4, v5
s_lshl_b32 {s(st)}, {s(wave)}, 11
v_add_u32 v5, {s(st)}, v5
s_lshl_b32 {s(st+1)}, s2, 13
s_add_u32 {s(st+1)}, {s(st+1)}, {zc}
s_mov_b32 {s(st)}, {ssq}''')
    A.t('q', f'buffer_load_dwordx4 {v(SQ,4)}, v5, {s(sW,4)}, {s(st)} offen{sc}')
    A.t('q', f'buffer_load_dwordx4 {v(SQ+4,4)}, v5, {s(sW,4)}, {s(st)} offen offset:64{sc}')
    A.t('z', f'buffer_load_dwordx4 {v(ZI,4)}, v5, {s(sW,4)}, {s(st+1)} offen{sc}')
    A.t('z', f'buffer_load_dwordx4 {v(ZI+4,4)}, v5, {s(sW,4)}, {s(st+1)} offen offset:64{sc}')

def col_wload(A):
    A(f'''s_lshl_b32 {s(st)}, {s(wave)}, 11
s_lshl_b32 {s(st+2)}, s2, 13
s_add_u32 {s(st+2)}, {s(st+2)}, {s(st)}
s_add_u32 {s(st+2)}, {s(st+2)}, {WF}''')
    A.t('w', f'buffer_load_dwordx4 {v(WW,4)}, {v(VL16)}, {s(sW,4)}, {s(st+2)} offen')
    A.t('w', f'buffer_load_dwordx4 {v(WW+4,4)}, {v(VL16)}, {s(sW,4)}, {s(st+2)} offen offset:1024')

def col_compute(A, zb, raw):
    T = CT
    wa0, wa1, wb, ra0, ra1, t1, oa = 184, 185, 186, 187, 188, T + 2, 189
    if raw:
        A(f's_mov_b32 {s(st+1)}, {f2u(2048.0*2048.0/448)}\nv_mov_b32 {v(t1)}, {f2u(1e-5*2048.0*2048.0)}')
        A.wait_vm('q')
        for i in range(8):
            A(f'v_fma_f32 {v(SQ+i)}, {v(SQ+i)}, {s(st+1)}, {v(t1)}')
        for i in range(8):
            A(f'v_rsq_f32 {v(SQ+i)}, {v(SQ+i)}')
    A.wait_vm('z')
    pstamp(A, 'coldata')
    for i in range(8):
        A(f'v_lshlrev_b32 {v(ZR+i)}, 16, {v(ZI+i)}\nv_and_b32 {v(ZM+i)}, 0xffff0000, {v(ZI+i)}')
    for i in range(0, 8, 2):
        A(f'v_pk_mul_f32 {v(SQ+8+i,2)}, {v(SQ+i,2)}, {v(ZR+i,2)}\nv_pk_mul_f32 {v(SQ+16+i,2)}, {v(SQ+i,2)}, {v(ZM+i,2)}')
    for i in range(4):
        A(f'v_cvt_pk_bf16_f32 {v(BR+i)}, {v(SQ+8+2*i)}, {v(SQ+9+2*i)}\nv_cvt_pk_bf16_f32 {v(BI+i)}, {v(SQ+16+2*i)}, {v(SQ+17+2*i)}')
    lab = A.label('nz')
    A(f's_cmp_lg_u32 s2, 0\ns_cbranch_scc1 {lab}')
    for i in range(4): A(f'v_mov_b32 {v(BI+i)}, 0')
    A(f'{lab}:')
    A(f'''ds_write_b64 {v(wa0)}, {v(BR,2)}
ds_write_b64 {v(wa1)}, {v(BR+2,2)}
ds_write_b64 {v(wa0)}, {v(BI,2)} offset:4096
ds_write_b64 {v(wa1)}, {v(BI+2,2)} offset:4096''')
    A('s_waitcnt lgkmcnt(0)\ns_barrier')
    def big_stage(base, tab_ri, tab_ir):
        def xa(pl, mu, ks): return XA + 4 * (ks * 4 + pl * 2 + mu)
        for ks in range(2):
            for pl in range(2):
                for mu in range(2):
                    for hf in range(2):
                        A(f'ds_read_b64_tr_b16 {v(xa(pl,mu,ks)+2*hf,2)}, {v(ra0+mu)} offset:{base+pl*4096+ks*2048+hf*1024}')
        for ks in range(2):
            A(f's_waitcnt lgkmcnt({12-8*ks})')
            for mu in range(2):
                c = v(DR + 4 * mu, 4) if ks else '0'
                A(f'v_mfma_f32_16x16x32_bf16 {v(DR+4*mu,4)}, {v(xa(0,mu,ks),4)}, {v(C64+4*ks,4)}, {c}')
                c = v(DI + 4 * mu, 4) if ks else '0'
                A(f'v_mfma_f32_16x16x32_bf16 {v(DI+4*mu,4)}, {v(xa(0,mu,ks),4)}, {v(tab_ri+4*ks,4)}, {c}')
            A(f's_waitcnt lgkmcnt({8-8*ks})')
            for mu in range(2):
                A(f'v_mfma_f32_16x16x32_bf16 {v(DR+4*mu,4)}, {v(xa(1,mu,ks),4)}, {v(tab_ir+4*ks,4)}, {v(DR+4*mu,4)}')
                A(f'v_mfma_f32_16x16x32_bf16 {v(DI+4*mu,4)}, {v(xa(1,mu,ks),4)}, {v(C64+4*ks,4)}, {v(DI+4*mu,4)}')
    def small_stage(tab_ri, tab_ir):
        for mu in range(2):
            A(f'v_mfma_f32_16x16x32_bf16 {v(DR+4*mu,4)}, {v(C32+4*mu,4)}, {v(BR,4)}, 0')
            A(f'v_mfma_f32_16x16x32_bf16 {v(DI+4*mu,4)}, {v(C32+4*mu,4)}, {v(BI,4)}, 0')
        for mu in range(2):
            A(f'v_mfma_f32_16x16x32_bf16 {v(DR+4*mu,4)}, {v(tab_ir+4*mu,4)}, {v(BI,4)}, {v(DR+4*mu,4)}')
            A(f'v_mfma_f32_16x16x32_bf16 {v(DI+4*mu,4)}, {v(tab_ri+4*mu,4)}, {v(BR,4)}, {v(DI+4*mu,4)}')
    U = T + 8
    def rot(cr, ci, sign):
        n1, n2 = ('[1,0,0]', '[0,0,0]') if sign > 0 else ('[0,0,0]', '[1,0,0]')
        for e in range(0, 8, 2):
            A(f'''v_pk_mul_f32 {v(U+e,2)}, {v(DR+e,2)}, {v(cr+e,2)}
v_pk_mul_f32 {v(U+8+e,2)}, {v(DI+e,2)}, {v(cr+e,2)}''')
        for e in range(0, 8, 2):
            A(f'''v_pk_fma_f32 {v(U+e,2)}, {v(DI+e,2)}, {v(ci+e,2)}, {v(U+e,2)} neg_lo:{n1} neg_hi:{n1}
v_pk_fma_f32 {v(U+8+e,2)}, {v(DR+e,2)}, {v(ci+e,2)}, {v(U+8+e,2)} neg_lo:{n2} neg_hi:{n2}''')
        for e in range(0, 8, 2):
            A(f'v_cvt_pk_bf16_f32 {v(BR+e//2)}, {v(U+e)}, {v(U+e+1)}\nv_cvt_pk_bf16_f32 {v(BI+e//2)}, {v(U+8+e)}, {v(U+9+e)}')
    WR, WI = 8, 176
    big_stage(0, N64, S64)
    rot(TC, TS, -1)
    small_stage(N32, S32)
    WR, WI = XA, XA + 8
    A.wait_vm('w')
    for i in range(4):
        A(f'''v_lshlrev_b32 {v(WR+2*i)}, 16, {v(WW+i)}
v_and_b32 {v(WR+2*i+1)}, 0xffff0000, {v(WW+i)}
v_lshlrev_b32 {v(WI+2*i)}, 16, {v(WW+4+i)}
v_and_b32 {v(WI+2*i+1)}, 0xffff0000, {v(WW+4+i)}''')
    rot(WR, WI, 1)
    small_stage(S32, N32)
    rot(TC, TS, 1)
    A(f'''ds_write_b128 {v(wb)}, {v(BR,4)} offset:8192
ds_write_b128 {v(wb)}, {v(BI,4)} offset:12288
s_mul_i32 {s(st)}, {s(wave)}, {8*57344}
s_lshl_b32 {s(st+1)}, s2, 8
s_add_u32 {s(st)}, {s(st)}, {s(st+1)}
s_add_u32 {s(st)}, {s(st)}, {zb}''')
    A('s_waitcnt lgkmcnt(0)\ns_barrier')
    big_stage(8192, S64, N64)
    for e in range(8):
        A(f'v_add_f32 {v(ZR+e)}, {v(ZR+e)}, {v(DR+e)}\nv_fma_f32 {v(ZM+e)}, {v(DI+e)}, {s(sim)}, {v(ZM+e)}')
    for i in range(4):
        A(f'v_cvt_pk_bf16_f32 {v(BR+i)}, {v(ZR+2*i)}, {v(ZR+2*i+1)}\nv_cvt_pk_bf16_f32 {v(BI+i)}, {v(ZM+2*i)}, {v(ZM+2*i+1)}')
    A.t('st', f'buffer_store_dwordx4 {v(BR,4)}, {v(oa)}, {s(sW,4)}, {s(st)} offen sc1')
    A.t('st', f'buffer_store_dwordx4 {v(BI,4)}, {v(oa)}, {s(sW,4)}, {s(st)} offen offset:128 sc1')

def lam_tables(A, lre, lim, ldt, T):
    t1, t2 = T, T + 1
    lam_calc(A, lre, lim, ldt, PR, PI, t1, t2)
    A(f'v_lshlrev_b32 {v(hd)}, 16, {v(hd)}\nv_mul_f32 {v(hd)}, 0.5, {v(hd)}')
    for t in range(1, 16):
        x, y = (t - 1) // 2, t - 1 - (t - 1) // 2
        cmul(A, PR + t, PI + t, PR + x, PI + x, PR + y, PI + y)
    m1r, m1i = PR + 15, PI + 15
    m2r, m2i, m3r, m3i, L1r, L1i, L2r, L2i, L3r, L3i = range(T + 2, T + 12)
    cmul(A, m2r, m2i, m1r, m1i, m1r, m1i)
    cmul(A, m3r, m3i, m2r, m2i, m1r, m1i)
    cmul(A, L1r, L1i, m2r, m2i, m2r, m2i)
    cmul(A, L2r, L2i, L1r, L1i, L1r, L1i)
    cmul(A, L3r, L3i, L2r, L2i, L1r, L1i)
    cmul(A, L4r, L4i, L2r, L2i, L2r, L2i)
    sel4(A, mgr, '1.0', m1r, m2r, m3r); sel4(A, mgi, '0', m1i, m2i, m3i)
    sel4(A, Lgr, '1.0', L1r, L2r, L3r); sel4(A, Lgi, '0', L1i, L2i, L3i)

def sel4(A, d, c0, x1, x2, x3):
    A(f'''v_cndmask_b32 {v(d)}, {c0}, {v(x1)}, s[44:45]
v_cndmask_b32 {v(d)}, {v(d)}, {v(x2)}, s[46:47]
v_cndmask_b32 {v(d)}, {v(d)}, {v(x3)}, s[48:49]''')

AR, AI, AS, GR, FA, RA, R2, MM, LB = 8, 24, 40, 56, 60, 100, 106, 122, 138
cgr, cgi = 154, 155
ST = 156

def scan_pre(A):
    t1 = ST
    A(f'''v_lshrrev_b32 {v(t1)}, 2, {v(lane)}
v_lshlrev_b32 {v(RA)}, 7, {v(t1)}
v_bfe_u32 {v(t1)}, {v(lane)}, 3, 2
v_lshl_add_u32 {v(RA)}, {v(t1)}, 5, {v(RA)}
v_and_b32 {v(t1)}, 3, {v(lane)}
v_lshl_add_u32 {v(RA)}, {v(t1)}, 3, {v(RA)}
v_xor_b32 {v(RA+1)}, 32, {v(RA)}
v_xor_b32 {v(RA+2)}, 64, {v(RA)}
v_xor_b32 {v(RA+3)}, 0x60, {v(RA)}
s_lshl_b32 {s(st+1)}, {s(wave)}, 5
v_xor_b32 {v(RA+4)}, {s(st+1)}, {v(RA)}''')

def scan_phase(A, lay, zb, hb, sAG, sb):
    T = ST; t1, t2 = T + 3, T + 4
    sz = st + 2
    A(f'''s_lshl_b32 {s(st+1)}, {s(wave)}, 10
s_mov_b32 m0, {s(st+1)}
s_mul_i32 {s(sz)}, {s(rt)}, 57344
s_add_u32 {s(sz)}, {s(sz)}, {s(st+1)}
s_add_u32 {s(sz)}, {s(sz)}, {zb}''')
    starts = [0, 2, 4, 9]
    grp = lambda ks: max(i for i, x in enumerate(starts) if x <= ks)
    for ks in range(14):
        A.t(f'z{grp(ks)}', f'buffer_load_dwordx4 {v(VL16)}, {s(sW,4)}, {s(sz)} offen sc1 lds')
        if ks < 13: A(f's_add_u32 m0, m0, 4096\ns_add_u32 {s(sz)}, {s(sz)}, 4096')
    def rd1(ks, mt, hf):
        A(f'ds_read_b64_tr_b16 {v(FA+20*(ks&1)+4*mt+2*hf,2)}, {v(RA+mt)} offset:{ks*4096+hf*2048}')
    A.wait_vm('z0')
    A('s_barrier')
    pstamp(A, 'grp0')
    for mt in range(5):
        rd1(0, mt, 0); rd1(0, mt, 1)
    for ks in range(14):
        nxt = ks + 1 < 14
        if ks + 1 in starts:
            A.wait_vm(f'z{grp(ks+1)}'); A('s_barrier')
        b = FA + 20 * (ks & 1)
        for mt in range(4):
            A(f's_waitcnt lgkmcnt({8 if nxt else 8-2*mt})')
            c = v(AR + 4 * mt, 4) if ks else '0'
            A(f'v_mfma_f32_16x16x32_bf16 {v(AR+4*mt,4)}, {v(b+4*mt,4)}, {a(8*ks,4)}, {c}')
            if nxt: rd1(ks + 1, mt, 0)
            c = v(AI + 4 * mt, 4) if ks else '0'
            A(f'v_mfma_f32_16x16x32_bf16 {v(AI+4*mt,4)}, {v(b+4*mt,4)}, {a(8*ks+4,4)}, {c}')
            if nxt: rd1(ks + 1, mt, 1)
            if ks >= 6 and (mt & 1): A.bg(1)
        A(f's_waitcnt lgkmcnt({8 if nxt else 0})')
        c = v(GR, 4) if ks else '0'
        A(f'v_mfma_f32_16x16x32_bf16 {v(GR,4)}, {v(b+16,4)}, {v(b+16,4)}, {c}')
        if nxt:
            rd1(ks + 1, 4, 0); rd1(ks + 1, 4, 1)
    pstamp(A, 'loopend')
    dc, sq, ad = T, T + 1, T + 2
    A(f'''v_and_b32 {v(t1)}, 3, {v(lane)}
v_lshlrev_b32 {v(ad)}, 3, {v(g)}
v_lshl_add_u32 {v(ad)}, {v(t1)}, 1, {v(ad)}
s_lshl_b32 {s(st)}, {s(wave)}, 5
v_add_u32 {v(ad)}, {s(st)}, {v(ad)}
ds_read_u16 {v(dc)}, {v(ad)} offset:128
v_cmp_eq_u32 s[50:51], 1, {v(t1)}
v_cmp_eq_u32 s[52:53], 2, {v(t1)}
v_cmp_eq_u32 s[54:55], 3, {v(t1)}
v_lshlrev_b32 {v(ad)}, 6, {v(g)}
v_lshl_add_u32 {v(ad)}, {v(t1)}, 2, {v(ad)}
s_lshl_b32 {s(st)}, {s(wave)}, 4
v_add_u32 {v(ad)}, {s(st)}, {v(ad)}
v_lshrrev_b32 {v(t2)}, 2, {v(l15)}
v_cmp_eq_u32 vcc, {v(t2)}, {v(g)}
v_cndmask_b32 {v(sq)}, {v(GR)}, {v(GR+1)}, s[50:51]
v_cndmask_b32 {v(sq)}, {v(sq)}, {v(GR+2)}, s[52:53]
v_cndmask_b32 {v(sq)}, {v(sq)}, {v(GR+3)}, s[54:55]
s_waitcnt lgkmcnt(0)
v_lshlrev_b32 {v(dc)}, 16, {v(dc)}
v_fma_f32 {v(sq)}, -{v(dc)}, {v(dc)}, {v(sq)}
v_max_f32 {v(sq)}, 0, {v(sq)}
v_mov_b32 {v(t2)}, {f2u(0.25e-5)}
v_fmac_f32 {v(t2)}, {f2u(0.25/448)}, {v(sq)}
v_rsq_f32 {v(t2)}, {v(t2)}
v_mul_f32 {v(dc)}, {f2u(math.sqrt(1.0/448))}, {v(dc)}
s_and_saveexec_b64 s[56:57], vcc
ds_write2st64_b32 {v(ad)}, {v(t2)}, {v(dc)} offset0:{L_RX//256} offset1:{L_RX//256+1}
s_mov_b64 exec, s[56:57]
v_lshlrev_b32 {v(ad)}, 6, {v(g)}
s_waitcnt lgkmcnt(0)
s_barrier''')
    for i in range(4):
        A(f'ds_read_b128 {v(R2+4*i,4)}, {v(ad)} offset:{L_RX+16*i}')
    if lay:
        for i in range(4):
            A(f'ds_read_b128 {v(MM+4*i,4)}, {v(ad)} offset:{L_RX+256+16*i}')
    for i in range(4):
        A(f's_waitcnt lgkmcnt({(7 if lay else 3)-i})')
        for e in range(0, 4, 2):
            t = 4 * i + e
            A(f'v_pk_mul_f32 {v(AR+t,2)}, {v(AR+t,2)}, {v(R2+t,2)}\nv_pk_mul_f32 {v(AI+t,2)}, {v(AI+t,2)}, {v(R2+t,2)}')
        for e in range(4):
            t = 4 * i + e
            if t: cfma(A, AR + t, AI + t, PR, PI, AR + t - 1, AI + t - 1)
    m1r, m1i = PR + 15, PI + 15
    e0r, e1r, e2r, e3r, e0i, e1i, e2i, e3i = T, T + 1, T + 2, T + 8, T + 4, T + 5, T + 6, T + 9
    for (x0, x1, src) in ((e0r, e1r, AR + 15), (e0i, e1i, AI + 15)):
        A(f'v_mov_b32 {v(x0)}, {v(src)}\nv_mov_b32 {v(x1)}, {v(src)}')
    pa = T + 10
    sag = st + 5
    A(f'''s_lshl_b32 {s(st)}, {s(sl)}, 2
s_add_u32 {s(st)}, {s(st)}, {s(wave)}
s_lshl_b32 {s(st)}, {s(st)}, 7
s_mul_i32 {s(sag)}, {s(rt)}, 3584
s_add_u32 {s(sag)}, {s(sag)}, {s(st)}''')
    A(f'v_permlane16_swap_b32 {v(e0r)}, {v(e1r)}\nv_permlane16_swap_b32 {v(e0i)}, {v(e1i)}')
    A(f'v_mov_b32 {v(e2r)}, {v(e0r)}\nv_mov_b32 {v(e3r)}, {v(e1r)}\nv_mov_b32 {v(e2i)}, {v(e0i)}\nv_mov_b32 {v(e3i)}, {v(e1i)}')
    A(f'v_lshlrev_b32 {v(pa)}, 3, {v(l15)}')
    A(f'v_permlane32_swap_b32 {v(e0r)}, {v(e2r)}\nv_permlane32_swap_b32 {v(e1r)}, {v(e3r)}')
    A(f'v_permlane32_swap_b32 {v(e0i)}, {v(e2i)}\nv_permlane32_swap_b32 {v(e1i)}, {v(e3i)}')
    cfma(A, e1r, e1i, m1r, m1i, e0r, e0i)
    cfma(A, e2r, e2i, m1r, m1i, e1r, e1i)
    cfma(A, e3r, e3i, m1r, m1i, e2r, e2i)
    A('s_mov_b64 exec, 0xffff')
    A.t('pub', f'buffer_store_dwordx2 {v(e3r,2)}, {v(pa)}, {s(sAG,4)}, {s(sag)} offen sc1')
    A('s_mov_b64 exec, -1')
    pstamp(A, 'pub')
    sel4(A, cgr, '0', e0r, e1r, e2r); sel4(A, cgi, '0', e0i, e1i, e2i)
    LA = T + 12
    A(f'''v_mul_u32_u24 {v(t1)}, 3584, {v(g)}
v_sub_u32 {v(LA)}, {v(pa)}, {v(t1)}
s_sub_u32 {s(sag)}, {s(sag)}, 3584
v_add_u32 {v(LA)}, {s(sag)}, {v(LA)}''')
    for i in range(1, 8):
        A(f'v_subrev_u32 {v(LA+i)}, {4*3584*i}, {v(LA)}')
    def lb_issue():
        for i in range(8):
            A.t('lb', f'buffer_load_dwordx2 {v(LB+2*i,2)}, {v(LA+i)}, {s(sAG,4)}, 0 offen sc1')
    A.wait_vm('sk')
    for mt in range(4):
        rd1(0, mt, 0); rd1(0, mt, 1)
    for ks in range(14):
        nxt = ks + 1 < 14
        b = FA + 20 * (ks & 1)
        for mt in range(4):
            A(f's_waitcnt lgkmcnt({6 if nxt else 6-2*mt})')
            c = v(AS + 4 * mt, 4) if ks else '0'
            A(f'v_mfma_f32_16x16x32_bf16 {v(AS+4*mt,4)}, {v(b+4*mt,4)}, {a(112+4*ks,4)}, {c}')
            if nxt:
                rd1(ks + 1, mt, 0); rd1(ks + 1, mt, 1)
        if ks < 7: A.bg(1)
        if ks == LBK: lb_issue()
    pstamp(A, 'skipend')
    zt = FA
    if lay == 0:
        A(f'''s_lshl_b32 {s(st)}, {s(sl)}, 2
s_add_u32 {s(st)}, {s(st)}, {s(wave)}
s_lshl_b32 {s(st)}, {s(st)}, 11
v_lshlrev_b32 {v(t1)}, 7, {v(l15)}
v_add_u32 {v(t1)}, {s(st)}, {v(t1)}
v_bfe_u32 {v(t2)}, {v(l15)}, 1, 2
v_lshl_add_u32 {v(t1)}, {v(t2)}, 5, {v(t1)}
v_lshl_add_u32 {v(t1)}, {v(g)}, 3, {v(t1)}''')
        for mt in range(4):
            if mt: A(f'v_xor_b32 {v(t2)}, {32*mt}, {v(t1)}')
            A(f'ds_read_b64 {v(zt+2*mt,2)}, {v(t2 if mt else t1)}')
        A(f'''v_lshlrev_b32 {v(t1)}, 12, {v(g)}
v_lshl_add_u32 {v(t1)}, {v(l15)}, 2, {v(t1)}
s_lshl_b32 {s(st)}, {s(wave)}, 6
s_add_u32 {s(st)}, {s(st)}, {L_RED}
v_add_u32 {v(t1)}, {s(st)}, {v(t1)}
s_waitcnt lgkmcnt(0)''')
        for t in range(16):
            d = zt + 8 + t
            src = zt + t // 2
            A(f'v_and_b32 {v(d)}, 0xffff0000, {v(src)}' if t & 1 else f'v_lshlrev_b32 {v(d)}, 16, {v(src)}')
            A(f'v_fmac_f32 {v(d)}, {v(R2+t)}, {v(AS+t)}')
            if t: A(f'v_xor_b32 {v(t2)}, {16*t}, {v(t1)}')
            A(f'ds_write_b32 {v(t2 if t else t1)}, {v(d)} offset:{256*t}')
    else:
        A(f'''v_lshlrev_b32 {v(t1)}, 2, {v(g)}
v_xor_b32 {v(t1)}, {v(t1)}, {v(l15)}
v_lshlrev_b32 {v(t1)}, 4, {v(t1)}
v_lshl_add_u32 {v(t1)}, {v(l15)}, 8, {v(t1)}
s_lshl_b32 {s(st)}, {s(wave)}, 12
s_add_u32 {s(st)}, {s(st)}, {L_RED}
v_add_u32 {v(t1)}, {s(st)}, {v(t1)}''')
        for t in range(16):
            A(f'''v_sub_f32 {v(MM+t)}, {v(AS+t)}, {v(MM+t)}
v_mul_f32 {v(R2+t)}, {v(R2+t)}, {v(hd)}
v_fmac_f32 {v(AS+t)}, {v(R2+t)}, {v(MM+t)}''')
            if (t & 3) == 3:
                mt = t // 4
                if mt: A(f'v_xor_b32 {v(t2)}, {16*mt}, {v(t1)}')
                A(f'ds_write_b128 {v(t2 if mt else t1)}, {v(AS+t-3,4)}')
    ha = T + 4
    xr, xi = T + 2, T + 3
    A(f'''v_lshlrev_b32 {v(ha)}, 6, {v(l15)}
v_lshl_add_u32 {v(ha)}, {v(g)}, 4, {v(ha)}
s_lshl_b32 {s(st+1)}, {s(sl)}, 2
s_add_u32 {s(st+1)}, {s(st+1)}, {s(wave)}
s_lshl_b32 {s(st+1)}, {s(st+1)}, 10
s_mul_i32 {s(st+2)}, {s(rt)}, 114688
s_add_u32 {s(st+1)}, {s(st+1)}, {s(st+2)}
s_add_u32 {s(st+1)}, {s(st+1)}, {hb}
s_add_u32 {s(st+2)}, {s(st+1)}, 28672
s_add_u32 {s(st+3)}, {s(st+1)}, 57344
s_add_u32 {s(st+4)}, {s(st+1)}, {57344+28672}
s_mov_b32 {s(st)}, 0''')
    A.wait_vm('lb')
    pstamp(A, 'lbw')
    lab = A.label('lb')
    A(f'{lab}:')
    mx = T
    A(f'v_max3_u32 {v(mx)}, {v(LB)}, {v(LB+1)}, {v(LB+2)}')
    for i in range(3, 15, 2):
        A(f'v_max3_u32 {v(mx)}, {v(mx)}, {v(LB+i)}, {v(LB+i+1)}')
    A(f'''v_max_u32 {v(mx)}, {v(mx)}, {v(LB+15)}
v_cmp_eq_u32 vcc, -1, {v(mx)}
s_cbranch_vccz {lab}_r
s_add_u32 {s(st)}, {s(st)}, 1
s_cmp_gt_u32 {s(st)}, {SPIN}
s_cbranch_scc1 {lab}_r''')
    A.track = False
    lb_issue()
    A.track = True
    A(f's_waitcnt vmcnt(0)\ns_branch {lab}')
    A(f'{lab}_r:')
    pstamp(A, 'lbr')
    for i in range(6, -1, -1):
        cfma(A, LB + 2 * i, LB + 2 * i + 1, L4r, L4i, LB + 2 * i + 2, LB + 2 * i + 3)
    cr, ci = T, T + 1
    cmul(A, cr, ci, Lgr, Lgi, LB, LB + 1)
    for sw in ('16', '32'):
        A(f'''v_mov_b32 {v(xr)}, {v(cr)}
v_mov_b32 {v(xi)}, {v(ci)}
v_permlane{sw}_swap_b32 {v(cr)}, {v(xr)}
v_permlane{sw}_swap_b32 {v(ci)}, {v(xi)}
v_add_f32 {v(cr)}, {v(cr)}, {v(xr)}
v_add_f32 {v(ci)}, {v(ci)}, {v(xi)}''')
    cfma(A, cgr, cgi, mgr, mgi, cr, ci)
    o = FA
    cg = v(cgr, 2)
    for hh in range(2):
        for t in range(8 * hh, 8 * hh + 8, 2):
            A(f'''v_pk_fma_f32 {v(AR+t,2)}, {v(PR+t,2)}, {cg}, {v(AR+t,2)} op_sel_hi:[1,0,1]
v_pk_fma_f32 {v(AI+t,2)}, {v(PR+t,2)}, {cg}, {v(AI+t,2)} op_sel:[0,1,0] op_sel_hi:[1,1,1]''')
        for t in range(8 * hh, 8 * hh + 8, 2):
            A(f'''v_pk_fma_f32 {v(AR+t,2)}, {v(PI+t,2)}, {cg}, {v(AR+t,2)} op_sel:[0,1,0] op_sel_hi:[1,1,1] neg_lo:[1,0,0] neg_hi:[1,0,0]
v_pk_fma_f32 {v(AI+t,2)}, {v(PI+t,2)}, {cg}, {v(AI+t,2)} op_sel_hi:[1,0,1]''')
        for t in range(8 * hh, 8 * hh + 8, 2):
            A(f'v_cvt_pk_bf16_f32 {v(o+t//2)}, {v(AR+t)}, {v(AR+t+1)}')
            A(f'v_cvt_pk_bf16_f32 {v(o+8+t//2)}, -{v(AI+t)}, -{v(AI+t+1)}')
        A.t('st', f'buffer_store_dwordx4 {v(o+4*hh,4)}, {v(ha)}, {s(sW,4)}, {s(st+1+2*hh)} offen sc1')
        A.t('st', f'buffer_store_dwordx4 {v(o+8+4*hh,4)}, {v(ha)}, {s(sW,4)}, {s(st+2+2*hh)} offen sc1')
    A('s_waitcnt lgkmcnt(0)')

T0, T1, BF, PT = 8, 24, 40, 72

def proj_pre(A, last):
    ra0, ra1, rw, rr, t1, t2, za = range(PT, PT + 7)
    A(f'''v_bfe_u32 {v(t1)}, {v(lane)}, 2, 2
v_lshrrev_b32 {v(t2)}, 5, {v(lane)}
v_lshl_add_u32 {v(ra0)}, {v(t2)}, {3 if last else 2}, {v(t1)}
v_lshlrev_b32 {v(ra0)}, 6, {v(ra0)}
v_bfe_u32 {v(t1)}, {v(lane)}, 4, 1
v_lshl_add_u32 {v(ra0)}, {v(t1)}, 5, {v(ra0)}
v_and_b32 {v(t1)}, 3, {v(lane)}''')
    if last:
        A(f's_lshl_b32 {s(st+1)}, {s(kh)}, 1\nv_xor_b32 {v(t1)}, {s(st+1)}, {v(t1)}')
    A(f'''v_lshl_add_u32 {v(ra0)}, {v(t1)}, 3, {v(ra0)}
s_mul_i32 {s(st+1)}, {s(kh)}, 28672
v_add_u32 {v(ra0)}, {s(st+1)}, {v(ra0)}
v_add_u32 {v(ra1)}, 57344, {v(ra0)}
s_lshl_b32 {s(st+1)}, {s(wave)}, 12
s_add_u32 {s(st+1)}, {s(st+1)}, {L_RED}
s_xor_b32 {s(st+2)}, {s(st+1)}, 4096
v_add_u32 {v(rw)}, {s(st+1)}, {v(VL16)}
v_add_u32 {v(rr)}, {s(st+2)}, {v(VL16)}''')
    if last:
        A(f'''s_lshl_b32 {s(st+1)}, {s(kh)}, 2
v_add_u32 {v(t2)}, {s(st+1)}, {v(t2)}
v_xor_b32 {v(t2)}, {v(t2)}, {v(l15)}
v_and_b32 {v(t1)}, 31, {v(lane)}
v_lshlrev_b32 {v(t1)}, 8, {v(t1)}
v_lshl_add_u32 {v(za)}, {v(t2)}, 4, {v(t1)}
s_lshl_b32 {s(st+1)}, {s(wm)}, 13
s_add_u32 {s(st+1)}, {s(st+1)}, {L_RED}
v_add_u32 {v(za)}, {s(st+1)}, {v(za)}''')
    else:
        A(f'''s_lshl_b32 {s(st+1)}, {s(kh)}, 1
s_lshl_b32 {s(st+2)}, {s(wm)}, 3
s_add_u32 {s(st+1)}, {s(st+1)}, {s(st+2)}
v_add_u32 {v(t2)}, {s(st+1)}, {v(t2)}
v_and_b32 {v(t1)}, 7, {v(lane)}
v_xor_b32 {v(t2)}, {v(t2)}, {v(t1)}
v_lshlrev_b32 {v(t1)}, 8, {v(t1)}
v_lshl_add_u32 {v(za)}, {v(t2)}, 4, {v(t1)}
v_bfe_u32 {v(t1)}, {v(lane)}, 3, 2
v_lshl_add_u32 {v(za)}, {v(t1)}, 12, {v(za)}
v_add_u32 {v(za)}, {L_RED}, {v(za)}''')
    for nt, Tn in enumerate((T0, T1)):
        for q in (0, 2):
            x = (64 * q + 32 * nt) if last else (32 * q + 128 * nt)
            off = 0 if last else 2048 * nt
            if x:
                A(f'v_xor_b32 {v(t1)}, {x}, {v(za)}\nds_read_b128 {v(Tn+4*q,4)}, {v(t1)} offset:{off}')
            else:
                A(f'ds_read_b128 {v(Tn+4*q,4)}, {v(za)} offset:{off}')
        for q in (1, 3):
            for i in range(4): A(f'v_mov_b32 {v(Tn+4*q+i)}, 0')
    A(f'''s_mul_i32 {s(st+4)}, {s(kh)}, 57344
s_mul_i32 {s(st+1)}, {s(wm)}, 28672
s_add_u32 {s(st+4)}, {s(st+4)}, {s(st+1)}
s_mov_b32 m0, {s(st+4)}
s_mul_i32 {s(st+1)}, {s(rt)}, 114688
s_add_u32 {s(st+4)}, {s(st+4)}, {s(st+1)}''')

NUP = int(os.environ.get('NUP', '17'))
def proj_phase(A, last, hb):
    ra0, ra1, rw, rr, t1, t2 = range(PT, PT + 6)
    sh = st + 4
    A(f's_add_u32 {s(sh)}, {s(sh)}, {hb}')
    def dma(k):
        A.t(f'h{k//4}', f'buffer_load_dwordx4 {v(VL16)}, {s(sW,4)}, {s(sh)} offen offset:{(k&3)*1024} sc1 lds')
        if (k & 3) == 3 and k < 27: A(f's_add_u32 m0, m0, 4096\ns_add_u32 {s(sh)}, {s(sh)}, 4096')
    hoff = 256 if last else 512
    def rd(k, nt):
        b = BF + 8 * (k % 4)
        for hf in range(2):
            A(f'ds_read_b64_tr_b16 {v(b+4*nt+2*hf,2)}, {v(ra0+nt)} offset:{k*1024+hf*hoff}')
    for k in range(NUP): dma(k)
    A.wait_vm('h0')
    A('s_barrier')
    pstamp(A, 'grp0')
    for k in range(2):
        rd(k, 0); rd(k, 1)
    for k in range(28):
        if (k & 3) == 2 and k + 2 < 28:
            A.wait_vm(f'h{(k+2)//4}'); A('s_barrier')
        b = BF + 8 * (k % 4)
        for nt, Tn in enumerate((T0, T1)):
            left = min(6, 4 * (27 - k) + 2 * (1 - nt))
            A(f's_waitcnt lgkmcnt({left})')
            x, y = wc_reg(k), v(b + 4 * nt, 4)
            if last: x, y = y, x
            A(f'v_mfma_f32_32x32x16_bf16 {v(Tn,16)}, {x}, {y}, {v(Tn,16)}')
            if k + 2 < 28: rd(k + 2, nt)
            if nt == 0:
                if k + NUP < 28: dma(k + NUP)
                else: A.bg(1)
    A.bg(64)
    pstamp(A, 'loopend')
    if last:
        A(f'''v_lshrrev_b32 {v(t1)}, 5, {v(lane)}
v_mul_u32_u24 {v(t1)}, {4*1792}, {v(t1)}
v_and_b32 {v(t2)}, 31, {v(lane)}
v_lshl_add_u32 {v(t1)}, {v(t2)}, 2, {v(t1)}
v_add_u32 {v(t2)}, 3584, {v(t1)}
s_lshl_b32 {s(st)}, {s(rt)}, 2
s_add_u32 {s(st)}, {s(st)}, {s(kh)}
s_mul_i32 {s(st)}, {s(st)}, {16*1792}
s_lshl_b32 {s(st+1)}, {s(sl)}, 8
s_add_u32 {s(st)}, {s(st)}, {s(st+1)}
s_lshl_b32 {s(st+1)}, {s(wm)}, 7
s_add_u32 {s(st)}, {s(st)}, {s(st+1)}
s_add_u32 {s(st+1)}, {s(st)}, {32*1792}
s_add_u32 {s(st+2)}, {s(st)}, {8*1792}
s_add_u32 {s(st+3)}, {s(st)}, {40*1792}''')
        ksplit_reduce(A, T0, T1, rw, rr, BF)
        for mt, Tn in enumerate((T0, T1)):
            for q in (0, 2):
                for i in range(4):
                    A(f'buffer_store_dword {v(Tn+4*q+i)}, {v(t1 if i < 2 else t2)}, {s(sO,4)}, {s(st+2*mt+q//2)} offen offset:{1792*(i&1)}{os.environ.get("OSC","")}')
        return
    ta, ia, ga, s0, s1, pk = PT + 6, PT + 7, PT + 8, PT + 10, PT + 11, BF + 16
    A(f'''v_and_b32 {v(ta)}, 7, {v(lane)}
v_bfe_u32 {v(t1)}, {v(lane)}, 3, 2
v_lshl_add_u32 {v(ta)}, {v(t1)}, 4, {v(ta)}
v_lshlrev_b32 {v(ta)}, 2, {v(ta)}
v_lshrrev_b32 {v(t1)}, 5, {v(lane)}
v_lshl_add_u32 {v(ia)}, {v(t1)}, 9, {v(ta)}
v_lshl_add_u32 {v(ta)}, {v(t1)}, 5, {v(ta)}
s_lshl_b32 {s(st)}, {s(wm)}, 12
s_lshl_b32 {s(st+1)}, {s(kh)}, 10
s_add_u32 {s(st)}, {s(st)}, {s(st+1)}
v_add_u32 {v(ia)}, {s(st)}, {v(ia)}
s_lshl_b32 {s(st)}, {s(wave)}, 8
v_add_u32 {v(ta)}, {s(st)}, {v(ta)}
v_lshlrev_b32 {v(ga)}, 13, {v(g)}
v_lshl_add_u32 {v(ga)}, {v(l15)}, 4, {v(ga)}
s_lshl_b32 {s(st)}, {s(wave)}, 11
v_add_u32 {v(t2)}, {s(st)}, {v(VL16)}
s_lshl_b32 {s(st)}, {s(sl)}, 2
s_add_u32 {s(st)}, {s(st)}, {s(wave)}
s_lshl_b32 {s(st)}, {s(st)}, 16
s_lshl_b32 {s(st+1)}, {s(rt)}, 8
s_add_u32 {s(st)}, {s(st)}, {s(st+1)}
s_add_u32 {s(st)}, {s(st)}, {ZC2}
s_add_u32 {s(st+2)}, {s(st)}, 32768
s_add_u32 {s(st+1)}, {s(st+1)}, {SSQ2}''')
    ksplit_reduce(A, T0, T1, rw, rr, BF)
    k = 0
    for nt, Tn in enumerate((T0, T1)):
        for q in (0, 2):
            for ip in range(2):
                r = Tn + 4 * q + 2 * ip
                A(f'v_cvt_pk_bf16_f32 {v(pk+k)}, {v(r)}, {v(r+1)}')
                A(f'ds_write_b32 {v(ia)}, {v(pk+k)} offset:{(4*q+ip)*256+32*nt}')
                k += 1
    lab = A.label('nodc')
    A(f'''s_or_b32 {s(st+3)}, {s(sl)}, {s(wave)}
s_cmp_lg_u32 {s(st+3)}, 0
s_cbranch_scc1 {lab}
v_cmp_gt_u32 vcc, 32, {v(lane)}
v_cndmask_b32 {v(T0+1)}, {v(T0+1)}, 0, vcc
v_cndmask_b32 {v(T1+1)}, {v(T1+1)}, 0, vcc
{lab}:''')
    for sreg, Tn in ((s0, T0), (s1, T1)):
        A(f'v_mul_f32 {v(sreg)}, {v(Tn)}, {v(Tn)}')
    for r in (1, 2, 3, 8, 9, 10, 11):
        for sreg, Tn in ((s0, T0), (s1, T1)):
            A(f'v_fmac_f32 {v(sreg)}, {v(Tn+r)}, {v(Tn+r)}')
    A(f'''v_permlane32_swap_b32 {v(s0)}, {v(s1)}
v_add_f32 {v(s0)}, {v(s0)}, {v(s1)}
ds_write_b32 {v(ta)}, {v(s0)} offset:8192
s_waitcnt lgkmcnt(0)
s_barrier
ds_read_b128 {v(T0,4)}, {v(t2)}
ds_read_b128 {v(T0+4,4)}, {v(t2)} offset:1024''')
    lab = A.label('ssq')
    A(f'''s_cmp_lg_u32 {s(wave)}, 1
s_cbranch_scc1 {lab}
v_lshlrev_b32 {v(ta)}, 2, {v(lane)}
ds_read2st64_b32 {v(pk,2)}, {v(ta)} offset0:32 offset1:33
ds_read2st64_b32 {v(pk+2,2)}, {v(ta)} offset0:34 offset1:35
s_waitcnt lgkmcnt(0)
v_add_f32 {v(pk)}, {v(pk)}, {v(pk+1)}
v_add_f32 {v(pk+2)}, {v(pk+2)}, {v(pk+3)}
v_add_f32 {v(pk)}, {v(pk)}, {v(pk+2)}''')
    A.track = False
    A(f'buffer_atomic_add_f32 {v(pk)}, {v(ta)}, {s(sW,4)}, {s(st+1)} offen')
    A.track = True
    A(f'{lab}:\ns_waitcnt lgkmcnt(1)')
    A.t('st', f'buffer_store_dwordx4 {v(T0,4)}, {v(ga)}, {s(sW,4)}, {s(st)} offen sc1')
    A('s_waitcnt lgkmcnt(0)')
    A.t('st', f'buffer_store_dwordx4 {v(T0+4,4)}, {v(ga)}, {s(sW,4)}, {s(st+2)} offen sc1')

def kp():
    A = Asm()
    gen.KSTAMP = False
    A(f's_cmp_ge_u32 s2, {224+NAUX}\ns_cbranch_scc1 KP_exit')
    pstamp(A, 'entry')
    ld_ptr(A, sW, WS)
    A('s_cmp_ge_u32 s2, 224\ns_cbranch_scc1 KP_aux')
    ld_ptr(A, sO, OUT); ld_ptr(A, 40, L_RE); ld_ptr(A, 44, L_IM); ld_ptr(A, 48, LOGDT); ld_ptr(A, 52, DSKIP)
    A(f'''v_and_b32 {v(lane)}, 63, v0
v_lshrrev_b32 v2, 6, v0
v_readfirstlane_b32 {s(wave)}, v2
v_and_b32 {v(l15)}, 15, {v(lane)}
v_lshrrev_b32 {v(g)}, 4, {v(lane)}
v_lshlrev_b32 {v(VL16)}, 4, {v(lane)}
s_and_b32 {s(kh)}, {s(wave)}, 1
s_lshr_b32 {s(wm)}, {s(wave)}, 1
s_lshl_b32 {s(st)}, {s(kh)}, 7
v_xor_b32 {v(VL16X)}, {s(st)}, {v(VL16)}
s_cmp_eq_u32 s2, 0
s_cselect_b32 {s(sim)}, 0, 1.0''')
    tile_ids(A, rt, sl, st)
    A(f'''s_lshl_b32 {s(st+3)}, {s(sl)}, 2
s_add_u32 {s(st+3)}, {s(st+3)}, {s(wave)}
s_mul_i32 {s(s_m1)}, {s(st+3)}, {28*1024}
s_add_u32 {s(s_m1)}, {s(s_m1)}, {WM1}
s_mul_i32 {s(s_sk)}, {s(st+3)}, {14*1024}
s_add_u32 {s(s_sk)}, {s(s_sk)}, {WSK}
s_lshl_b32 {s(st+3)}, {s(st+3)}, 5
s_lshl_b32 {s(s_wc)}, {s(sl)}, 1
s_add_u32 {s(s_wc)}, {s(s_wc)}, {s(kh)}
s_lshl_b32 {s(s_wc)}, {s(s_wc)}, 1
s_add_u32 {s(s_wc)}, {s(s_wc)}, {s(wm)}
s_mul_i32 {s(s_wc)}, {s(s_wc)}, {28*1024}
s_add_u32 {s(s_wc)}, {s(s_wc)}, {WC}''')
    col_tables1(A)
    A('s_waitcnt lgkmcnt(0)')
    srd_ws(A, sW); srd(A, sO, S * D * 4)
    for r in (40, 44, 48, 52): srd(A, r, D * 2)
    pstamp(A, 'karg')
    col_loads(A, ZC, R0, '')
    col_wload(A)
    lre, lim, ldt = PR + 1, PR + 2, PR + 3
    A(f'v_lshlrev_b32 v6, 1, {v(l15)}')
    for r, sr in ((lre, 40), (lim, 44), (ldt, 48), (hd, 52)):
        A.t('lam', f'buffer_load_ushort {v(r)}, v6, {s(sr,4)}, {s(st+3)} offen')
    for i, r in enumerate((sAG0, sAG1)):
        A(f's_add_u32 {s(r)}, s4, {AGG + i*AGG_L}\ns_addc_u32 {s(r+1)}, s5, 0')
        srd(A, r, AGG_L)
    A(f'''v_cmp_eq_u32 s[44:45], 1, {v(g)}
v_cmp_eq_u32 s[46:47], 2, {v(g)}
v_cmp_eq_u32 s[48:49], 3, {v(g)}''')
    q_m1(A)
    col_tables2(A)
    col_compute(A, ZB, False)
    signal16(A, 'st', F_CA[0])
    A.bg(64)
    A.wait_vm('lam')
    A(f'v_mov_b32 v8, {v(lre)}\nv_mov_b32 v9, {v(lim)}\nv_mov_b32 v10, {v(ldt)}')
    lam_tables(A, 8, 9, 10, 12)
    for lay in range(2):
        scan_pre(A)
        A.wait_vm('m1')
        poll(A, poll16(F_CA[lay], (F_CE, 7) if lay == 0 else None))
        if lay == 0:
            q_sk(A, ' sc1'); q_wc(A, VL16X, '')
        scan_phase(A, lay, (ZB, ZB3)[lay], (HB, HB2)[lay], (sAG0, sAG1)[lay], 0)
        A(f's_lshl_b32 {s(st+3)}, {s(rt)}, 7\ns_add_u32 {s(st+3)}, {s(st+3)}, {F_CB[lay]}')
        signal(A, 'st', st + 3)
        A.bg(64)
        proj_pre(A, lay == 1)
        A.wait_vm('wc')
        pt = f'v_mov_b32 v5, {s(st+3)}\nv_mov_b32 v6, 7'
        if lay == 0: pt += f'\ns_and_b32 {s(st)}, s2, 7\n' + poll_extra(F_CD, NAUX)
        poll(A, pt)
        if lay == 0:
            A(f's_add_u32 {s(s_sk)}, {s(s_sk)}, {WSK_L - 12288}')
            q_sk(A, ' sc1')
        proj_phase(A, lay == 1, (HB, HB2)[lay])
        if lay == 0:
            signal16(A, 'st', F_CC)
            A(f's_add_u32 {s(s_wc)}, {s(s_wc)}, {WC_L - 28672}')
            col_wload(A)
            q_wc(A, VL16, ' sc1')
            A.bg(8)
            col_tables1(A)
            A.bg(8)
            col_tables2(A)
            A.bg(64)
            poll(A, poll16(F_CC))
            col_loads(A, ZC2, SSQ2, ' sc1')
            col_compute(A, ZB3, True)
            signal16(A, 'st', F_CA[1])
    A('KP_end:')
    if PROBE:
        pstamp(A, 'end')
        i, j = [int(x) for x in PROBE.split(',')]
        A(f's_cmp_lg_u32 s2, {os.environ.get("DBGWG", "100")}\ns_cbranch_scc1 KP_exit')
        if i < 0:
            A(f'v_mov_b32 v5, 0\ns_mov_b32 s64, {STAMP}\nbuffer_load_dword v6, v5, {s(sW,4)}, s64 offen sc1\ns_waitcnt vmcnt(0)\nv_readfirstlane_b32 s60, v6')
        A('''s_memrealtime s[64:65]
s_waitcnt lgkmcnt(0)
s_sub_u32 s60, s62, s60
s_min_u32 s60, s60, 10000
s_mul_i32 s60, s60, 10
KP_spin:
s_memrealtime s[66:67]
s_waitcnt lgkmcnt(0)
s_sub_u32 s66, s66, s64
s_cmp_lt_u32 s66, s60
s_cbranch_scc1 KP_spin''')
    if STAMPS == 1:
        A('s_memrealtime s[100:101]\ns_waitcnt lgkmcnt(0)')
        for i in range(21): A(f'v_mov_b32 {v(8+i)}, {s(60+2*i)}')
        A(f'''v_lshrrev_b32 v5, 6, v0
v_lshlrev_b32 v5, 7, v5
s_lshl_b32 s60, s2, 9
s_add_u32 s60, s60, {STAMP + 131072}''')
        for i in range(6): A(f'buffer_store_dwordx4 {v(8+4*i,4)}, v5, {s(sW,4)}, s60 offen offset:{16*i}')
    A('KP_exit:\ns_endpgm')

    A('KP_aux:')
    A.track = False
    ld_ptr(A, 8, C_RE); ld_ptr(A, 12, C_IM)
    A(f'''v_and_b32 {v(lane)}, 63, v0
v_lshrrev_b32 v2, 6, v0
v_readfirstlane_b32 {s(wave)}, v2
s_cmp_lt_u32 s2, 231
s_cbranch_scc1 KP_qt
s_sub_u32 {s(st)}, s2, 231
s_and_b32 {s(st+1)}, {s(st)}, 1
s_lshr_b32 {s(st+2)}, {s(wave)}, 1
s_and_b32 {s(st+3)}, {s(wave)}, 1
s_andn2_b32 {s(st+4)}, {s(st)}, 1
s_add_u32 {s(st+4)}, {s(st+4)}, {s(st+2)}
s_mul_i32 {s(st+4)}, {s(st+4)}, {32*896}
s_mul_i32 {s(st+5)}, {s(st+3)}, {14*32}
s_add_u32 {s(st+4)}, {s(st+4)}, {s(st+5)}
s_lshl_b32 {s(st+5)}, {s(st)}, 1
s_add_u32 {s(st+5)}, {s(st+5)}, {s(st+2)}
s_lshl_b32 {s(st+5)}, {s(st+5)}, 1
s_add_u32 {s(st+5)}, {s(st+5)}, {s(st+3)}
s_mul_i32 {s(st+5)}, {s(st+5)}, {14*1024}
s_add_u32 {s(st+5)}, {s(st+5)}, {WC + WC_L}
v_and_b32 v5, 31, {v(lane)}
v_mul_u32_u24 v5, 896, v5
v_lshrrev_b32 v6, 5, {v(lane)}
v_lshl_add_u32 v5, v6, 4, v5
v_lshlrev_b32 v6, 4, {v(lane)}
s_waitcnt lgkmcnt(0)
s_cmp_eq_u32 {s(st+1)}, 0
s_cselect_b32 s8, s8, s12
s_cselect_b32 s9, s9, s13''')
    srd(A, 8, D * D * 2); srd_ws(A, sW)
    for k in range(14):
        A(f'buffer_load_dwordx4 {v(8+4*k,4)}, v5, s[8:11], {s(st+4)} offen offset:{32*k}')
    for k in range(14):
        A(f's_waitcnt vmcnt(13)\nbuffer_store_dwordx4 {v(8+4*k,4)}, v6, {s(sW,4)}, {s(st+5)} offen sc1\ns_add_u32 {s(st+5)}, {s(st+5)}, 1024')
    A('s_branch KP_auxsig')
    A('KP_qt:')
    TS_ = 5392
    sc_ = 0.25 * math.sqrt(2.0 / 448)
    A('s_waitcnt lgkmcnt(0)')
    srd_ws(A, sW)
    A(f's_mov_b32 {s(st)}, {ZD}')
    for i in range(3):
        x, c, sg = 16 + 8 * i, 17 + 8 * i, 18 + 8 * i
        A(f'''v_add_u32 {v(x)}, {256*i}, v0
v_subrev_u32 {v(c)}, 224, {v(x)}
v_sub_u32 {v(sg)}, 224, {v(x)}
v_max_i32 {v(c)}, {v(c)}, {v(sg)}
v_sub_u32 {v(sg)}, 448, {v(c)}
v_min_i32 {v(c)}, {v(c)}, {v(sg)}
v_lshlrev_b32 {v(sg)}, 3, {v(c)}
v_cmp_eq_u32 vcc, 224, {v(c)}
v_cndmask_b32 {v(sg)}, {v(sg)}, 0, vcc
buffer_load_dwordx2 {v(x+4,2)}, {v(sg)}, {s(sW,4)}, {s(st)} offen''')
    for i in range(3):
        x, c, sg, cc, cs, nn = 16 + 8 * i, 17 + 8 * i, 18 + 8 * i, 20 + 8 * i, 21 + 8 * i, 19 + 8 * i
        A(f'''s_waitcnt vmcnt({2-i})
v_cmp_eq_u32 vcc, 0, {v(c)}
v_cndmask_b32 {v(cc)}, {v(cc)}, {v(cs)}, vcc
v_cmp_eq_u32 s[40:41], 0, {v(c)}
v_cmp_eq_u32 vcc, 224, {v(c)}
s_or_b64 vcc, vcc, s[40:41]
v_mov_b32 {v(sg)}, {f2u(sc_)}
v_mov_b32 {v(nn)}, {f2u(sc_*math.sqrt(2.0))}
v_cndmask_b32 {v(nn)}, {v(sg)}, {v(nn)}, vcc
v_cndmask_b32 {v(cs)}, {v(cs)}, 0, vcc
v_mul_f32 {v(cc)}, {v(cc)}, {v(nn)}
v_mul_f32 {v(cs)}, {v(cs)}, {v(sg)}
v_cmp_gt_u32 vcc, 224, {v(x)}
s_mov_b64 s[40:41], vcc
v_cmp_lt_u32 vcc, 448, {v(x)}
s_or_b64 vcc, vcc, s[40:41]
v_xor_b32 {v(nn)}, 0x80000000, {v(cs)}
v_cndmask_b32 {v(cs)}, {v(cs)}, {v(nn)}, vcc
v_xor_b32 {v(nn+3)}, 0x80000000, {v(cs)}
v_mov_b32 {v(nn+4)}, {v(cc)}
v_xor_b32 {v(nn)}, 0x80000000, {v(cc)}
v_mov_b32 {v(sg)}, {v(cs)}
v_lshlrev_b32 {v(c)}, 3, {v(x)}
v_cmp_gt_u32 vcc, 673, {v(x)}
s_and_saveexec_b64 s[40:41], vcc
ds_write_b64 {v(c)}, {v(cc,2)}
ds_write_b64 {v(c)}, {v(nn+3,2)} offset:{TS_}
ds_write_b64 {v(c)}, {v(cc,2)} offset:{2*TS_}
ds_write_b64 {v(c)}, {v(sg,2)} offset:{3*TS_}
s_mov_b64 exec, s[40:41]''')
    jp, cp, pr, am, ap, fa = 5, 6, 7, 8, 9, 10
    A(f'''s_sub_u32 {s(st)}, s2, 224
s_lshl_b32 {s(st)}, {s(st)}, 2
s_add_u32 {s(st)}, {s(st)}, {s(wave)}
s_lshl_b32 {s(st+1)}, {s(st)}, 4
s_mul_i32 {s(st)}, {s(st)}, {14*1024}
s_add_u32 {s(st)}, {s(st)}, {WSK}
v_and_b32 {v(jp)}, 15, {v(lane)}
v_add_u32 {v(jp)}, {s(st+1)}, {v(jp)}
v_lshrrev_b32 {v(cp)}, 1, {v(jp)}
v_and_b32 {v(pr)}, 1, {v(jp)}
v_mov_b32 v12, 224
v_cmp_eq_u32 vcc, 0, {v(jp)}
v_cndmask_b32 {v(cp)}, {v(cp)}, v12, vcc
v_cmp_gt_u32 vcc, 2, {v(jp)}
v_cndmask_b32 {v(pr)}, {v(pr)}, 0, vcc
v_mov_b32 v12, {f2u(math.sqrt(0.5))}
v_cndmask_b32 {v(fa)}, 1.0, v12, vcc
v_mul_u32_u24 {v(pr)}, {TS_}, {v(pr)}
v_lshrrev_b32 v13, 4, {v(lane)}
v_lshlrev_b32 v14, 1, v13
v_sub_u32 {v(am)}, 224, {v(cp)}
v_add_u32 {v(ap)}, 224, {v(cp)}
v_lshl_add_u32 v15, {v(am)}, 3, {v(pr)}
v_lshl_add_u32 v12, {v(ap)}, 3, {v(pr)}
v_add_u32 {v(am)}, {v(am)}, v14
v_add_u32 {v(ap)}, {v(ap)}, v14
v_lshl_add_u32 {v(am)}, {v(am)}, 3, {v(pr)}
v_lshl_add_u32 {v(ap)}, {v(ap)}, 3, {v(pr)}
s_waitcnt lgkmcnt(0)
s_barrier
ds_read_b32 v40, v15 offset:{224*8}
ds_read_b32 v41, v12 offset:{224*8+2*TS_}''')
    O = 48
    def m2rd(ks):
        b = 16 + 16 * (ks & 1) if False else (112 + 16 * (ks & 1))
        for p in range(4):
            off = 8 * (16 * ks + 8 * (p >> 1) + (p & 1))
            A(f'ds_read_b64 {v(b+4*p,2)}, {v(am)} offset:{off}\nds_read_b64 {v(b+4*p+2,2)}, {v(ap)} offset:{off+2*TS_}')
    m2rd(0)
    for ks in range(14):
        if ks < 13:
            m2rd(ks + 1); A('s_waitcnt lgkmcnt(8)')
        else:
            A('s_waitcnt lgkmcnt(0)')
        b = 112 + 16 * (ks & 1)
        for p in range(4):
            A(f'v_pk_add_f32 {v(b+4*p,2)}, {v(b+4*p,2)}, {v(b+4*p+2,2)}')
        if ks == 0:
            A(f'''v_add_f32 v40, v40, v41
v_mul_f32 v40, {f2u(math.sqrt(0.5))}, v40
v_cmp_eq_u32 vcc, 0, v13
v_cndmask_b32 {v(b)}, {v(b)}, v40, vcc
v_cndmask_b32 {v(b+1)}, {v(b+1)}, 0, vcc''')
        for p in range(4):
            A(f'v_pk_mul_f32 {v(b+4*p,2)}, {v(b+4*p,2)}, {v(fa,2)} op_sel_hi:[1,0]')
        for p in range(4):
            A(f'v_cvt_pk_bf16_f32 {v(O+4*ks+p)}, {v(b+4*p)}, {v(b+4*p+1)}')
    A(f'v_lshlrev_b32 v6, 4, {v(lane)}')
    for k in range(14):
        A(f'buffer_store_dwordx4 {v(O+4*k,4)}, v6, {s(sW,4)}, {s(st)} offen sc1\ns_add_u32 {s(st)}, {s(st)}, 1024')
    A(f's_mov_b32 {s(st+1)}, {F_CE}')
    signal(A, None, st + 1, 8, 128)
    A.track = False
    sinv, s448 = 25, 26
    amp, df, two, c16, t, u, d0, d1, d2, tq = 6, 7, 8, 9, 10, 11, 112, 113, 114, 115
    O = 48
    a2 = math.sqrt(2.0 / 448); a1 = math.sqrt(1.0 / 448)
    A(f'''s_mov_b32 {s(sinv)}, {f2u(INV448)}
s_mov_b32 {s(s448)}, {f2u(448.0)}
s_sub_u32 {s(st)}, s2, 224
s_lshl_b32 {s(st)}, {s(st)}, 2
s_add_u32 {s(st)}, {s(st)}, {s(wave)}
s_lshl_b32 {s(st+1)}, {s(st)}, 4
s_mul_i32 {s(st)}, {s(st)}, {14*1024}
s_add_u32 {s(st)}, {s(st)}, {WSK + WSK_L}
v_and_b32 v12, 15, {v(lane)}
v_add_u32 v12, {s(st+1)}, v12
v_cvt_f32_u32 {v(df)}, v12
v_lshrrev_b32 v13, 4, {v(lane)}
v_lshlrev_b32 v14, 1, v13
v_cvt_f32_u32 v14, v14
v_add_f32 {v(t)}, {f2u(96.0)}, v14
v_mul_f32 {v(t)}, {v(t)}, {v(df)}
v_mul_f32 {v(c16)}, {f2u(16.0)}, {v(df)}
v_mul_f32 {v(d2)}, {f2u(7.0)}, {v(df)}
v_mov_b32 {v(amp)}, {f2u(a2)}''')
    for r in (t, c16, d2):
        A(f'''v_mul_f32 {v(tq)}, {s(sinv)}, {v(r)}
v_rndne_f32 {v(tq)}, {v(tq)}
v_fma_f32 {v(r)}, -{v(tq)}, {s(s448)}, {v(r)}
v_mul_f32 {v(r)}, {s(sinv)}, {v(r)}''')
    A(f'''v_cos_f32 {v(two)}, {v(c16)}
v_add_f32 {v(u)}, {v(t)}, {v(c16)}
v_mov_b32 {v(d0)}, 0x3e800000
v_mul_f32 {v(d1)}, {s(sinv)}, {v(df)}
v_subrev_f32 {v(d1)}, 0x3e800000, {v(d1)}
v_subrev_f32 {v(d2)}, 0x3e800000, {v(d2)}''')
    cheb(A, O, 16, t, u, [d0, d1, d0, d2, d0, d1, d0], amp, two, None, None)
    A(f'''v_mov_b32 {v(t)}, {f2u(a1)}
v_cvt_pk_bf16_f32 {v(t)}, {v(t)}, {v(t)}
v_and_b32 v12, 1, v12
v_lshlrev_b32 v12, 15, v12
v_xor_b32 {v(t)}, {v(t)}, v12
v_cmp_eq_u32 vcc, 0, v13
v_cndmask_b32 {v(O)}, {v(O)}, {v(t)}, vcc
v_lshlrev_b32 v6, 4, {v(lane)}
s_waitcnt lgkmcnt(0)''')
    srd_ws(A, sW)
    for k in range(14):
        A(f'buffer_store_dwordx4 {v(O+4*k,4)}, v6, {s(sW,4)}, {s(st)} offen sc1\ns_add_u32 {s(st)}, {s(st)}, 1024')
    A('KP_auxsig:')
    A(f's_mov_b32 {s(st+1)}, {F_CD}')
    signal(A, None, st + 1, 8, 128)
    A('s_endpgm')
    return A.render()

def main():
    gen.REST_BYTES = 40960; gen.K0_BYTES = 12288
    txt = build([('k0', k0(), 256, 0), ('k1', kp(), 256, 256)], [('k0', 491, 81920), ('k1', 224 + NAUX, LDS_BYTES)])
    txt = txt.replace('.amdhsa_next_free_sgpr 96', '.amdhsa_next_free_sgpr 102')
    open(sys.argv[1] if len(sys.argv) > 1 else 'k.s', 'w').write(txt)
    if PROBE: print(list(enumerate(NAMES)))
    if STAMPS == 1: open((sys.argv[1] if len(sys.argv) > 1 else 'k.s') + '.names', 'w').write(' '.join(NAMES))

if __name__ == '__main__':
    main()
```

```python
import re, struct

def f2u(f):
    return '0x%08x' % struct.unpack('<I', struct.pack('<f', f))[0]

def v(i, n=1):
    return 'v%d' % i if n == 1 else 'v[%d:%d]' % (i, i + n - 1)
def a(i, n=1):
    return 'a%d' % i if n == 1 else 'a[%d:%d]' % (i, i + n - 1)
def s(i, n=1):
    return 's%d' % i if n == 1 else 's[%d:%d]' % (i, i + n - 1)

_REG = re.compile(r'^(-|abs\(|\|)?\s*([vas])(?:(\d+)|\[(\d+):(\d+)\])')
TRANS = ('v_exp_f32', 'v_log_f32', 'v_rcp_f32', 'v_rsq_f32', 'v_sqrt_f32', 'v_sin_f32', 'v_cos_f32', 'v_rcp_iflag_f32')

def regs_of(op):
    op = op.strip()
    if op in ('vcc', 'exec', 'm0', 'scc'):
        return {(op, 0)}
    if op in ('vcc_lo', 'vcc_hi'):
        return {('vcc', 0)}
    if op in ('exec_lo', 'exec_hi'):
        return {('exec', 0)}
    m = _REG.match(op)
    if not m:
        return set()
    k = m.group(2)
    if m.group(3) is not None:
        return {(k, int(m.group(3)))}
    return {(k, i) for i in range(int(m.group(4)), int(m.group(5)) + 1)}

def split_ops(rest):
    ops, depth, cur = [], 0, ''
    for ch in rest:
        if ch in '[(':
            depth += 1
        if ch in '])':
            depth -= 1
        if ch == ',' and depth == 0:
            ops.append(cur); cur = ''
        else:
            cur += ch
    if cur.strip():
        ops.append(cur)
    return [o.strip() for o in ops]

class Ins:
    __slots__ = ('text', 'mn', 'wr', 'rd', 'kind', 'srcc', 'passes', 'states', 'dpp', 'wide_store', 'data', 'lanesel')
    def __init__(self, text):
        self.text = text
        t = text.split(';')[0].strip()
        parts = t.split(None, 1)
        mn = parts[0]; self.mn = mn
        rest = parts[1] if len(parts) > 1 else ''
        ops = split_ops(rest)
        mods = ''
        if ops:
            last = ops[-1].split(None, 1)
            ops[-1] = last[0]
            mods = last[1] if len(last) > 1 else ''
        self.wr, self.rd = set(), set()
        self.srcc = set(); self.passes = 0; self.states = 1
        self.dpp = ('_dpp' in mn) or ('row_' in mods) or ('quad_perm' in mods)
        self.wide_store = False; self.data = set(); self.lanesel = set()
        R = [regs_of(o) for o in ops]
        def allr(l):
            r = set()
            for x in l: r |= x
            return r
        if mn == 's_nop':
            self.kind = 'nop'; self.states = int(ops[0], 0) + 1
        elif mn.startswith('v_mfma'):
            self.kind = 'mfma'
            self.wr = R[0]; self.rd = R[1] | R[2] | R[3]; self.srcc = R[3]
            self.passes = 8 if '32x32x16' in mn else 4 if '16x16x32' in mn else 16
        elif mn.startswith('v_cmp'):
            self.kind = 'valu'; self.wr = set(R[0]); self.rd = allr(R[1:])
            if mn.startswith('v_cmpx'): self.wr |= {('exec', 0)}
        elif mn.startswith('v_readfirstlane') or mn.startswith('v_readlane'):
            self.kind = 'valu'; self.wr = R[0]; self.rd = allr(R[1:])
            if len(R) > 2: self.lanesel = R[2]
        elif mn.startswith('v_permlane') and 'swap' in mn:
            self.kind = 'valu'; self.wr = R[0] | R[1]; self.rd = R[0] | R[1]
        elif mn.startswith('v_'):
            self.kind = 'valu'
            if re.match(r'v_(add|sub|subrev|addc|subb)_co_u32', mn) or mn.startswith('v_mad_u64') or mn.startswith('v_div_scale'):
                self.wr = R[0] | R[1]; self.rd = allr(R[2:])
            else:
                self.wr = set(R[0]); self.rd = allr(R[1:])
            if re.match(r'v_(fmac|mac|dot2c|pk_fmac)', mn) or mn.startswith('v_writelane') or self.dpp or 'sdwa' in mn:
                self.rd |= R[0]
            if mn.startswith('v_cndmask') and len(ops) == 3:
                self.rd |= {('vcc', 0)}
        elif mn.startswith('ds_'):
            self.kind = 'ds'
            if mn.startswith('ds_read') or mn.startswith('ds_bpermute') or mn.startswith('ds_permute') or mn.startswith('ds_swizzle'):
                self.wr = R[0]; self.rd = allr(R[1:])
                if 'd16' in mn: self.rd |= R[0]
            else:
                self.rd = allr(R)
        elif mn.startswith('buffer_') or mn.startswith('global_'):
            self.kind = 'vmem'
            islds = re.search(r'\blds\b', mods) is not None or 'load_lds' in mn
            if mn in ('buffer_wbl2', 'buffer_inv'):
                pass
            elif islds:
                self.rd = allr(R) | {('m0', 0)}
            elif 'load' in mn:
                self.wr = R[0]; self.rd = allr(R[1:])
                if 'd16' in mn: self.rd |= R[0]
            else:
                self.rd = allr(R)
                dat = R[0] if mn.startswith('buffer_') else R[1]
                self.data = dat
                if 'x3' in mn or 'x4' in mn: self.wide_store = True
                if 'atomic' in mn and 'sc0' in mods: self.wr = dat
        elif mn.startswith('s_'):
            self.kind = 'salu'
            if mn.startswith('s_cmp') or mn.startswith('s_cbranch') or mn in ('s_branch', 's_waitcnt', 's_barrier', 's_endpgm', 's_sleep', 's_setprio', 's_bitcmp1_b32', 's_bitcmp0_b32'):
                self.rd = allr(R)
            else:
                self.wr = set(R[0]) if R else set(); self.rd = allr(R[1:])
                if 'saveexec' in mn: self.wr |= {('exec', 0)}
        else:
            raise ValueError('unknown instruction: ' + text)

def need(prod, cons):
    n = 0
    vw = {r for r in prod.wr if r[0] in 'va'}
    sw = {r for r in prod.wr if r[0] in ('s', 'vcc')}
    if prod.kind == 'valu':
        if cons.kind == 'mfma' and (vw & cons.rd): n = max(n, 2)
        if cons.kind == 'valu':
            if cons.dpp and (vw & cons.rd): n = max(n, 2)
            if cons.mn.startswith('v_permlane') and (vw & cons.rd): n = max(n, 2)
            if (cons.mn.startswith('v_readfirstlane') or cons.mn.startswith('v_readlane')) and (vw & cons.rd): n = max(n, 1)
            if sw & cons.rd: n = max(n, 2)
            if sw & cons.lanesel: n = max(n, 4)
            if prod.mn.split('_e32')[0].split('_e64')[0] in TRANS and (vw & cons.rd): n = max(n, 1)
            if ('sdwa' in prod.mn or ('op_sel' in prod.text and not prod.mn.startswith('v_pk_'))) and (vw & (cons.rd | cons.wr)): n = max(n, 1)
            if ('exec', 0) in prod.wr:
                if cons.dpp: n = max(n, 5)
                if cons.mn.startswith('v_read') or cons.mn.startswith('v_permlane') or cons.mn.startswith('v_writelane'): n = max(n, 4)
        if cons.kind == 'mfma' and ('exec', 0) in prod.wr: n = max(n, 4)
        if cons.kind == 'vmem' and (sw & cons.rd): n = max(n, 5)
        if cons.kind == 'salu' and (sw & cons.rd) and not cons.mn.startswith('s_cbranch'): n = max(n, 1)
        if prod.mn.split('_e32')[0] in TRANS and cons.kind in ('vmem', 'ds', 'mfma') and (vw & cons.rd): n = max(n, 2)
    if prod.kind == 'salu':
        if ('m0', 0) in prod.wr and ('m0', 0) in cons.rd: n = max(n, 1)
    if prod.kind == 'vmem' and prod.wide_store:
        if prod.data & cons.wr: n = max(n, 2 if cons.kind == 'valu' else 1)
    if prod.kind == 'mfma':
        big = {4: 8, 8: 12, 16: 20}[prod.passes]
        if cons.kind == 'mfma':
            ab = cons.rd - cons.srcc
            if prod.wr & ab: n = max(n, big)
            elif prod.wr & cons.srcc:
                if prod.wr == cons.srcc and prod.passes == cons.passes: pass
                else: n = max(n, big - 2)
            elif prod.wr & cons.wr: n = max(n, big)
        else:
            if prod.wr & (cons.rd | cons.wr): n = max(n, big)
        if cons.kind == 'valu' and (prod.srcc & cons.wr):
            n = max(n, {4: 3, 8: 7, 16: 15}[prod.passes])
        if cons.kind in ('vmem', 'ds') and (prod.srcc & cons.wr):
            n = max(n, {4: 3, 8: 7, 16: 15}[prod.passes])
    return n

class Asm:
    def __init__(self):
        self.lines = []
        self.nlabel = 0
        self.vm = []
        self.tag = None
        self.track = True
        self.bgq = []
        self.issued = 0
        self.fq = []
    def __call__(self, text):
        for ln in text.split('\n'):
            t = ln.split(';')[0].strip()
            if not t:
                continue
            if t.endswith(':') or t.startswith('.'):
                self.lines.append(('l', t))
            else:
                ins = Ins(ln.strip())
                self.lines.append(('i', ins))
                if ins.kind == 'vmem' and self.track:
                    self.vm.append(self.tag); self.issued += 1
    def wait_vm(self, tag=None):
        if tag is None:
            n = 0
        else:
            idx = [i for i, t in enumerate(self.vm) if t == tag]
            if not idx:
                return
            n = len(self.vm) - 1 - idx[-1]
        n = min(n, 63)
        self('s_waitcnt vmcnt(%d)' % n)
        self.vm = self.vm[len(self.vm) - n:] if n else []
    def t(self, tag, text):
        old = self.tag; self.tag = tag; self(text); self.tag = old
    def bg(self, n=1):
        for _ in range(n):
            if self.bgq:
                tag, text = self.bgq.pop(0)
                self.t(tag, text)
    def fill(self, n=1):
        for _ in range(n):
            if self.fq: self(self.fq.pop(0))
    def label(self, base='L'):
        self.nlabel += 1
        return '%s_%d' % (base, self.nlabel)
    def render(self):
        L = self.lines
        labels = {t[1][:-1]: i for i, t in enumerate(L) if t[0] == 'l' and t[1].endswith(':')}
        pads = [0] * (len(L) + 1)
        def walk_back(i, budget, acc, seen):
            dist = 0
            j = i - 1
            dist += pads[i]
            while j >= -1 and dist < budget:
                if j >= 0 and L[j][0] == 'l':
                    if L[j][1].endswith(':'):
                        name = L[j][1][:-1]
                        for b in self._branches.get(name, []):
                            if (b, dist) not in seen:
                                seen.add((b, dist))
                                sub = []
                                walk_back(b, budget - dist - 1, sub, seen)
                                acc.extend((p, d + dist + 1) for p, d in sub)
                    dist += pads[j]
                    j -= 1
                    continue
                if j < 0: break
                ins = L[j][1]
                if ins.mn in ('s_branch', 's_endpgm'):
                    break
                acc.append((ins, dist))
                dist += ins.states + pads[j]
                j -= 1
        self._branches = {}
        for i, t in enumerate(L):
            if t[0] == 'i' and (t[1].mn.startswith('s_cbranch') or t[1].mn == 's_branch'):
                tgt = t[1].text.split(';')[0].split()[1]
                self._branches.setdefault(tgt, []).append(i)
        for _ in range(3):
            changed = False
            for i, t in enumerate(L):
                if t[0] != 'i': continue
                acc = []
                walk_back(i, 21, acc, set())
                short = 0
                for p, d in acc:
                    n = need(p, t[1])
                    if n > d: short = max(short, n - d)
                if short:
                    pads[i] += short; changed = True
            if not changed: break
        out = []
        for i, t in enumerate(L):
            k = pads[i]
            while k > 0:
                m = min(k, 16); out.append('s_nop %d' % (m - 1)); k -= m
            out.append(t[1] if t[0] == 'l' else t[1].text)
        return '\n'.join(out) + '\n'

def kernel_text(name, body, vgpr, agpr=0, sgpr=96):
    acc = (vgpr + 3) // 4 * 4
    nfv = acc + agpr if agpr else vgpr
    return f'''.text
.globl {name}
.p2align 8
.type {name},@function
{name}:
{body}''', f'''.section .rodata,"a"
.p2align 6
.amdhsa_kernel {name}
  .amdhsa_next_free_vgpr {nfv}
  .amdhsa_next_free_sgpr {sgpr}
  .amdhsa_accum_offset {acc}
  .amdhsa_group_segment_fixed_size 0
  .amdhsa_kernarg_size 120
  .amdhsa_user_sgpr_count 2
  .amdhsa_user_sgpr_kernarg_segment_ptr 1
  .amdhsa_system_sgpr_workgroup_id_x 1
  .amdhsa_float_denorm_mode_32 3
.end_amdhsa_kernel
'''
```

```python
import sys, math
sys.path.insert(0, 'dev')
from asmgen import *

S, D = 2048, 448
A_X, A_WR, A_WI, _BX, L_RE, L_IM, B_RE, B_IM, C_RE, C_IM, LOGDT, DSKIP, OUT, DBG, WS = range(15)
MB = 1 << 20
ZC, SSQ, ZB, HB, ZMID, WF = 0, 2 * MB, 3 * MB, 5 * MB, 9 * MB, 13 * MB
ZC2, ZB3, HB2, FLAGS = 9 * MB, 11 * MB, 20 * MB, 19 * MB + 524288
SSQ2 = FLAGS + 8192
R0 = SSQ
QF = 2 * MB + 65536
ZD = 2 * MB + 32768
WM1, WSK, WC, AGG = 15 * MB, 16 * MB, 17 * MB, 19 * MB
WSK_L = 401408; WC_L = 802816; AGG_L = 32 * 448 * 8
ZU2, ZU0, SSQP = 25 * MB, 27 * MB, 8 * MB + 524288
WS_SIZE = 29 * MB
LOG2E = 1.4426950408889634
INV448 = 1.0 / 448

import os
STAMPS = int(os.environ.get('STAMPS', '0'))
STAMP = 24 * MB
KSTAMP = True
def stamp(A, i):
    if not KSTAMP: return
    if STAMPS == 1 or (STAMPS >= 2 and i == 0): A(f's_memrealtime {s(80+2*i,2)}')
def stamp_out(A, kidx, sw):
    if not STAMPS: return
    if STAMPS == 3:
        lab = A.label('dbg%d' % id(A))
        A(f's_cmp_lg_u32 s2, {os.environ.get("DBGWG", "0")}\ns_cbranch_scc1 {lab}')
        A(f's_memrealtime {s(94,2)}\ns_waitcnt lgkmcnt(0)')
        A(f's_mul_i32 s78, {kidx}, 8\ns_add_u32 s78, s78, {STAMP}')
        A(f'v_mov_b32 v240, s80\nv_mov_b32 v241, s94\nv_mov_b32 v242, 0\nbuffer_store_dwordx2 v[240:241], v242, {s(sw,4)}, s78 offen sc1')
        if kidx == 6:
            i, j = [int(x) for x in os.environ['PROBE'].split(',')]
            A(f's_waitcnt vmcnt(0)\ns_mov_b32 s78, {STAMP}')
            A(f'buffer_load_dword v240, v242, {s(sw,4)}, s78 offen offset:{4*i} sc1\nbuffer_load_dword v241, v242, {s(sw,4)}, s78 offen offset:{4*j} sc1')
            A(f's_waitcnt vmcnt(0)\nv_sub_u32 v240, v241, v240\nv_min_u32 v240, 10000, v240\nv_readfirstlane_b32 s78, v240\ns_mul_i32 s78, s78, 20')
            A(f'{lab}_s:\ns_memrealtime s[76:77]\ns_waitcnt lgkmcnt(0)\ns_sub_u32 s76, s76, s94\ns_cmp_lt_u32 s76, s78\ns_cbranch_scc1 {lab}_s')
        A(f'{lab}:')
        return
    if STAMPS == 2:
        lab = A.label('dbg%d' % id(A))
        A(f's_cmp_lg_u32 s2, {os.environ.get("DBGWG", "0")}\ns_cbranch_scc1 {lab}')
        A(f's_load_dwordx2 s[76:77], s[0:1], {DBG*8}\ns_memrealtime {s(94,2)}\ns_waitcnt lgkmcnt(0)')
        A(f's_mul_i32 s78, {kidx}, 504\ns_sub_u32 s78, 3072, s78\ns_add_u32 s76, s76, s78\ns_addc_u32 s77, s77, 0')
        A('v_mov_b32 v240, s80\nv_mov_b32 v241, s94\nv_mov_b32 v242, 0\nglobal_store_dwordx2 v242, v[240:241], s[76:77]')
        A(f'{lab}:')
        return
    A(f's_memrealtime {s(94,2)}\ns_waitcnt lgkmcnt(0)')
    for i in range(8): A(f'v_mov_b32 {v(240+i)}, {s(80+2*i)}')
    A(f'''v_lshrrev_b32 v248, 6, v0
v_lshlrev_b32 v248, 5, v248
s_lshl_b32 s80, s2, 7
{('s_add_u32 s80, s80, %d' % (STAMP + kidx * 131072)) if isinstance(kidx, int) else ('s_lshl_b32 s81, %s, 17' % kidx + chr(10) + 's_add_u32 s80, s80, s81' + chr(10) + 's_add_u32 s80, s80, %d' % STAMP)}
buffer_store_dwordx4 v[240:243], v248, {s(sw,4)}, s80 offen
buffer_store_dwordx4 v[244:247], v248, {s(sw,4)}, s80 offen offset:16''')

def srd_ws(A, r, off=None):
    A(f's_mov_b32 {s(r+2)}, {WS_SIZE}\ns_mov_b32 {s(r+3)}, 0x20000')

def srd(A, r, size):
    A(f's_mov_b32 {s(r+2)}, {size}\ns_mov_b32 {s(r+3)}, 0x20000')

def ld_ptr(A, r, slot):
    A(f's_load_dwordx2 {s(r,2)}, s[0:1], {slot*8}')

def div7(A, q, rem, x, tmp):
    A(f's_mul_i32 {s(q)}, {s(x)}, 9363\ns_lshr_b32 {s(q)}, {s(q)}, 16\ns_mul_i32 {s(tmp)}, {s(q)}, 7\ns_sub_u32 {s(rem)}, {s(x)}, {s(tmp)}')

def tile_ids(A, rt, sl, tmp):
    A(f's_lshr_b32 {s(tmp)}, s2, 3')
    div7(A, rt, sl, tmp, tmp + 1)
    A(f's_and_b32 {s(tmp)}, s2, 7\ns_lshl_b32 {s(tmp)}, {s(tmp)}, 2\ns_add_u32 {s(rt)}, {s(rt)}, {s(tmp)}')

def cos_reduced(A, dst, t, ph, amp, tq, sinv, s448):
    A(f'v_mul_f32 {v(tq)}, {s(sinv)}, {v(t)}')
    A(f'v_rndne_f32 {v(tq)}, {v(tq)}')
    A(f'v_fma_f32 {v(tq)}, -{v(tq)}, {s(s448)}, {v(t)}')
    if ph is not None:
        A(f'v_fma_f32 {v(tq)}, {v(tq)}, {s(sinv)}, {v(ph)}')
    else:
        A(f'v_mul_f32 {v(tq)}, {s(sinv)}, {v(tq)}')
    A(f'v_cos_f32 {v(dst)}, {v(tq)}')
    if amp is not None:
        A(f'v_mul_f32 {v(dst)}, {amp}, {v(dst)}')

def gen_q(A, dst, vj, vd0f, dc_amp, ch, tmp, sinv, s448, dreg=None, scale=1.0, hook=None):
    amp, cf, two, ph, t, tq, dl, u = range(tmp, tmp + 8)
    a2 = scale * math.sqrt(2.0 / 448); a1 = scale * math.sqrt(1.0 / 448)
    A(f'''v_lshrrev_b32 {v(cf)}, 1, {v(vj)}
v_and_b32 {v(ph)}, 1, {v(vj)}
v_cvt_f32_u32 {v(cf)}, {v(cf)}
v_cvt_f32_u32 {v(ph)}, {v(ph)}
v_cmp_eq_u32 vcc, 0, {v(vj)}
v_mul_f32 {v(ph)}, 0x3e800000, {v(ph)}
v_mov_b32 {v(amp)}, {f2u(a2)}
v_mov_b32 {v(t)}, {f2u(224.0)}
v_mov_b32 {v(tq)}, {f2u(a1)}
v_cndmask_b32 {v(cf)}, {v(cf)}, {v(t)}, vcc
v_cndmask_b32 {v(amp)}, {v(amp)}, {v(tq)}, vcc
v_cmp_eq_u32 vcc, 1, {v(vj)}
v_mov_b32 {v(tq)}, {f2u(dc_amp)}
v_add_f32 {v(t)}, {f2u(96.0)}, {v(vd0f)}
v_cndmask_b32 {v(ph)}, {v(ph)}, 0, vcc
v_cndmask_b32 {v(amp)}, {v(amp)}, {v(tq)}, vcc
v_mul_f32 {v(t)}, {v(t)}, {v(cf)}
v_mul_f32 {v(u)}, {f2u(16.0)}, {v(cf)}
v_mul_f32 {v(tq)}, {s(sinv)}, {v(t)}
v_mul_f32 {v(dl)}, {s(sinv)}, {v(u)}
v_rndne_f32 {v(tq)}, {v(tq)}
v_rndne_f32 {v(dl)}, {v(dl)}
v_fma_f32 {v(t)}, -{v(tq)}, {s(s448)}, {v(t)}
v_fma_f32 {v(u)}, -{v(dl)}, {s(s448)}, {v(u)}
v_fma_f32 {v(t)}, {v(t)}, {s(sinv)}, {v(ph)}
v_mul_f32 {v(u)}, {s(sinv)}, {v(u)}
v_mul_f32 {v(dl)}, {s(sinv)}, {v(cf)}
v_cos_f32 {v(two)}, {v(u)}
v_add_f32 {v(u)}, {v(u)}, {v(t)}''')
    cheb(A, dst, ch, t, u, [dl] * 7, amp, two, ph, tq, dreg, hook)

def cheb(A, dst, ch, t, u, steps, amp, two, x0, x1, dreg=None, hook=None):
    X, Y, W, Z = ch, ch + 8, ch + 16, ch + 24
    for e in range(8):
        A(f'v_cos_f32 {v(X+e)}, {v(t)}')
        if e < 7: A(f'v_add_f32 {v(t)}, {v(t)}, {v(steps[e])}')
        A(f'v_cos_f32 {v(Y+e)}, {v(u)}')
        if e < 7: A(f'v_add_f32 {v(u)}, {v(u)}, {v(steps[e])}')
        if hook and e == int(os.environ.get('QH', '7')): hook()
    A(f'v_add_f32 {v(two)}, {v(two)}, {v(two)}')
    A.bg(1)
    for e in range(0, 16, 2):
        A(f'v_pk_mul_f32 {v(X+e,2)}, {v(X+e,2)}, {v(amp,2)} op_sel_hi:[1,0]')
    def emit(k, r):
        for e in range(0, 8, 2):
            if dreg is None:
                A(f'v_cvt_pk_bf16_f32 {v(dst+4*k+e//2)}, {v(r+e)}, {v(r+e+1)}')
            else:
                d = dreg + 4 * k + e // 2
                A(f'''v_lshlrev_b32 {v(x0)}, 16, {v(d)}
v_and_b32 {v(x1)}, 0xffff0000, {v(d)}
v_mul_f32 {v(x0)}, {v(x0)}, {v(r+e)}
v_mul_f32 {v(x1)}, {v(x1)}, {v(r+e+1)}
v_cvt_pk_bf16_f32 {v(dst+4*k+e//2)}, {v(x0)}, {v(x1)}''')
    def step(d, c, o):
        for e in range(0, 8, 2):
            A(f'v_pk_fma_f32 {v(d+e,2)}, {v(two,2)}, {v(c+e,2)}, {v(o+e,2)} op_sel_hi:[0,1,1] neg_lo:[0,0,1] neg_hi:[0,0,1]')
    A.bg(1)
    step(W, X, Y); step(Z, Y, X)
    A.bg(1)
    emit(6, X); emit(7, Y)
    up = [Y, Z]; dn = [X, W]
    for i in range(5):
        o, c = up[i % 2], up[(i + 1) % 2]
        o2, c2 = dn[i % 2], dn[(i + 1) % 2]
        A.bg(1)
        step(o, c, o); step(o2, c2, o2)
        A.bg(1)
        emit(8 + i, c)
        A.bg(1)
        emit(5 - i, c2)
    emit(13, up[0]); emit(0, dn[0])

def lam_calc(A, vre, vim, vdt, lr, li, t0, t1):
    A(f'''v_lshlrev_b32 {v(vre)}, 16, {v(vre)}
v_lshlrev_b32 {v(vim)}, 16, {v(vim)}
v_lshlrev_b32 {v(vdt)}, 16, {v(vdt)}
v_mul_f32 {v(vdt)}, {f2u(LOG2E)}, {v(vdt)}
v_exp_f32 {v(vdt)}, {v(vdt)}
v_cvt_pk_bf16_f32 {v(vdt)}, {v(vdt)}, {v(vdt)}
v_lshlrev_b32 {v(vdt)}, 16, {v(vdt)}
v_mul_f32 {v(t0)}, {v(vdt)}, {v(vre)}
v_mul_f32 {v(t0)}, {f2u(LOG2E)}, {v(t0)}
v_exp_f32 {v(t0)}, {v(t0)}
v_mul_f32 {v(t1)}, {v(vdt)}, {v(vim)}
v_mul_f32 {v(t1)}, {f2u(1/(2*math.pi))}, {v(t1)}
v_fract_f32 {v(t1)}, {v(t1)}
v_cos_f32 {v(lr)}, {v(t1)}
v_sin_f32 {v(li)}, {v(t1)}
v_mul_f32 {v(lr)}, {v(lr)}, {v(t0)}
v_mul_f32 {v(li)}, {v(li)}, {v(t0)}''')

def prefetch_code(A, start, nbytes, vtmp, stmp, dst, part=None):
    A(f's_getpc_b64 {s(stmp,2)}')
    A(f's_add_u32 {s(stmp)}, {s(stmp)}, {start}@rel32@lo+4')
    A(f's_addc_u32 {s(stmp+1)}, {s(stmp+1)}, {start}@rel32@hi+12')
    A(f'v_lshlrev_b32 {v(vtmp)}, 4, v0')
    if part is not None: A(f'v_add_u32 {v(vtmp)}, {s(part)}, {v(vtmp)}')
    n = (nbytes + 4095) // 4096
    for i in range(n):
        A(f'global_load_dwordx4 {v(dst,4)}, {v(vtmp)}, {s(stmp,2)}')
        if i < n - 1: A(f'v_add_u32 {v(vtmp)}, 4096, {v(vtmp)}')

RED = 65536

def ksplit_reduce(A, T0, T1, vaddr_w, vaddr_r, tmp, pk=False):
    stamp(A, 4)
    for i, r in enumerate((T0 + 4, T0 + 12, T1 + 4, T1 + 12)):
        A(f'ds_write_b128 {v(vaddr_w)}, {v(r,4)} offset:{i*1024}')
    A('s_waitcnt lgkmcnt(0)\ns_barrier')
    for i in range(4):
        A(f'ds_read_b128 {v(tmp+4*i,4)}, {v(vaddr_r)} offset:{i*1024}')
    for i, r in enumerate((T0, T0 + 8, T1, T1 + 8)):
        A(f's_waitcnt lgkmcnt({3-i})')
        if pk:
            for e in (0, 2): A(f'v_pk_add_f32 {v(r+e,2)}, {v(r+e,2)}, {v(tmp+4*i+e,2)}')
            continue
        for e in range(4):
            A(f'v_add_f32 {v(r+e)}, {v(r+e)}, {v(tmp+4*i+e)}')
    stamp(A, 5)

def zc_store(A, T0, T1, lane, tmp, s_ws, s_rt, s_sl, s_kh, s_wm, s_t, sc=''):
    va, s0, s1, vl, pk = tmp, tmp + 1, tmp + 2, tmp + 3, tmp + 4
    A(f'''v_lshrrev_b32 {v(va)}, 5, {v(lane)}
v_lshlrev_b32 {v(va)}, 14, {v(va)}
v_and_b32 {v(s0)}, 31, {v(lane)}
v_lshl_add_u32 {v(va)}, {v(s0)}, 2, {v(va)}
s_lshl_b32 {s(s_t)}, {s(s_sl)}, 5
s_lshl_b32 {s(s_t+1)}, {s(s_wm)}, 4
s_add_u32 {s(s_t)}, {s(s_t)}, {s(s_t+1)}
s_lshl_b32 {s(s_t+1)}, {s(s_kh)}, 2
s_add_u32 {s(s_t)}, {s(s_t)}, {s(s_t+1)}
s_lshl_b32 {s(s_t)}, {s(s_t)}, 13
s_lshl_b32 {s(s_t+1)}, {s(s_rt)}, 8
s_add_u32 {s(s_t)}, {s(s_t)}, {s(s_t+1)}
s_add_u32 {s(s_t)}, {s(s_t)}, {ZC}
s_add_u32 {s(s_t+1)}, {s(s_t)}, 8192
s_add_u32 {s(s_t+2)}, {s(s_t)}, {8*8192}
s_add_u32 {s(s_t+3)}, {s(s_t)}, {9*8192}''')
    k = 0
    for nt, T in enumerate((T0, T1)):
        for qi, q in enumerate((0, 2)):
            for ip in range(2):
                r = T + 4 * q + 2 * ip
                A(f'v_cvt_pk_bf16_f32 {v(pk+k)}, {v(r)}, {v(r+1)}')
                A(f'buffer_store_dword {v(pk+k)}, {v(va)}, {s(s_ws,4)}, {s(s_t+2*qi+ip)} offen offset:{nt*128}{sc}')
                k += 1

def zc_epilogue(A, T0, T1, lane, tmp, s_ws, s_rt, s_sl, s_kh, s_wm, s_t, wave, ssq_lds, ZC=ZC, SSQ=SSQ, sc='', endlab='L_end'):
    va, s0, s1, vl, pk = tmp, tmp + 1, tmp + 2, tmp + 3, tmp + 4
    A(f'''v_lshrrev_b32 {v(va)}, 5, {v(lane)}
v_lshlrev_b32 {v(va)}, 14, {v(va)}
v_and_b32 {v(s0)}, 31, {v(lane)}
v_lshl_add_u32 {v(va)}, {v(s0)}, 2, {v(va)}
s_lshl_b32 {s(s_t)}, {s(s_sl)}, 5
s_lshl_b32 {s(s_t+1)}, {s(s_wm)}, 4
s_add_u32 {s(s_t)}, {s(s_t)}, {s(s_t+1)}
s_lshl_b32 {s(s_t+1)}, {s(s_kh)}, 2
s_add_u32 {s(s_t)}, {s(s_t)}, {s(s_t+1)}
s_lshl_b32 {s(s_t)}, {s(s_t)}, 13
s_lshl_b32 {s(s_t+1)}, {s(s_rt)}, 8
s_add_u32 {s(s_t)}, {s(s_t)}, {s(s_t+1)}
s_add_u32 {s(s_t)}, {s(s_t)}, {ZC}
s_add_u32 {s(s_t+1)}, {s(s_t)}, 8192
s_add_u32 {s(s_t+2)}, {s(s_t)}, {8*8192}
s_add_u32 {s(s_t+3)}, {s(s_t)}, {9*8192}''')
    k = 0
    for nt, T in enumerate((T0, T1)):
        for qi, q in enumerate((0, 2)):
            for ip in range(2):
                r = T + 4 * q + 2 * ip
                A(f'v_cvt_pk_bf16_f32 {v(pk+k)}, {v(r)}, {v(r+1)}')
                A(f'buffer_store_dword {v(pk+k)}, {v(va)}, {s(s_ws,4)}, {s(s_t+2*qi+ip)} offen offset:{nt*128}{sc}')
                k += 1
    lab = A.label('nodc')
    A(f'''s_or_b32 {s(s_t+4)}, {s(s_sl)}, {s(wave)}
s_cmp_lg_u32 {s(s_t+4)}, 0
s_cbranch_scc1 {lab}
v_cmp_gt_u32 vcc, 32, {v(lane)}
v_cndmask_b32 {v(T0+1)}, {v(T0+1)}, 0, vcc
v_cndmask_b32 {v(T1+1)}, {v(T1+1)}, 0, vcc
{lab}:''')
    for sreg, T in ((s0, T0), (s1, T1)):
        A(f'v_mul_f32 {v(sreg)}, {v(T)}, {v(T)}')
    for r in (1, 2, 3, 8, 9, 10, 11):
        for sreg, T in ((s0, T0), (s1, T1)):
            A(f'v_fmac_f32 {v(sreg)}, {v(T+r)}, {v(T+r)}')
    A(f'''v_permlane32_swap_b32 {v(s0)}, {v(s1)}
v_add_f32 {v(s0)}, {v(s0)}, {v(s1)}
v_lshlrev_b32 {v(vl)}, 2, {v(lane)}
s_lshl_b32 {s(s_t+4)}, {s(wave)}, 8
v_add_u32 {v(s1)}, {s(s_t+4)}, {v(vl)}
ds_write_b32 {v(s1)}, {v(s0)} offset:{ssq_lds}
s_waitcnt lgkmcnt(0)
s_barrier
s_cmp_lg_u32 {s(wave)}, 0
s_cbranch_scc1 {endlab}
ds_read2st64_b32 {v(pk,2)}, {v(vl)} offset0:{ssq_lds//256} offset1:{ssq_lds//256+1}
ds_read2st64_b32 {v(pk+2,2)}, {v(vl)} offset0:{ssq_lds//256+2} offset1:{ssq_lds//256+3}
s_lshl_b32 {s(s_t)}, {s(s_sl)}, 13
s_lshl_b32 {s(s_t+1)}, {s(s_rt)}, 8
s_add_u32 {s(s_t)}, {s(s_t)}, {s(s_t+1)}
s_add_u32 {s(s_t)}, {s(s_t)}, {SSQ}
s_waitcnt lgkmcnt(0)
v_add_f32 {v(pk)}, {v(pk)}, {v(pk+1)}
v_add_f32 {v(pk+2)}, {v(pk+2)}, {v(pk+3)}
v_add_f32 {v(pk)}, {v(pk)}, {v(pk+2)}
buffer_store_dword {v(pk)}, {v(vl)}, {s(s_ws,4)}, {s(s_t)} offen{sc}''')

def k0():
    A = Asm()
    lane = 1
    QA, T0, T1, BF, B0, CH, TM = 16, 72, 88, 104, 160, 216, 248
    sW = 4
    sI = 8
    sI2 = 12
    wave, kh, wm, rt, sl = 20, 21, 22, 23, 24
    sinv, s448 = 25, 26
    st = 28
    stamp(A, 0)
    if os.environ.get('PROBE'): A('s_memrealtime s[80:81]')
    ld_ptr(A, sW, WS)
    A('s_cmp_ge_u32 s2, 16\ns_cbranch_scc1 K0_nopf')
    prefetch_code(A, 'k0_kernel', K0_BYTES, 2, 40, 72)
    A(f'''K0_nopf:
v_and_b32 {v(lane)}, 63, v0
v_lshrrev_b32 v2, 6, v0
v_readfirstlane_b32 {s(wave)}, v2
s_and_b32 {s(kh)}, {s(wave)}, 1
s_lshr_b32 {s(wm)}, {s(wave)}, 1
s_mov_b32 {s(sinv)}, {f2u(INV448)}
s_mov_b32 {s(s448)}, {f2u(448.0)}
s_cmp_lt_u32 s2, 224
s_cbranch_scc1 R_x
s_sub_u32 s27, s2, 224
s_cmp_lt_u32 s2, 256
s_cbranch_scc1 R_wt
s_cmp_lt_u32 s2, 354
s_cbranch_scc1 R_m1
s_cmp_lt_u32 s2, 452
s_cbranch_scc1 R_m2b
s_sub_u32 s27, s2, 420
s_cmp_lt_u32 s2, 484
s_cbranch_scc1 R_wt
s_cmp_lt_u32 s2, 491
s_cbranch_scc1 R_d
s_endpgm''')

    def stage_rows(rowbase_s):
        A(f's_lshl_b32 {s(st)}, {s(wave)}, 14\ns_mov_b32 m0, {s(st)}\nv_lshlrev_b32 v2, 4, {v(lane)}')
        for r in range(16):
            if r: A(f'v_xor_b32 v3, {16*r}, v2')
            A(f'buffer_load_dwordx4 {v(3 if r else 2)}, {s(sI,4)}, {s(rowbase_s)} offen lds')
            if r < 15: A(f's_add_u32 m0, m0, 1024\ns_add_u32 {s(rowbase_s)}, {s(rowbase_s)}, 896')

    def q_setup(xor8):
        A(f'''v_and_b32 v4, 31, {v(lane)}
s_lshl_b32 {s(st)}, {s(sl)}, 6
s_lshl_b32 {s(st+1)}, {s(wm)}, 5
s_add_u32 {s(st)}, {s(st)}, {s(st+1)}''')
        if xor8:
            A(f's_lshl_b32 {s(st+1)}, {s(kh)}, 3\nv_xor_b32 v4, {s(st+1)}, v4')
        A(f'''v_add_u32 v4, {s(st)}, v4
v_lshrrev_b32 v5, 5, {v(lane)}
v_lshlrev_b32 v5, 3, v5
s_mul_i32 {s(st)}, {s(kh)}, 224
v_add_u32 v5, {s(st)}, v5
v_cvt_f32_u32 v5, v5''')

    def red_addr():
        A(f'''s_lshl_b32 {s(st)}, {s(wave)}, 12
s_add_u32 {s(st)}, {s(st)}, {RED}
s_xor_b32 {s(st+1)}, {s(st)}, 4096
v_lshlrev_b32 v7, 4, {v(lane)}
v_add_u32 v6, {s(st)}, v7
v_add_u32 v7, {s(st+1)}, v7''')

    def gemm_rows():
        A(f'''v_and_b32 v8, 31, {v(lane)}
v_lshrrev_b32 v9, 5, {v(lane)}
v_and_b32 v10, 15, {v(lane)}
v_xor_b32 v9, v9, v10
v_lshlrev_b32 v9, 4, v9
v_lshl_add_u32 v8, v8, 10, v9
s_mul_i32 {s(st)}, {s(kh)}, 448''')
        stamp(A, 2)
        A('s_waitcnt vmcnt(0)\ns_barrier')
        stamp(A, 3)
        def rd(k):
            b = BF + 8 * (k % 4)
            A(f'v_xor_b32 v9, {s(st)}, v8\ns_add_u32 {s(st)}, {s(st)}, 32')
            A(f'ds_read_b128 {v(b,4)}, v9\nds_read_b128 {v(b+4,4)}, v9 offset:32768')
        for k in range(3): rd(k)
        for k in range(14):
            if k + 3 < 14: rd(k + 3)
            out = min(3, 13 - k)
            A(f's_waitcnt lgkmcnt({2*out})')
            b = BF + 8 * (k % 4)
            c0 = v(T0, 16) if k else '0'; c1 = v(T1, 16) if k else '0'
            A(f'v_mfma_f32_32x32x16_bf16 {v(T0,16)}, {v(QA+4*k,4)}, {v(b,4)}, {c0}')
            A(f'v_mfma_f32_32x32x16_bf16 {v(T1,16)}, {v(QA+4*k,4)}, {v(b+4,4)}, {c1}')

    A('R_x:')
    ld_ptr(A, sI, A_X)
    tile_ids(A, rt, sl, st)
    A(f's_lshl_b32 {s(st+2)}, {s(rt)}, 2\ns_add_u32 {s(st+2)}, {s(st+2)}, {s(wave)}\ns_mul_i32 {s(st+2)}, {s(st+2)}, {16*896}')
    A('s_waitcnt lgkmcnt(0)')
    srd(A, sI, S * D * 2); srd_ws(A, sW); stamp(A, 1)
    stage_rows(st + 2)
    A(f'v_lshlrev_b32 v2, 2, v0\nv_mov_b32 v3, -1\ns_lshl_b32 {s(st)}, s2, 10\ns_add_u32 {s(st)}, {s(st)}, {AGG}\nbuffer_store_dword v3, v2, {s(sW,4)}, {s(st)} offen')
    q_setup(True); red_addr()
    gen_q(A, QA, 4, 5, math.sqrt(1.0 / 448), CH, TM, sinv, s448)
    gemm_rows()
    X0 = CH
    A(f'''s_cmp_ge_u32 {s(sl)}, 4
s_cbranch_scc1 X_nostat
v_lshrrev_b32 v10, 4, v0
v_and_b32 v11, 15, v0
s_lshl_b32 {s(st)}, {s(sl)}, 14
v_lshlrev_b32 v12, 10, v10
v_lshl_add_u32 v12, v11, 4, v12
v_add_u32 v12, {s(st)}, v12
ds_read_b128 {v(X0,4)}, v12
ds_read_b128 {v(X0+4,4)}, v12 offset:256
ds_read_b128 {v(X0+8,4)}, v12 offset:512
ds_read_b128 {v(X0+12,4)}, v12 offset:768
v_xor_b32 v13, v10, v11
v_cmp_gt_u32 vcc, 8, v13
s_mov_b32 {s(st+1)}, 0x3f803f80
v_mov_b32 v13, 0
v_mov_b32 v14, 0
s_waitcnt lgkmcnt(0)''')
    for i in range(4): A(f'v_cndmask_b32 {v(X0+12+i)}, 0, {v(X0+12+i)}, vcc')
    for i in range(16):
        A(f'v_dot2_f32_bf16 v13, {v(X0+i)}, {v(X0+i)}, v13\nv_dot2_f32_bf16 v14, {v(X0+i)}, {s(st+1)}, v14')
    for sh in (8, 4, 2, 1):
        A(f's_nop 1\nv_add_f32_dpp v13, v13, v13 row_ror:{sh} row_mask:0xf bank_mask:0xf\nv_add_f32_dpp v14, v14, v14 row_ror:{sh} row_mask:0xf bank_mask:0xf')
    A(f'''v_mul_f32 v14, v14, v14
v_fmac_f32 v13, {f2u(-1.0/448)}, v14
v_max_f32 v13, 0, v13
v_mov_b32 v14, {f2u(1e-5*2048.0*2048.0)}
v_fmac_f32 v14, {f2u(2048.0*2048.0/448)}, v13
v_rsq_f32 v14, v14
v_lshlrev_b32 v10, 2, v10
s_lshl_b32 {s(st)}, {s(rt)}, 8
s_lshl_b32 {s(st+1)}, {s(sl)}, 6
s_add_u32 {s(st)}, {s(st)}, {s(st+1)}
s_add_u32 {s(st)}, {s(st)}, {R0}
v_cmp_eq_u32 vcc, 0, v11
s_and_saveexec_b64 s[40:41], vcc
buffer_store_dword v14, v10, {s(sW,4)}, {s(st)} offen
s_mov_b64 exec, s[40:41]
X_nostat:''')
    ksplit_reduce(A, T0, T1, 6, 7, BF)
    zc_store(A, T0, T1, lane, BF + 16, sW, rt, sl, kh, wm, st)
    A('v_lshlrev_b32 v2, 4, v0\nv_mov_b32 v8, -1\nv_mov_b32 v9, -1\nv_mov_b32 v10, -1\nv_mov_b32 v11, -1')
    for base, n in ((ZB, 2), (HB, 4), (ZC2, 2), (ZB3, 2), (HB2, 4)) if os.environ.get('DRAIN', '1') == '0' else ():
        A(f's_mul_i32 {s(st)}, s2, {n*4096}\ns_add_u32 {s(st)}, {s(st)}, {base}')
        for i in range(n):
            A(f'buffer_store_dwordx4 v[8:11], v2, {s(sW,4)}, {s(st)} offen{os.environ.get("PFSC", " sc1")}')
            if i < n - 1: A(f's_add_u32 {s(st)}, {s(st)}, 4096')
    A('s_branch L_end')

    A('R_d:')
    ld_ptr(A, sI, DSKIP)
    A(f's_sub_u32 {s(sl)}, s2, 484\ns_mov_b32 m0, 0\nv_lshlrev_b32 v2, 4, {v(lane)}\ns_waitcnt lgkmcnt(0)')
    srd(A, sI, D * 2); srd_ws(A, sW); stamp(A, 1)
    A(f'buffer_load_dwordx4 v2, {s(sI,4)}, 0 offen lds')
    q_setup(True); red_addr()
    gen_q(A, QA, 4, 5, math.sqrt(1.0 / 448), CH, TM, sinv, s448)
    gemm_rows()
    ksplit_reduce(A, T0, T1, 6, 7, BF)
    A(f'''v_lshrrev_b32 v8, 1, {v(lane)}
s_lshl_b32 {s(st)}, {s(sl)}, 8
s_lshl_b32 {s(st+1)}, {s(wm)}, 7
s_add_u32 {s(st)}, {s(st)}, {s(st+1)}
s_lshl_b32 {s(st+1)}, {s(kh)}, 5
s_add_u32 {s(st)}, {s(st)}, {s(st+1)}
s_add_u32 {s(st)}, {s(st)}, {ZD}
s_mov_b32 exec_lo, 1
s_mov_b32 exec_hi, 1
buffer_store_dwordx4 {v(T0,4)}, v8, {s(sW,4)}, {s(st)} offen
buffer_store_dwordx4 {v(T0+8,4)}, v8, {s(sW,4)}, {s(st)} offen offset:64
s_mov_b64 exec, -1
s_branch L_end''')

    A('R_m1:')
    pb = rt
    ld_ptr(A, sI, B_RE); ld_ptr(A, sI2, B_IM)
    ld_ptr(A, 40, L_RE); ld_ptr(A, 44, L_IM); ld_ptr(A, 48, LOGDT)
    A(f's_sub_u32 {s(st+2)}, s2, 256')
    div7(A, pb, sl, st + 2, st)
    A(f'''s_lshl_b32 {s(st+2)}, {s(pb)}, 1
s_add_u32 {s(st+2)}, {s(st+2)}, {s(kh)}
s_mul_i32 {s(st+2)}, {s(st+2)}, {16*896}
s_waitcnt lgkmcnt(0)
s_cmp_eq_u32 {s(wm)}, 0
s_cselect_b32 {s(sI)}, {s(sI)}, {s(sI2)}
s_cselect_b32 {s(sI+1)}, {s(sI+1)}, {s(sI2+1)}''')
    srd(A, sI, D * D * 2); srd_ws(A, sW); stamp(A, 1)
    for r in (40, 44, 48): srd(A, r, D * 2)
    stage_rows(st + 2)
    A(f'''v_and_b32 v11, 31, {v(lane)}
v_lshlrev_b32 v11, 1, v11
s_lshl_b32 {s(st+2)}, {s(pb)}, 6
buffer_load_ushort v12, v11, s[40:43], {s(st+2)} offen
buffer_load_ushort v13, v11, s[44:47], {s(st+2)} offen
buffer_load_ushort v14, v11, s[48:51], {s(st+2)} offen''')
    q_setup(True); red_addr()
    gen_q(A, QA, 4, 5, 0.0, CH, TM, sinv, s448)
    gemm_rows()
    lr, li, t0, t1, gr, gi = CH, CH + 1, CH + 2, CH + 3, CH + 4, CH + 5
    lam_calc(A, 12, 13, 14, lr, li, t0, t1)
    A(f'''v_subrev_f32 {v(lr)}, 1.0, {v(lr)}
v_mul_f32 {v(t0)}, v12, v12
v_fmac_f32 {v(t0)}, v13, v13
v_rcp_f32 {v(t0)}, {v(t0)}
v_mul_f32 {v(gr)}, {v(lr)}, v12
v_fmac_f32 {v(gr)}, {v(li)}, v13
v_mul_f32 {v(gi)}, {v(li)}, v12
v_fma_f32 {v(gi)}, -{v(lr)}, v13, {v(gi)}
v_mul_f32 {v(gr)}, {v(gr)}, {v(t0)}
v_mul_f32 {v(gi)}, {v(gi)}, {v(t0)}''')
    ksplit_reduce(A, T0, T1, 6, 7, BF)
    o = BF + 16
    for i, r in enumerate((0, 1, 2, 3, 8, 9, 10, 11)):
        A(f'''v_mul_f32 {v(o+i)}, {v(gr)}, {v(T0+r)}
v_mul_f32 {v(o+8+i)}, {v(gr)}, {v(T1+r)}
v_fma_f32 {v(o+i)}, -{v(gi)}, {v(T1+r)}, {v(o+i)}
v_fmac_f32 {v(o+8+i)}, {v(gi)}, {v(T0+r)}''')
    for i in range(8):
        A(f'v_cvt_pk_bf16_f32 {v(BF+i)}, {v(o+2*i)}, {v(o+2*i+1)}')
    A(f'''v_bfe_u32 v8, {v(lane)}, 4, 1
v_mul_u32_u24 v8, {28*1024}, v8
v_lshrrev_b32 v9, 5, {v(lane)}
v_lshl_add_u32 v8, v9, 8, v8
v_and_b32 v9, 15, {v(lane)}
v_lshl_add_u32 v8, v9, 4, v8
s_mul_i32 {s(st)}, {s(pb)}, 28
s_lshl_b32 {s(st+1)}, {s(sl)}, 1
s_add_u32 {s(st)}, {s(st)}, {s(st+1)}
s_add_u32 {s(st)}, {s(st)}, {s(wm)}
s_lshl_b32 {s(st)}, {s(st)}, 11
s_lshl_b32 {s(st+1)}, {s(kh)}, 9
s_add_u32 {s(st)}, {s(st)}, {s(st+1)}
s_add_u32 {s(st)}, {s(st)}, {WM1}
buffer_store_dwordx4 {v(BF,4)}, v8, {s(sW,4)}, {s(st)} offen
buffer_store_dwordx4 {v(BF+4,4)}, v8, {s(sW,4)}, {s(st)} offen offset:1024
s_branch L_end''')

    A('R_m2b:')
    arr, pblk = 27, rt
    ld_ptr(A, sI, C_RE); ld_ptr(A, sI2, C_IM)
    A(f's_sub_u32 {s(st+2)}, s2, 354')
    div7(A, st + 3, sl, st + 2, st)
    A(f'''s_cmp_ge_u32 {s(st+3)}, 7
s_cselect_b32 {s(arr)}, 1, 0
s_mul_i32 {s(st)}, {s(arr)}, 7
s_sub_u32 {s(pblk)}, {s(st+3)}, {s(st)}
s_mul_i32 {s(st+2)}, {s(wave)}, {14*7168}
s_lshl_b32 {s(st)}, {s(pblk)}, 7
s_add_u32 {s(st+2)}, {s(st+2)}, {s(st)}
v_lshrrev_b32 v2, 3, {v(lane)}
v_mul_u32_u24 v2, 896, v2
v_and_b32 v3, 7, {v(lane)}
v_bfe_u32 v4, {v(lane)}, 4, 1
v_lshlrev_b32 v4, 2, v4
v_xor_b32 v3, v3, v4
v_lshl_add_u32 v2, v3, 4, v2
s_mul_i32 {s(st)}, {s(wave)}, {14*1024}
s_mov_b32 m0, {s(st)}
s_waitcnt lgkmcnt(0)
s_cmp_eq_u32 {s(arr)}, 0
s_cselect_b32 {s(sI)}, {s(sI)}, {s(sI2)}
s_cselect_b32 {s(sI+1)}, {s(sI+1)}, {s(sI2+1)}''')
    srd(A, sI, D * D * 2); srd_ws(A, sW); stamp(A, 1)
    for i in range(14):
        A(f'buffer_load_dwordx4 v2, {s(sI,4)}, {s(st+2)} offen lds')
        if i < 13: A(f's_add_u32 m0, m0, 1024\ns_add_u32 {s(st+2)}, {s(st+2)}, 7168')
    q_setup(False); red_addr()
    gen_q(A, QA, 4, 5, math.sqrt(1.0 / 448), CH, TM, sinv, s448)
    A(f'''v_bfe_u32 v8, {v(lane)}, 2, 2
v_lshrrev_b32 v9, 5, {v(lane)}
v_lshl_add_u32 v9, v9, 3, v8
v_lshlrev_b32 v9, 7, v9
v_lshrrev_b32 v8, 1, v8
v_lshl_add_u32 v9, v8, 6, v9
v_bfe_u32 v8, {v(lane)}, 1, 1
v_xor_b32 v8, {s(kh)}, v8
v_lshl_add_u32 v9, v8, 5, v9
v_bfe_u32 v8, {v(lane)}, 4, 1
v_lshl_add_u32 v9, v8, 4, v9
v_and_b32 v8, 1, {v(lane)}
v_lshl_add_u32 v9, v8, 3, v9
s_mul_i32 {s(st)}, {s(kh)}, {224*128}
v_add_u32 v8, {s(st)}, v9
v_xor_b32 v9, 64, v8''')
    stamp(A, 2)
    A('s_waitcnt vmcnt(0)\ns_barrier')
    stamp(A, 3)
    def rd2(k):
        b = BF + 8 * (k % 4)
        for mt in range(2):
            for hf in range(2):
                A(f'ds_read_b64_tr_b16 {v(b+4*mt+2*hf,2)}, {v(8+mt)} offset:{k*2048+hf*512}')
    for k in range(3): rd2(k)
    for k in range(14):
        if k + 3 < 14: rd2(k + 3)
        A(f's_waitcnt lgkmcnt({4*min(3, 13-k)})')
        b = BF + 8 * (k % 4)
        c0 = v(T0, 16) if k else '0'; c1 = v(T1, 16) if k else '0'
        A(f'v_mfma_f32_32x32x16_bf16 {v(T0,16)}, {v(b,4)}, {v(QA+4*k,4)}, {c0}')
        A(f'v_mfma_f32_32x32x16_bf16 {v(T1,16)}, {v(b+4,4)}, {v(QA+4*k,4)}, {c1}')
    ksplit_reduce(A, T0, T1, 6, 7, BF)
    for mt, T in enumerate((T0, T1)):
        for i, r in enumerate((0, 2, 8, 10)):
            A(f'v_cvt_pk_bf16_f32 {v(BF+16+4*mt+i)}, {v(T+r)}, {v(T+r+1)}')
    A(f'''v_lshlrev_b32 v8, 4, {v(lane)}
s_lshl_b32 {s(st)}, {s(sl)}, 1
s_add_u32 {s(st)}, {s(st)}, {s(arr)}
s_lshl_b32 {s(st)}, {s(st)}, 1
s_add_u32 {s(st)}, {s(st)}, {s(wm)}
s_mul_i32 {s(st)}, {s(st)}, 28
s_lshl_b32 {s(st+1)}, {s(pblk)}, 2
s_add_u32 {s(st)}, {s(st)}, {s(st+1)}
s_add_u32 {s(st)}, {s(st)}, {s(kh)}
s_lshl_b32 {s(st)}, {s(st)}, 10
s_add_u32 {s(st)}, {s(st)}, {WC}
buffer_store_dwordx4 {v(BF+16,4)}, v8, {s(sW,4)}, {s(st)} offen
buffer_store_dwordx4 {v(BF+20,4)}, v8, {s(sW,4)}, {s(st)} offen offset:2048
s_branch L_end''')

    A('R_wt:')
    ld_ptr(A, sI, A_WR); ld_ptr(A, sI2, A_WI)
    arr, w4, g, hf = 41, rt, sl, 42
    A(f'''s_and_b32 {s(hf)}, s27, 1
s_bfe_u32 {s(arr)}, s27, 0x10001
s_bfe_u32 {s(w4)}, s27, 0x20002
s_lshr_b32 {s(g)}, s27, 4
s_lshl_b32 {s(st)}, {s(g)}, 3
s_lshl_b32 {s(st+1)}, {s(wave)}, 1
s_add_u32 {s(st)}, {s(st)}, {s(st+1)}
s_lshl_b32 {s(st)}, {s(st)}, 2
s_add_u32 {s(st)}, {s(st)}, {s(w4)}
s_lshl_b32 {s(st)}, {s(st)}, 1
s_add_u32 {s(st)}, {s(st)}, {s(hf)}
s_mul_i32 {s(st+2)}, {s(st)}, 3600
s_lshl_b32 {s(st)}, {s(wave)}, 13
s_mov_b32 m0, {s(st)}
v_lshlrev_b32 v2, 4, {v(lane)}
s_waitcnt lgkmcnt(0)
s_cmp_eq_u32 {s(arr)}, 0
s_cselect_b32 {s(sI)}, {s(sI)}, {s(sI2)}
s_cselect_b32 {s(sI+1)}, {s(sI+1)}, {s(sI2+1)}''')
    srd(A, sI, S * 450); srd_ws(A, sW); stamp(A, 1)
    for e in range(2):
        for i in range(4):
            A(f'buffer_load_dwordx4 v2, {s(sI,4)}, {s(st+2)} offen offset:{i*1024} lds')
        if e == 0:
            A(f's_add_u32 m0, m0, 4096\ns_add_u32 {s(st+2)}, {s(st+2)}, {4*7200}')
    A(f'v_lshlrev_b32 v2, 4, v0\nv_mov_b32 v8, 0\nv_mov_b32 v9, 0\nv_mov_b32 v10, 0\nv_mov_b32 v11, 0\ns_lshl_b32 {s(st)}, s27, 13\ns_add_u32 {s(st)}, {s(st)}, {FLAGS}\nbuffer_store_dwordx4 v[8:11], v2, {s(sW,4)}, {s(st)} offen\nv_add_u32 v2, 4096, v2\nbuffer_store_dwordx4 v[8:11], v2, {s(sW,4)}, {s(st)} offen')
    A('s_cmp_ge_u32 s27, 16\ns_cbranch_scc1 WT_nopf')
    prefetch_code(A, 'k1_kernel', REST_BYTES, 2, 44, 72)
    A(f'''WT_nopf:
v_and_b32 v3, 7, {v(lane)}
v_mul_u32_u24 v4, 450, v3
v_lshrrev_b32 v5, 3, v0
v_lshl_add_u32 v4, v5, 1, v4
v_add_u32 v6, 448, v4
v_cmp_eq_u32 vcc, 0, v5
v_cndmask_b32 v6, v4, v6, vcc
v_lshlrev_b32 v5, 13, v5
v_lshl_add_u32 v5, v3, 4, v5
s_lshl_b32 {s(st)}, {s(w4)}, 1
s_add_u32 {s(st)}, {s(st)}, {s(arr)}
s_lshl_b32 {s(st)}, {s(st)}, 10
s_lshl_b32 {s(st+1)}, {s(g)}, 8
s_add_u32 {s(st)}, {s(st)}, {s(st+1)}
s_lshl_b32 {s(st+1)}, {s(hf)}, 7
s_add_u32 {s(st)}, {s(st)}, {s(st+1)}
s_add_u32 {s(st)}, {s(st)}, {WF}''')
    stamp(A, 2)
    A('s_waitcnt vmcnt(0)\ns_barrier')
    stamp(A, 3)
    def wt_fin(it):
        b = 16 + 8 * (it % 2)
        o = 32 + 4 * it
        for i in range(4):
            A(f'v_or_b32 {v(o+i)}, {v(b+2*i)}, {v(b+2*i+1)}')
        A(f'buffer_store_dwordx4 {v(o,4)}, v5, {s(sW,4)}, {s(st)} offen\ns_add_u32 {s(st)}, {s(st)}, {32*8192}')
    for it in range(7):
        b = 16 + 8 * (it % 2)
        for e in range(8):
            A(f'ds_read_u16{"_d16_hi" if e & 1 else ""} {v(b+e)}, {v(6 if it == 0 else 4)} offset:{e*4096+it*64}')
        if it >= 1:
            A('s_waitcnt lgkmcnt(8)')
            wt_fin(it - 1)
    A('s_waitcnt lgkmcnt(0)')
    wt_fin(6)
    A('L_end:')
    if os.environ.get('PROBE'):
        A(f's_cmp_lg_u32 s2, 100\ns_cbranch_scc1 K0_np\nv_mov_b32 v2, 0\nv_mov_b32 v3, s80\ns_mov_b32 s82, {STAMP}\nbuffer_store_dword v3, v2, {s(sW,4)}, s82 offen\nK0_np:')
    stamp_out(A, 0, sW)
    A('s_endpgm')
    return A.render().replace('L_end', 'k0_end')

K0_BYTES = 24576
REST_BYTES = 28672

def build(kernels, launches):
    out = ''
    for k, g, lds in launches:
        out += f'; @launch kernel={k}_kernel grid=({g},1,1) block=(256,1,1) lds={lds}\n'
    out += '.amdgcn_target "amdgcn-amd-amdhsa--gfx950"\n'
    descs = ''
    for name, body, vg, ag in kernels:
        t, d = kernel_text(name + '_kernel', body, vg, ag)
        if body is not None: out += t
        else: out += f'.globl {name}_kernel\n.type {name}_kernel,@function\n'
        descs += d
    out += '.text\n.p2align 8\ncode_end:\n.fill 768, 4, 0xbf800000\n' + descs
    return out

if __name__ == '__main__':
    import gen_rest
    gen_rest.main()
```

```python
import sys
sys.path.insert(0, 'dev')
from gen import *
import gen

NREP = int(os.environ.get('NREP', '16')); NSH = int(os.environ.get('NSH', '16')); PMASK = int(os.environ.get('PMASK', '1'))
NOD = set(os.environ.get('NOD', 'cb,cc,ca1').split(','))
F_PF1 = F_PF2 = None
LATE = int(os.environ.get('LATE', '0'))
F_CA = [FLAGS + 131072, FLAGS + 262144]
F_CC = FLAGS + 393216
F_CB = [FLAGS, FLAGS + 4096]
F_CD = FLAGS + 16384
F_CE = FLAGS + 20480
NAUX = 21
SPIN = 0x8000
ZSC = os.environ.get('ZSC', ' sc1'); HSC = os.environ.get('HSC', ' sc1'); WSC = os.environ.get('WSC', '')
CBG = int(os.environ.get('CBG', '2'))
MH = int(os.environ.get('MH', '3'))
LBK = int(os.environ.get('LBK', '8'))

L_RX = 57344
L_RED = 114688
L_COL = 131072
LDS_BYTES = 147456

lane, l15, g = 1, 3, 4
VL16, VL16X = 231, 230
WCV = 232
PR, PI = 190, 206
mgr, mgi, Lgr, Lgi, L4r, L4i, hd = range(222, 229)
sW, sAG0, sAG1, sO = 4, 8, 12, 16
wave, kh, wm, rt, sl, sim = 20, 21, 22, 23, 24, 25
s_m1, s_sk, s_wc = 26, 27, 58
st = 28
s_sk0, s_wc0, s_redo = 34, 35, 36
s_pf = 37
REDO = 256

NAMES = []
SKIP = int(os.environ.get('SSKIP', '0'))
_cnt = [0]
PROBE = os.environ.get('PROBE')
_pc = [0]
def pstamp(A, name):
    if PROBE:
        i, j = [int(x) for x in PROBE.split(',')]
        if _pc[0] == i: A('s_memrealtime s[60:61]')
        if _pc[0] == j: A('s_memrealtime s[62:63]')
        NAMES.append(name); _pc[0] += 1
        return
    if STAMPS != 1: return
    _cnt[0] += 1
    if _cnt[0] > 1 and _cnt[0] <= SKIP + 1: return
    if len(NAMES) >= 20: return
    A(f's_memrealtime {s(60+2*len(NAMES),2)}'); NAMES.append(name)

def capture(*fns):
    B = Asm()
    for f in fns: f(B)
    return [x[1].text for x in B.lines]

def wc_reg(k):
    return a(168 + 4 * k, 4) if k < 22 else v(WCV + 4 * (k - 22), 4)

def cmul(A, dr, di, ar, ai, br, bi):
    A(f'''v_mul_f32 {v(dr)}, {v(ar)}, {v(br)}
v_mul_f32 {v(di)}, {v(ar)}, {v(bi)}
v_fma_f32 {v(dr)}, -{v(ai)}, {v(bi)}, {v(dr)}
v_fmac_f32 {v(di)}, {v(ai)}, {v(br)}''')

def cfma(A, dr, di, ar, ai, br, bi):
    A(f'''v_fmac_f32 {v(dr)}, {v(ar)}, {v(br)}
v_fmac_f32 {v(di)}, {v(ar)}, {v(bi)}
v_fma_f32 {v(dr)}, -{v(ai)}, {v(bi)}, {v(dr)}
v_fmac_f32 {v(di)}, {v(ai)}, {v(br)}''')

def q_m1(A):
    for ks in range(14):
        for nt in range(2):
            i = 2 * ks + nt
            txt = f'buffer_load_dwordx4 {a(4*i,4)}, {v(VL16)}, {s(sW,4)}, {s(s_m1)} offen offset:{(i&3)*1024}'
            if (i & 3) == 3: txt += f'\ns_add_u32 {s(s_m1)}, {s(s_m1)}, 4096'
            A.bgq.append(('m1', txt))

def q_sk(A, sc):
    for ks in range(14):
        txt = f'buffer_load_dwordx4 {a(112+4*ks,4)}, {v(VL16)}, {s(sW,4)}, {s(s_sk)} offen offset:{(ks&3)*1024}{sc}'
        if (ks & 3) == 3: txt += f'\ns_add_u32 {s(s_sk)}, {s(s_sk)}, 4096'
        A.bgq.append(('sk', txt))

def q_wc(A, va, sc):
    for k in range(28):
        txt = f'buffer_load_dwordx4 {wc_reg(k)}, {v(va)}, {s(sW,4)}, {s(s_wc)} offen offset:{(k&3)*1024}{sc}'
        if (k & 3) == 3: txt += f'\ns_add_u32 {s(s_wc)}, {s(s_wc)}, 4096'
        A.bgq.append(('wc', txt))

XL = int(os.environ.get('XL', '0')); HST = os.environ.get('HST', ' sc1')
def signal(A, tag, addr_s, nrep=1, rstride=0, sc=' sc1', drain=True):
    if drain: A.wait_vm(tag)
    lab = A.label('sig')
    A(f's_barrier\ns_cmp_lg_u32 {s(wave)}, 0\ns_cbranch_scc1 {lab}')
    A.track = False
    A(f'''v_mov_b32 v5, 1
v_mul_u32_u24 v6, {rstride}, {v(lane)}
{exec_mask(nrep)}
buffer_atomic_add v5, v6, {s(sW,4)}, {s(addr_s)} offen{sc}
s_mov_b64 exec, -1''')
    A.track = True
    A(f'{lab}:')

def late(A, base, per_tile):
    if not LATE: return
    lab = A.label('late')
    tr = A.track; A.track = False
    if per_tile: A(f's_lshl_b32 s59, {s(rt)}, 7\ns_add_u32 s59, s59, {base}\nv_mov_b32 v7, 0')
    else: A(f's_and_b32 s59, s2, {NSH-1}\ns_lshl_b32 s59, s59, 7\ns_add_u32 s59, s59, {base}\nv_mul_u32_u24 v7, {NSH*128}, {v(lane)}')
    A(f'''s_cmp_lg_u32 {s(wave)}, 0
s_cbranch_scc1 {lab}_a
v_mov_b32 v2, 1
{exec_mask(1 if per_tile else NREP)}
buffer_atomic_add v2, v7, {s(sW,4)}, s59 offen sc1
s_mov_b64 exec, -1
{lab}_a:
s_add_u32 s59, s2, {s(wave)}
s_mul_i32 s59, s59, 37
s_and_b32 s59, s59, 7
s_cmp_lg_u32 s59, 3
s_cbranch_scc1 {lab}_b
s_mov_b32 s59, 0
{lab}_c:
s_add_u32 s59, s59, 1
s_cmp_lt_u32 s59, {LATE}
s_cbranch_scc1 {lab}_c
{lab}_b:''')
    A.track = tr

def signal16(A, tag, base, drain=True):
    if LATE and not drain:
        A('s_barrier'); return
    A(f's_and_b32 {s(st+1)}, s2, {NSH-1}\ns_lshl_b32 {s(st+1)}, {s(st+1)}, 7\ns_add_u32 {s(st+1)}, {s(st+1)}, {base}')
    signal(A, tag, st + 1, NREP, NSH * 128, drain=drain)

def poll_issue(A, setup):
    lab = A.label('pi')
    A(f's_cmp_lg_u32 {s(wave)}, 0\ns_cbranch_scc1 {lab}')
    A(setup)
    tr = A.track; A.track = False
    A(f'v_mov_b32 v7, 0\ns_mov_b64 exec, s[50:51]\nbuffer_atomic_or v7, v5, {s(sW,4)}, 0 offen sc0 sc1\ns_mov_b64 exec, -1\n{lab}:')
    A.track = tr

def poll_check(A, n, drain=False):
    lab = A.label('poll')
    A(f's_cmp_lg_u32 {s(wave)}, 0\ns_cbranch_scc1 {lab}_d')
    A.track = False
    A(f'''s_mov_b32 {s(st)}, 0
s_mov_b64 exec, s[50:51]
s_waitcnt vmcnt({n})
{lab}:
v_cmp_gt_u32 vcc, v6, v7
s_add_u32 {s(st)}, {s(st)}, 1
s_and_b64 exec, vcc, vcc
s_cbranch_scc0 {lab}_d
s_cmp_gt_u32 {s(st)}, {SPIN}
s_cbranch_scc1 {lab}_d
v_mov_b32 v7, 0
buffer_atomic_or v7, v5, {s(sW,4)}, 0 offen sc0 sc1
s_waitcnt vmcnt(0)
s_branch {lab}''')
    A.track = True
    A(f'{lab}_d:\ns_mov_b64 exec, -1')
    if drain: A.wait_vm(None)
    A('s_barrier')
    pstamp(A, 'polled')

def poll(A, setup, mid=None):
    pstamp(A, 'prepoll')
    poll_issue(A, setup)
    n0 = A.issued
    if mid: mid()
    poll_check(A, A.issued - n0)

def poll16(base, extra=None):
    t = f'''s_and_b32 {s(st)}, s2, {NREP-1}
s_mul_i32 {s(st+1)}, {s(st)}, {NSH*128}
s_add_u32 {s(st+1)}, {s(st+1)}, {base}
v_and_b32 v5, {NSH-1}, {v(lane)}
v_lshlrev_b32 v5, 7, v5
v_add_u32 v5, {s(st+1)}, v5
v_mov_b32 v6, {224//NSH}
s_mov_b32 s50, {((1 << (NSH + (1 if extra else 0))) - 1) & 0xffffffff}
s_mov_b32 s51, {((1 << (NSH + (1 if extra else 0))) - 1) >> 32}'''
    if extra: t += '\n' + poll_extra(*extra)
    return t

def poll_extra(base, target):
    return f'''s_lshl_b32 {s(st+1)}, {s(st)}, 7
s_add_u32 {s(st+1)}, {s(st+1)}, {base}
v_mov_b32 v7, {s(st+1)}
v_cmp_lt_u32 vcc, {NSH-1}, {v(lane)}
v_cndmask_b32 v5, v5, v7, vcc
v_cndmask_b32 v6, v6, {target}, vcc'''

def flag_lane(nl, base, target):
    return f'''s_and_b32 {s(st)}, s2, {NREP-1}
s_lshl_b32 {s(st)}, {s(st)}, 7
s_add_u32 {s(st)}, {s(st)}, {base}
s_sub_u32 {s(st)}, {s(st)}, {s(st+1)}
v_mov_b32 v7, {s(st)}
v_cmp_le_u32 vcc, {nl}, {v(lane)}
v_cndmask_b32 v5, v5, v7, vcc
v_cndmask_b32 v6, v6, {target+1}, vcc'''

def exec_mask(n):
    m = (1 << n) - 1
    return f's_mov_b32 exec_lo, {m & 0xffffffff}\ns_mov_b32 exec_hi, {m >> 32}'

def canary_issue(A, nl, soff):
    A(exec_mask(nl))
    A.t('can', f'buffer_load_dword v7, v5, {s(sW,4)}, {s(soff)} offen sc1')
    A('s_mov_b64 exec, -1')

def canary_wait(A, nl, soff):
    pstamp(A, 'prepoll')
    lab = A.label('can')
    A(exec_mask(nl))
    A(f's_mov_b32 {s(st)}, 0')
    A.wait_vm('can')
    A.track = False
    A(f'''{lab}:
v_add_u32 v7, 1, v7
v_cmp_gt_u32 vcc, v6, v7
s_add_u32 {s(st)}, {s(st)}, 1
s_and_b64 exec, vcc, vcc
s_cbranch_scc0 {lab}_d
s_cmp_gt_u32 {s(st)}, {SPIN}
s_cbranch_scc1 {lab}_d
buffer_load_dword v7, v5, {s(sW,4)}, {s(soff)} offen sc1
s_waitcnt vmcnt(0)
s_branch {lab}
{lab}_d:
s_mov_b64 exec, -1''')
    A.track = True
    pstamp(A, 'polled')

def redo_check(A, x, y, target):
    lab = A.label('ok')
    A(f'''v_cmp_u_f32 vcc, {v(x)}, {v(y)}
s_cbranch_vccz {lab}
s_add_u32 {s(s_redo)}, {s(s_redo)}, 1
s_cmp_gt_u32 {s(s_redo)}, {REDO}
s_cbranch_scc1 {lab}
s_waitcnt vmcnt(0) lgkmcnt(0)
s_barrier
s_branch {target}
{lab}:''')

PFV = 200
def q_prefill(A, which):
    def add(va, setup):
        A.bgq.append(('pf', setup + f'\nbuffer_store_dwordx4 {v(PFV,4)}, {v(va)}, {s(sW,4)}, {s(s_pf)} offen sc1'))
    if which in ('hb', 'hb2'):
        add(VL16, f'''s_lshl_b32 {s(s_pf)}, {s(sl)}, 2
s_add_u32 {s(s_pf)}, {s(s_pf)}, {s(wave)}
s_lshl_b32 {s(s_pf)}, {s(s_pf)}, 10
s_mul_i32 {s(s_pf+1)}, {s(rt)}, 114688
s_add_u32 {s(s_pf)}, {s(s_pf)}, {s(s_pf+1)}
s_add_u32 {s(s_pf)}, {s(s_pf)}, {HB if which == 'hb' else HB2}''')
        for i in range(3): add(VL16, f's_add_u32 {s(s_pf)}, {s(s_pf)}, 28672')
    if which == 'zc2':
        add(PFV + 4, f'''v_lshlrev_b32 {v(PFV+4)}, 13, {v(g)}
v_lshl_add_u32 {v(PFV+4)}, {v(l15)}, 4, {v(PFV+4)}
s_lshl_b32 {s(s_pf)}, {s(sl)}, 2
s_add_u32 {s(s_pf)}, {s(s_pf)}, {s(wave)}
s_lshl_b32 {s(s_pf)}, {s(s_pf)}, 16
s_lshl_b32 {s(s_pf+1)}, {s(rt)}, 8
s_add_u32 {s(s_pf)}, {s(s_pf)}, {s(s_pf+1)}
s_add_u32 {s(s_pf)}, {s(s_pf)}, {ZC2}''')
        add(PFV + 4, f's_add_u32 {s(s_pf)}, {s(s_pf)}, 32768')
        add(PFV + 4, f's_add_u32 {s(s_pf)}, {s(s_pf)}, {ZU2 - ZC2}')
        add(PFV + 4, f's_sub_u32 {s(s_pf)}, {s(s_pf)}, 32768')
        A.bgq.append(('pf', f'''s_lshl_b32 {s(s_pf)}, {s(rt)}, 3
s_add_u32 {s(s_pf)}, {s(s_pf)}, {s(sl)}
s_lshl_b32 {s(s_pf)}, {s(s_pf)}, 8
s_add_u32 {s(s_pf)}, {s(s_pf)}, {SSQP}
s_mov_b64 exec, 0xffff
buffer_store_dwordx4 {v(PFV,4)}, {v(VL16)}, {s(sW,4)}, {s(s_pf)} offen sc1
s_mov_b64 exec, -1'''))
    if which == 'zb3':
        add(189, f'''s_mul_i32 {s(s_pf)}, {s(wave)}, {8*57344}
s_lshl_b32 {s(s_pf+1)}, s2, 8
s_add_u32 {s(s_pf)}, {s(s_pf)}, {s(s_pf+1)}
s_add_u32 {s(s_pf)}, {s(s_pf)}, {ZB3}''')
        add(189, f's_add_u32 {s(s_pf)}, {s(s_pf)}, 128')

ZI, SQ, WW = 8, 16, 72
C64, S64, N64, C32, S32, N32, TC, TS = 80, 88, 96, 104, 112, 120, 128, 136
ZR, ZM = 144, 152
XA, DR, DI, BR, BI = 16, 48, 56, 64, 68
CT = 160

def col_tables1(A):
    T = CT; nf, ang, dl, gf = T, T + 1, T + 2, T + 3
    cs = T + 8
    A(f'''s_lshl_b32 {s(st)}, {s(wave)}, 4
v_add_u32 v7, {s(st)}, {v(l15)}
v_cvt_f32_u32 {v(nf)}, v7
v_cvt_f32_u32 {v(gf)}, {v(g)}
v_mul_f32 {v(dl)}, {f2u(1/64)}, {v(nf)}
v_mul_f32 {v(ang)}, 4.0, {v(gf)}
v_mul_f32 {v(ang)}, {v(ang)}, {v(dl)}
v_mul_f32 {v(T+4)}, {f2u(13.0)}, {v(dl)}''')
    for e in range(8):
        A(f'v_cos_f32 {v(cs+e)}, {v(ang)}\nv_sin_f32 {v(cs+8+e)}, {v(ang)}')
        if e < 7: A(f'v_add_f32 {v(ang)}, {v(ang)}, {v(T+4 if e == 3 else dl)}')
    A(f'v_and_b32 v7, 1, v7\nv_lshlrev_b32 v7, 15, v7\nv_lshl_or_b32 v7, v7, 16, v7')
    for i in range(4):
        A(f'v_cvt_pk_bf16_f32 {v(C64+i)}, {v(cs+2*i)}, {v(cs+2*i+1)}')
        A(f'v_cvt_pk_bf16_f32 {v(S64+i)}, {v(cs+8+2*i)}, {v(cs+9+2*i)}')
    for i in range(4):
        A(f'v_xor_b32 {v(C64+4+i)}, v7, {v(C64+i)}\nv_xor_b32 {v(S64+4+i)}, v7, {v(S64+i)}')
    for i in range(8):
        A(f'v_xor_b32 {v(N64+i)}, 0x80008000, {v(S64+i)}')

def col_tables2(A):
    T = CT; nf, ang, dl, gf = T, T + 1, T + 2, T + 3
    cs = T + 8
    for mu in range(2):
        A(f'''v_lshrrev_b32 v7, 2, {v(l15)}
v_lshlrev_b32 v7, 3, v7
v_and_or_b32 v7, {v(l15)}, 3, v7
v_add_u32 v7, {4*mu}, v7
v_cvt_f32_u32 {v(dl)}, v7
v_mul_f32 {v(dl)}, {f2u(1/32)}, {v(dl)}
v_mul_f32 {v(ang)}, {f2u(8.0)}, {v(gf)}
v_mul_f32 {v(ang)}, {v(ang)}, {v(dl)}''')
        for e in range(8):
            A(f'v_cos_f32 {v(cs+e)}, {v(ang)}\nv_sin_f32 {v(cs+8+e)}, {v(ang)}')
            if e < 7: A(f'v_add_f32 {v(ang)}, {v(ang)}, {v(dl)}')
            if e & 1: A.bg(1)
        for i in range(4):
            A(f'v_cvt_pk_bf16_f32 {v(C32+4*mu+i)}, {v(cs+2*i)}, {v(cs+2*i+1)}')
            A(f'v_cvt_pk_bf16_f32 {v(S32+4*mu+i)}, {v(cs+8+2*i)}, {v(cs+9+2*i)}')
    for i in range(8):
        A(f'v_xor_b32 {v(N32+i)}, 0x80008000, {v(S32+i)}')
    A(f'''v_mul_f32 {v(dl)}, {f2u(1/2048)}, {v(nf)}
v_mul_f32 {v(ang)}, {f2u(8.0)}, {v(gf)}
v_mul_f32 {v(ang)}, {v(ang)}, {v(dl)}''')
    for e in range(8):
        A(f'v_cos_f32 {v(TC+e)}, {v(ang)}\nv_sin_f32 {v(TS+e)}, {v(ang)}')
        if e < 7: A(f'v_add_f32 {v(ang)}, {v(ang)}, {v(dl)}')
        if e & 1: A.bg(1)
    wa0, wa1, wb, ra0, ra1, t1, t2, oa = 184, 185, 186, 187, 188, T + 2, T + 5, 189
    A(f'''v_bfe_u32 {v(t1)}, {v(l15)}, 1, 2
s_lshl_b32 {s(st)}, {s(wave)}, 10
s_add_u32 {s(st)}, {s(st)}, {L_COL}
v_lshlrev_b32 {v(t2)}, 6, {v(l15)}
v_add_u32 {v(t2)}, {s(st)}, {v(t2)}
v_xor_b32 {v(wb)}, {v(g)}, {v(t1)}
v_lshl_add_u32 {v(wb)}, {v(wb)}, 4, {v(t2)}
v_and_b32 {v(wa0)}, 1, {v(g)}
v_lshlrev_b32 {v(wa0)}, 1, {v(wa0)}
v_xor_b32 {v(wa0)}, {v(wa0)}, {v(t1)}
v_lshl_add_u32 {v(wa0)}, {v(wa0)}, 4, {v(t2)}
v_lshrrev_b32 {v(t1)}, 1, {v(g)}
v_lshl_add_u32 {v(wa0)}, {v(t1)}, 3, {v(wa0)}
v_xor_b32 {v(wa1)}, 16, {v(wa0)}
v_lshrrev_b32 {v(t1)}, 2, {v(lane)}
v_lshlrev_b32 {v(ra0)}, 6, {v(t1)}
v_bfe_u32 {v(t1)}, {v(lane)}, 3, 2
v_bfe_u32 {v(t2)}, {v(lane)}, 1, 1
v_xor_b32 {v(t1)}, {v(t1)}, {v(t2)}
v_lshl_add_u32 {v(ra0)}, {v(t1)}, 4, {v(ra0)}
v_and_b32 {v(t1)}, 1, {v(lane)}
v_lshl_add_u32 {v(ra0)}, {v(t1)}, 3, {v(ra0)}
v_add_u32 {v(ra0)}, {L_COL}, {v(ra0)}
v_xor_b32 {v(ra1)}, 32, {v(ra0)}
v_lshrrev_b32 {v(t1)}, 1, {v(l15)}
v_mul_u32_u24 {v(t1)}, 57344, {v(t1)}
v_and_b32 {v(t2)}, 1, {v(l15)}
v_lshl_add_u32 {v(t2)}, {v(g)}, 1, {v(t2)}
s_and_b32 {s(st)}, s2, 3
s_lshl_b32 {s(st)}, {s(st)}, 1
v_xor_b32 {v(t2)}, {s(st)}, {v(t2)}
v_lshl_add_u32 {v(oa)}, {v(t2)}, 4, {v(t1)}''')

def col_loads(A, zc, ssq, sc):
    A(f'''v_lshlrev_b32 v5, 7, {v(l15)}
v_lshl_add_u32 v5, {v(g)}, 4, v5
s_lshl_b32 {s(st)}, {s(wave)}, 11
v_add_u32 v5, {s(st)}, v5
s_lshl_b32 {s(st+1)}, s2, 13
s_add_u32 {s(st+1)}, {s(st+1)}, {zc}
s_mov_b32 {s(st)}, {ssq}''')
    A.t('q', f'buffer_load_dwordx4 {v(SQ,4)}, v5, {s(sW,4)}, {s(st)} offen{sc}')
    A.t('q', f'buffer_load_dwordx4 {v(SQ+4,4)}, v5, {s(sW,4)}, {s(st)} offen offset:64{sc}')
    A.t('z', f'buffer_load_dwordx4 {v(ZI,4)}, v5, {s(sW,4)}, {s(st+1)} offen{ZSC}')
    A.t('z', f'buffer_load_dwordx4 {v(ZI+4,4)}, v5, {s(sW,4)}, {s(st+1)} offen offset:64{ZSC}')

def col_poll(A, zc, ssq, mid=None, val=False):
    if not val:
        A.t('q', f'buffer_load_dwordx4 {v(SQ,4)}, v5, {s(sW,4)}, {s(st+2)} offen sc1')
        A.t('q', f'buffer_load_dwordx4 {v(SQ+4,4)}, v5, {s(sW,4)}, {s(st+2)} offen offset:64 sc1')
        A.t('z', f'buffer_load_dwordx4 {v(ZI,4)}, v5, {s(sW,4)}, {s(st+1)} offen sc1')
        A.t('z', f'buffer_load_dwordx4 {v(ZI+4,4)}, v5, {s(sW,4)}, {s(st+1)} offen offset:64 sc1')
        if mid: mid()
        A.wait_vm('q')
        for i in range(8): A(f'v_fma_f32 {v(SQ+i)}, {v(SQ+i)}, {s(st+4)}, {v(CT+2)}')
        for i in range(8): A(f'v_rsq_f32 {v(SQ+i)}, {v(SQ+i)}')
        return
    lab = A.label('cp')
    A.track = False
    A(f'''{lab}:
buffer_load_dwordx4 {v(SQ,4)}, v5, {s(sW,4)}, {s(st+2)} offen sc1
buffer_load_dwordx4 {v(SQ+4,4)}, v5, {s(sW,4)}, {s(st+2)} offen offset:64 sc1
buffer_load_dwordx4 {v(ZI,4)}, v5, {s(sW,4)}, {s(st+1)} offen sc1
buffer_load_dwordx4 {v(ZI+4,4)}, v5, {s(sW,4)}, {s(st+1)} offen offset:64 sc1
s_add_u32 {s(st)}, {s(st)}, 1
s_waitcnt vmcnt(2)
v_min3_u32 v7, {v(SQ)}, {v(SQ+1)}, {v(SQ+2)}
v_min3_u32 v6, {v(SQ+3)}, {v(SQ+4)}, {v(SQ+5)}
v_min3_u32 v7, v7, {v(SQ+6)}, {v(SQ+7)}
v_min_u32 v7, v7, v6
v_cmp_gt_u32 s[50:51], {s(st+3)}, v7''')
    for i in range(8):
        A(f'v_lshlrev_b32 {v(SQ+i)}, 16, {v(SQ+i)}\nv_fma_f32 {v(SQ+i)}, {v(SQ+i)}, {s(st+4)}, {v(CT+2)}')
    for i in range(8):
        A(f'v_rsq_f32 {v(SQ+i)}, {v(SQ+i)}')
    A(f'''s_waitcnt vmcnt(0)
v_max3_u32 v7, {v(ZI)}, {v(ZI+1)}, {v(ZI+2)}
v_max3_u32 v6, {v(ZI+3)}, {v(ZI+4)}, {v(ZI+5)}
v_max3_u32 v7, v7, {v(ZI+6)}, {v(ZI+7)}
v_max_u32 v7, v7, v6
v_cmp_eq_u32 vcc, -1, v7
s_or_b64 vcc, vcc, s[50:51]
s_and_b64 exec, vcc, vcc
s_cbranch_scc0 {lab}_d
s_cmp_le_u32 {s(st)}, {SPIN}
s_cbranch_scc1 {lab}
{lab}_d:
s_mov_b64 exec, -1''')
    A.track = True
    A.vm = []

def col_poll_pre(zc, ssq):
    return f'''v_lshlrev_b32 v5, 7, {v(l15)}
v_lshl_add_u32 v5, {v(g)}, 4, v5
s_lshl_b32 {s(st)}, {s(wave)}, 11
v_add_u32 v5, {s(st)}, v5
s_lshl_b32 {s(st+1)}, s2, 13
s_add_u32 {s(st+1)}, {s(st+1)}, {zc}
s_mov_b32 {s(st+2)}, {ssq}
s_mov_b32 {s(st+3)}, 0x40e00000
s_mov_b32 {s(st+4)}, {f2u(2048.0*2048.0/448)}
v_mov_b32 {v(CT+2)}, {f2u(1e-5*2048.0*2048.0)}
s_mov_b32 {s(st)}, 0'''

def col_wload(A, r=st + 2, WW=WW):
    A(f'''s_lshl_b32 {s(r)}, s2, 2
s_add_u32 {s(r)}, {s(r)}, {s(wave)}
s_lshl_b32 {s(r)}, {s(r)}, 11
s_add_u32 {s(r)}, {s(r)}, {WF}''')
    A.t('w', f'buffer_load_dwordx4 {v(WW,4)}, {v(VL16)}, {s(sW,4)}, {s(r)} offen')
    A.t('w', f'buffer_load_dwordx4 {v(WW+4,4)}, {v(VL16)}, {s(sW,4)}, {s(r)} offen offset:1024')

def col_compute(A, zb, raw, hook=None, WW=WW):
    T = CT
    wa0, wa1, wb, ra0, ra1, t1, oa = 184, 185, 186, 187, 188, T + 2, 189
    def unpack():
        for i in range(8):
            A(f'v_lshlrev_b32 {v(ZR+i)}, 16, {v(ZI+i)}\nv_and_b32 {v(ZM+i)}, 0xffff0000, {v(ZI+i)}')
    A.wait_vm('z')
    pstamp(A, 'coldata')
    unpack()
    for i in range(0, 8, 2):
        A(f'v_pk_mul_f32 {v(SQ+8+i,2)}, {v(SQ+i,2)}, {v(ZR+i,2)}\nv_pk_mul_f32 {v(SQ+16+i,2)}, {v(SQ+i,2)}, {v(ZM+i,2)}')
    for i in range(4):
        A(f'v_cvt_pk_bf16_f32 {v(BR+i)}, {v(SQ+8+2*i)}, {v(SQ+9+2*i)}\nv_cvt_pk_bf16_f32 {v(BI+i)}, {v(SQ+16+2*i)}, {v(SQ+17+2*i)}')
    lab = A.label('nz')
    A(f's_cmp_lg_u32 s2, 0\ns_cbranch_scc1 {lab}')
    for i in range(4): A(f'v_mov_b32 {v(BI+i)}, 0')
    A(f'{lab}:')
    A(f'''ds_write_b64 {v(wa0)}, {v(BR,2)}
ds_write_b64 {v(wa1)}, {v(BR+2,2)}
ds_write_b64 {v(wa0)}, {v(BI,2)} offset:4096
ds_write_b64 {v(wa1)}, {v(BI+2,2)} offset:4096''')
    A.bg(CBG)
    A('s_waitcnt lgkmcnt(0)\ns_barrier')
    def big_stage(base, tab_ri, tab_ir):
        def xa(pl, mu, ks): return XA + 4 * (ks * 4 + pl * 2 + mu)
        for ks in range(2):
            for pl in range(2):
                for mu in range(2):
                    for hf in range(2):
                        A(f'ds_read_b64_tr_b16 {v(xa(pl,mu,ks)+2*hf,2)}, {v(ra0+mu)} offset:{base+pl*4096+ks*2048+hf*1024}')
        A.bg(CBG)
        for ks in range(2):
            A(f's_waitcnt lgkmcnt({12-8*ks})')
            for mu in range(2):
                c = v(DR + 4 * mu, 4) if ks else '0'
                A(f'v_mfma_f32_16x16x32_bf16 {v(DR+4*mu,4)}, {v(xa(0,mu,ks),4)}, {v(C64+4*ks,4)}, {c}')
                c = v(DI + 4 * mu, 4) if ks else '0'
                A(f'v_mfma_f32_16x16x32_bf16 {v(DI+4*mu,4)}, {v(xa(0,mu,ks),4)}, {v(tab_ri+4*ks,4)}, {c}')
            A(f's_waitcnt lgkmcnt({8-8*ks})')
            for mu in range(2):
                A(f'v_mfma_f32_16x16x32_bf16 {v(DR+4*mu,4)}, {v(xa(1,mu,ks),4)}, {v(tab_ir+4*ks,4)}, {v(DR+4*mu,4)}')
                A(f'v_mfma_f32_16x16x32_bf16 {v(DI+4*mu,4)}, {v(xa(1,mu,ks),4)}, {v(C64+4*ks,4)}, {v(DI+4*mu,4)}')
    def small_stage(tab_ri, tab_ir):
        for mu in range(2):
            A(f'v_mfma_f32_16x16x32_bf16 {v(DR+4*mu,4)}, {v(C32+4*mu,4)}, {v(BR,4)}, 0')
            A(f'v_mfma_f32_16x16x32_bf16 {v(DI+4*mu,4)}, {v(C32+4*mu,4)}, {v(BI,4)}, 0')
        for mu in range(2):
            A(f'v_mfma_f32_16x16x32_bf16 {v(DR+4*mu,4)}, {v(tab_ir+4*mu,4)}, {v(BI,4)}, {v(DR+4*mu,4)}')
            A(f'v_mfma_f32_16x16x32_bf16 {v(DI+4*mu,4)}, {v(tab_ri+4*mu,4)}, {v(BR,4)}, {v(DI+4*mu,4)}')
        A.bg(CBG)
    U = T + 8
    def rot(cr, ci, sign):
        n1, n2 = ('[1,0,0]', '[0,0,0]') if sign > 0 else ('[0,0,0]', '[1,0,0]')
        for e in range(0, 8, 2):
            A(f'''v_pk_mul_f32 {v(U+e,2)}, {v(DR+e,2)}, {v(cr+e,2)}
v_pk_mul_f32 {v(U+8+e,2)}, {v(DI+e,2)}, {v(cr+e,2)}''')
        for e in range(0, 8, 2):
            A(f'''v_pk_fma_f32 {v(U+e,2)}, {v(DI+e,2)}, {v(ci+e,2)}, {v(U+e,2)} neg_lo:{n1} neg_hi:{n1}
v_pk_fma_f32 {v(U+8+e,2)}, {v(DR+e,2)}, {v(ci+e,2)}, {v(U+8+e,2)} neg_lo:{n2} neg_hi:{n2}''')
        A.bg(CBG)
        for e in range(0, 8, 2):
            A(f'v_cvt_pk_bf16_f32 {v(BR+e//2)}, {v(U+e)}, {v(U+e+1)}\nv_cvt_pk_bf16_f32 {v(BI+e//2)}, {v(U+8+e)}, {v(U+9+e)}')
    WR, WI = 8, 176
    if hook: hook(0)
    big_stage(0, N64, S64)
    rot(TC, TS, -1)
    small_stage(N32, S32)
    WR, WI = XA, XA + 8
    A.wait_vm('w')
    if hook: hook(1)
    for i in range(4):
        A(f'''v_lshlrev_b32 {v(WR+2*i)}, 16, {v(WW+i)}
v_and_b32 {v(WR+2*i+1)}, 0xffff0000, {v(WW+i)}
v_lshlrev_b32 {v(WI+2*i)}, 16, {v(WW+4+i)}
v_and_b32 {v(WI+2*i+1)}, 0xffff0000, {v(WW+4+i)}''')
    rot(WR, WI, 1)
    if hook: hook(2)
    small_stage(S32, N32)
    rot(TC, TS, 1)
    if hook: hook(3)
    A(f'''ds_write_b128 {v(wb)}, {v(BR,4)} offset:8192
ds_write_b128 {v(wb)}, {v(BI,4)} offset:12288
s_mul_i32 {s(st)}, {s(wave)}, {8*57344}
s_lshl_b32 {s(st+1)}, s2, 8
s_add_u32 {s(st)}, {s(st)}, {s(st+1)}
s_add_u32 {s(st)}, {s(st)}, {zb}''')
    A.bg(CBG)
    A('s_waitcnt lgkmcnt(0)\ns_barrier')
    big_stage(8192, S64, N64)
    if hook: hook(4)
    for e in range(8):
        A(f'v_add_f32 {v(ZR+e)}, {v(ZR+e)}, {v(DR+e)}\nv_fma_f32 {v(ZM+e)}, {v(DI+e)}, {s(sim)}, {v(ZM+e)}')
    for i in range(4):
        A(f'v_cvt_pk_bf16_f32 {v(BR+i)}, {v(ZR+2*i)}, {v(ZR+2*i+1)}\nv_cvt_pk_bf16_f32 {v(BI+i)}, {v(ZM+2*i)}, {v(ZM+2*i+1)}')
    assert not [x for x in A.bgq if x[0] == 'pf']
    A.wait_vm('pf')
    if zb == ZB3 and 'ca1' in NOD: late(A, F_CA[1], False)
    A.t('st', f'buffer_store_dwordx4 {v(BR,4)}, {v(oa)}, {s(sW,4)}, {s(st)} offen sc1')
    A.t('st', f'buffer_store_dwordx4 {v(BI,4)}, {v(oa)}, {s(sW,4)}, {s(st)} offen offset:128 sc1')

def lam_tables(A, lre, lim, ldt, T):
    t1, t2 = T, T + 1
    lam_calc(A, lre, lim, ldt, PR, PI, t1, t2)
    A(f'v_lshlrev_b32 {v(hd)}, 16, {v(hd)}\nv_mul_f32 {v(hd)}, 0.5, {v(hd)}')
    for t in range(1, 16):
        x, y = (t - 1) // 2, t - 1 - (t - 1) // 2
        cmul(A, PR + t, PI + t, PR + x, PI + x, PR + y, PI + y)
    m1r, m1i = PR + 15, PI + 15
    m2r, m2i, m3r, m3i, L1r, L1i, L2r, L2i, L3r, L3i = range(T + 2, T + 12)
    cmul(A, m2r, m2i, m1r, m1i, m1r, m1i)
    cmul(A, m3r, m3i, m2r, m2i, m1r, m1i)
    cmul(A, L1r, L1i, m2r, m2i, m2r, m2i)
    cmul(A, L2r, L2i, L1r, L1i, L1r, L1i)
    cmul(A, L3r, L3i, L2r, L2i, L1r, L1i)
    cmul(A, L4r, L4i, L2r, L2i, L2r, L2i)
    sel4(A, mgr, '1.0', m1r, m2r, m3r); sel4(A, mgi, '0', m1i, m2i, m3i)
    sel4(A, Lgr, '1.0', L1r, L2r, L3r); sel4(A, Lgi, '0', L1i, L2i, L3i)

def sel4(A, d, c0, x1, x2, x3):
    A(f'''v_cndmask_b32 {v(d)}, {c0}, {v(x1)}, s[44:45]
v_cndmask_b32 {v(d)}, {v(d)}, {v(x2)}, s[46:47]
v_cndmask_b32 {v(d)}, {v(d)}, {v(x3)}, s[48:49]''')

AR, AI, AS, GR, FA, RA, R2, MM, LB = 8, 24, 40, 56, 60, 100, 106, 122, 138
cgr, cgi = 154, 155
ST = 156

def scan_pre(A):
    t1 = ST
    A(f'''v_lshrrev_b32 {v(t1)}, 2, {v(lane)}
v_lshlrev_b32 {v(RA)}, 7, {v(t1)}
v_bfe_u32 {v(t1)}, {v(lane)}, 3, 2
v_lshl_add_u32 {v(RA)}, {v(t1)}, 5, {v(RA)}
v_and_b32 {v(t1)}, 3, {v(lane)}
v_lshl_add_u32 {v(RA)}, {v(t1)}, 3, {v(RA)}
v_xor_b32 {v(RA+1)}, 32, {v(RA)}
v_xor_b32 {v(RA+2)}, 64, {v(RA)}
v_xor_b32 {v(RA+3)}, 0x60, {v(RA)}
s_lshl_b32 {s(st+1)}, {s(wave)}, 5
v_xor_b32 {v(RA+4)}, {s(st+1)}, {v(RA)}''')

def scan_canary(A, zb, flag):
    A(f'''v_lshrrev_b32 v5, 2, {v(lane)}
v_lshlrev_b32 v5, 12, v5
v_and_b32 v6, 3, {v(lane)}
v_lshl_add_u32 v5, v6, 8, v5
v_add_u32 v5, 252, v5
v_mov_b32 v6, 1
s_lshl_b32 {s(st)}, {s(wave)}, 10
s_mul_i32 {s(st+1)}, {s(rt)}, 57344
s_add_u32 {s(st+1)}, {s(st+1)}, {s(st)}
s_add_u32 {s(st+1)}, {s(st+1)}, {zb}''')
    if flag: A(flag_lane(56, *flag))
    A(f's_mov_b32 {s(s_pf)}, {s(st+1)}')
    canary_issue(A, 57 if flag else 56, s_pf)

def scan_phase(A, lay, zb, hb, sAG, hook=None):
    T = ST; t1, t2 = T + 3, T + 4
    sz = st + 2
    A(f's_mov_b32 {s(s_sk0)}, {s(s_sk)}\ns_mov_b32 {s(s_wc0)}, {s(s_wc)}')
    A(f'SC_redo{lay}:\ns_mov_b32 {s(s_sk)}, {s(s_sk0)}\ns_mov_b32 {s(s_wc)}, {s(s_wc0)}')
    A(f'''s_lshl_b32 {s(st+1)}, {s(wave)}, 10
s_mov_b32 m0, {s(st+1)}
s_mul_i32 {s(sz)}, {s(rt)}, 57344
s_add_u32 {s(sz)}, {s(sz)}, {s(st+1)}
s_add_u32 {s(sz)}, {s(sz)}, {zb}''')
    starts = [0, 2, 4, 9]
    grp = lambda ks: max(i for i, x in enumerate(starts) if x <= ks)
    for ks in range(14):
        A.t(f'z{grp(ks)}', f'buffer_load_dwordx4 {v(VL16)}, {s(sW,4)}, {s(sz)} offen{ZSC} lds')
        if ks < 13: A(f's_add_u32 m0, m0, 4096\ns_add_u32 {s(sz)}, {s(sz)}, 4096')
    if hook: hook(-1)
    def rd1(ks, mt, hf):
        A(f'ds_read_b64_tr_b16 {v(FA+20*(ks&1)+4*mt+2*hf,2)}, {v(RA+mt)} offset:{ks*4096+hf*2048}')
    A.wait_vm('z0')
    A('s_barrier')
    pstamp(A, 'grp0')
    for mt in range(5):
        rd1(0, mt, 0); rd1(0, mt, 1)
    for ks in range(14):
        nxt = ks + 1 < 14
        if hook: hook(ks)
        if ks + 1 in starts:
            A.wait_vm(f'z{grp(ks+1)}'); A('s_barrier')
        b = FA + 20 * (ks & 1)
        for mt in range(4):
            A(f's_waitcnt lgkmcnt({8 if nxt else 8-2*mt})')
            c = v(AR + 4 * mt, 4) if ks else '0'
            A(f'v_mfma_f32_16x16x32_bf16 {v(AR+4*mt,4)}, {v(b+4*mt,4)}, {a(8*ks,4)}, {c}')
            if nxt: rd1(ks + 1, mt, 0)
            c = v(AI + 4 * mt, 4) if ks else '0'
            A(f'v_mfma_f32_16x16x32_bf16 {v(AI+4*mt,4)}, {v(b+4*mt,4)}, {a(8*ks+4,4)}, {c}')
            if nxt: rd1(ks + 1, mt, 1)
            if ks >= 6 and (mt & 1): A.bg(1)
        A(f's_waitcnt lgkmcnt({8 if nxt else 0})')
        c = v(GR, 4) if ks else '0'
        A(f'v_mfma_f32_16x16x32_bf16 {v(GR,4)}, {v(b+16,4)}, {v(b+16,4)}, {c}')
        if nxt:
            rd1(ks + 1, 4, 0); rd1(ks + 1, 4, 1)
    pstamp(A, 'loopend')
    dc, sq, ad = T, T + 1, T + 2
    A(f'''v_and_b32 {v(t1)}, 3, {v(lane)}
v_lshlrev_b32 {v(ad)}, 3, {v(g)}
v_lshl_add_u32 {v(ad)}, {v(t1)}, 1, {v(ad)}
s_lshl_b32 {s(st)}, {s(wave)}, 5
v_add_u32 {v(ad)}, {s(st)}, {v(ad)}
ds_read_u16 {v(dc)}, {v(ad)} offset:128
v_cmp_eq_u32 s[50:51], 1, {v(t1)}
v_cmp_eq_u32 s[52:53], 2, {v(t1)}
v_cmp_eq_u32 s[54:55], 3, {v(t1)}
v_lshlrev_b32 {v(ad)}, 6, {v(g)}
v_lshl_add_u32 {v(ad)}, {v(t1)}, 2, {v(ad)}
s_lshl_b32 {s(st)}, {s(wave)}, 4
v_add_u32 {v(ad)}, {s(st)}, {v(ad)}
v_lshrrev_b32 {v(t2)}, 2, {v(l15)}
v_cmp_eq_u32 vcc, {v(t2)}, {v(g)}
v_cndmask_b32 {v(sq)}, {v(GR)}, {v(GR+1)}, s[50:51]
v_cndmask_b32 {v(sq)}, {v(sq)}, {v(GR+2)}, s[52:53]
v_cndmask_b32 {v(sq)}, {v(sq)}, {v(GR+3)}, s[54:55]
s_waitcnt lgkmcnt(0)
v_lshlrev_b32 {v(dc)}, 16, {v(dc)}
v_fma_f32 {v(sq)}, -{v(dc)}, {v(dc)}, {v(sq)}
v_max_f32 {v(sq)}, 0, {v(sq)}
v_mov_b32 {v(t2)}, {f2u(0.25e-5)}
v_fmac_f32 {v(t2)}, {f2u(0.25/448)}, {v(sq)}
v_rsq_f32 {v(t2)}, {v(t2)}
v_mul_f32 {v(dc)}, {f2u(math.sqrt(1.0/448))}, {v(dc)}
s_and_saveexec_b64 s[56:57], vcc
ds_write2st64_b32 {v(ad)}, {v(t2)}, {v(dc)} offset0:{L_RX//256} offset1:{L_RX//256+1}
s_mov_b64 exec, s[56:57]
v_lshlrev_b32 {v(ad)}, 6, {v(g)}
s_waitcnt lgkmcnt(0)
s_barrier''')
    for i in range(4):
        A(f'ds_read_b128 {v(R2+4*i,4)}, {v(ad)} offset:{L_RX+16*i}')
    if lay:
        for i in range(4):
            A(f'ds_read_b128 {v(MM+4*i,4)}, {v(ad)} offset:{L_RX+256+16*i}')
    for i in range(4):
        A(f's_waitcnt lgkmcnt({(7 if lay else 3)-i})')
        for e in range(0, 4, 2):
            t = 4 * i + e
            A(f'v_pk_mul_f32 {v(AR+t,2)}, {v(AR+t,2)}, {v(R2+t,2)}\nv_pk_mul_f32 {v(AI+t,2)}, {v(AI+t,2)}, {v(R2+t,2)}')
        for e in range(4):
            t = 4 * i + e
            if t: cfma(A, AR + t, AI + t, PR, PI, AR + t - 1, AI + t - 1)
        A.bg(1)
    m1r, m1i = PR + 15, PI + 15
    e0r, e1r, e2r, e3r, e0i, e1i, e2i, e3i = T, T + 1, T + 2, T + 8, T + 4, T + 5, T + 6, T + 9
    for (x0, x1, src) in ((e0r, e1r, AR + 15), (e0i, e1i, AI + 15)):
        A(f'v_mov_b32 {v(x0)}, {v(src)}\nv_mov_b32 {v(x1)}, {v(src)}')
    pa = T + 10
    sag = st + 5
    A(f'''s_lshl_b32 {s(st)}, {s(sl)}, 2
s_add_u32 {s(st)}, {s(st)}, {s(wave)}
s_lshl_b32 {s(st)}, {s(st)}, 7
s_mul_i32 {s(sag)}, {s(rt)}, 3584
s_add_u32 {s(sag)}, {s(sag)}, {s(st)}''')
    A(f'v_permlane16_swap_b32 {v(e0r)}, {v(e1r)}\nv_permlane16_swap_b32 {v(e0i)}, {v(e1i)}')
    A(f'v_mov_b32 {v(e2r)}, {v(e0r)}\nv_mov_b32 {v(e3r)}, {v(e1r)}\nv_mov_b32 {v(e2i)}, {v(e0i)}\nv_mov_b32 {v(e3i)}, {v(e1i)}')
    A(f'v_lshlrev_b32 {v(pa)}, 3, {v(l15)}')
    A(f'v_permlane32_swap_b32 {v(e0r)}, {v(e2r)}\nv_permlane32_swap_b32 {v(e1r)}, {v(e3r)}')
    A(f'v_permlane32_swap_b32 {v(e0i)}, {v(e2i)}\nv_permlane32_swap_b32 {v(e1i)}, {v(e3i)}')
    cfma(A, e1r, e1i, m1r, m1i, e0r, e0i)
    cfma(A, e2r, e2i, m1r, m1i, e1r, e1i)
    cfma(A, e3r, e3i, m1r, m1i, e2r, e2i)
    if lay and 'ca1' in NOD: redo_check(A, e3r, e3i, f'SC_redo{lay}')
    A('s_mov_b64 exec, 0xffff')
    A.t('pub', f'buffer_store_dwordx2 {v(e3r,2)}, {v(pa)}, {s(sAG,4)}, {s(sag)} offen sc1')
    A('s_mov_b64 exec, -1')
    pstamp(A, 'pub')
    if hook: hook(100)
    sel4(A, cgr, '0', e0r, e1r, e2r); sel4(A, cgi, '0', e0i, e1i, e2i)
    LA = T + 12
    A(f'''v_mul_u32_u24 {v(t1)}, 3584, {v(g)}
v_sub_u32 {v(LA)}, {v(pa)}, {v(t1)}
s_sub_u32 {s(sag)}, {s(sag)}, 3584
v_add_u32 {v(LA)}, {s(sag)}, {v(LA)}''')
    for i in range(1, 8):
        A(f'v_subrev_u32 {v(LA+i)}, {4*3584*i}, {v(LA)}')
    def lb_issue():
        for i in range(8):
            A.t('lb', f'buffer_load_dwordx2 {v(LB+2*i,2)}, {v(LA+i)}, {s(sAG,4)}, 0 offen sc1')
    while [x for x in A.bgq if x[0] == 'sk']: A.bg(1)
    A.wait_vm('sk')
    for mt in range(4):
        rd1(0, mt, 0); rd1(0, mt, 1)
    for ks in range(14):
        nxt = ks + 1 < 14
        b = FA + 20 * (ks & 1)
        for mt in range(4):
            A(f's_waitcnt lgkmcnt({6 if nxt else 6-2*mt})')
            c = v(AS + 4 * mt, 4) if ks else '0'
            A(f'v_mfma_f32_16x16x32_bf16 {v(AS+4*mt,4)}, {v(b+4*mt,4)}, {a(112+4*ks,4)}, {c}')
            if nxt:
                rd1(ks + 1, mt, 0); rd1(ks + 1, mt, 1)
        if ks == LBK: lb_issue()
        else: A.bg(1)
    pstamp(A, 'skipend')
    zt = FA
    if lay == 0:
        A(f'''s_lshl_b32 {s(st)}, {s(sl)}, 2
s_add_u32 {s(st)}, {s(st)}, {s(wave)}
s_lshl_b32 {s(st)}, {s(st)}, 11
v_lshlrev_b32 {v(t1)}, 7, {v(l15)}
v_add_u32 {v(t1)}, {s(st)}, {v(t1)}
v_bfe_u32 {v(t2)}, {v(l15)}, 1, 2
v_lshl_add_u32 {v(t1)}, {v(t2)}, 5, {v(t1)}
v_lshl_add_u32 {v(t1)}, {v(g)}, 3, {v(t1)}''')
        for mt in range(4):
            if mt: A(f'v_xor_b32 {v(t2)}, {32*mt}, {v(t1)}')
            A(f'ds_read_b64 {v(zt+2*mt,2)}, {v(t2 if mt else t1)}')
        A(f'''v_lshlrev_b32 {v(t1)}, 12, {v(g)}
v_lshl_add_u32 {v(t1)}, {v(l15)}, 2, {v(t1)}
s_lshl_b32 {s(st)}, {s(wave)}, 6
s_add_u32 {s(st)}, {s(st)}, {L_RED}
v_add_u32 {v(t1)}, {s(st)}, {v(t1)}
s_waitcnt lgkmcnt(0)''')
        for t in range(16):
            d = zt + 8 + t
            src = zt + t // 2
            A(f'v_and_b32 {v(d)}, 0xffff0000, {v(src)}' if t & 1 else f'v_lshlrev_b32 {v(d)}, 16, {v(src)}')
            A(f'v_fmac_f32 {v(d)}, {v(R2+t)}, {v(AS+t)}')
            if t: A(f'v_xor_b32 {v(t2)}, {16*t}, {v(t1)}')
            A(f'ds_write_b32 {v(t2 if t else t1)}, {v(d)} offset:{256*t}')
            if (t & 3) == 1: A.bg(1)
    else:
        A(f'''v_lshlrev_b32 {v(t1)}, 2, {v(g)}
v_xor_b32 {v(t1)}, {v(t1)}, {v(l15)}
v_lshlrev_b32 {v(t1)}, 4, {v(t1)}
v_lshl_add_u32 {v(t1)}, {v(l15)}, 8, {v(t1)}
s_lshl_b32 {s(st)}, {s(wave)}, 12
s_add_u32 {s(st)}, {s(st)}, {L_RED}
v_add_u32 {v(t1)}, {s(st)}, {v(t1)}''')
        for t in range(16):
            A(f'''v_sub_f32 {v(MM+t)}, {v(AS+t)}, {v(MM+t)}
v_mul_f32 {v(R2+t)}, {v(R2+t)}, {v(hd)}
v_fmac_f32 {v(AS+t)}, {v(R2+t)}, {v(MM+t)}''')
            if (t & 3) == 3:
                mt = t // 4
                if mt: A(f'v_xor_b32 {v(t2)}, {16*mt}, {v(t1)}')
                A(f'ds_write_b128 {v(t2 if mt else t1)}, {v(AS+t-3,4)}')
                A.bg(1)
    ha = T + 4
    xr, xi = T + 2, T + 3
    A(f'''v_lshlrev_b32 {v(ha)}, 6, {v(l15)}
v_lshl_add_u32 {v(ha)}, {v(g)}, 4, {v(ha)}
s_lshl_b32 {s(st+1)}, {s(sl)}, 2
s_add_u32 {s(st+1)}, {s(st+1)}, {s(wave)}
s_lshl_b32 {s(st+1)}, {s(st+1)}, 10
s_mul_i32 {s(st+2)}, {s(rt)}, 114688
s_add_u32 {s(st+1)}, {s(st+1)}, {s(st+2)}
s_add_u32 {s(st+1)}, {s(st+1)}, {hb}
s_add_u32 {s(st+2)}, {s(st+1)}, 28672
s_add_u32 {s(st+3)}, {s(st+1)}, 57344
s_add_u32 {s(st+4)}, {s(st+1)}, {57344+28672}
s_mov_b32 {s(st)}, 0''')
    A.wait_vm('lb')
    pstamp(A, 'lbw')
    lab = A.label('lb')
    A(f'{lab}:')
    mx = T
    A(f'v_max3_u32 {v(mx)}, {v(LB)}, {v(LB+1)}, {v(LB+2)}')
    for i in range(3, 15, 2):
        A(f'v_max3_u32 {v(mx)}, {v(mx)}, {v(LB+i)}, {v(LB+i+1)}')
    A(f'''v_max_u32 {v(mx)}, {v(mx)}, {v(LB+15)}
v_cmp_eq_u32 vcc, -1, {v(mx)}
s_cbranch_vccz {lab}_r
s_add_u32 {s(st)}, {s(st)}, 1
s_cmp_gt_u32 {s(st)}, {SPIN}
s_cbranch_scc1 {lab}_r''')
    A.track = False
    lb_issue()
    A.track = True
    A(f's_waitcnt vmcnt(0)\ns_branch {lab}')
    A(f'{lab}_r:')
    pstamp(A, 'lbr')
    for i in range(6, -1, -1):
        cfma(A, LB + 2 * i, LB + 2 * i + 1, L4r, L4i, LB + 2 * i + 2, LB + 2 * i + 3)
    cr, ci = T, T + 1
    cmul(A, cr, ci, Lgr, Lgi, LB, LB + 1)
    for sw in ('16', '32'):
        A(f'''v_mov_b32 {v(xr)}, {v(cr)}
v_mov_b32 {v(xi)}, {v(ci)}
v_permlane{sw}_swap_b32 {v(cr)}, {v(xr)}
v_permlane{sw}_swap_b32 {v(ci)}, {v(xi)}
v_add_f32 {v(cr)}, {v(cr)}, {v(xr)}
v_add_f32 {v(ci)}, {v(ci)}, {v(xi)}''')
    cfma(A, cgr, cgi, mgr, mgi, cr, ci)
    if hook: hook(101)
    if 'cb' in NOD: late(A, F_CB[lay], True)
    o = FA
    cg = v(cgr, 2)
    for hh in range(2):
        for t in range(8 * hh, 8 * hh + 8, 2):
            A(f'''v_pk_fma_f32 {v(AR+t,2)}, {v(PR+t,2)}, {cg}, {v(AR+t,2)} op_sel_hi:[1,0,1]
v_pk_fma_f32 {v(AI+t,2)}, {v(PR+t,2)}, {cg}, {v(AI+t,2)} op_sel:[0,1,0] op_sel_hi:[1,1,1]''')
        for t in range(8 * hh, 8 * hh + 8, 2):
            A(f'''v_pk_fma_f32 {v(AR+t,2)}, {v(PI+t,2)}, {cg}, {v(AR+t,2)} op_sel:[0,1,0] op_sel_hi:[1,1,1] neg_lo:[1,0,0] neg_hi:[1,0,0]
v_pk_fma_f32 {v(AI+t,2)}, {v(PI+t,2)}, {cg}, {v(AI+t,2)} op_sel_hi:[1,0,1]''')
        for t in range(8 * hh, 8 * hh + 8, 2):
            A(f'v_cvt_pk_bf16_f32 {v(o+t//2)}, {v(AR+t)}, {v(AR+t+1)}')
            A(f'v_cvt_pk_bf16_f32 {v(o+8+t//2)}, -{v(AI+t)}, -{v(AI+t+1)}')
        A.t('st', f'buffer_store_dwordx4 {v(o+4*hh,4)}, {v(ha)}, {s(sW,4)}, {s(st+1+2*hh)} offen{HST}')
        A.t('st', f'buffer_store_dwordx4 {v(o+8+4*hh,4)}, {v(ha)}, {s(sW,4)}, {s(st+2+2*hh)} offen{HST}')
    A('s_waitcnt lgkmcnt(0)')

T0, T1, BF, PT = 8, 24, 40, 72
INIT = 144

def proj_pre(A, last):
    ra0, ra1, rw, rr, t1, t2, za = range(PT, PT + 7)
    A(f'''v_bfe_u32 {v(t1)}, {v(lane)}, 2, 2
v_lshrrev_b32 {v(t2)}, 5, {v(lane)}
v_lshl_add_u32 {v(ra0)}, {v(t2)}, {3 if last else 2}, {v(t1)}
v_lshlrev_b32 {v(ra0)}, 6, {v(ra0)}
v_bfe_u32 {v(t1)}, {v(lane)}, 4, 1
v_lshl_add_u32 {v(ra0)}, {v(t1)}, 5, {v(ra0)}
v_and_b32 {v(t1)}, 3, {v(lane)}''')
    if last:
        A(f's_lshl_b32 {s(st+1)}, {s(kh)}, 1\nv_xor_b32 {v(t1)}, {s(st+1)}, {v(t1)}')
    A(f'''v_lshl_add_u32 {v(ra0)}, {v(t1)}, 3, {v(ra0)}
s_mul_i32 {s(st+1)}, {s(kh)}, 28672
v_add_u32 {v(ra0)}, {s(st+1)}, {v(ra0)}
v_add_u32 {v(ra1)}, 57344, {v(ra0)}
s_lshl_b32 {s(st+1)}, {s(wave)}, 12
s_add_u32 {s(st+1)}, {s(st+1)}, {L_RED}
s_xor_b32 {s(st+2)}, {s(st+1)}, 4096
v_add_u32 {v(rw)}, {s(st+1)}, {v(VL16)}
v_add_u32 {v(rr)}, {s(st+2)}, {v(VL16)}''')
    if last:
        A(f'''s_lshl_b32 {s(st+1)}, {s(kh)}, 2
v_add_u32 {v(t2)}, {s(st+1)}, {v(t2)}
v_xor_b32 {v(t2)}, {v(t2)}, {v(l15)}
v_and_b32 {v(t1)}, 31, {v(lane)}
v_lshlrev_b32 {v(t1)}, 8, {v(t1)}
v_lshl_add_u32 {v(za)}, {v(t2)}, 4, {v(t1)}
s_lshl_b32 {s(st+1)}, {s(wm)}, 13
s_add_u32 {s(st+1)}, {s(st+1)}, {L_RED}
v_add_u32 {v(za)}, {s(st+1)}, {v(za)}''')
    else:
        A(f'''s_lshl_b32 {s(st+1)}, {s(kh)}, 1
s_lshl_b32 {s(st+2)}, {s(wm)}, 3
s_add_u32 {s(st+1)}, {s(st+1)}, {s(st+2)}
v_add_u32 {v(t2)}, {s(st+1)}, {v(t2)}
v_and_b32 {v(t1)}, 7, {v(lane)}
v_xor_b32 {v(t2)}, {v(t2)}, {v(t1)}
v_lshlrev_b32 {v(t1)}, 8, {v(t1)}
v_lshl_add_u32 {v(za)}, {v(t2)}, 4, {v(t1)}
v_bfe_u32 {v(t1)}, {v(lane)}, 3, 2
v_lshl_add_u32 {v(za)}, {v(t1)}, 12, {v(za)}
v_add_u32 {v(za)}, {L_RED}, {v(za)}''')

def proj_init(A, last):
    ra0, ra1, rw, rr, t1, t2, za = range(PT, PT + 7)
    for nt, Tn in enumerate((T0, T1)):
        for q in (0, 2):
            x = (64 * q + 32 * nt) if last else (32 * q + 128 * nt)
            off = 0 if last else 2048 * nt
            d = INIT + 8 * nt + 2 * q
            if x:
                A(f'v_xor_b32 {v(t1)}, {x}, {v(za)}\nds_read_b128 {v(d,4)}, {v(t1)} offset:{off}')
            else:
                A(f'ds_read_b128 {v(d,4)}, {v(za)} offset:{off}')

def proj_addr(A, hb):
    A(f'''s_mul_i32 {s(s_pf+1)}, {s(kh)}, 57344
s_mul_i32 {s(st+1)}, {s(wm)}, 28672
s_add_u32 {s(s_pf+1)}, {s(s_pf+1)}, {s(st+1)}
s_mul_i32 {s(st+1)}, {s(rt)}, 114688
s_add_u32 {s(s_pf)}, {s(s_pf+1)}, {s(st+1)}
s_add_u32 {s(s_pf)}, {s(s_pf)}, {hb}''')

CBG = int(os.environ.get('CBG', '2'))
NFILL = int(os.environ.get('NFILL', '2')); NG0 = int(os.environ.get('NG0', '74')); NW0 = int(os.environ.get('NW0', '97'))
NB1 = int(os.environ.get('NB1', '6')); NB0 = int(os.environ.get('NB0', '8'))
NUP = int(os.environ.get('NUP', '17'))
def add_init(A):
    for i, r in enumerate((T0, T0 + 8, T1, T1 + 8)):
        for e in (0, 2): A(f'v_pk_add_f32 {v(r+e,2)}, {v(r+e,2)}, {v(INIT+4*i+e,2)}')

def proj_phase(A, last, hb):
    ra0, ra1, rw, rr, t1, t2 = range(PT, PT + 6)
    sh = st + 4
    A(f'PJ_redo{int(last)}:\ns_mov_b32 {s(sh)}, {s(s_pf)}\ns_mov_b32 m0, {s(s_pf+1)}')
    def dma(k):
        A.t(f'h{k//4}', f'buffer_load_dwordx4 {v(VL16)}, {s(sW,4)}, {s(sh)} offen offset:{(k&3)*1024}{HSC} lds')
        if (k & 3) == 3 and k < 27: A(f's_add_u32 m0, m0, 4096\ns_add_u32 {s(sh)}, {s(sh)}, 4096')
    hoff = 256 if last else 512
    def rd(k, nt):
        b = BF + 8 * (k % 4)
        for hf in range(2):
            A(f'ds_read_b64_tr_b16 {v(b+4*nt+2*hf,2)}, {v(ra0+nt)} offset:{k*1024+hf*hoff}')
    for k in range(NUP): dma(k)
    A.fill(NG0)
    A.wait_vm('h0')
    A('s_barrier')
    pstamp(A, 'grp0')
    for k in range(2):
        rd(k, 0); rd(k, 1)
    for k in range(28):
        if (k & 3) == 2 and k + 2 < 28:
            A.wait_vm(f'h{(k+2)//4}'); A('s_barrier')
        b = BF + 8 * (k % 4)
        for nt, Tn in enumerate((T0, T1)):
            left = min(6, 4 * (27 - k) + 2 * (1 - nt))
            A(f's_waitcnt lgkmcnt({left})')
            x, y = wc_reg(k), v(b + 4 * nt, 4)
            if last: x, y = y, x
            A(f'v_mfma_f32_32x32x16_bf16 {v(Tn,16)}, {x}, {y}, {v(Tn,16) if k else 0}')
            if k + 2 < 28: rd(k + 2, nt)
            if nt == 0:
                if k + NUP < 28: dma(k + NUP)
                else: A.bg(1)
            A.fill(NFILL)
    A.bg(64); A.fill(999)
    pstamp(A, 'loopend')
    if last:
        c = BF + 16
        if 'cb' in NOD:
          for i in range(0, 16, 2): A(f'v_pk_add_f32 {v(c+i,2)}, {v(T0+i,2)}, {v(T1+i,2)}')
          for n in (8, 4, 2):
            for i in range(0, n, 2): A(f'v_pk_add_f32 {v(c+i,2)}, {v(c+i,2)}, {v(c+n+i,2)}')
          A(f'''v_cmp_u_f32 vcc, {v(c)}, {v(c+1)}
s_cmp_lg_u64 vcc, 0
s_cselect_b32 {s(st+5)}, 0x7fc00000, 0
v_add_f32 {v(T0)}, {s(st+5)}, {v(T0)}
v_add_f32 {v(T0+4)}, {s(st+5)}, {v(T0+4)}''')
        ksplit_reduce(A, T0, T1, rw, rr, BF, True)
        if 'cb' in NOD: redo_check(A, T0, T0, 'PJ_redo1')
        add_init(A)
        for mt, Tn in enumerate((T0, T1)):
            for q in (0, 2):
                for i in range(4):
                    A(f'buffer_store_dword {v(Tn+4*q+i)}, {v(t1 if i < 2 else t2)}, {s(sO,4)}, {s(st+2*mt+q//2)} offen offset:{1792*(i&1)}{os.environ.get("OSC","")}')
        return
    ksplit_reduce(A, T0, T1, rw, rr, BF, True)
    if 'cb' in NOD: redo_check(A, T0, T1, 'PJ_redo0')
    add_init(A)
    zepi(A, T0, T1, BF, (PT + 6, PT + 7, 5, 6), 32, cnt='cc' in NOD)

def out_setup(A):
    t1, t2 = PT + 4, PT + 5
    A(f'''v_lshrrev_b32 {v(t1)}, 5, {v(lane)}
v_mul_u32_u24 {v(t1)}, {4*1792}, {v(t1)}
v_and_b32 {v(t2)}, 31, {v(lane)}
v_lshl_add_u32 {v(t1)}, {v(t2)}, 2, {v(t1)}
v_add_u32 {v(t2)}, 3584, {v(t1)}
s_lshl_b32 {s(st)}, {s(rt)}, 2
s_add_u32 {s(st)}, {s(st)}, {s(kh)}
s_mul_i32 {s(st)}, {s(st)}, {16*1792}
s_lshl_b32 {s(st+1)}, {s(sl)}, 8
s_add_u32 {s(st)}, {s(st)}, {s(st+1)}
s_lshl_b32 {s(st+1)}, {s(wm)}, 7
s_add_u32 {s(st)}, {s(st)}, {s(st+1)}
s_add_u32 {s(st+1)}, {s(st)}, {32*1792}
s_add_u32 {s(st+2)}, {s(st)}, {8*1792}
s_add_u32 {s(st+3)}, {s(st)}, {40*1792}''')

def zepi_setup(A, regs, ntoff, zc, ssq):
    ta, ia, ga, t2 = regs
    if ntoff == 32:
        A(f'''v_and_b32 {v(ta)}, 7, {v(lane)}
v_bfe_u32 {v(t2)}, {v(lane)}, 3, 2
v_lshl_add_u32 {v(ta)}, {v(t2)}, 4, {v(ta)}''')
    else:
        A(f'v_and_b32 {v(ta)}, 31, {v(lane)}')
    A(f'''v_lshlrev_b32 {v(ta)}, 2, {v(ta)}
v_lshrrev_b32 {v(t2)}, 5, {v(lane)}
v_lshl_add_u32 {v(ia)}, {v(t2)}, 9, {v(ta)}
v_lshl_add_u32 {v(ta)}, {v(t2)}, {5 if ntoff == 32 else 7}, {v(ta)}
s_lshl_b32 {s(st)}, {s(wm)}, 12
s_lshl_b32 {s(st+1)}, {s(kh)}, 10
s_add_u32 {s(st)}, {s(st)}, {s(st+1)}
v_add_u32 {v(ia)}, {s(st)}, {v(ia)}
s_lshl_b32 {s(st)}, {s(wave)}, 8
v_add_u32 {v(ta)}, {s(st)}, {v(ta)}
v_lshlrev_b32 {v(ga)}, 13, {v(g)}
v_lshl_add_u32 {v(ga)}, {v(l15)}, 4, {v(ga)}
s_lshl_b32 {s(st)}, {s(wave)}, 11
v_add_u32 {v(t2)}, {s(st)}, {v(VL16)}
s_lshl_b32 {s(st)}, {s(sl)}, 2
s_add_u32 {s(st)}, {s(st)}, {s(wave)}
s_lshl_b32 {s(st)}, {s(st)}, 16
s_lshl_b32 {s(st+1)}, {s(rt)}, 8
s_add_u32 {s(st)}, {s(st)}, {s(st+1)}
s_add_u32 {s(st)}, {s(st)}, {zc}
s_add_u32 {s(st+2)}, {s(st)}, 32768
s_add_u32 {s(st+1)}, {s(st+1)}, {ssq}''')

def zepi(A, T0, T1, BF, regs, ntoff, gate=None, cnt=False):
    ta, ia, ga, t2 = regs
    pk, s0, s1 = BF + 16, BF + 24, BF + 25
    k = 0
    for nt, Tn in enumerate((T0, T1)):
        for q in (0, 2):
            for ip in range(2):
                r = Tn + 4 * q + 2 * ip
                A(f'v_cvt_pk_bf16_f32 {v(pk+k)}, {v(r)}, {v(r+1)}')
                A(f'ds_write_b32 {v(ia)}, {v(pk+k)} offset:{(4*q+ip)*256+ntoff*nt}')
                k += 1
    lab = A.label('nodc')
    A(f'''s_or_b32 {s(st+3)}, {s(sl)}, {s(wave)}
s_cmp_lg_u32 {s(st+3)}, 0
s_cbranch_scc1 {lab}
v_cmp_gt_u32 vcc, 32, {v(lane)}
v_cndmask_b32 {v(T0+1)}, {v(T0+1)}, 0, vcc
v_cndmask_b32 {v(T1+1)}, {v(T1+1)}, 0, vcc
{lab}:''')
    for sreg, Tn in ((s0, T0), (s1, T1)):
        A(f'v_mul_f32 {v(sreg)}, {v(Tn)}, {v(Tn)}')
    for r in (1, 2, 3, 8, 9, 10, 11):
        for sreg, Tn in ((s0, T0), (s1, T1)):
            A(f'v_fmac_f32 {v(sreg)}, {v(Tn+r)}, {v(Tn+r)}')
    A(f'''v_permlane32_swap_b32 {v(s0)}, {v(s1)}
v_add_f32 {v(s0)}, {v(s0)}, {v(s1)}
ds_write_b32 {v(ta)}, {v(s0)} offset:8192
v_lshlrev_b32 {v(ta)}, 2, {v(lane)}''')
    if gate: gate()
    A('s_waitcnt lgkmcnt(0)\ns_barrier')
    lab = A.label('ssq')
    A(f'''ds_read_b128 {v(T0,4)}, {v(t2)}
ds_read_b128 {v(T0+4,4)}, {v(t2)} offset:1024''')
    A.track = False
    A(f'''s_cmp_lg_u32 {s(wave)}, 1
s_cbranch_scc1 {lab}
ds_read2st64_b32 {v(pk,2)}, {v(ta)} offset0:32 offset1:33
ds_read2st64_b32 {v(pk+2,2)}, {v(ta)} offset0:34 offset1:35
s_waitcnt lgkmcnt(0)
v_pk_add_f32 {v(pk,2)}, {v(pk,2)}, {v(pk+2,2)}
v_add_f32 {v(pk)}, {v(pk)}, {v(pk+1)}
{'' if not cnt else 'v_cvt_pk_bf16_f32 %s, %s, 1.0' % (v(pk), v(pk))}
buffer_atomic_{'pk_add_bf16' if cnt else 'add_f32'} {v(pk)}, {v(ta)}, {s(sW,4)}, {s(st+1)} offen sc1
{lab}:''')
    A.track = True
    if cnt: late(A, F_CC, False)
    A('s_waitcnt lgkmcnt(1)')
    A.t('st', f'buffer_store_dwordx4 {v(T0,4)}, {v(ga)}, {s(sW,4)}, {s(st)} offen sc1')
    A('s_waitcnt lgkmcnt(0)')
    A.t('st', f'buffer_store_dwordx4 {v(T0+4,4)}, {v(ga)}, {s(sW,4)}, {s(st+2)} offen sc1')

ND = int(os.environ.get('ND', '2'))
def layers(A, lre, lim, ldt, pre=None, shook=None):
    pstamp(A, 'stored')
    if pre: pre(0)
    A.bg(ND)
    A.wait_vm('lam')
    A(f'v_mov_b32 v8, {v(lre)}\nv_mov_b32 v9, {v(lim)}\nv_mov_b32 v10, {v(ldt)}')
    lam_tables(A, 8, 9, 10, 12)
    for lay in range(2):
        scan_pre(A)
        signal16(A, 'st', F_CA[lay], not (lay and 'ca1' in NOD))
        def mid():
            if lay == 0 and pre: pre(1)
            A.bg(NB1 if lay else 64)
        poll(A, poll16(F_CA[lay]), mid)
        if lay == 0: q_wc(A, VL16X, '')
        scan_phase(A, lay, (ZB, ZB3)[lay], (HB, HB2)[lay], (sAG0, sAG1)[lay], shook if lay == 0 else None)
        pstamp(A, 'stored')
        A.bg(ND)
        if lay == 0:
            A.fq = capture(col_tables1, col_tables2, lambda B: zepi_setup(B, (PT + 6, PT + 7, 5, 6), 32, ZC2, SSQ2))
            A.fill(NW0)
        else:
            A.fq = capture(out_setup)
        proj_pre(A, lay == 1)
        proj_addr(A, (HB, HB2)[lay])
        A(f's_lshl_b32 {s(st+3)}, {s(rt)}, 7\ns_add_u32 {s(st+3)}, {s(st+3)}, {F_CB[lay]}')
        if LATE and 'cb' in NOD: A('s_barrier')
        else: signal(A, 'st', st + 3, drain='cb' not in NOD)
        def mid():
            proj_init(A, lay == 1); A.bg(64)
        pt = f'v_mov_b32 v5, {s(st+3)}\nv_mov_b32 v6, 7\ns_mov_b64 s[50:51], 1'
        if lay == 0 and NOD - {''}:
            pt += f'''
s_and_b32 {s(st)}, s2, {NREP-1}
s_lshl_b32 {s(st)}, {s(st)}, 7
s_add_u32 {s(st)}, {s(st)}, {F_PF2}
v_writelane_b32 v5, {s(st)}, 1
v_writelane_b32 v6, 32, 1
s_mov_b64 s[50:51], 3'''
        poll(A, pt, mid)
        proj_phase(A, lay == 1, (HB, HB2)[lay])
        if lay == 0:
            pstamp(A, 'stored')
            col_wload(A)
            A(f's_add_u32 {s(s_sk)}, {s(s_sk)}, {WSK_L - 12288}')
            A(f's_add_u32 {s(s_wc)}, {s(s_wc)}, {WC_L - 28672}')
            signal16(A, 'st', F_CC, 'cc' not in NOD)
            poll(A, poll16(F_CC, (F_CD, 32 if NOD - {''} else NAUX)))
            A(col_poll_pre(ZC2, SSQ2))
            col_poll(A, ZC2, SSQ2, val='cc' in NOD)
            q_sk(A, WSC); q_wc(A, VL16, WSC)
            col_compute(A, ZB3, True)
            pstamp(A, 'stored')
            A.bg(ND)

def kend(A):
    A('KP_end:')
    if PROBE:
        pstamp(A, 'end')
        i, j = [int(x) for x in PROBE.split(',')]
        A(f's_cmp_lg_u32 s2, {os.environ.get("DBGWG", "100")}\ns_cbranch_scc1 KP_exit')
        if i < 0:
            A(f'v_mov_b32 v5, 0\ns_mov_b32 s64, {STAMP}\nbuffer_load_dword v6, v5, {s(sW,4)}, s64 offen sc1\ns_waitcnt vmcnt(0)\nv_readfirstlane_b32 s60, v6')
        A('''s_memrealtime s[64:65]
s_waitcnt lgkmcnt(0)
s_sub_u32 s60, s62, s60
s_min_u32 s60, s60, 10000
s_mul_i32 s60, s60, 10
KP_spin:
s_memrealtime s[66:67]
s_waitcnt lgkmcnt(0)
s_sub_u32 s66, s66, s64
s_cmp_lt_u32 s66, s60
s_cbranch_scc1 KP_spin''')
    if STAMPS == 1:
        A('s_memrealtime s[100:101]\ns_waitcnt lgkmcnt(0)')
        for i in range(21): A(f'v_mov_b32 {v(8+i)}, {s(60+2*i)}')
        A(f'v_mov_b32 {v(8+21)}, {s(s_redo)}')
        A(f'''v_lshrrev_b32 v5, 6, v0
v_lshlrev_b32 v5, 7, v5
s_lshl_b32 s60, s2, 9
s_add_u32 s60, s60, {STAMP + 131072}''')
        for i in range(6): A(f'buffer_store_dwordx4 {v(8+4*i,4)}, v5, {s(sW,4)}, s60 offen offset:{16*i}')
    A('KP_exit:\ns_endpgm')


def kp():
    A = Asm()
    gen.KSTAMP = False
    A(f's_cmp_ge_u32 s2, {224+NAUX}\ns_cbranch_scc1 KP_exit')
    pstamp(A, 'entry')
    ld_ptr(A, sW, WS)
    A('s_cmp_ge_u32 s2, 224\ns_cbranch_scc1 KP_aux')
    ld_ptr(A, sO, OUT); ld_ptr(A, 40, L_RE); ld_ptr(A, 44, L_IM); ld_ptr(A, 48, LOGDT); ld_ptr(A, 52, DSKIP)
    A(f'''v_and_b32 {v(lane)}, 63, v0
v_lshrrev_b32 v2, 6, v0
v_readfirstlane_b32 {s(wave)}, v2
v_and_b32 {v(l15)}, 15, {v(lane)}
v_lshrrev_b32 {v(g)}, 4, {v(lane)}
v_lshlrev_b32 {v(VL16)}, 4, {v(lane)}
s_and_b32 {s(kh)}, {s(wave)}, 1
s_lshr_b32 {s(wm)}, {s(wave)}, 1
s_lshl_b32 {s(st)}, {s(kh)}, 7
v_xor_b32 {v(VL16X)}, {s(st)}, {v(VL16)}
s_cmp_eq_u32 s2, 0
s_cselect_b32 {s(sim)}, 0, 1.0''')
    tile_ids(A, rt, sl, st)
    A(f'''s_lshl_b32 {s(st+3)}, {s(sl)}, 2
s_add_u32 {s(st+3)}, {s(st+3)}, {s(wave)}
s_mul_i32 {s(s_m1)}, {s(st+3)}, {28*1024}
s_add_u32 {s(s_m1)}, {s(s_m1)}, {WM1}
s_mul_i32 {s(s_sk)}, {s(st+3)}, {14*1024}
s_add_u32 {s(s_sk)}, {s(s_sk)}, {WSK}
s_lshl_b32 {s(st+3)}, {s(st+3)}, 5
s_lshl_b32 {s(s_wc)}, {s(sl)}, 1
s_add_u32 {s(s_wc)}, {s(s_wc)}, {s(kh)}
s_lshl_b32 {s(s_wc)}, {s(s_wc)}, 1
s_add_u32 {s(s_wc)}, {s(s_wc)}, {s(wm)}
s_mul_i32 {s(s_wc)}, {s(s_wc)}, {28*1024}
s_add_u32 {s(s_wc)}, {s(s_wc)}, {WC}''')
    col_tables1(A)
    A('s_waitcnt lgkmcnt(0)')
    srd_ws(A, sW); srd(A, sO, S * D * 4)
    for r in (40, 44, 48, 52): srd(A, r, D * 2)
    pstamp(A, 'karg')
    col_loads(A, ZC, R0, '')
    col_wload(A)
    lre, lim, ldt = PR + 1, PR + 2, PR + 3
    A(f'v_lshlrev_b32 v6, 1, {v(l15)}')
    for r, sr in ((lre, 40), (lim, 44), (ldt, 48), (hd, 52)):
        A.t('lam', f'buffer_load_ushort {v(r)}, v6, {s(sr,4)}, {s(st+3)} offen')
    for i, r in enumerate((sAG0, sAG1)):
        A(f's_add_u32 {s(r)}, s4, {AGG + i*AGG_L}\ns_addc_u32 {s(r+1)}, s5, 0')
        srd(A, r, AGG_L)
    A(f'''v_cmp_eq_u32 s[44:45], 1, {v(g)}
v_cmp_eq_u32 s[46:47], 2, {v(g)}
v_cmp_eq_u32 s[48:49], 3, {v(g)}''')
    A(f's_mov_b32 {s(s_redo)}, 0')
    q_m1(A)
    col_tables2(A)
    A.bg(NB0)
    col_compute(A, ZB, False)
    layers(A, lre, lim, ldt)
    kend(A)
    A('KP_aux:')
    A.track = False
    A(f'''v_and_b32 {v(lane)}, 63, v0
v_lshrrev_b32 v2, 6, v0
v_readfirstlane_b32 {s(wave)}, v2''')
    aux_tail(A)
    return A.render()

def aux_tail(A, zd_wait=None):
    ld_ptr(A, 8, C_RE); ld_ptr(A, 12, C_IM)
    A(f'''s_cmp_ge_u32 s2, {224+NAUX}
s_cbranch_scc1 KP_m2a
s_cmp_lt_u32 s2, 231
s_cbranch_scc1 KP_qt
s_sub_u32 {s(st)}, s2, 231
s_and_b32 {s(st+1)}, {s(st)}, 1
s_lshr_b32 {s(st+2)}, {s(wave)}, 1
s_and_b32 {s(st+3)}, {s(wave)}, 1
s_andn2_b32 {s(st+4)}, {s(st)}, 1
s_add_u32 {s(st+4)}, {s(st+4)}, {s(st+2)}
s_mul_i32 {s(st+4)}, {s(st+4)}, {32*896}
s_mul_i32 {s(st+5)}, {s(st+3)}, {14*32}
s_add_u32 {s(st+4)}, {s(st+4)}, {s(st+5)}
s_lshl_b32 {s(st+5)}, {s(st)}, 1
s_add_u32 {s(st+5)}, {s(st+5)}, {s(st+2)}
s_lshl_b32 {s(st+5)}, {s(st+5)}, 1
s_add_u32 {s(st+5)}, {s(st+5)}, {s(st+3)}
s_mul_i32 {s(st+5)}, {s(st+5)}, {14*1024}
s_add_u32 {s(st+5)}, {s(st+5)}, {WC + WC_L}
v_and_b32 v5, 31, {v(lane)}
v_mul_u32_u24 v5, 896, v5
v_lshrrev_b32 v6, 5, {v(lane)}
v_lshl_add_u32 v5, v6, 4, v5
v_lshlrev_b32 v6, 4, {v(lane)}
s_waitcnt lgkmcnt(0)
s_cmp_eq_u32 {s(st+1)}, 0
s_cselect_b32 s8, s8, s12
s_cselect_b32 s9, s9, s13''')
    srd(A, 8, D * D * 2); srd_ws(A, sW)
    for k in range(14):
        A(f'buffer_load_dwordx4 {v(8+4*k,4)}, v5, s[8:11], {s(st+4)} offen offset:{32*k}')
    for k in range(14):
        A(f's_waitcnt vmcnt(13)\nbuffer_store_dwordx4 {v(8+4*k,4)}, v6, {s(sW,4)}, {s(st+5)} offen sc1\ns_add_u32 {s(st+5)}, {s(st+5)}, 1024')
    A('s_branch KP_auxsig')
    A('KP_qt:')
    sinv, s448 = 25, 26
    amp, df, two, c16, t, u, d0, d1, d2, tq = 6, 7, 8, 9, 10, 11, 112, 113, 114, 115
    O = 48
    a2 = math.sqrt(2.0 / 448); a1 = math.sqrt(1.0 / 448)
    A(f'''s_mov_b32 {s(sinv)}, {f2u(INV448)}
s_mov_b32 {s(s448)}, {f2u(448.0)}
s_sub_u32 {s(st)}, s2, 224
s_lshl_b32 {s(st)}, {s(st)}, 2
s_add_u32 {s(st)}, {s(st)}, {s(wave)}
s_lshl_b32 {s(st+1)}, {s(st)}, 4
s_mul_i32 {s(st)}, {s(st)}, {14*1024}
s_add_u32 {s(st)}, {s(st)}, {WSK + WSK_L}
v_and_b32 v12, 15, {v(lane)}
v_add_u32 v12, {s(st+1)}, v12
v_cvt_f32_u32 {v(df)}, v12
v_lshrrev_b32 v13, 4, {v(lane)}
v_lshlrev_b32 v14, 1, v13
v_cvt_f32_u32 v14, v14
v_add_f32 {v(t)}, {f2u(96.0)}, v14
v_mul_f32 {v(t)}, {v(t)}, {v(df)}
v_mul_f32 {v(c16)}, {f2u(16.0)}, {v(df)}
v_mul_f32 {v(d2)}, {f2u(7.0)}, {v(df)}
v_mov_b32 {v(amp)}, {f2u(a2)}''')
    for r in (t, c16, d2):
        A(f'''v_mul_f32 {v(tq)}, {s(sinv)}, {v(r)}
v_rndne_f32 {v(tq)}, {v(tq)}
v_fma_f32 {v(r)}, -{v(tq)}, {s(s448)}, {v(r)}
v_mul_f32 {v(r)}, {s(sinv)}, {v(r)}''')
    A(f'''v_cos_f32 {v(two)}, {v(c16)}
v_add_f32 {v(u)}, {v(t)}, {v(c16)}
v_mov_b32 {v(d0)}, 0x3e800000
v_mul_f32 {v(d1)}, {s(sinv)}, {v(df)}
v_subrev_f32 {v(d1)}, 0x3e800000, {v(d1)}
v_subrev_f32 {v(d2)}, 0x3e800000, {v(d2)}''')
    cheb(A, O, 16, t, u, [d0, d1, d0, d2, d0, d1, d0], amp, two, None, None)
    A(f'''v_mov_b32 {v(t)}, {f2u(a1)}
v_cvt_pk_bf16_f32 {v(t)}, {v(t)}, {v(t)}
v_and_b32 v12, 1, v12
v_lshlrev_b32 v12, 15, v12
v_xor_b32 {v(t)}, {v(t)}, v12
v_cmp_eq_u32 vcc, 0, v13
v_cndmask_b32 {v(O)}, {v(O)}, {v(t)}, vcc
v_lshlrev_b32 v6, 4, {v(lane)}
s_waitcnt lgkmcnt(0)''')
    srd_ws(A, sW)
    for k in range(14):
        A(f'buffer_store_dwordx4 {v(O+4*k,4)}, v6, {s(sW,4)}, {s(st)} offen sc1\ns_add_u32 {s(st)}, {s(st)}, 1024')
    A('KP_auxsig:')
    if not NOD - {''}:
        A(f's_mov_b32 {s(st+1)}, {F_CD}')
        signal(A, None, st + 1, NREP, 128)
    A.track = False
    A('KP_m2a:')
    TS_ = 5392
    sc_ = 0.25 * math.sqrt(2.0 / 448)
    zd_wait()
    A(f's_mov_b32 {s(st)}, {ZD}')
    for i in range(3):
        x, c, sg = 16 + 8 * i, 17 + 8 * i, 18 + 8 * i
        A(f'''v_add_u32 {v(x)}, {256*i}, v0
v_subrev_u32 {v(c)}, 224, {v(x)}
v_sub_u32 {v(sg)}, 224, {v(x)}
v_max_i32 {v(c)}, {v(c)}, {v(sg)}
v_sub_u32 {v(sg)}, 448, {v(c)}
v_min_i32 {v(c)}, {v(c)}, {v(sg)}
v_lshlrev_b32 {v(sg)}, 3, {v(c)}
v_cmp_eq_u32 vcc, 224, {v(c)}
v_cndmask_b32 {v(sg)}, {v(sg)}, 0, vcc
buffer_load_dwordx2 {v(x+4,2)}, {v(sg)}, {s(sW,4)}, {s(st)} offen''')
    for i in range(3):
        x, c, sg, cc, cs, nn = 16 + 8 * i, 17 + 8 * i, 18 + 8 * i, 20 + 8 * i, 21 + 8 * i, 19 + 8 * i
        A(f'''s_waitcnt vmcnt({2-i})
v_cmp_eq_u32 vcc, 0, {v(c)}
v_cndmask_b32 {v(cc)}, {v(cc)}, {v(cs)}, vcc
v_cmp_eq_u32 s[40:41], 0, {v(c)}
v_cmp_eq_u32 vcc, 224, {v(c)}
s_or_b64 vcc, vcc, s[40:41]
v_mov_b32 {v(sg)}, {f2u(sc_)}
v_mov_b32 {v(nn)}, {f2u(sc_*math.sqrt(2.0))}
v_cndmask_b32 {v(nn)}, {v(sg)}, {v(nn)}, vcc
v_cndmask_b32 {v(cs)}, {v(cs)}, 0, vcc
v_mul_f32 {v(cc)}, {v(cc)}, {v(nn)}
v_mul_f32 {v(cs)}, {v(cs)}, {v(sg)}
v_cmp_gt_u32 vcc, 224, {v(x)}
s_mov_b64 s[40:41], vcc
v_cmp_lt_u32 vcc, 448, {v(x)}
s_or_b64 vcc, vcc, s[40:41]
v_xor_b32 {v(nn)}, 0x80000000, {v(cs)}
v_cndmask_b32 {v(cs)}, {v(cs)}, {v(nn)}, vcc
v_xor_b32 {v(nn+3)}, 0x80000000, {v(cs)}
v_mov_b32 {v(nn+4)}, {v(cc)}
v_xor_b32 {v(nn)}, 0x80000000, {v(cc)}
v_mov_b32 {v(sg)}, {v(cs)}
v_lshlrev_b32 {v(c)}, 3, {v(x)}
v_cmp_gt_u32 vcc, 673, {v(x)}
s_and_saveexec_b64 s[40:41], vcc
ds_write_b64 {v(c)}, {v(cc,2)}
ds_write_b64 {v(c)}, {v(nn+3,2)} offset:{TS_}
ds_write_b64 {v(c)}, {v(cc,2)} offset:{2*TS_}
ds_write_b64 {v(c)}, {v(sg,2)} offset:{3*TS_}
s_mov_b64 exec, s[40:41]''')
    jp, cp, pr, am, ap, fa = 5, 6, 7, 8, 9, 10
    A(f'''s_sub_u32 {s(st)}, s2, 224
s_lshl_b32 {s(st+1)}, {s(st)}, 4
s_mul_i32 {s(st)}, {s(st)}, 14
s_add_u32 {s(st)}, {s(st)}, {s(wave)}
s_lshl_b32 {s(st)}, {s(st)}, 10
s_add_u32 {s(st)}, {s(st)}, {WSK}
v_and_b32 {v(jp)}, 15, {v(lane)}
v_add_u32 {v(jp)}, {s(st+1)}, {v(jp)}
v_lshrrev_b32 {v(cp)}, 1, {v(jp)}
v_and_b32 {v(pr)}, 1, {v(jp)}
v_mov_b32 v12, 224
v_cmp_eq_u32 vcc, 0, {v(jp)}
v_cndmask_b32 {v(cp)}, {v(cp)}, v12, vcc
v_cmp_gt_u32 vcc, 2, {v(jp)}
v_cndmask_b32 {v(pr)}, {v(pr)}, 0, vcc
v_mov_b32 v12, {f2u(math.sqrt(0.5))}
v_cndmask_b32 {v(fa)}, 1.0, v12, vcc
v_mul_u32_u24 {v(pr)}, {TS_}, {v(pr)}
v_lshrrev_b32 v13, 4, {v(lane)}
v_lshlrev_b32 v14, 1, v13
s_lshl_b32 {s(st+2)}, {s(wave)}, 4
v_add_u32 v14, {s(st+2)}, v14
v_or_b32 v13, {s(wave)}, v13
v_sub_u32 {v(am)}, 224, {v(cp)}
v_add_u32 {v(ap)}, 224, {v(cp)}
v_lshl_add_u32 v15, {v(am)}, 3, {v(pr)}
v_lshl_add_u32 v12, {v(ap)}, 3, {v(pr)}
v_add_u32 {v(am)}, {v(am)}, v14
v_add_u32 {v(ap)}, {v(ap)}, v14
v_lshl_add_u32 {v(am)}, {v(am)}, 3, {v(pr)}
v_lshl_add_u32 {v(ap)}, {v(ap)}, 3, {v(pr)}
s_waitcnt lgkmcnt(0)
s_barrier
ds_read_b32 v40, v15 offset:{224*8}
ds_read_b32 v41, v12 offset:{224*8+2*TS_}''')
    O = 48
    for i in range(4):
        b = 112 + 16 * i
        for p in range(4):
            off = 8 * (64 * i + 8 * (p >> 1) + (p & 1))
            A(f'ds_read_b64 {v(b+4*p,2)}, {v(am)} offset:{off}\nds_read_b64 {v(b+4*p+2,2)}, {v(ap)} offset:{off+2*TS_}')
    A(f'v_lshlrev_b32 v6, 4, {v(lane)}')
    for i in range(4):
        A(f's_waitcnt lgkmcnt({min(15, 24-8*i)})')
        b = 112 + 16 * i
        for p in range(4):
            A(f'v_pk_add_f32 {v(b+4*p,2)}, {v(b+4*p,2)}, {v(b+4*p+2,2)}')
        if i == 0:
            A(f'''v_add_f32 v40, v40, v41
v_mul_f32 v40, {f2u(math.sqrt(0.5))}, v40
v_cmp_eq_u32 vcc, 0, v13
v_cndmask_b32 {v(b)}, {v(b)}, v40, vcc
v_cndmask_b32 {v(b+1)}, {v(b+1)}, 0, vcc''')
        for p in range(4):
            A(f'v_pk_mul_f32 {v(b+4*p,2)}, {v(b+4*p,2)}, {v(fa,2)} op_sel_hi:[1,0]')
        for p in range(4):
            A(f'v_cvt_pk_bf16_f32 {v(O+4*i+p)}, {v(b+4*p)}, {v(b+4*p+1)}')
        if i == 3: A(f's_cmp_ge_u32 {s(wave)}, 2\ns_cbranch_scc1 KP_m2s')
        A(f'buffer_store_dwordx4 {v(O+4*i,4)}, v6, {s(sW,4)}, {s(st)} offen sc1\ns_add_u32 {s(st)}, {s(st)}, 4096')
    A(f'KP_m2s:\ns_mov_b32 {s(st+1)}, {F_CE}')
    signal(A, None, st + 1, 64, 128)
    A.track = False
    A('KP_pf:')
    if NOD - {''}:
        A('v_lshlrev_b32 v2, 4, v0\nv_mov_b32 v8, -1\nv_mov_b32 v9, -1\nv_mov_b32 v10, -1\nv_mov_b32 v11, -1')
        for grp, (flag, nrep) in zip((((HB, 28),), ((ZC2, 14),), ((ZB3, 14), (HB2, 28))), ((F_PF1, 64), (F_PF2, NREP), (F_CD, NREP))):
            for base, n in grp:
                lab = A.label('pf')
                A(f'''s_sub_u32 {s(st)}, s2, 224
s_mul_i32 {s(st)}, {s(st)}, {n*4096}
s_add_u32 {s(st)}, {s(st)}, {base}
s_add_u32 {s(st+1)}, {s(st)}, {n*4096}
{lab}:
buffer_store_dwordx4 v[8:11], v2, {s(sW,4)}, {s(st)} offen sc1
s_add_u32 {s(st)}, {s(st)}, 4096
s_cmp_lt_u32 {s(st)}, {s(st+1)}
s_cbranch_scc1 {lab}''')
            A(f's_mov_b32 {s(st+1)}, {flag}')
            signal(A, None, st + 1, nrep, 128)
            A.track = False
    A('s_endpgm')

def main():
    gen.REST_BYTES = 40960; gen.K0_BYTES = 12288
    txt = build([('k0', k0(), 256, 0), ('k1', kp(), 256, 256)], [('k0', 491, 81920), ('k1', 224 + NAUX, LDS_BYTES)])
    txt = txt.replace('.amdhsa_next_free_sgpr 96', '.amdhsa_next_free_sgpr 102')
    open(sys.argv[1] if len(sys.argv) > 1 else 'k.s', 'w').write(txt)
    if PROBE: print(list(enumerate(NAMES)))
    if STAMPS == 1: open((sys.argv[1] if len(sys.argv) > 1 else 'k.s') + '.names', 'w').write(' '.join(NAMES))

if __name__ == '__main__':
    main()
```

```python
import sys
sys.path.insert(0, 'dev')
import gen, gen_p
from gen import *
from gen_p import *

K = 1024
F_P0 = FLAGS
gen_p.F_CA[0], gen_p.F_CA[1] = FLAGS + 32 * K, FLAGS + 96 * K
gen_p.F_CC = FLAGS + 64 * K
gen_p.F_CB[0], gen_p.F_CB[1] = FLAGS + 128 * K, FLAGS + 132 * K
F_W = FLAGS + 184 * K
gen_p.F_CE, gen_p.F_CD = FLAGS + 176 * K, FLAGS + 140 * K
F_M1, F_M2, F_ZD, F_NO = FLAGS + 144 * K, FLAGS + 151 * K, FLAGS + 158 * K, FLAGS + 159 * K
SSQ0 = FLAGS + 160 * K
gen_p.SSQ2 = FLAGS + 168 * K
gen_p.F_PF1, gen_p.F_PF2 = FLAGS + 192 * K, FLAGS + 136 * K
NA = 32
L_XRED, L_M = 65536, 81920
QA, X0, X1, XB, CH, TM = 8, 64, 144, 190, 80, 112
vj, vd0, vt, vmb, rw, rr, ga_, gt_, ta_, ia_ = 120, 121, 122, 222, 223, 224, 225, 226, 227, 229
lre, lim, ldt = 232, 233, 234
mre, mim, mdt = 235, 236, 237
sX, sM, sD = 8, 12, 56
sinv, s448, m_off, m_step, m_xr, m_dx, role, s_k = 34, 35, 36, 37, 38, 39, 59, 33
KSIG = int(os.environ.get('KSIG', '-1'))
NF0 = int(os.environ.get('NF0', '4')); NF1 = int(os.environ.get('NF1', '1'))
NDX = int(os.environ.get('NDX', '4'))
PI0 = int(os.environ.get('PI0', '0')); MD = int(os.environ.get('MD', '2')); NT2 = int(os.environ.get('NT2', '86'))
HEAD_BYTES = 12288; PF_START = 8192; PF_PART = 12288

def gemm(A, rd, nrd, mf, nf, mid=None):
    for k in range(3): rd(k)
    for k in range(14):
        if mid and k == KSIG: mid()
        if k + 3 < 14: rd(k + 3)
        A(f's_waitcnt lgkmcnt({nrd*min(3, 13-k)})')
        for i, T in enumerate((X0, X1)):
            A(f'v_mfma_f32_32x32x16_bf16 {v(T,16)}, {mf(k, i)}, {v(T,16) if k else 0}')
            A.fill(nf)
            if i == 0 or k < 2: A.bg(1)
    A.fill(999)

def gemm_rows(A, nf, mid=None):
    A(f's_mul_i32 {s(s_k)}, {s(kh)}, 448')
    def rd(k):
        b = XB + 8 * (k % 4)
        A(f'v_xor_b32 {v(gt_)}, {s(s_k)}, {v(ga_)}\ns_add_u32 {s(s_k)}, {s(s_k)}, 32')
        A(f'ds_read_b128 {v(b,4)}, {v(gt_)}\nds_read_b128 {v(b+4,4)}, {v(gt_)} offset:32768')
    gemm(A, rd, 2, lambda k, i: f'{v(QA+4*k,4)}, {v(XB+8*(k%4)+4*i,4)}', nf, mid)

CEK = int(os.environ.get('CEK', '9'))
def chk_issue(A, r, mask=3):
    A(f'v_mov_b32 {v(r+2)}, 0\ns_mov_b64 exec, {mask}')
    A.t('chk', f'buffer_atomic_or {v(r+2)}, {v(r)}, {s(sW,4)}, 0 offen sc0 sc1')
    A('s_mov_b64 exec, -1')

def chk_wait(A, r, cnt, mask=3):
    lab = A.label('chk')
    A(f's_mov_b32 {s(cnt)}, 0\ns_mov_b64 exec, {mask}')
    A.wait_vm('chk')
    A.track = False
    A(f'''{lab}:
v_cmp_gt_u32 vcc, {v(r+1)}, {v(r+2)}
s_add_u32 {s(cnt)}, {s(cnt)}, 1
s_cbranch_vccz {lab}_d
s_cmp_gt_u32 {s(cnt)}, {SPIN}
s_cbranch_scc1 {lab}_d
v_mov_b32 {v(r+2)}, 0
buffer_atomic_or {v(r+2)}, {v(r)}, {s(sW,4)}, 0 offen sc0 sc1
s_waitcnt vmcnt(0)
s_branch {lab}
{lab}_d:
s_mov_b64 exec, -1''')
    A.track = True

def km():
    A = Asm()
    gen.KSTAMP = False
    A(f's_cmp_ge_u32 s2, {224+NA}\ns_cbranch_scc1 KP_exit')
    pstamp(A, 'entry')
    ld_ptr(A, sW, WS); ld_ptr(A, sD, DBG)
    A('s_cmp_ge_u32 s2, 224\ns_cbranch_scc1 KP_aux')
    ld_ptr(A, sX, A_X); ld_ptr(A, sO, OUT)
    A(f's_load_dwordx8 s[40:47], s[0:1], {L_RE*8}\ns_load_dwordx8 s[48:55], s[0:1], {C_RE*8}')
    A('s_cmp_ge_u32 s2, 8\ns_cbranch_scc1 KM_nopf')
    A.track = False
    prefetch_code(A, 'km_kernel', HEAD_BYTES, 2, 28, 240)
    A.track = True
    A(f'''KM_nopf:
v_and_b32 {v(lane)}, 63, v0
v_lshrrev_b32 v2, 6, v0
v_readfirstlane_b32 {s(wave)}, v2
v_and_b32 {v(l15)}, 15, {v(lane)}
v_lshrrev_b32 {v(g)}, 4, {v(lane)}
v_lshlrev_b32 {v(VL16)}, 4, {v(lane)}
s_and_b32 {s(kh)}, {s(wave)}, 1
s_lshr_b32 {s(wm)}, {s(wave)}, 1
s_lshl_b32 {s(st)}, {s(kh)}, 7
v_xor_b32 {v(VL16X)}, {s(st)}, {v(VL16)}
s_cmp_eq_u32 s2, 0
s_cselect_b32 {s(sim)}, 0, 1.0''')
    tile_ids(A, rt, sl, st)
    A(f'''s_lshl_b32 {s(st+2)}, {s(rt)}, 2
s_add_u32 {s(st+2)}, {s(st+2)}, {s(wave)}
s_mul_i32 {s(st+2)}, {s(st+2)}, {16*896}
s_lshl_b32 {s(st)}, {s(wave)}, 14
s_mov_b32 m0, {s(st)}
s_min_u32 {s(role)}, {s(rt)}, 29
s_sub_u32 {s(role)}, {s(role)}, 26
s_cmp_lt_u32 {s(rt)}, 28
s_cselect_b32 {s(role)}, 1, {s(role)}
s_cmp_lt_u32 {s(rt)}, 14
s_cselect_b32 {s(role)}, 0, {s(role)}
s_lshl_b32 {s(m_off)}, {s(rt)}, 1
s_add_u32 {s(m_off)}, {s(m_off)}, {s(kh)}
s_mul_i32 {s(m_off)}, {s(m_off)}, {16*896}
s_cmp_ge_u32 {s(rt)}, 21
s_cselect_b32 {s(st+3)}, 21, 14
s_sub_u32 {s(st+3)}, {s(rt)}, {s(st+3)}
s_lshl_b32 {s(st+3)}, {s(st+3)}, 7
s_mul_i32 {s(st+4)}, {s(wave)}, {14*7168}
s_add_u32 {s(st+3)}, {s(st+3)}, {s(st+4)}
s_cmp_eq_u32 {s(role)}, 0
s_cselect_b32 {s(m_off)}, {s(m_off)}, 0
s_cselect_b32 {s(m_step)}, 896, 0
s_cmp_eq_u32 {s(role)}, 1
s_cselect_b32 {s(m_off)}, {s(st+3)}, {s(m_off)}
s_cselect_b32 {s(m_step)}, 7168, {s(m_step)}
s_cselect_b32 {s(m_dx)}, 0, 16
s_cselect_b64 vcc, -1, 0
s_mov_b32 {s(m_xr)}, 0
v_lshrrev_b32 v5, 3, {v(lane)}
v_mul_u32_u24 v5, 896, v5
v_and_b32 v6, 7, {v(lane)}
v_bfe_u32 v7, {v(lane)}, 4, 1
v_lshlrev_b32 v7, 2, v7
v_xor_b32 v6, v6, v7
v_lshl_add_u32 v5, v6, 4, v5
v_cndmask_b32 {v(vmb)}, {v(VL16)}, v5, vcc
s_mov_b32 {s(sinv)}, {f2u(INV448)}
s_mov_b32 {s(s448)}, {f2u(448.0)}''')
    A(f'''v_and_b32 {v(vj)}, 31, {v(lane)}
s_lshl_b32 {s(st)}, {s(sl)}, 6
s_lshl_b32 {s(st+1)}, {s(wm)}, 5
s_add_u32 {s(st)}, {s(st)}, {s(st+1)}
s_lshl_b32 {s(st+1)}, {s(kh)}, 3
v_xor_b32 {v(vj)}, {s(st+1)}, {v(vj)}
v_add_u32 {v(vj)}, {s(st)}, {v(vj)}
v_lshrrev_b32 {v(vd0)}, 5, {v(lane)}
v_lshlrev_b32 {v(vd0)}, 3, {v(vd0)}
s_mul_i32 {s(st)}, {s(kh)}, 224
v_add_u32 {v(vd0)}, {s(st)}, {v(vd0)}
v_cvt_f32_u32 {v(vd0)}, {v(vd0)}''')
    mq = []
    def memstart():
        A('s_waitcnt lgkmcnt(0)')
        srd(A, sX, S * D * 2); srd_ws(A, sW)
        pstamp(A, 'karg')
        for r in range(16):
            if r: A(f'v_xor_b32 {v(vt)}, {16*r}, {v(VL16)}')
            A.t('x', f'buffer_load_dwordx4 {v(vt if r else VL16)}, {s(sX,4)}, {s(st+2)} offen lds')
            if r < 15: A(f's_add_u32 m0, m0, 1024\ns_add_u32 {s(st+2)}, {s(st+2)}, 896')
        srd(A, sO, S * D * 4)
        A(f'''s_cmp_eq_u32 {s(wm)}, 0
s_cselect_b32 {s(sM)}, s44, s46
s_cselect_b32 {s(sM+1)}, s45, s47
s_cmp_ge_u32 {s(rt)}, 21
s_cselect_b32 s48, s50, s48
s_cselect_b32 s49, s51, s49
s_cmp_eq_u32 {s(role)}, 1
s_cselect_b32 {s(sM)}, s48, {s(sM)}
s_cselect_b32 {s(sM+1)}, s49, {s(sM+1)}
s_cmp_ge_u32 {s(role)}, 2
s_cselect_b32 {s(sM)}, s54, {s(sM)}
s_cselect_b32 {s(sM+1)}, s55, {s(sM+1)}
s_mov_b32 {s(sM+2)}, {D*D*2}
s_cselect_b32 {s(sM+2)}, {D*2}, {s(sM+2)}
s_cmp_eq_u32 {s(role)}, 3
s_cselect_b32 {s(sM+2)}, 0, {s(sM+2)}
s_mov_b32 {s(sM+3)}, 0x20000
s_lshl_b32 {s(st)}, {s(wave)}, 14
s_add_u32 {s(st)}, {s(st)}, {L_M}
s_mov_b32 m0, {s(st)}
s_lshl_b32 {s(st+3)}, {s(sl)}, 2
s_add_u32 {s(st+3)}, {s(st+3)}, {s(wave)}
s_mul_i32 {s(s_m1)}, {s(st+3)}, {28*1024}
s_add_u32 {s(s_m1)}, {s(s_m1)}, {WM1}
s_mul_i32 {s(s_sk)}, {s(st+3)}, {14*1024}
s_add_u32 {s(s_sk)}, {s(s_sk)}, {WSK}
s_lshl_b32 {s(st+3)}, {s(st+3)}, 5
s_lshl_b32 {s(s_wc)}, {s(sl)}, 1
s_add_u32 {s(s_wc)}, {s(s_wc)}, {s(kh)}
s_lshl_b32 {s(s_wc)}, {s(s_wc)}, 1
s_add_u32 {s(s_wc)}, {s(s_wc)}, {s(wm)}
s_mul_i32 {s(s_wc)}, {s(s_wc)}, {28*1024}
s_add_u32 {s(s_wc)}, {s(s_wc)}, {WC}
v_lshl_add_u32 v5, {v(l15)}, 1, {s(st+3)}
s_min_u32 {s(st)}, {s(rt)}, 13
s_lshl_b32 {s(st)}, {s(st)}, 6
v_and_b32 v6, 31, {v(lane)}
v_lshl_add_u32 v6, v6, 1, {s(st)}
v_lshlrev_b32 v2, 2, v0
v_mov_b32 v7, -1
s_lshl_b32 {s(st)}, s2, 10
s_add_u32 {s(st)}, {s(st)}, {AGG}''')
        for i in range(16):
            mq.append(('m', f'''v_xor_b32 {v(vt)}, {s(m_xr)}, {v(vmb)}
buffer_load_dwordx4 {v(vt)}, {s(sM,4)}, {s(m_off)} offen lds
s_add_u32 m0, m0, 1024
s_add_u32 {s(m_off)}, {s(m_off)}, {s(m_step)}
s_add_u32 {s(m_xr)}, {s(m_xr)}, {s(m_dx)}'''))
        A.t('pf', f'buffer_store_dword v7, v2, {s(sW,4)}, {s(st)} offen sc1')
        for r, sr in ((lre, 40), (lim, 42), (ldt, 52), (hd, 54)):
            A.t('lam', f'global_load_ushort {v(r)}, v5, {s(sr,2)}')
        for r, sr in ((mre, 40), (mim, 42), (mdt, 52)):
            A.t('lam', f'global_load_ushort {v(r)}, v6, {s(sr,2)}')
    gen_q(A, QA, vj, vd0, math.sqrt(1.0 / 448), CH, TM, sinv, s448, hook=memstart)
    A.bg(64)
    A(f'''s_lshl_b32 {s(st)}, {s(wave)}, 12
s_add_u32 {s(st)}, {s(st)}, {L_XRED}
s_xor_b32 {s(st+1)}, {s(st)}, 4096
v_add_u32 {v(rw)}, {s(st)}, {v(VL16)}
v_add_u32 {v(rr)}, {s(st+1)}, {v(VL16)}
v_and_b32 {v(ga_)}, 31, {v(lane)}
v_lshrrev_b32 {v(gt_)}, 5, {v(lane)}
v_xor_b32 {v(gt_)}, {v(gt_)}, {v(l15)}
v_lshlrev_b32 {v(gt_)}, 4, {v(gt_)}
v_lshl_add_u32 {v(ga_)}, {v(ga_)}, 10, {v(gt_)}
v_cmp_eq_u32 s[44:45], 1, {v(g)}
v_cmp_eq_u32 s[46:47], 2, {v(g)}
v_cmp_eq_u32 s[48:49], 3, {v(g)}''')
    pstamp(A, 'qgen')
    A.wait_vm('x')
    A('s_barrier')
    pstamp(A, 'xin')
    zr = (ta_, ia_, 5, 6)
    A.fq = capture(col_tables1, lambda B: zepi_setup(B, zr, 128, ZC, SSQ0))
    A.bgq = mq
    gemm_rows(A, NF0)
    pstamp(A, 'xgemm')
    A(f's_load_dword {s(s_k)}, {s(sD,2)}, 0')
    ksplit_reduce(A, X0, X1, rw, rr, XB, True)
    def gate():
        lab = A.label('gate')
        A.track = False
        A(f'''s_cmp_ge_u32 {s(s_k)}, {NA}
s_cbranch_scc1 {lab}_d
v_mov_b32 v2, 0
s_mov_b32 {s(s_k)}, 0
{lab}:
global_load_dword v7, v2, {s(sD,2)} sc1
s_add_u32 {s(s_k)}, {s(s_k)}, 1
s_cmp_gt_u32 {s(s_k)}, {SPIN}
s_cbranch_scc1 {lab}_d
s_waitcnt vmcnt(0)
v_cmp_gt_u32 vcc, {NA}, v7
s_cbranch_vccnz {lab}
{lab}_d:''')
        A.track = True
    zepi(A, X0, X1, XB, zr, 128, gate)
    pstamp(A, 'stored')
    tab2 = capture(col_tables2)
    for ln in tab2[:NT2]: A(ln)
    tab3 = tab2[NT2:]; tab2 = []
    lr, li, t0, t1, gr, gi = range(238, 244)
    lam_calc(A, mre, mim, mdt, lr, li, t0, t1)
    A(f"""v_subrev_f32 {v(lr)}, 1.0, {v(lr)}
v_mul_f32 {v(t0)}, {v(mre)}, {v(mre)}
v_fmac_f32 {v(t0)}, {v(mim)}, {v(mim)}
v_rcp_f32 {v(t0)}, {v(t0)}
v_mul_f32 {v(gr)}, {v(lr)}, {v(mre)}
v_fmac_f32 {v(gr)}, {v(li)}, {v(mim)}
v_mul_f32 {v(gi)}, {v(li)}, {v(mre)}
v_fma_f32 {v(gi)}, -{v(lr)}, {v(mim)}, {v(gi)}
v_mul_f32 {v(gr)}, {v(gr)}, {v(t0)}
v_mul_f32 {v(gi)}, {v(gi)}, {v(t0)}
v_add_u32 {v(ga_)}, {L_M}, {v(ga_)}""")
    sig0 = None
    if KSIG < 0:
        pstamp(A, 'tab2')
        signal16(A, 'st', F_P0)
        pstamp(A, 'sig0')
    else:
        A.wait_vm('m')
        A('s_barrier')
        pstamp(A, 'tab2')
        pstamp(A, 'sig0')
        vm0 = list(A.vm)
        def sig0():
            A.vm = list(vm0)
            signal16(A, 'st', F_P0)
            A.track = False
            if STAMPS == 1 and 'sig0' in NAMES: A(f's_memrealtime {s(60+2*NAMES.index("sig0"),2)}')
    A.track = False
    A(f's_cmp_eq_u32 {s(role)}, 1\ns_cbranch_scc1 KM_m2\ns_cmp_eq_u32 {s(role)}, 3\ns_cbranch_scc1 KM_none')
    P0 = poll16(F_P0)
    A.fq = tab2 + f"""v_bfe_u32 v244, {v(lane)}, 4, 1
v_mul_u32_u24 v244, {28*1024}, v244
v_lshrrev_b32 v245, 5, {v(lane)}
v_lshl_add_u32 v244, v245, 8, v244
v_lshl_add_u32 v244, {v(l15)}, 4, v244
s_mul_i32 {s(st+2)}, {s(rt)}, 28
s_lshl_b32 {s(st+1)}, {s(sl)}, 1
s_add_u32 {s(st+2)}, {s(st+2)}, {s(st+1)}
s_add_u32 {s(st+2)}, {s(st+2)}, {s(wm)}
s_lshl_b32 {s(st+2)}, {s(st+2)}, 11
s_lshl_b32 {s(st+1)}, {s(kh)}, 9
s_add_u32 {s(st+2)}, {s(st+2)}, {s(st+1)}
s_add_u32 {s(st+2)}, {s(st+2)}, {WM1}
s_lshr_b32 {s(st+4)}, {s(rt)}, 1
s_lshl_b32 {s(st+4)}, {s(st+4)}, 10
s_add_u32 {s(st+4)}, {s(st+4)}, {F_M1}""".split('\n')
    gemm_rows(A, NF1, sig0)
    if PI0 == 0: poll_issue(A, P0)
    ksplit_reduce(A, X0, X1, rw, rr, XB, True)
    if PI0 == 1: poll_issue(A, P0)
    A(f"""s_cmp_eq_u32 {s(role)}, 2
s_cbranch_scc1 KM_d
s_or_b32 {s(st+1)}, {s(sl)}, {s(wave)}
s_cmp_lg_u32 {s(st+1)}, 0
s_cbranch_scc1 KM_nodc
v_cmp_gt_u32 vcc, 32, {v(lane)}
v_cndmask_b32 {v(X0+1)}, {v(X0+1)}, 0, vcc
v_cndmask_b32 {v(X1+1)}, {v(X1+1)}, 0, vcc
KM_nodc:""")
    o = XB + 16
    G = v(gr, 2)
    for i, r in enumerate((0, 2, 8, 10)):
        A(f'v_pk_mul_f32 {v(o+2*i,2)}, {v(X0+r,2)}, {G} op_sel_hi:[1,0]\nv_pk_mul_f32 {v(o+8+2*i,2)}, {v(X1+r,2)}, {G} op_sel_hi:[1,0]')
    for i, r in enumerate((0, 2, 8, 10)):
        A(f'v_pk_fma_f32 {v(o+2*i,2)}, {v(X1+r,2)}, {G}, {v(o+2*i,2)} op_sel:[0,1,0] op_sel_hi:[1,1,1] neg_lo:[1,0,0] neg_hi:[1,0,0]')
        A(f'v_pk_fma_f32 {v(o+8+2*i,2)}, {v(X0+r,2)}, {G}, {v(o+8+2*i,2)} op_sel:[0,1,0] op_sel_hi:[1,1,1]')
    for i in range(8):
        A(f'v_cvt_pk_bf16_f32 {v(XB+i)}, {v(o+2*i)}, {v(o+2*i+1)}')
    A(f"""buffer_store_dwordx4 {v(XB,4)}, v244, {s(sW,4)}, {s(st+2)} offen sc1
buffer_store_dwordx4 {v(XB+4,4)}, v244, {s(sW,4)}, {s(st+2)} offen offset:1024 sc1
s_branch KM_join
KM_d:
v_lshrrev_b32 v244, 1, {v(lane)}
s_lshl_b32 {s(st)}, {s(sl)}, 8
s_lshl_b32 {s(st+1)}, {s(wm)}, 7
s_add_u32 {s(st)}, {s(st)}, {s(st+1)}
s_lshl_b32 {s(st+1)}, {s(kh)}, 5
s_add_u32 {s(st)}, {s(st)}, {s(st+1)}
s_add_u32 {s(st)}, {s(st)}, {ZD}
s_mov_b32 {s(st+4)}, {F_ZD}
s_mov_b32 exec_lo, 1
s_mov_b32 exec_hi, 1
buffer_store_dwordx4 {v(X0,4)}, v244, {s(sW,4)}, {s(st)} offen sc1
buffer_store_dwordx4 {v(X0+8,4)}, v244, {s(sW,4)}, {s(st)} offen offset:64 sc1
s_mov_b64 exec, 0xff
v_mov_b32 v244, 1
v_lshlrev_b32 v245, 7, {v(lane)}
s_waitcnt vmcnt(0)
buffer_atomic_add v244, v245, {s(sW,4)}, {s(st+4)} offen sc1
s_mov_b64 exec, -1
s_mov_b32 {s(st+4)}, {F_NO}
s_branch KM_join""")
    a0, a1 = 244, 245
    A(f"""KM_m2:
v_bfe_u32 {v(a0)}, {v(lane)}, 2, 2
v_lshrrev_b32 {v(a1)}, 5, {v(lane)}
v_lshl_add_u32 {v(a1)}, {v(a1)}, 3, {v(a0)}
v_lshlrev_b32 {v(a1)}, 7, {v(a1)}
v_lshrrev_b32 {v(a0)}, 1, {v(a0)}
v_lshl_add_u32 {v(a1)}, {v(a0)}, 6, {v(a1)}
v_bfe_u32 {v(a0)}, {v(lane)}, 1, 1
v_xor_b32 {v(a0)}, {s(kh)}, {v(a0)}
v_lshl_add_u32 {v(a1)}, {v(a0)}, 5, {v(a1)}
v_bfe_u32 {v(a0)}, {v(lane)}, 4, 1
v_lshl_add_u32 {v(a1)}, {v(a0)}, 4, {v(a1)}
v_and_b32 {v(a0)}, 1, {v(lane)}
v_lshl_add_u32 {v(a1)}, {v(a0)}, 3, {v(a1)}
s_lshl_b32 {s(st)}, {s(kh)}, 15
s_add_u32 {s(st)}, {s(st)}, {L_M}
v_add_u32 {v(a0)}, {s(st)}, {v(a1)}
v_xor_b32 {v(a1)}, 64, {v(a0)}""")
    def rd2(k):
        b = XB + 8 * (k % 4)
        for mt in range(2):
            for hf in range(2):
                A(f'ds_read_b64_tr_b16 {v(b+4*mt+2*hf,2)}, {v(a0+mt)} offset:{k*2048+(2048 if k >= 7 else 0)+hf*512}')
    A.fq = tab2 + f"""v_xor_b32 {v(rr)}, 0x80, {v(rr)}
s_min_u32 {s(st+2)}, {s(rt)}, 21
s_lshr_b32 {s(st+2)}, {s(st+2)}, 0
s_sub_u32 {s(st+2)}, {s(st+2)}, 14
s_mul_i32 {s(st+2)}, {s(st+2)}, 37
s_lshr_b32 {s(st+2)}, {s(st+2)}, 8
s_mul_i32 {s(st+1)}, {s(st+2)}, 7
s_add_u32 {s(st+1)}, {s(st+1)}, 14
s_sub_u32 {s(st+1)}, {s(rt)}, {s(st+1)}
s_lshl_b32 {s(st)}, {s(sl)}, 1
s_add_u32 {s(st)}, {s(st)}, {s(st+2)}
s_lshl_b32 {s(st)}, {s(st)}, 1
s_add_u32 {s(st)}, {s(st)}, {s(wm)}
s_mul_i32 {s(st)}, {s(st)}, 28
s_lshl_b32 {s(st+1)}, {s(st+1)}, 2
s_add_u32 {s(st)}, {s(st)}, {s(st+1)}
s_add_u32 {s(st)}, {s(st)}, {s(kh)}
s_lshl_b32 {s(st)}, {s(st)}, 10
s_add_u32 {s(st+2)}, {s(st)}, {WC}
s_lshl_b32 {s(st+4)}, {s(sl)}, 10
s_add_u32 {s(st+4)}, {s(st+4)}, {F_M2}""".split('\n')
    gemm(A, rd2, 4, lambda k, i: f'{v(XB+8*(k%4)+4*i,4)}, {v(QA+4*k,4)}', NF1, sig0)
    if PI0 == 0: poll_issue(A, P0)
    ksplit_reduce(A, X0, X1, rw, rr, XB, True)
    if PI0 == 1: poll_issue(A, P0)
    for mt, T in enumerate((X0, X1)):
        for i, r in enumerate((0, 2, 8, 10)):
            A(f'v_cvt_pk_bf16_f32 {v(XB+16+4*mt+i)}, {v(T+r)}, {v(T+r+1)}')
    A(f"""buffer_store_dwordx4 {v(XB+16,4)}, {v(VL16X)}, {s(sW,4)}, {s(st+2)} offen sc1
buffer_store_dwordx4 {v(XB+20,4)}, {v(VL16X)}, {s(sW,4)}, {s(st+2)} offen offset:2048 sc1
s_branch KM_join
KM_none:""")
    if sig0: sig0()
    poll_issue(A, P0)
    A(f"""s_waitcnt vmcnt(0)
s_mov_b32 {s(st+4)}, {F_NO}
KM_join:
s_mov_b32 {s(role)}, {s(st+4)}""")
    A.track = True
    pstamp(A, 'mdone')
    A.vm = []
    ck = 246
    def mid0():
        for i, r in enumerate((sAG0, sAG1)):
            A(f's_add_u32 {s(r)}, s4, {AGG + i*AGG_L}\ns_addc_u32 {s(r+1)}, s5, 0')
            srd(A, r, AGG_L)
        A(f"""s_mov_b32 {s(s_redo)}, 0
s_lshl_b32 {s(st+2)}, {s(sl)}, 10
s_and_b32 {s(st+3)}, s2, 7
s_lshl_b32 {s(st+3)}, {s(st+3)}, 7
s_add_u32 {s(st+2)}, {s(st+2)}, {s(st+3)}
s_add_u32 {s(st+2)}, {s(st+2)}, {F_M1}
v_mul_u32_u24 {v(ck)}, {F_M2 - F_M1}, {v(lane)}
v_add_u32 {v(ck)}, {s(st+2)}, {v(ck)}
v_mov_b32 {v(ck+1)}, 56""")
    poll_check(A, 2)
    A(col_poll_pre(ZC, SSQ0))
    cw = 250
    def mid1():
        A(f"""s_and_b32 {s(st)}, s2, 15
s_lshl_b32 {s(st)}, {s(st)}, 2
s_add_u32 {s(st)}, {s(st)}, {s(wave)}
s_lshl_b32 {s(st)}, {s(st)}, 7
s_add_u32 {s(st)}, {s(st)}, {F_W}
v_mov_b32 {v(cw)}, {s(st)}
v_mov_b32 {v(cw+1)}, {NA}""")
        chk_issue(A, cw, 1)
        mid0()
        for ln in tab3: A(ln)
        A(f'v_mov_b32 {v(CT+2)}, {f2u(1e-5*2048.0*2048.0)}')
    col_poll(A, ZC, SSQ0, mid1)
    A(f"""v_mov_b32 v5, 1
v_lshlrev_b32 v6, 7, {v(lane)}
s_mov_b64 exec, 0xff
buffer_atomic_add v5, v6, {s(sW,4)}, {s(role)} offen sc1
s_mov_b64 exec, -1""")
    A.track = True
    chk_wait(A, cw, st + 5, 1)
    col_wload(A, st + 5)
    def hook(i):
        if i == MH: chk_issue(A, ck)
        if i == MH + MD:
            chk_wait(A, ck, st + 5); q_m1(A)
    col_compute(A, ZB, True, hook)
    def pre(i):
        if i == 0 and MH + MD > 4:
            chk_wait(A, ck, st + 5); q_m1(A); A.bg(NDX)
    ce, cp = 170, 176
    def shook(ks):
        if ks == -1:
            A(f'''s_and_b32 {s(st)}, s2, 15
s_lshl_b32 {s(st)}, {s(st)}, 2
s_add_u32 {s(st)}, {s(st)}, {s(wave)}
s_lshl_b32 {s(st)}, {s(st)}, 7
s_add_u32 {s(st)}, {s(st)}, {gen_p.F_CE}
v_mov_b32 {v(ce)}, {s(st)}
v_mov_b32 {v(ce+1)}, 28''')
        if ks == 100 and 'cb' in NOD:
            A(f'v_add_u32 {v(cp)}, {gen_p.F_PF1 - gen_p.F_CE}, {v(ce)}\nv_mov_b32 {v(cp+1)}, {NA}')
            chk_issue(A, cp, 1)
        if ks == 101 and 'cb' in NOD: chk_wait(A, cp, st + 5, 1)
        if ks == CEK - 4: chk_issue(A, ce, 1)
        if ks == CEK:
            chk_wait(A, ce, st + 5, 1)
            rest = A.bgq; A.bgq = []; q_sk(A, WSC); A.bgq += rest
    layers(A, lre, lim, ldt, pre, shook)
    kend(A)

    A('KP_aux:')
    A.track = False
    sI, sI2 = 8, 12
    arr, w4, gq, hf, u = 41, 23, 24, 42, 27
    ld_ptr(A, sI, A_WR); ld_ptr(A, sI2, A_WI)
    A(f'''v_and_b32 {v(lane)}, 63, v0
v_lshrrev_b32 v2, 6, v0
v_readfirstlane_b32 {s(wave)}, v2
s_sub_u32 {s(u)}, s2, 224
s_and_b32 {s(hf)}, {s(u)}, 1
s_bfe_u32 {s(arr)}, {s(u)}, 0x10001
s_bfe_u32 {s(w4)}, {s(u)}, 0x20002
s_lshr_b32 {s(gq)}, {s(u)}, 4
s_lshl_b32 {s(st)}, {s(gq)}, 3
s_lshl_b32 {s(st+1)}, {s(wave)}, 1
s_add_u32 {s(st)}, {s(st)}, {s(st+1)}
s_lshl_b32 {s(st)}, {s(st)}, 2
s_add_u32 {s(st)}, {s(st)}, {s(w4)}
s_lshl_b32 {s(st)}, {s(st)}, 1
s_add_u32 {s(st)}, {s(st)}, {s(hf)}
s_mul_i32 {s(st+2)}, {s(st)}, 3600
s_lshl_b32 {s(st)}, {s(wave)}, 13
s_mov_b32 m0, {s(st)}
v_lshlrev_b32 v2, 4, {v(lane)}
v_lshlrev_b32 v3, 4, v0
v_mov_b32 v8, 0
v_mov_b32 v9, 0
v_mov_b32 v10, 0
v_mov_b32 v11, 0
s_lshl_b32 {s(st)}, {s(u)}, 13
s_add_u32 {s(st)}, {s(st)}, {FLAGS}
s_add_u32 {s(st+1)}, {s(st)}, 4096
s_waitcnt lgkmcnt(0)
s_cmp_eq_u32 {s(arr)}, 0
s_cselect_b32 {s(sI)}, {s(sI)}, {s(sI2)}
s_cselect_b32 {s(sI+1)}, {s(sI+1)}, {s(sI2+1)}''')
    srd(A, sI, S * 450); srd_ws(A, sW)
    A(f'buffer_store_dwordx4 v[8:11], v3, {s(sW,4)}, {s(st)} offen sc1\nbuffer_store_dwordx4 v[8:11], v3, {s(sW,4)}, {s(st+1)} offen sc1')
    for un in range(2):
        for e in range(2):
            for i in range(4):
                A(f'buffer_load_dwordx4 v2, {s(sI,4)}, {s(st+2)} offen offset:{i*1024} lds')
            if e == 0: A(f's_add_u32 m0, m0, 4096\ns_add_u32 {s(st+2)}, {s(st+2)}, {4*7200}')
        if un == 0: A(f's_add_u32 m0, m0, {32768-4096}\ns_add_u32 {s(st+2)}, {s(st+2)}, {128*3600-4*7200}')
    A(f'''s_waitcnt vmcnt(16)
s_barrier
s_cmp_lg_u32 {s(wave)}, 0
s_cbranch_scc1 KM_ag
v_mov_b32 v8, 1
s_mov_b64 exec, 1
global_atomic_add v9, v8, {s(sD,2)} sc1
s_mov_b64 exec, -1
KM_ag:
v_and_b32 v3, 7, {v(lane)}
v_mul_u32_u24 v4, 450, v3
v_lshrrev_b32 v5, 3, v0
v_lshl_add_u32 v4, v5, 1, v4
v_add_u32 v6, 448, v4
v_cmp_eq_u32 vcc, 0, v5
v_cndmask_b32 v6, v4, v6, vcc
v_lshlrev_b32 v5, 13, v5
v_lshl_add_u32 v5, v3, 4, v5
s_lshl_b32 {s(st)}, {s(w4)}, 1
s_add_u32 {s(st)}, {s(st)}, {s(arr)}
s_lshl_b32 {s(st)}, {s(st)}, 10
s_lshl_b32 {s(st+1)}, {s(gq)}, 8
s_add_u32 {s(st)}, {s(st)}, {s(st+1)}
s_lshl_b32 {s(st+1)}, {s(hf)}, 7
s_add_u32 {s(st)}, {s(st)}, {s(st+1)}
s_add_u32 {s(st)}, {s(st)}, {WF}
s_mov_b32 {s(st+3)}, 0
s_waitcnt vmcnt(0)
s_barrier''')
    if STAMPS == 1: A('s_memrealtime s[62:63]')
    A(f's_lshr_b32 {s(st+4)}, {s(u)}, 3\ns_mul_i32 {s(st+4)}, {s(st+4)}, {PF_PART}\ns_add_u32 {s(st+4)}, {s(st+4)}, {PF_START}')
    prefetch_code(A, 'km_kernel', PF_PART, 2, 44, 72, st + 4)
    A('KM_wt:')
    def wt_fin(it):
        b = 16 + 8 * (it % 2)
        o = 32 + 4 * it
        for i in range(4):
            A(f'v_or_b32 {v(o+i)}, {v(b+2*i)}, {v(b+2*i+1)}')
        A(f'buffer_store_dwordx4 {v(o,4)}, v5, {s(sW,4)}, {s(st)} offen sc1\ns_add_u32 {s(st)}, {s(st)}, {32*8192}')
    for it in range(7):
        b = 16 + 8 * (it % 2)
        for e in range(8):
            A(f'ds_read_u16{"_d16_hi" if e & 1 else ""} {v(b+e)}, {v(6 if it == 0 else 4)} offset:{e*4096+it*64}')
        if it >= 1:
            A('s_waitcnt lgkmcnt(8)')
            wt_fin(it - 1)
    A('s_waitcnt lgkmcnt(0)')
    wt_fin(6)
    A(f'''s_sub_u32 {s(st)}, {s(st)}, {7*32*8192-512}
v_add_u32 v4, 32768, v4
v_add_u32 v6, 32768, v6
s_add_u32 {s(st+3)}, {s(st+3)}, 1
s_cmp_lt_u32 {s(st+3)}, 2
s_cbranch_scc1 KM_wt
s_load_dword {s(s_k)}, {s(sD,2)}, 0
s_waitcnt lgkmcnt(0)''')
    if STAMPS == 1: A('s_memrealtime s[64:65]')
    gate()
    A.track = False
    A(f's_mov_b32 {s(st+1)}, {F_W}')
    signal(A, None, st + 1, 64, 128)
    A.track = False
    def astamp():
        if STAMPS != 1: return
        A('s_memrealtime s[100:101]\ns_waitcnt lgkmcnt(0)')
        for i in range(21): A(f'v_mov_b32 {v(8+i)}, {s(60+2*i)}')
        A(f'v_lshrrev_b32 v5, 6, v0\nv_lshlrev_b32 v5, 7, v5\ns_lshl_b32 s59, s2, 9\ns_add_u32 s59, s59, {STAMP + 131072}')
        for i in range(6): A(f'buffer_store_dwordx4 {v(8+4*i,4)}, v5, {s(sW,4)}, s59 offen offset:{16*i}')
    astamp()
    A(f's_cmp_ge_u32 s2, {224+28}\ns_cbranch_scc1 KP_pf')
    def zd_wait():
        A.track = True
        poll(A, f's_and_b32 {s(st)}, s2, 7\ns_lshl_b32 {s(st)}, {s(st)}, 7\ns_add_u32 {s(st)}, {s(st)}, {F_ZD}\nv_mov_b32 v5, {s(st)}\nv_mov_b32 v6, 28\ns_mov_b64 s[50:51], 1')
        A.track = False
    aux_tail(A, zd_wait)
    return A.render()

def main():
    txt = build([('km', km(), 256, 256)], [('km', 224 + NA, LDS_BYTES)])
    txt = txt.replace('.amdhsa_next_free_sgpr 96', '.amdhsa_next_free_sgpr 102')
    fn = sys.argv[1]
    open(fn, 'w').write(txt)
    if PROBE: print(list(enumerate(NAMES)))
    if STAMPS == 1: open(fn + '.names', 'w').write(' '.join(NAMES))

if __name__ == '__main__':
    main()
```

```python
import sys
sys.path.insert(0, 'dev')
from gen import *
import gen

NREP = int(os.environ.get('NREP', '16')); NSH = int(os.environ.get('NSH', '16')); PMASK = int(os.environ.get('PMASK', '1'))
NOD = set(os.environ.get('NOD', 'cb,cc,ca1,ca0').split(','))
F_PF1 = F_PF2 = F_PF3 = F_PF4 = None
LATE = int(os.environ.get('LATE', '0'))
F_CA = [FLAGS + 131072, FLAGS + 262144]
F_CC = FLAGS + 393216
F_CB = [FLAGS, FLAGS + 4096]
F_CD = FLAGS + 16384
F_CE = FLAGS + 20480
NAUX = 21
SPIN = 0x8000
ZSC = os.environ.get('ZSC', ' sc1'); HSC = os.environ.get('HSC', ' sc1'); WSC = os.environ.get('WSC', '')
CBG = int(os.environ.get('CBG', '3'))
MH = int(os.environ.get('MH', '3'))
QSC = os.environ.get('QSC', ' sc1')
M1L = int(os.environ.get('M1L', '16')); M1S = int(os.environ.get('M1S', '0'))
LBK = int(os.environ.get('LBK', '8'))

L_RX = 57344
L_RED = 114688
L_COL = 131072
LDS_BYTES = 147456

lane, l15, g = 1, 3, 4
VL16, VL16X = 231, 230
WCV = 232
PR, PI = 190, 206
mgr, mgi, Lgr, Lgi, L4r, L4i, hd = range(222, 229)
sW, sAG0, sAG1, sO = 4, 8, 12, 16
wave, kh, wm, rt, sl, sim = 20, 21, 22, 23, 24, 25
s_m1, s_sk, s_wc = 26, 27, 58
st = 28
s_sk0, s_wc0, s_redo = 34, 35, 36
s_pf = 37
REDO = 256

NAMES = []
SKIP = int(os.environ.get('SSKIP', '0'))
_cnt = [0]
PROBE = os.environ.get('PROBE')
_pc = [0]
def pstamp(A, name):
    if PROBE:
        i, j = [int(x) for x in PROBE.split(',')]
        if _pc[0] == i: A('s_memrealtime s[60:61]')
        if _pc[0] == j: A('s_memrealtime s[62:63]')
        NAMES.append(name); _pc[0] += 1
        return
    if STAMPS != 1: return
    _cnt[0] += 1
    if _cnt[0] > 1 and _cnt[0] <= SKIP + 1: return
    if len(NAMES) >= 20: return
    A(f's_memrealtime {s(60+2*len(NAMES),2)}'); NAMES.append(name)

def capture(*fns):
    B = Asm()
    for f in fns: f(B)
    return [x[1].text for x in B.lines]

def wc_reg(k):
    return a(168 + 4 * k, 4) if k < 22 else v(WCV + 4 * (k - 22), 4)

def cmul(A, dr, di, ar, ai, br, bi):
    A(f'''v_mul_f32 {v(dr)}, {v(ar)}, {v(br)}
v_mul_f32 {v(di)}, {v(ar)}, {v(bi)}
v_fma_f32 {v(dr)}, -{v(ai)}, {v(bi)}, {v(dr)}
v_fmac_f32 {v(di)}, {v(ai)}, {v(br)}''')

def cfma(A, dr, di, ar, ai, br, bi):
    A(f'''v_fmac_f32 {v(dr)}, {v(ar)}, {v(br)}
v_fmac_f32 {v(di)}, {v(ar)}, {v(bi)}
v_fma_f32 {v(dr)}, -{v(ai)}, {v(bi)}, {v(dr)}
v_fmac_f32 {v(di)}, {v(ai)}, {v(br)}''')

def q_m1(A):
    for ks in range(14):
        for nt in range(2):
            i = 2 * ks + nt
            txt = f'buffer_load_dwordx4 {a(4*i,4)}, {v(VL16)}, {s(sW,4)}, {s(s_m1)} offen offset:{(i&3)*1024}'
            if (i & 3) == 3: txt += f'\ns_add_u32 {s(s_m1)}, {s(s_m1)}, 4096'
            A.bgq.append((f'm1_{ks}', txt))

def q_sk(A, sc):
    for ks in range(14):
        txt = f'buffer_load_dwordx4 {a(112+4*ks,4)}, {v(VL16)}, {s(sW,4)}, {s(s_sk)} offen offset:{(ks&3)*1024}{sc}'
        if (ks & 3) == 3: txt += f'\ns_add_u32 {s(s_sk)}, {s(s_sk)}, 4096'
        A.bgq.append(('sk', txt))

def q_wc(A, va, sc):
    for k in range(28):
        txt = f'buffer_load_dwordx4 {wc_reg(k)}, {v(va)}, {s(sW,4)}, {s(s_wc)} offen offset:{(k&3)*1024}{sc}'
        if (k & 3) == 3: txt += f'\ns_add_u32 {s(s_wc)}, {s(s_wc)}, 4096'
        A.bgq.append(('wc', txt))

XL = int(os.environ.get('XL', '0')); HST = os.environ.get('HST', ' sc1')
def signal(A, tag, addr_s, nrep=1, rstride=0, sc=' sc1', drain=True):
    if drain: A.wait_vm(tag)
    lab = A.label('sig')
    A(f's_barrier\ns_cmp_lg_u32 {s(wave)}, 0\ns_cbranch_scc1 {lab}')
    A.track = False
    A(f'''v_mov_b32 v5, 1
v_mul_u32_u24 v6, {rstride}, {v(lane)}
{exec_mask(nrep)}
buffer_atomic_add v5, v6, {s(sW,4)}, {s(addr_s)} offen{sc}
s_mov_b64 exec, -1''')
    A.track = True
    A(f'{lab}:')

def late(A, base, per_tile):
    if not LATE: return
    lab = A.label('late')
    tr = A.track; A.track = False
    if per_tile: A(f's_lshl_b32 s59, {s(rt)}, 7\ns_add_u32 s59, s59, {base}\nv_mov_b32 v7, 0')
    else: A(f's_and_b32 s59, s2, {NSH-1}\ns_lshl_b32 s59, s59, 7\ns_add_u32 s59, s59, {base}\nv_mul_u32_u24 v7, {NSH*128}, {v(lane)}')
    A(f'''s_cmp_lg_u32 {s(wave)}, 0
s_cbranch_scc1 {lab}_a
v_mov_b32 v2, 1
{exec_mask(1 if per_tile else NREP)}
buffer_atomic_add v2, v7, {s(sW,4)}, s59 offen sc1
s_mov_b64 exec, -1
{lab}_a:
s_add_u32 s59, s2, {s(wave)}
s_mul_i32 s59, s59, 37
s_and_b32 s59, s59, 7
s_cmp_lg_u32 s59, 3
s_cbranch_scc1 {lab}_b
s_mov_b32 s59, 0
{lab}_c:
s_add_u32 s59, s59, 1
s_cmp_lt_u32 s59, {LATE}
s_cbranch_scc1 {lab}_c
{lab}_b:''')
    A.track = tr

EP = dict(zip(('cb', 'cc', 'ca1', 'p0', 'ca0'), [int(x) for x in os.environ.get('EP', '1,2,1,2,1').split(',')]))
def hint(A, kind, pos, base):
    if LATE or kind not in NOD or EP[kind] != pos: return
    lab = A.label('hint')
    tr = A.track; A.track = False
    A(f's_cmp_lg_u32 {s(wave)}, 0\ns_cbranch_scc1 {lab}')
    if kind == 'cb': A(f's_lshl_b32 s59, {s(rt)}, 7\ns_add_u32 s59, s59, {base}\nv_mov_b32 v7, 0')
    else: A(f's_and_b32 s59, s2, {NSH-1}\ns_lshl_b32 s59, s59, 7\ns_add_u32 s59, s59, {base}\nv_mul_u32_u24 v7, {NSH*128}, {v(lane)}')
    A(f'''v_mov_b32 v2, 1
{exec_mask(1 if kind == 'cb' else NREP)}
buffer_atomic_add v2, v7, {s(sW,4)}, s59 offen sc1
s_mov_b64 exec, -1
{lab}:''')
    A.track = tr

def signal16(A, tag, base, drain=True):
    if not drain: return
    A(f's_and_b32 {s(st+1)}, s2, {NSH-1}\ns_lshl_b32 {s(st+1)}, {s(st+1)}, 7\ns_add_u32 {s(st+1)}, {s(st+1)}, {base}')
    signal(A, tag, st + 1, NREP, NSH * 128, drain=drain)

def poll_issue(A, setup):
    lab = A.label('pi')
    A(f's_cmp_lg_u32 {s(wave)}, 0\ns_cbranch_scc1 {lab}')
    A(setup)
    tr = A.track; A.track = False
    A(f'v_mov_b32 v2, 0\ns_mov_b64 exec, s[50:51]\nbuffer_atomic_or v2, v5, {s(sW,4)}, 0 offen sc0 sc1\ns_mov_b64 exec, -1\n{lab}:')
    A.track = tr

def poll_check(A, n, drain=False):
    lab = A.label('poll')
    A(f's_cmp_lg_u32 {s(wave)}, 0\ns_cbranch_scc1 {lab}_d')
    A.track = False
    A(f'''s_mov_b32 {s(st)}, 0
s_mov_b64 exec, s[50:51]
s_waitcnt vmcnt({n})
{lab}:
v_cmp_gt_u32 vcc, v6, v2
s_add_u32 {s(st)}, {s(st)}, 1
s_and_b64 exec, vcc, vcc
s_cbranch_scc0 {lab}_d
s_cmp_gt_u32 {s(st)}, {SPIN}
s_cbranch_scc1 {lab}_d
v_mov_b32 v2, 0
buffer_atomic_or v2, v5, {s(sW,4)}, 0 offen sc0 sc1
s_waitcnt vmcnt(0)
s_branch {lab}''')
    A.track = True
    A(f'{lab}_d:\ns_mov_b64 exec, -1')
    if drain: A.wait_vm(None)
    A('s_barrier')
    pstamp(A, 'polled')

def poll(A, setup, mid=None):
    pstamp(A, 'prepoll')
    poll_issue(A, setup)
    n0 = A.issued
    if mid: mid()
    poll_check(A, A.issued - n0)

def poll16(base, extra=None):
    t = f'''s_and_b32 {s(st)}, s2, {NREP-1}
s_mul_i32 {s(st+1)}, {s(st)}, {NSH*128}
s_add_u32 {s(st+1)}, {s(st+1)}, {base}
v_and_b32 v5, {NSH-1}, {v(lane)}
v_lshlrev_b32 v5, 7, v5
v_add_u32 v5, {s(st+1)}, v5
v_mov_b32 v6, {224//NSH}
s_mov_b32 s50, {((1 << (NSH + (1 if extra else 0))) - 1) & 0xffffffff}
s_mov_b32 s51, {((1 << (NSH + (1 if extra else 0))) - 1) >> 32}'''
    if extra: t += '\n' + poll_extra(*extra)
    return t

def poll_extra(base, target):
    return f'''s_lshl_b32 {s(st+1)}, {s(st)}, 7
s_add_u32 {s(st+1)}, {s(st+1)}, {base}
v_mov_b32 v7, {s(st+1)}
v_cmp_lt_u32 vcc, {NSH-1}, {v(lane)}
v_cndmask_b32 v5, v5, v7, vcc
v_cndmask_b32 v6, v6, {target}, vcc'''

def flag_lane(nl, base, target):
    return f'''s_and_b32 {s(st)}, s2, {NREP-1}
s_lshl_b32 {s(st)}, {s(st)}, 7
s_add_u32 {s(st)}, {s(st)}, {base}
s_sub_u32 {s(st)}, {s(st)}, {s(st+1)}
v_mov_b32 v7, {s(st)}
v_cmp_le_u32 vcc, {nl}, {v(lane)}
v_cndmask_b32 v5, v5, v7, vcc
v_cndmask_b32 v6, v6, {target+1}, vcc'''

def exec_mask(n):
    m = (1 << n) - 1
    return f's_mov_b32 exec_lo, {m & 0xffffffff}\ns_mov_b32 exec_hi, {m >> 32}'

def canary_issue(A, nl, soff):
    A(exec_mask(nl))
    A.t('can', f'buffer_load_dword v7, v5, {s(sW,4)}, {s(soff)} offen sc1')
    A('s_mov_b64 exec, -1')

def canary_wait(A, nl, soff):
    pstamp(A, 'prepoll')
    lab = A.label('can')
    A(exec_mask(nl))
    A(f's_mov_b32 {s(st)}, 0')
    A.wait_vm('can')
    A.track = False
    A(f'''{lab}:
v_add_u32 v7, 1, v7
v_cmp_gt_u32 vcc, v6, v7
s_add_u32 {s(st)}, {s(st)}, 1
s_and_b64 exec, vcc, vcc
s_cbranch_scc0 {lab}_d
s_cmp_gt_u32 {s(st)}, {SPIN}
s_cbranch_scc1 {lab}_d
buffer_load_dword v7, v5, {s(sW,4)}, {s(soff)} offen sc1
s_waitcnt vmcnt(0)
s_branch {lab}
{lab}_d:
s_mov_b64 exec, -1''')
    A.track = True
    pstamp(A, 'polled')

def redo_check(A, x, y, target):
    lab = A.label('ok')
    A(f'''v_cmp_u_f32 vcc, {v(x)}, {v(y)}
s_cbranch_vccz {lab}
s_add_u32 {s(s_redo)}, {s(s_redo)}, 1
s_cmp_gt_u32 {s(s_redo)}, {REDO}
s_cbranch_scc1 {lab}
s_waitcnt vmcnt(0) lgkmcnt(0)
s_barrier
s_branch {target}
{lab}:''')

PFV = 200
def q_prefill(A, which):
    def add(va, setup):
        A.bgq.append(('pf', setup + f'\nbuffer_store_dwordx4 {v(PFV,4)}, {v(va)}, {s(sW,4)}, {s(s_pf)} offen sc1'))
    if which in ('hb', 'hb2'):
        add(VL16, f'''s_lshl_b32 {s(s_pf)}, {s(sl)}, 2
s_add_u32 {s(s_pf)}, {s(s_pf)}, {s(wave)}
s_lshl_b32 {s(s_pf)}, {s(s_pf)}, 10
s_mul_i32 {s(s_pf+1)}, {s(rt)}, 114688
s_add_u32 {s(s_pf)}, {s(s_pf)}, {s(s_pf+1)}
s_add_u32 {s(s_pf)}, {s(s_pf)}, {HB if which == 'hb' else HB2}''')
        for i in range(3): add(VL16, f's_add_u32 {s(s_pf)}, {s(s_pf)}, 28672')
    if which == 'zc2':
        add(PFV + 4, f'''v_lshlrev_b32 {v(PFV+4)}, 13, {v(g)}
v_lshl_add_u32 {v(PFV+4)}, {v(l15)}, 4, {v(PFV+4)}
s_lshl_b32 {s(s_pf)}, {s(sl)}, 2
s_add_u32 {s(s_pf)}, {s(s_pf)}, {s(wave)}
s_lshl_b32 {s(s_pf)}, {s(s_pf)}, 16
s_lshl_b32 {s(s_pf+1)}, {s(rt)}, 8
s_add_u32 {s(s_pf)}, {s(s_pf)}, {s(s_pf+1)}
s_add_u32 {s(s_pf)}, {s(s_pf)}, {ZC2}''')
        add(PFV + 4, f's_add_u32 {s(s_pf)}, {s(s_pf)}, 32768')
        add(PFV + 4, f's_add_u32 {s(s_pf)}, {s(s_pf)}, {ZU2 - ZC2}')
        add(PFV + 4, f's_sub_u32 {s(s_pf)}, {s(s_pf)}, 32768')
        A.bgq.append(('pf', f'''s_lshl_b32 {s(s_pf)}, {s(rt)}, 3
s_add_u32 {s(s_pf)}, {s(s_pf)}, {s(sl)}
s_lshl_b32 {s(s_pf)}, {s(s_pf)}, 8
s_add_u32 {s(s_pf)}, {s(s_pf)}, {SSQP}
s_mov_b64 exec, 0xffff
buffer_store_dwordx4 {v(PFV,4)}, {v(VL16)}, {s(sW,4)}, {s(s_pf)} offen sc1
s_mov_b64 exec, -1'''))
    if which == 'zb3':
        add(189, f'''s_mul_i32 {s(s_pf)}, {s(wave)}, {8*57344}
s_lshl_b32 {s(s_pf+1)}, s2, 8
s_add_u32 {s(s_pf)}, {s(s_pf)}, {s(s_pf+1)}
s_add_u32 {s(s_pf)}, {s(s_pf)}, {ZB3}''')
        add(189, f's_add_u32 {s(s_pf)}, {s(s_pf)}, 128')

ZI, SQ, WW = 8, 16, 72
C64, S64, N64, C32, S32, N32, TC, TS = 80, 88, 96, 104, 112, 120, 128, 136
ZR, ZM = 144, 152
XA, DR, DI, BR, BI = 16, 48, 56, 64, 68
CT = 160

def col_tables1(A):
    T = CT; nf, ang, dl, gf = T, T + 1, T + 2, T + 3
    cs = T + 8
    A(f'''s_lshl_b32 {s(st)}, {s(wave)}, 4
v_add_u32 v7, {s(st)}, {v(l15)}
v_cvt_f32_u32 {v(nf)}, v7
v_cvt_f32_u32 {v(gf)}, {v(g)}
v_mul_f32 {v(dl)}, {f2u(1/64)}, {v(nf)}
v_mul_f32 {v(ang)}, 4.0, {v(gf)}
v_mul_f32 {v(ang)}, {v(ang)}, {v(dl)}
v_mul_f32 {v(T+4)}, {f2u(13.0)}, {v(dl)}''')
    for e in range(8):
        A(f'v_cos_f32 {v(cs+e)}, {v(ang)}\nv_sin_f32 {v(cs+8+e)}, {v(ang)}')
        if e < 7: A(f'v_add_f32 {v(ang)}, {v(ang)}, {v(T+4 if e == 3 else dl)}')
    A(f'v_and_b32 v7, 1, v7\nv_lshlrev_b32 v7, 15, v7\nv_lshl_or_b32 v7, v7, 16, v7')
    for i in range(4):
        A(f'v_cvt_pk_bf16_f32 {v(C64+i)}, {v(cs+2*i)}, {v(cs+2*i+1)}')
        A(f'v_cvt_pk_bf16_f32 {v(S64+i)}, {v(cs+8+2*i)}, {v(cs+9+2*i)}')
    for i in range(4):
        A(f'v_xor_b32 {v(C64+4+i)}, v7, {v(C64+i)}\nv_xor_b32 {v(S64+4+i)}, v7, {v(S64+i)}')
    for i in range(8):
        A(f'v_xor_b32 {v(N64+i)}, 0x80008000, {v(S64+i)}')

def col_tables2(A):
    T = CT; nf, ang, dl, gf = T, T + 1, T + 2, T + 3
    cs = T + 8
    for mu in range(2):
        A(f'''v_lshrrev_b32 v7, 2, {v(l15)}
v_lshlrev_b32 v7, 3, v7
v_and_or_b32 v7, {v(l15)}, 3, v7
v_add_u32 v7, {4*mu}, v7
v_cvt_f32_u32 {v(dl)}, v7
v_mul_f32 {v(dl)}, {f2u(1/32)}, {v(dl)}
v_mul_f32 {v(ang)}, {f2u(8.0)}, {v(gf)}
v_mul_f32 {v(ang)}, {v(ang)}, {v(dl)}''')
        for e in range(8):
            A(f'v_cos_f32 {v(cs+e)}, {v(ang)}\nv_sin_f32 {v(cs+8+e)}, {v(ang)}')
            if e < 7: A(f'v_add_f32 {v(ang)}, {v(ang)}, {v(dl)}')
            if e & 1: A.bg(1)
        for i in range(4):
            A(f'v_cvt_pk_bf16_f32 {v(C32+4*mu+i)}, {v(cs+2*i)}, {v(cs+2*i+1)}')
            A(f'v_cvt_pk_bf16_f32 {v(S32+4*mu+i)}, {v(cs+8+2*i)}, {v(cs+9+2*i)}')
    for i in range(8):
        A(f'v_xor_b32 {v(N32+i)}, 0x80008000, {v(S32+i)}')
    A(f'''v_mul_f32 {v(dl)}, {f2u(1/2048)}, {v(nf)}
v_mul_f32 {v(ang)}, {f2u(8.0)}, {v(gf)}
v_mul_f32 {v(ang)}, {v(ang)}, {v(dl)}''')
    for e in range(8):
        A(f'v_cos_f32 {v(TC+e)}, {v(ang)}\nv_sin_f32 {v(TS+e)}, {v(ang)}')
        if e < 7: A(f'v_add_f32 {v(ang)}, {v(ang)}, {v(dl)}')
        if e & 1: A.bg(1)
    wa0, wa1, wb, ra0, ra1, t1, t2, oa = 184, 185, 186, 187, 188, T + 2, T + 5, 189
    A(f'''v_bfe_u32 {v(t1)}, {v(l15)}, 1, 2
s_lshl_b32 {s(st)}, {s(wave)}, 10
s_add_u32 {s(st)}, {s(st)}, {L_COL}
v_lshlrev_b32 {v(t2)}, 6, {v(l15)}
v_add_u32 {v(t2)}, {s(st)}, {v(t2)}
v_xor_b32 {v(wb)}, {v(g)}, {v(t1)}
v_lshl_add_u32 {v(wb)}, {v(wb)}, 4, {v(t2)}
v_and_b32 {v(wa0)}, 1, {v(g)}
v_lshlrev_b32 {v(wa0)}, 1, {v(wa0)}
v_xor_b32 {v(wa0)}, {v(wa0)}, {v(t1)}
v_lshl_add_u32 {v(wa0)}, {v(wa0)}, 4, {v(t2)}
v_lshrrev_b32 {v(t1)}, 1, {v(g)}
v_lshl_add_u32 {v(wa0)}, {v(t1)}, 3, {v(wa0)}
v_xor_b32 {v(wa1)}, 16, {v(wa0)}
v_lshrrev_b32 {v(t1)}, 2, {v(lane)}
v_lshlrev_b32 {v(ra0)}, 6, {v(t1)}
v_bfe_u32 {v(t1)}, {v(lane)}, 3, 2
v_bfe_u32 {v(t2)}, {v(lane)}, 1, 1
v_xor_b32 {v(t1)}, {v(t1)}, {v(t2)}
v_lshl_add_u32 {v(ra0)}, {v(t1)}, 4, {v(ra0)}
v_and_b32 {v(t1)}, 1, {v(lane)}
v_lshl_add_u32 {v(ra0)}, {v(t1)}, 3, {v(ra0)}
v_add_u32 {v(ra0)}, {L_COL}, {v(ra0)}
v_xor_b32 {v(ra1)}, 32, {v(ra0)}
v_lshrrev_b32 {v(t1)}, 1, {v(l15)}
v_mul_u32_u24 {v(t1)}, 57344, {v(t1)}
v_and_b32 {v(t2)}, 1, {v(l15)}
v_lshl_add_u32 {v(t2)}, {v(g)}, 1, {v(t2)}
s_and_b32 {s(st)}, s2, 3
s_lshl_b32 {s(st)}, {s(st)}, 1
v_xor_b32 {v(t2)}, {s(st)}, {v(t2)}
v_lshl_add_u32 {v(oa)}, {v(t2)}, 4, {v(t1)}''')

def col_loads(A, zc, ssq, sc):
    A(f'''v_lshlrev_b32 v5, 7, {v(l15)}
v_lshl_add_u32 v5, {v(g)}, 4, v5
s_lshl_b32 {s(st)}, {s(wave)}, 11
v_add_u32 v5, {s(st)}, v5
s_lshl_b32 {s(st+1)}, s2, 13
s_add_u32 {s(st+1)}, {s(st+1)}, {zc}
s_mov_b32 {s(st)}, {ssq}''')
    A.t('q', f'buffer_load_dwordx4 {v(SQ,4)}, v5, {s(sW,4)}, {s(st)} offen{sc}')
    A.t('q', f'buffer_load_dwordx4 {v(SQ+4,4)}, v5, {s(sW,4)}, {s(st)} offen offset:64{sc}')
    A.t('z', f'buffer_load_dwordx4 {v(ZI,4)}, v5, {s(sW,4)}, {s(st+1)} offen{ZSC}')
    A.t('z', f'buffer_load_dwordx4 {v(ZI+4,4)}, v5, {s(sW,4)}, {s(st+1)} offen offset:64{ZSC}')

def col_poll(A, zc, ssq, mid=None, val=False):
    if not val:
        A.t('q', f'buffer_load_dwordx4 {v(SQ,4)}, v5, {s(sW,4)}, {s(st+2)} offen sc1')
        A.t('q', f'buffer_load_dwordx4 {v(SQ+4,4)}, v5, {s(sW,4)}, {s(st+2)} offen offset:64 sc1')
        A.t('z', f'buffer_load_dwordx4 {v(ZI,4)}, v5, {s(sW,4)}, {s(st+1)} offen sc1')
        A.t('z', f'buffer_load_dwordx4 {v(ZI+4,4)}, v5, {s(sW,4)}, {s(st+1)} offen offset:64 sc1')
        if mid: mid()
        A.wait_vm('q')
        for i in range(8): A(f'v_fma_f32 {v(SQ+i)}, {v(SQ+i)}, {s(st+4)}, {v(CT+2)}')
        for i in range(8): A(f'v_rsq_f32 {v(SQ+i)}, {v(SQ+i)}')
        return
    lab = A.label('cp')
    A.track = False
    if QSC != ' sc1':
        A(f'''buffer_load_dwordx4 {v(SQ,4)}, v5, {s(sW,4)}, {s(st+2)} offen{QSC}
buffer_load_dwordx4 {v(SQ+4,4)}, v5, {s(sW,4)}, {s(st+2)} offen offset:64{QSC}
s_branch {lab}_z''')
    A(f'''{lab}:
buffer_load_dwordx4 {v(SQ,4)}, v5, {s(sW,4)}, {s(st+2)} offen sc1
buffer_load_dwordx4 {v(SQ+4,4)}, v5, {s(sW,4)}, {s(st+2)} offen offset:64 sc1
{lab}_z:
buffer_load_dwordx4 {v(ZI,4)}, v5, {s(sW,4)}, {s(st+1)} offen sc1
buffer_load_dwordx4 {v(ZI+4,4)}, v5, {s(sW,4)}, {s(st+1)} offen offset:64 sc1
s_add_u32 {s(st)}, {s(st)}, 1''')
    if mid:
        A(f's_cmp_lg_u32 {s(st)}, 1\ns_cbranch_scc1 {lab}_c')
        mid()
        A(f'{lab}_c:')
    A(f'''s_waitcnt vmcnt(2)
v_min3_u32 v7, {v(SQ)}, {v(SQ+1)}, {v(SQ+2)}
v_min3_u32 v6, {v(SQ+3)}, {v(SQ+4)}, {v(SQ+5)}
v_min3_u32 v7, v7, {v(SQ+6)}, {v(SQ+7)}
v_min_u32 v7, v7, v6
v_cmp_gt_u32 s[50:51], {s(st+3)}, v7''')
    for i in range(8):
        A(f'v_lshlrev_b32 {v(SQ+i)}, 16, {v(SQ+i)}\nv_fma_f32 {v(SQ+i)}, {v(SQ+i)}, {s(st+4)}, {v(CT+2)}')
    for i in range(8):
        A(f'v_rsq_f32 {v(SQ+i)}, {v(SQ+i)}')
    A(f'''s_waitcnt vmcnt(0)
v_max3_u32 v7, {v(ZI)}, {v(ZI+1)}, {v(ZI+2)}
v_max3_u32 v6, {v(ZI+3)}, {v(ZI+4)}, {v(ZI+5)}
v_max3_u32 v7, v7, {v(ZI+6)}, {v(ZI+7)}
v_max_u32 v7, v7, v6
v_cmp_eq_u32 vcc, -1, v7
s_or_b64 vcc, vcc, s[50:51]
s_and_b64 exec, vcc, vcc
s_cbranch_scc0 {lab}_d
s_cmp_le_u32 {s(st)}, {SPIN}
s_cbranch_scc1 {lab}
{lab}_d:
s_mov_b64 exec, -1''')
    A.track = True
    A.vm = []

def col_poll_pre(zc, ssq):
    return f'''v_lshlrev_b32 v5, 7, {v(l15)}
v_lshl_add_u32 v5, {v(g)}, 4, v5
s_lshl_b32 {s(st)}, {s(wave)}, 11
v_add_u32 v5, {s(st)}, v5
s_lshl_b32 {s(st+1)}, s2, 13
s_add_u32 {s(st+1)}, {s(st+1)}, {zc}
s_mov_b32 {s(st+2)}, {ssq}
s_mov_b32 {s(st+3)}, 0x40e00000
s_mov_b32 {s(st+4)}, {f2u(2048.0*2048.0/448)}
v_mov_b32 {v(CT+2)}, {f2u(1e-5*2048.0*2048.0)}
s_mov_b32 {s(st)}, 0'''

def col_wload(A, r=st + 2, WW=WW):
    A(f'''s_lshl_b32 {s(r)}, s2, 2
s_add_u32 {s(r)}, {s(r)}, {s(wave)}
s_lshl_b32 {s(r)}, {s(r)}, 11
s_add_u32 {s(r)}, {s(r)}, {WF}''')
    A.t('w', f'buffer_load_dwordx4 {v(WW,4)}, {v(VL16)}, {s(sW,4)}, {s(r)} offen')
    A.t('w', f'buffer_load_dwordx4 {v(WW+4,4)}, {v(VL16)}, {s(sW,4)}, {s(r)} offen offset:1024')

def col_compute(A, zb, raw, hook=None, WW=WW):
    T = CT
    wa0, wa1, wb, ra0, ra1, t1, oa = 184, 185, 186, 187, 188, T + 2, 189
    def unpack():
        for i in range(8):
            A(f'v_lshlrev_b32 {v(ZR+i)}, 16, {v(ZI+i)}\nv_and_b32 {v(ZM+i)}, 0xffff0000, {v(ZI+i)}')
    A.wait_vm('z')
    pstamp(A, 'coldata')
    unpack()
    for i in range(0, 8, 2):
        A(f'v_pk_mul_f32 {v(SQ+8+i,2)}, {v(SQ+i,2)}, {v(ZR+i,2)}\nv_pk_mul_f32 {v(SQ+16+i,2)}, {v(SQ+i,2)}, {v(ZM+i,2)}')
    for i in range(4):
        A(f'v_cvt_pk_bf16_f32 {v(BR+i)}, {v(SQ+8+2*i)}, {v(SQ+9+2*i)}\nv_cvt_pk_bf16_f32 {v(BI+i)}, {v(SQ+16+2*i)}, {v(SQ+17+2*i)}')
    lab = A.label('nz')
    A(f's_cmp_lg_u32 s2, 0\ns_cbranch_scc1 {lab}')
    for i in range(4): A(f'v_mov_b32 {v(BI+i)}, 0')
    A(f'{lab}:')
    A(f'''ds_write_b64 {v(wa0)}, {v(BR,2)}
ds_write_b64 {v(wa1)}, {v(BR+2,2)}
ds_write_b64 {v(wa0)}, {v(BI,2)} offset:4096
ds_write_b64 {v(wa1)}, {v(BI+2,2)} offset:4096''')
    A.bg(CBG)
    A('s_waitcnt lgkmcnt(0)\ns_barrier')
    def big_stage(base, tab_ri, tab_ir):
        def xa(pl, mu, ks): return XA + 4 * (ks * 4 + pl * 2 + mu)
        for ks in range(2):
            for pl in range(2):
                for mu in range(2):
                    for hf in range(2):
                        A(f'ds_read_b64_tr_b16 {v(xa(pl,mu,ks)+2*hf,2)}, {v(ra0+mu)} offset:{base+pl*4096+ks*2048+hf*1024}')
        A.bg(CBG)
        for ks in range(2):
            A(f's_waitcnt lgkmcnt({12-8*ks})')
            for mu in range(2):
                c = v(DR + 4 * mu, 4) if ks else '0'
                A(f'v_mfma_f32_16x16x32_bf16 {v(DR+4*mu,4)}, {v(xa(0,mu,ks),4)}, {v(C64+4*ks,4)}, {c}')
                c = v(DI + 4 * mu, 4) if ks else '0'
                A(f'v_mfma_f32_16x16x32_bf16 {v(DI+4*mu,4)}, {v(xa(0,mu,ks),4)}, {v(tab_ri+4*ks,4)}, {c}')
            A(f's_waitcnt lgkmcnt({8-8*ks})')
            for mu in range(2):
                A(f'v_mfma_f32_16x16x32_bf16 {v(DR+4*mu,4)}, {v(xa(1,mu,ks),4)}, {v(tab_ir+4*ks,4)}, {v(DR+4*mu,4)}')
                A(f'v_mfma_f32_16x16x32_bf16 {v(DI+4*mu,4)}, {v(xa(1,mu,ks),4)}, {v(C64+4*ks,4)}, {v(DI+4*mu,4)}')
    def small_stage(tab_ri, tab_ir):
        for mu in range(2):
            A(f'v_mfma_f32_16x16x32_bf16 {v(DR+4*mu,4)}, {v(C32+4*mu,4)}, {v(BR,4)}, 0')
            A(f'v_mfma_f32_16x16x32_bf16 {v(DI+4*mu,4)}, {v(C32+4*mu,4)}, {v(BI,4)}, 0')
        for mu in range(2):
            A(f'v_mfma_f32_16x16x32_bf16 {v(DR+4*mu,4)}, {v(tab_ir+4*mu,4)}, {v(BI,4)}, {v(DR+4*mu,4)}')
            A(f'v_mfma_f32_16x16x32_bf16 {v(DI+4*mu,4)}, {v(tab_ri+4*mu,4)}, {v(BR,4)}, {v(DI+4*mu,4)}')
        A.bg(CBG)
    U = T + 8
    def rot(cr, ci, sign):
        n1, n2 = ('[1,0,0]', '[0,0,0]') if sign > 0 else ('[0,0,0]', '[1,0,0]')
        for e in range(0, 8, 2):
            A(f'''v_pk_mul_f32 {v(U+e,2)}, {v(DR+e,2)}, {v(cr+e,2)}
v_pk_mul_f32 {v(U+8+e,2)}, {v(DI+e,2)}, {v(cr+e,2)}''')
        for e in range(0, 8, 2):
            A(f'''v_pk_fma_f32 {v(U+e,2)}, {v(DI+e,2)}, {v(ci+e,2)}, {v(U+e,2)} neg_lo:{n1} neg_hi:{n1}
v_pk_fma_f32 {v(U+8+e,2)}, {v(DR+e,2)}, {v(ci+e,2)}, {v(U+8+e,2)} neg_lo:{n2} neg_hi:{n2}''')
        A.bg(CBG)
        for e in range(0, 8, 2):
            A(f'v_cvt_pk_bf16_f32 {v(BR+e//2)}, {v(U+e)}, {v(U+e+1)}\nv_cvt_pk_bf16_f32 {v(BI+e//2)}, {v(U+8+e)}, {v(U+9+e)}')
    WR, WI = 8, 176
    if hook: hook(0)
    big_stage(0, N64, S64)
    rot(TC, TS, -1)
    small_stage(N32, S32)
    WR, WI = XA, XA + 8
    A.wait_vm('w')
    if hook: hook(1)
    for i in range(4):
        A(f'''v_lshlrev_b32 {v(WR+2*i)}, 16, {v(WW+i)}
v_and_b32 {v(WR+2*i+1)}, 0xffff0000, {v(WW+i)}
v_lshlrev_b32 {v(WI+2*i)}, 16, {v(WW+4+i)}
v_and_b32 {v(WI+2*i+1)}, 0xffff0000, {v(WW+4+i)}''')
    rot(WR, WI, 1)
    if hook: hook(2)
    small_stage(S32, N32)
    rot(TC, TS, 1)
    if hook: hook(3)
    A(f'''ds_write_b128 {v(wb)}, {v(BR,4)} offset:8192
ds_write_b128 {v(wb)}, {v(BI,4)} offset:12288
s_mul_i32 {s(st)}, {s(wave)}, {8*57344}
s_lshl_b32 {s(st+1)}, s2, 8
s_add_u32 {s(st)}, {s(st)}, {s(st+1)}
s_add_u32 {s(st)}, {s(st)}, {zb}''')
    A.bg(CBG)
    A('s_waitcnt lgkmcnt(0)\ns_barrier')
    ck_ = ('ca1', F_CA[1]) if zb == ZB3 else ('ca0', F_CA[0])
    hint(A, ck_[0], 2, ck_[1])
    big_stage(8192, S64, N64)
    hint(A, ck_[0], 1, ck_[1])
    if hook: hook(4)
    for e in range(8):
        A(f'v_add_f32 {v(ZR+e)}, {v(ZR+e)}, {v(DR+e)}\nv_fma_f32 {v(ZM+e)}, {v(DI+e)}, {s(sim)}, {v(ZM+e)}')
    for i in range(4):
        A(f'v_cvt_pk_bf16_f32 {v(BR+i)}, {v(ZR+2*i)}, {v(ZR+2*i+1)}\nv_cvt_pk_bf16_f32 {v(BI+i)}, {v(ZM+2*i)}, {v(ZM+2*i+1)}')
    assert not [x for x in A.bgq if x[0] == 'pf']
    A.wait_vm('pf')
    if ck_[0] in NOD: late(A, ck_[1], False)
    A.t('st', f'buffer_store_dwordx4 {v(BR,4)}, {v(oa)}, {s(sW,4)}, {s(st)} offen sc1')
    A.t('st', f'buffer_store_dwordx4 {v(BI,4)}, {v(oa)}, {s(sW,4)}, {s(st)} offen offset:128 sc1')
    hint(A, ck_[0], 0, ck_[1])

def lam_tables(A, lre, lim, ldt, T):
    t1, t2 = T, T + 1
    lam_calc(A, lre, lim, ldt, PR, PI, t1, t2)
    A(f'v_lshlrev_b32 {v(hd)}, 16, {v(hd)}\nv_mul_f32 {v(hd)}, 0.5, {v(hd)}')
    for t in range(1, 16):
        x, y = (t - 1) // 2, t - 1 - (t - 1) // 2
        cmul(A, PR + t, PI + t, PR + x, PI + x, PR + y, PI + y)
    m1r, m1i = PR + 15, PI + 15
    m2r, m2i, m3r, m3i, L1r, L1i, L2r, L2i, L3r, L3i = range(T + 2, T + 12)
    cmul(A, m2r, m2i, m1r, m1i, m1r, m1i)
    cmul(A, m3r, m3i, m2r, m2i, m1r, m1i)
    cmul(A, L1r, L1i, m2r, m2i, m2r, m2i)
    cmul(A, L2r, L2i, L1r, L1i, L1r, L1i)
    cmul(A, L3r, L3i, L2r, L2i, L1r, L1i)
    cmul(A, L4r, L4i, L2r, L2i, L2r, L2i)
    sel4(A, mgr, '1.0', m1r, m2r, m3r); sel4(A, mgi, '0', m1i, m2i, m3i)
    sel4(A, Lgr, '1.0', L1r, L2r, L3r); sel4(A, Lgi, '0', L1i, L2i, L3i)

def sel4(A, d, c0, x1, x2, x3):
    A(f'''v_cndmask_b32 {v(d)}, {c0}, {v(x1)}, s[44:45]
v_cndmask_b32 {v(d)}, {v(d)}, {v(x2)}, s[46:47]
v_cndmask_b32 {v(d)}, {v(d)}, {v(x3)}, s[48:49]''')

AR, AI, AS, GR, FA, RA, R2, MM, LB = 8, 24, 40, 56, 60, 100, 106, 122, 138
cgr, cgi = 154, 155
ST = 156

def scan_pre(A):
    t1 = ST
    A(f'''v_lshrrev_b32 {v(t1)}, 2, {v(lane)}
v_lshlrev_b32 {v(RA)}, 7, {v(t1)}
v_bfe_u32 {v(t1)}, {v(lane)}, 3, 2
v_lshl_add_u32 {v(RA)}, {v(t1)}, 5, {v(RA)}
v_and_b32 {v(t1)}, 3, {v(lane)}
v_lshl_add_u32 {v(RA)}, {v(t1)}, 3, {v(RA)}
v_xor_b32 {v(RA+1)}, 32, {v(RA)}
v_xor_b32 {v(RA+2)}, 64, {v(RA)}
v_xor_b32 {v(RA+3)}, 0x60, {v(RA)}
s_lshl_b32 {s(st+1)}, {s(wave)}, 5
v_xor_b32 {v(RA+4)}, {s(st+1)}, {v(RA)}''')

def scan_canary(A, zb, flag):
    A(f'''v_lshrrev_b32 v5, 2, {v(lane)}
v_lshlrev_b32 v5, 12, v5
v_and_b32 v6, 3, {v(lane)}
v_lshl_add_u32 v5, v6, 8, v5
v_add_u32 v5, 252, v5
v_mov_b32 v6, 1
s_lshl_b32 {s(st)}, {s(wave)}, 10
s_mul_i32 {s(st+1)}, {s(rt)}, 57344
s_add_u32 {s(st+1)}, {s(st+1)}, {s(st)}
s_add_u32 {s(st+1)}, {s(st+1)}, {zb}''')
    if flag: A(flag_lane(56, *flag))
    A(f's_mov_b32 {s(s_pf)}, {s(st+1)}')
    canary_issue(A, 57 if flag else 56, s_pf)

def scan_phase(A, lay, zb, hb, sAG, hook=None):
    T = ST; t1, t2 = T + 3, T + 4
    sz = st + 2
    A(f's_mov_b32 {s(s_sk0)}, {s(s_sk)}\ns_mov_b32 {s(s_wc0)}, {s(s_wc)}')
    A(f's_mov_b32 s3, {s(s_m1)}')
    A(f'SC_redo{lay}:\ns_mov_b32 {s(s_m1)}, s3\ns_mov_b32 {s(s_sk)}, {s(s_sk0)}\ns_mov_b32 {s(s_wc)}, {s(s_wc0)}')
    A(f'''s_lshl_b32 {s(st+1)}, {s(wave)}, 10
s_mov_b32 m0, {s(st+1)}
s_mul_i32 {s(sz)}, {s(rt)}, 57344
s_add_u32 {s(sz)}, {s(sz)}, {s(st+1)}
s_add_u32 {s(sz)}, {s(sz)}, {zb}''')
    starts = [0, 2, 4, 9]
    grp = lambda ks: max(i for i, x in enumerate(starts) if x <= ks)
    for ks in range(14):
        A.t(f'z{grp(ks)}', f'buffer_load_dwordx4 {v(VL16)}, {s(sW,4)}, {s(sz)} offen{ZSC} lds')
        if ks < 13: A(f's_add_u32 m0, m0, 4096\ns_add_u32 {s(sz)}, {s(sz)}, 4096')
    if hook: hook(-1)
    def rd1(ks, mt, hf):
        A(f'ds_read_b64_tr_b16 {v(FA+20*(ks&1)+4*mt+2*hf,2)}, {v(RA+mt)} offset:{ks*4096+hf*2048}')
    A.wait_vm('z0')
    A('s_barrier')
    pstamp(A, 'grp0')
    for mt in range(5):
        rd1(0, mt, 0); rd1(0, mt, 1)
    for ks in range(14):
        nxt = ks + 1 < 14
        if hook: hook(ks)
        if ks + 1 in starts:
            A.wait_vm(f'z{grp(ks+1)}'); A('s_barrier')
        b = FA + 20 * (ks & 1)
        assert not [x for x in A.bgq if x[0] == f'm1_{ks}']
        A.wait_vm(f'm1_{ks}')
        for mt in range(4):
            A(f's_waitcnt lgkmcnt({8 if nxt else 8-2*mt})')
            c = v(AR + 4 * mt, 4) if ks else '0'
            A(f'v_mfma_f32_16x16x32_bf16 {v(AR+4*mt,4)}, {v(b+4*mt,4)}, {a(8*ks,4)}, {c}')
            if nxt: rd1(ks + 1, mt, 0)
            c = v(AI + 4 * mt, 4) if ks else '0'
            A(f'v_mfma_f32_16x16x32_bf16 {v(AI+4*mt,4)}, {v(b+4*mt,4)}, {a(8*ks+4,4)}, {c}')
            if nxt: rd1(ks + 1, mt, 1)
            if (mt & 1 or A.bgq and A.bgq[0][0].startswith('m1') and mt < M1S) and (ks >= 6 or A.bgq and A.bgq[0][0].startswith('m1')): A.bg(1)
        A(f's_waitcnt lgkmcnt({8 if nxt else 0})')
        c = v(GR, 4) if ks else '0'
        A(f'v_mfma_f32_16x16x32_bf16 {v(GR,4)}, {v(b+16,4)}, {v(b+16,4)}, {c}')
        if nxt:
            rd1(ks + 1, 4, 0); rd1(ks + 1, 4, 1)
    pstamp(A, 'loopend')
    dc, sq, ad = T, T + 1, T + 2
    A(f'''v_and_b32 {v(t1)}, 3, {v(lane)}
v_lshlrev_b32 {v(ad)}, 3, {v(g)}
v_lshl_add_u32 {v(ad)}, {v(t1)}, 1, {v(ad)}
s_lshl_b32 {s(st)}, {s(wave)}, 5
v_add_u32 {v(ad)}, {s(st)}, {v(ad)}
ds_read_u16 {v(dc)}, {v(ad)} offset:128
v_cmp_eq_u32 s[50:51], 1, {v(t1)}
v_cmp_eq_u32 s[52:53], 2, {v(t1)}
v_cmp_eq_u32 s[54:55], 3, {v(t1)}
v_lshlrev_b32 {v(ad)}, 6, {v(g)}
v_lshl_add_u32 {v(ad)}, {v(t1)}, 2, {v(ad)}
s_lshl_b32 {s(st)}, {s(wave)}, 4
v_add_u32 {v(ad)}, {s(st)}, {v(ad)}
v_lshrrev_b32 {v(t2)}, 2, {v(l15)}
v_cmp_eq_u32 vcc, {v(t2)}, {v(g)}
v_cndmask_b32 {v(sq)}, {v(GR)}, {v(GR+1)}, s[50:51]
v_cndmask_b32 {v(sq)}, {v(sq)}, {v(GR+2)}, s[52:53]
v_cndmask_b32 {v(sq)}, {v(sq)}, {v(GR+3)}, s[54:55]
s_waitcnt lgkmcnt(0)
v_lshlrev_b32 {v(dc)}, 16, {v(dc)}
v_fma_f32 {v(sq)}, -{v(dc)}, {v(dc)}, {v(sq)}
v_max_f32 {v(sq)}, 0, {v(sq)}
v_mov_b32 {v(t2)}, {f2u(0.25e-5)}
v_fmac_f32 {v(t2)}, {f2u(0.25/448)}, {v(sq)}
v_rsq_f32 {v(t2)}, {v(t2)}
v_mul_f32 {v(dc)}, {f2u(math.sqrt(1.0/448))}, {v(dc)}
s_and_saveexec_b64 s[56:57], vcc
ds_write2st64_b32 {v(ad)}, {v(t2)}, {v(dc)} offset0:{L_RX//256} offset1:{L_RX//256+1}
s_mov_b64 exec, s[56:57]
v_lshlrev_b32 {v(ad)}, 6, {v(g)}
s_waitcnt lgkmcnt(0)
s_barrier''')
    for i in range(4):
        A(f'ds_read_b128 {v(R2+4*i,4)}, {v(ad)} offset:{L_RX+16*i}')
    if lay:
        for i in range(4):
            A(f'ds_read_b128 {v(MM+4*i,4)}, {v(ad)} offset:{L_RX+256+16*i}')
    for i in range(4):
        A(f's_waitcnt lgkmcnt({(7 if lay else 3)-i})')
        for e in range(0, 4, 2):
            t = 4 * i + e
            A(f'v_pk_mul_f32 {v(AR+t,2)}, {v(AR+t,2)}, {v(R2+t,2)}\nv_pk_mul_f32 {v(AI+t,2)}, {v(AI+t,2)}, {v(R2+t,2)}')
        for e in range(4):
            t = 4 * i + e
            if t: cfma(A, AR + t, AI + t, PR, PI, AR + t - 1, AI + t - 1)
        A.bg(1)
    m1r, m1i = PR + 15, PI + 15
    e0r, e1r, e2r, e3r, e0i, e1i, e2i, e3i = T, T + 1, T + 2, T + 8, T + 4, T + 5, T + 6, T + 9
    for (x0, x1, src) in ((e0r, e1r, AR + 15), (e0i, e1i, AI + 15)):
        A(f'v_mov_b32 {v(x0)}, {v(src)}\nv_mov_b32 {v(x1)}, {v(src)}')
    pa = T + 10
    sag = st + 5
    A(f'''s_lshl_b32 {s(st)}, {s(sl)}, 2
s_add_u32 {s(st)}, {s(st)}, {s(wave)}
s_lshl_b32 {s(st)}, {s(st)}, 7
s_mul_i32 {s(sag)}, {s(rt)}, 3584
s_add_u32 {s(sag)}, {s(sag)}, {s(st)}''')
    A(f'v_permlane16_swap_b32 {v(e0r)}, {v(e1r)}\nv_permlane16_swap_b32 {v(e0i)}, {v(e1i)}')
    A(f'v_mov_b32 {v(e2r)}, {v(e0r)}\nv_mov_b32 {v(e3r)}, {v(e1r)}\nv_mov_b32 {v(e2i)}, {v(e0i)}\nv_mov_b32 {v(e3i)}, {v(e1i)}')
    A(f'v_lshlrev_b32 {v(pa)}, 3, {v(l15)}')
    A(f'v_permlane32_swap_b32 {v(e0r)}, {v(e2r)}\nv_permlane32_swap_b32 {v(e1r)}, {v(e3r)}')
    A(f'v_permlane32_swap_b32 {v(e0i)}, {v(e2i)}\nv_permlane32_swap_b32 {v(e1i)}, {v(e3i)}')
    cfma(A, e1r, e1i, m1r, m1i, e0r, e0i)
    cfma(A, e2r, e2i, m1r, m1i, e1r, e1i)
    cfma(A, e3r, e3i, m1r, m1i, e2r, e2i)
    if f'ca{lay}' in NOD: redo_check(A, e3r, e3i, f'SC_redo{lay}')
    A('s_mov_b64 exec, 0xffff')
    A.t('pub', f'buffer_store_dwordx2 {v(e3r,2)}, {v(pa)}, {s(sAG,4)}, {s(sag)} offen sc1')
    A('s_mov_b64 exec, -1')
    pstamp(A, 'pub')
    if hook: hook(100)
    sel4(A, cgr, '0', e0r, e1r, e2r); sel4(A, cgi, '0', e0i, e1i, e2i)
    LA = T + 12
    A(f'''v_mul_u32_u24 {v(t1)}, 3584, {v(g)}
v_sub_u32 {v(LA)}, {v(pa)}, {v(t1)}
s_sub_u32 {s(sag)}, {s(sag)}, 3584
v_add_u32 {v(LA)}, {s(sag)}, {v(LA)}''')
    for i in range(1, 8):
        A(f'v_subrev_u32 {v(LA+i)}, {4*3584*i}, {v(LA)}')
    def lb_issue():
        for i in range(8):
            A.t('lb', f'buffer_load_dwordx2 {v(LB+2*i,2)}, {v(LA+i)}, {s(sAG,4)}, 0 offen sc1')
    while [x for x in A.bgq if x[0] == 'sk']: A.bg(1)
    A.wait_vm('sk')
    for mt in range(4):
        rd1(0, mt, 0); rd1(0, mt, 1)
    for ks in range(14):
        nxt = ks + 1 < 14
        b = FA + 20 * (ks & 1)
        for mt in range(4):
            A(f's_waitcnt lgkmcnt({6 if nxt else 6-2*mt})')
            c = v(AS + 4 * mt, 4) if ks else '0'
            A(f'v_mfma_f32_16x16x32_bf16 {v(AS+4*mt,4)}, {v(b+4*mt,4)}, {a(112+4*ks,4)}, {c}')
            if nxt:
                rd1(ks + 1, mt, 0); rd1(ks + 1, mt, 1)
        if ks == LBK: lb_issue()
        else: A.bg(1)
    pstamp(A, 'skipend')
    if hook: hook(102)
    hint(A, 'cb', 3, F_CB[lay])
    zt = FA
    if lay == 0:
        A(f'''s_lshl_b32 {s(st)}, {s(sl)}, 2
s_add_u32 {s(st)}, {s(st)}, {s(wave)}
s_lshl_b32 {s(st)}, {s(st)}, 11
v_lshlrev_b32 {v(t1)}, 7, {v(l15)}
v_add_u32 {v(t1)}, {s(st)}, {v(t1)}
v_bfe_u32 {v(t2)}, {v(l15)}, 1, 2
v_lshl_add_u32 {v(t1)}, {v(t2)}, 5, {v(t1)}
v_lshl_add_u32 {v(t1)}, {v(g)}, 3, {v(t1)}''')
        for mt in range(4):
            if mt: A(f'v_xor_b32 {v(t2)}, {32*mt}, {v(t1)}')
            A(f'ds_read_b64 {v(zt+2*mt,2)}, {v(t2 if mt else t1)}')
        A(f'''v_lshlrev_b32 {v(t1)}, 12, {v(g)}
v_lshl_add_u32 {v(t1)}, {v(l15)}, 2, {v(t1)}
s_lshl_b32 {s(st)}, {s(wave)}, 6
s_add_u32 {s(st)}, {s(st)}, {L_RED}
v_add_u32 {v(t1)}, {s(st)}, {v(t1)}
s_waitcnt lgkmcnt(0)''')
        for t in range(16):
            d = zt + 8 + t
            src = zt + t // 2
            A(f'v_and_b32 {v(d)}, 0xffff0000, {v(src)}' if t & 1 else f'v_lshlrev_b32 {v(d)}, 16, {v(src)}')
            A(f'v_fmac_f32 {v(d)}, {v(R2+t)}, {v(AS+t)}')
            if t: A(f'v_xor_b32 {v(t2)}, {16*t}, {v(t1)}')
            A(f'ds_write_b32 {v(t2 if t else t1)}, {v(d)} offset:{256*t}')
            if (t & 3) == 1: A.bg(1)
    else:
        A(f'''v_lshlrev_b32 {v(t1)}, 2, {v(g)}
v_xor_b32 {v(t1)}, {v(t1)}, {v(l15)}
v_lshlrev_b32 {v(t1)}, 4, {v(t1)}
v_lshl_add_u32 {v(t1)}, {v(l15)}, 8, {v(t1)}
s_lshl_b32 {s(st)}, {s(wave)}, 12
s_add_u32 {s(st)}, {s(st)}, {L_RED}
v_add_u32 {v(t1)}, {s(st)}, {v(t1)}''')
        for t in range(16):
            A(f'''v_sub_f32 {v(MM+t)}, {v(AS+t)}, {v(MM+t)}
v_mul_f32 {v(R2+t)}, {v(R2+t)}, {v(hd)}
v_fmac_f32 {v(AS+t)}, {v(R2+t)}, {v(MM+t)}''')
            if (t & 3) == 3:
                mt = t // 4
                if mt: A(f'v_xor_b32 {v(t2)}, {16*mt}, {v(t1)}')
                A(f'ds_write_b128 {v(t2 if mt else t1)}, {v(AS+t-3,4)}')
                A.bg(1)
    ha = T + 4
    xr, xi = T + 2, T + 3
    A(f'''v_lshlrev_b32 {v(ha)}, 6, {v(l15)}
v_lshl_add_u32 {v(ha)}, {v(g)}, 4, {v(ha)}
s_lshl_b32 {s(st+1)}, {s(sl)}, 2
s_add_u32 {s(st+1)}, {s(st+1)}, {s(wave)}
s_lshl_b32 {s(st+1)}, {s(st+1)}, 10
s_mul_i32 {s(st+2)}, {s(rt)}, 114688
s_add_u32 {s(st+1)}, {s(st+1)}, {s(st+2)}
s_add_u32 {s(st+1)}, {s(st+1)}, {hb}
s_add_u32 {s(st+2)}, {s(st+1)}, 28672
s_add_u32 {s(st+3)}, {s(st+1)}, 57344
s_add_u32 {s(st+4)}, {s(st+1)}, {57344+28672}
s_mov_b32 {s(st)}, 0''')
    A.wait_vm('lb')
    pstamp(A, 'lbw')
    lab = A.label('lb')
    A(f'{lab}:')
    mx = T
    A(f'v_max3_u32 {v(mx)}, {v(LB)}, {v(LB+1)}, {v(LB+2)}')
    for i in range(3, 15, 2):
        A(f'v_max3_u32 {v(mx)}, {v(mx)}, {v(LB+i)}, {v(LB+i+1)}')
    A(f'''v_max_u32 {v(mx)}, {v(mx)}, {v(LB+15)}
v_cmp_eq_u32 vcc, -1, {v(mx)}
s_cbranch_vccz {lab}_r
s_add_u32 {s(st)}, {s(st)}, 1
s_cmp_gt_u32 {s(st)}, {SPIN}
s_cbranch_scc1 {lab}_r''')
    A.track = False
    lb_issue()
    A.track = True
    A(f's_waitcnt vmcnt(0)\ns_branch {lab}')
    A(f'{lab}_r:')
    pstamp(A, 'lbr')
    hint(A, 'cb', 2, F_CB[lay])
    for i in range(6, -1, -1):
        cfma(A, LB + 2 * i, LB + 2 * i + 1, L4r, L4i, LB + 2 * i + 2, LB + 2 * i + 3)
    cr, ci = T, T + 1
    cmul(A, cr, ci, Lgr, Lgi, LB, LB + 1)
    for sw in ('16', '32'):
        A(f'''v_mov_b32 {v(xr)}, {v(cr)}
v_mov_b32 {v(xi)}, {v(ci)}
v_permlane{sw}_swap_b32 {v(cr)}, {v(xr)}
v_permlane{sw}_swap_b32 {v(ci)}, {v(xi)}
v_add_f32 {v(cr)}, {v(cr)}, {v(xr)}
v_add_f32 {v(ci)}, {v(ci)}, {v(xi)}''')
    cfma(A, cgr, cgi, mgr, mgi, cr, ci)
    if hook: hook(101)
    if 'cb' in NOD: late(A, F_CB[lay], True)
    hint(A, 'cb', 1, F_CB[lay])
    o = FA
    cg = v(cgr, 2)
    for hh in range(2):
        for t in range(8 * hh, 8 * hh + 8, 2):
            A(f'''v_pk_fma_f32 {v(AR+t,2)}, {v(PR+t,2)}, {cg}, {v(AR+t,2)} op_sel_hi:[1,0,1]
v_pk_fma_f32 {v(AI+t,2)}, {v(PR+t,2)}, {cg}, {v(AI+t,2)} op_sel:[0,1,0] op_sel_hi:[1,1,1]''')
        for t in range(8 * hh, 8 * hh + 8, 2):
            A(f'''v_pk_fma_f32 {v(AR+t,2)}, {v(PI+t,2)}, {cg}, {v(AR+t,2)} op_sel:[0,1,0] op_sel_hi:[1,1,1] neg_lo:[1,0,0] neg_hi:[1,0,0]
v_pk_fma_f32 {v(AI+t,2)}, {v(PI+t,2)}, {cg}, {v(AI+t,2)} op_sel_hi:[1,0,1]''')
        for t in range(8 * hh, 8 * hh + 8, 2):
            A(f'v_cvt_pk_bf16_f32 {v(o+t//2)}, {v(AR+t)}, {v(AR+t+1)}')
            A(f'v_cvt_pk_bf16_f32 {v(o+8+t//2)}, -{v(AI+t)}, -{v(AI+t+1)}')
        A.t('st', f'buffer_store_dwordx4 {v(o+4*hh,4)}, {v(ha)}, {s(sW,4)}, {s(st+1+2*hh)} offen{HST}')
        A.t('st', f'buffer_store_dwordx4 {v(o+8+4*hh,4)}, {v(ha)}, {s(sW,4)}, {s(st+2+2*hh)} offen{HST}')
    hint(A, 'cb', 0, F_CB[lay])
    A('s_waitcnt lgkmcnt(0)')

T0, T1, BF, PT = 8, 24, 40, 72
INIT = 144

def proj_pre(A, last):
    ra0, ra1, rw, rr, t1, t2, za = range(PT, PT + 7)
    A(f'''v_bfe_u32 {v(t1)}, {v(lane)}, 2, 2
v_lshrrev_b32 {v(t2)}, 5, {v(lane)}
v_lshl_add_u32 {v(ra0)}, {v(t2)}, {3 if last else 2}, {v(t1)}
v_lshlrev_b32 {v(ra0)}, 6, {v(ra0)}
v_bfe_u32 {v(t1)}, {v(lane)}, 4, 1
v_lshl_add_u32 {v(ra0)}, {v(t1)}, 5, {v(ra0)}
v_and_b32 {v(t1)}, 3, {v(lane)}''')
    if last:
        A(f's_lshl_b32 {s(st+1)}, {s(kh)}, 1\nv_xor_b32 {v(t1)}, {s(st+1)}, {v(t1)}')
    A(f'''v_lshl_add_u32 {v(ra0)}, {v(t1)}, 3, {v(ra0)}
s_mul_i32 {s(st+1)}, {s(kh)}, 28672
v_add_u32 {v(ra0)}, {s(st+1)}, {v(ra0)}
v_add_u32 {v(ra1)}, 57344, {v(ra0)}
s_lshl_b32 {s(st+1)}, {s(wave)}, 12
s_add_u32 {s(st+1)}, {s(st+1)}, {L_RED}
s_xor_b32 {s(st+2)}, {s(st+1)}, 4096
v_add_u32 {v(rw)}, {s(st+1)}, {v(VL16)}
v_add_u32 {v(rr)}, {s(st+2)}, {v(VL16)}''')
    if last:
        A(f'''s_lshl_b32 {s(st+1)}, {s(kh)}, 2
v_add_u32 {v(t2)}, {s(st+1)}, {v(t2)}
v_xor_b32 {v(t2)}, {v(t2)}, {v(l15)}
v_and_b32 {v(t1)}, 31, {v(lane)}
v_lshlrev_b32 {v(t1)}, 8, {v(t1)}
v_lshl_add_u32 {v(za)}, {v(t2)}, 4, {v(t1)}
s_lshl_b32 {s(st+1)}, {s(wm)}, 13
s_add_u32 {s(st+1)}, {s(st+1)}, {L_RED}
v_add_u32 {v(za)}, {s(st+1)}, {v(za)}''')
    else:
        A(f'''s_lshl_b32 {s(st+1)}, {s(kh)}, 1
s_lshl_b32 {s(st+2)}, {s(wm)}, 3
s_add_u32 {s(st+1)}, {s(st+1)}, {s(st+2)}
v_add_u32 {v(t2)}, {s(st+1)}, {v(t2)}
v_and_b32 {v(t1)}, 7, {v(lane)}
v_xor_b32 {v(t2)}, {v(t2)}, {v(t1)}
v_lshlrev_b32 {v(t1)}, 8, {v(t1)}
v_lshl_add_u32 {v(za)}, {v(t2)}, 4, {v(t1)}
v_bfe_u32 {v(t1)}, {v(lane)}, 3, 2
v_lshl_add_u32 {v(za)}, {v(t1)}, 12, {v(za)}
v_add_u32 {v(za)}, {L_RED}, {v(za)}''')

def proj_init(A, last):
    ra0, ra1, rw, rr, t1, t2, za = range(PT, PT + 7)
    for nt, Tn in enumerate((T0, T1)):
        for q in (0, 2):
            x = (64 * q + 32 * nt) if last else (32 * q + 128 * nt)
            off = 0 if last else 2048 * nt
            d = INIT + 8 * nt + 2 * q
            if x:
                A(f'v_xor_b32 {v(t1)}, {x}, {v(za)}\nds_read_b128 {v(d,4)}, {v(t1)} offset:{off}')
            else:
                A(f'ds_read_b128 {v(d,4)}, {v(za)} offset:{off}')

def proj_addr(A, hb):
    A(f'''s_mul_i32 {s(s_pf+1)}, {s(kh)}, 57344
s_mul_i32 {s(st+1)}, {s(wm)}, 28672
s_add_u32 {s(s_pf+1)}, {s(s_pf+1)}, {s(st+1)}
s_mul_i32 {s(st+1)}, {s(rt)}, 114688
s_add_u32 {s(s_pf)}, {s(s_pf+1)}, {s(st+1)}
s_add_u32 {s(s_pf)}, {s(s_pf)}, {hb}''')

CBG = int(os.environ.get('CBG', '3'))
NFILL = int(os.environ.get('NFILL', '2')); NG0 = int(os.environ.get('NG0', '75')); NW0 = int(os.environ.get('NW0', '58'))
NB2 = int(os.environ.get('NB2', '0'))
NB1 = int(os.environ.get('NB1', '6')); NB0 = int(os.environ.get('NB0', '6'))
NUP = int(os.environ.get('NUP', '17'))
def add_init(A):
    for i, r in enumerate((T0, T0 + 8, T1, T1 + 8)):
        for e in (0, 2): A(f'v_pk_add_f32 {v(r+e,2)}, {v(r+e,2)}, {v(INIT+4*i+e,2)}')

def proj_phase(A, last, hb):
    ra0, ra1, rw, rr, t1, t2 = range(PT, PT + 6)
    sh = st + 4
    A(f'PJ_redo{int(last)}:\ns_mov_b32 {s(sh)}, {s(s_pf)}\ns_mov_b32 m0, {s(s_pf+1)}')
    if not last: A(f's_mov_b32 {s(s_sk)}, {s(s_sk0)}')
    def dma(k):
        A.t(f'h{k//4}', f'buffer_load_dwordx4 {v(VL16)}, {s(sW,4)}, {s(sh)} offen offset:{(k&3)*1024}{HSC} lds')
        if (k & 3) == 3 and k < 27: A(f's_add_u32 m0, m0, 4096\ns_add_u32 {s(sh)}, {s(sh)}, 4096')
    hoff = 256 if last else 512
    def rd(k, nt):
        b = BF + 8 * (k % 4)
        for hf in range(2):
            A(f'ds_read_b64_tr_b16 {v(b+4*nt+2*hf,2)}, {v(ra0+nt)} offset:{k*1024+hf*hoff}')
    for k in range(NUP): dma(k)
    A.fill(NG0)
    A.wait_vm('h0')
    A('s_barrier')
    pstamp(A, 'grp0')
    for k in range(2):
        rd(k, 0); rd(k, 1)
    for k in range(28):
        if (k & 3) == 2 and k + 2 < 28:
            A.wait_vm(f'h{(k+2)//4}'); A('s_barrier')
        b = BF + 8 * (k % 4)
        for nt, Tn in enumerate((T0, T1)):
            left = min(6, 4 * (27 - k) + 2 * (1 - nt))
            A(f's_waitcnt lgkmcnt({left})')
            x, y = wc_reg(k), v(b + 4 * nt, 4)
            if last: x, y = y, x
            A(f'v_mfma_f32_32x32x16_bf16 {v(Tn,16)}, {x}, {y}, {v(Tn,16) if k else 0}')
            if k + 2 < 28: rd(k + 2, nt)
            if nt == 0:
                if k + NUP < 28: dma(k + NUP)
                else: A.bg(1)
            A.fill(NFILL)
    A.bg(64); A.fill(999)
    pstamp(A, 'loopend')
    if last:
        c = BF + 16
        if 'cb' in NOD:
          for i in range(0, 16, 2): A(f'v_pk_add_f32 {v(c+i,2)}, {v(T0+i,2)}, {v(T1+i,2)}')
          for n in (8, 4, 2):
            for i in range(0, n, 2): A(f'v_pk_add_f32 {v(c+i,2)}, {v(c+i,2)}, {v(c+n+i,2)}')
          A(f'''v_cmp_u_f32 vcc, {v(c)}, {v(c+1)}
s_cmp_lg_u64 vcc, 0
s_cselect_b32 {s(st+5)}, 0x7fc00000, 0
v_add_f32 {v(T0)}, {s(st+5)}, {v(T0)}
v_add_f32 {v(T0+4)}, {s(st+5)}, {v(T0+4)}''')
        ksplit_reduce(A, T0, T1, rw, rr, BF, True)
        if 'cb' in NOD: redo_check(A, T0, T0, 'PJ_redo1')
        add_init(A)
        for mt, Tn in enumerate((T0, T1)):
            for q in (0, 2):
                for i in range(4):
                    A(f'buffer_store_dword {v(Tn+4*q+i)}, {v(t1 if i < 2 else t2)}, {s(sO,4)}, {s(st+2*mt+q//2)} offen offset:{1792*(i&1)}{os.environ.get("OSC","")}')
        return
    ksplit_reduce(A, T0, T1, rw, rr, BF, True)
    if 'cb' in NOD: redo_check(A, T0, T1, 'PJ_redo0')
    add_init(A)
    zepi(A, T0, T1, BF, (PT + 6, PT + 7, 5, 6), 32, cnt='cc' in NOD)

def out_setup(A):
    t1, t2 = PT + 4, PT + 5
    A(f'''v_lshrrev_b32 {v(t1)}, 5, {v(lane)}
v_mul_u32_u24 {v(t1)}, {4*1792}, {v(t1)}
v_and_b32 {v(t2)}, 31, {v(lane)}
v_lshl_add_u32 {v(t1)}, {v(t2)}, 2, {v(t1)}
v_add_u32 {v(t2)}, 3584, {v(t1)}
s_lshl_b32 {s(st)}, {s(rt)}, 2
s_add_u32 {s(st)}, {s(st)}, {s(kh)}
s_mul_i32 {s(st)}, {s(st)}, {16*1792}
s_lshl_b32 {s(st+1)}, {s(sl)}, 8
s_add_u32 {s(st)}, {s(st)}, {s(st+1)}
s_lshl_b32 {s(st+1)}, {s(wm)}, 7
s_add_u32 {s(st)}, {s(st)}, {s(st+1)}
s_add_u32 {s(st+1)}, {s(st)}, {32*1792}
s_add_u32 {s(st+2)}, {s(st)}, {8*1792}
s_add_u32 {s(st+3)}, {s(st)}, {40*1792}''')

def zepi_setup(A, regs, ntoff, zc, ssq):
    ta, ia, ga, t2 = regs
    if ntoff == 32:
        A(f'''v_and_b32 {v(ta)}, 7, {v(lane)}
v_bfe_u32 {v(t2)}, {v(lane)}, 3, 2
v_lshl_add_u32 {v(ta)}, {v(t2)}, 4, {v(ta)}''')
    else:
        A(f'v_and_b32 {v(ta)}, 31, {v(lane)}')
    A(f'''v_lshlrev_b32 {v(ta)}, 2, {v(ta)}
v_lshrrev_b32 {v(t2)}, 5, {v(lane)}
v_lshl_add_u32 {v(ia)}, {v(t2)}, 9, {v(ta)}
v_lshl_add_u32 {v(ta)}, {v(t2)}, {5 if ntoff == 32 else 7}, {v(ta)}
s_lshl_b32 {s(st)}, {s(wm)}, 12
s_lshl_b32 {s(st+1)}, {s(kh)}, 10
s_add_u32 {s(st)}, {s(st)}, {s(st+1)}
v_add_u32 {v(ia)}, {s(st)}, {v(ia)}
s_lshl_b32 {s(st)}, {s(wave)}, 8
v_add_u32 {v(ta)}, {s(st)}, {v(ta)}
v_lshlrev_b32 {v(ga)}, 13, {v(g)}
v_lshl_add_u32 {v(ga)}, {v(l15)}, 4, {v(ga)}
s_lshl_b32 {s(st)}, {s(wave)}, 11
v_add_u32 {v(t2)}, {s(st)}, {v(VL16)}
s_lshl_b32 {s(st)}, {s(sl)}, 2
s_add_u32 {s(st)}, {s(st)}, {s(wave)}
s_lshl_b32 {s(st)}, {s(st)}, 16
s_lshl_b32 {s(st+1)}, {s(rt)}, 8
s_add_u32 {s(st)}, {s(st)}, {s(st+1)}
s_add_u32 {s(st)}, {s(st)}, {zc}
s_add_u32 {s(st+2)}, {s(st)}, 32768
s_add_u32 {s(st+1)}, {s(st+1)}, {ssq}''')

def zepi(A, T0, T1, BF, regs, ntoff, gate=None, cnt=False, hk=None):
    ta, ia, ga, t2 = regs
    pk, s0, s1 = BF + 16, BF + 24, BF + 25
    hk = hk or ('cc', F_CC)
    if cnt: hint(A, hk[0], 2, hk[1])
    k = 0
    for nt, Tn in enumerate((T0, T1)):
        for q in (0, 2):
            for ip in range(2):
                r = Tn + 4 * q + 2 * ip
                A(f'v_cvt_pk_bf16_f32 {v(pk+k)}, {v(r)}, {v(r+1)}')
                A(f'ds_write_b32 {v(ia)}, {v(pk+k)} offset:{(4*q+ip)*256+ntoff*nt}')
                k += 1
    lab = A.label('nodc')
    A(f'''s_or_b32 {s(st+3)}, {s(sl)}, {s(wave)}
s_cmp_lg_u32 {s(st+3)}, 0
s_cbranch_scc1 {lab}
v_cmp_gt_u32 vcc, 32, {v(lane)}
v_cndmask_b32 {v(T0+1)}, {v(T0+1)}, 0, vcc
v_cndmask_b32 {v(T1+1)}, {v(T1+1)}, 0, vcc
{lab}:''')
    for sreg, Tn in ((s0, T0), (s1, T1)):
        A(f'v_mul_f32 {v(sreg)}, {v(Tn)}, {v(Tn)}')
    for r in (1, 2, 3, 8, 9, 10, 11):
        for sreg, Tn in ((s0, T0), (s1, T1)):
            A(f'v_fmac_f32 {v(sreg)}, {v(Tn+r)}, {v(Tn+r)}')
    A(f'''v_permlane32_swap_b32 {v(s0)}, {v(s1)}
v_add_f32 {v(s0)}, {v(s0)}, {v(s1)}
ds_write_b32 {v(ta)}, {v(s0)} offset:8192
v_lshlrev_b32 {v(ta)}, 2, {v(lane)}''')
    if gate: gate()
    A('s_waitcnt lgkmcnt(0)\ns_barrier')
    lab = A.label('ssq')
    A(f'''ds_read_b128 {v(T0,4)}, {v(t2)}
ds_read_b128 {v(T0+4,4)}, {v(t2)} offset:1024''')
    A.track = False
    A(f'''s_cmp_lg_u32 {s(wave)}, 1
s_cbranch_scc1 {lab}
ds_read2st64_b32 {v(pk,2)}, {v(ta)} offset0:32 offset1:33
ds_read2st64_b32 {v(pk+2,2)}, {v(ta)} offset0:34 offset1:35
s_waitcnt lgkmcnt(0)
v_pk_add_f32 {v(pk,2)}, {v(pk,2)}, {v(pk+2,2)}
v_add_f32 {v(pk)}, {v(pk)}, {v(pk+1)}
{'' if not cnt else 'v_cvt_pk_bf16_f32 %s, %s, 1.0' % (v(pk), v(pk))}
buffer_atomic_{'pk_add_bf16' if cnt else 'add_f32'} {v(pk)}, {v(ta)}, {s(sW,4)}, {s(st+1)} offen sc1
{lab}:''')
    A.track = True
    if cnt: late(A, hk[1], False)
    if cnt: hint(A, hk[0], 1, hk[1])
    A('s_waitcnt lgkmcnt(1)')
    A.t('st', f'buffer_store_dwordx4 {v(T0,4)}, {v(ga)}, {s(sW,4)}, {s(st)} offen sc1')
    A('s_waitcnt lgkmcnt(0)')
    A.t('st', f'buffer_store_dwordx4 {v(T0+4,4)}, {v(ga)}, {s(sW,4)}, {s(st+2)} offen sc1')
    if cnt: hint(A, hk[0], 0, hk[1])

ND = int(os.environ.get('ND', '2'))
def layers(A, lre, lim, ldt, pre=None, shook=None, wcq=False):
    pstamp(A, 'stored')
    for lay in range(2):
        def pre_work():
            if lay == 0:
                if pre: pre(0)
                assert len([x for x in A.bgq if x[0] == 'wc']) in range(6, 29) or not wcq
                A.wait_vm('lam')
                A(f'v_mov_b32 v8, {v(lre)}\nv_mov_b32 v9, {v(lim)}\nv_mov_b32 v10, {v(ldt)}')
                lam_tables(A, 8, 9, 10, 12)
            A.bg(ND)
            scan_pre(A)
        def mid():
            if f'ca{lay}' in NOD: pre_work()
            if wcq or lay: A.bg(NB1 if lay else NB0)
            while len([x for x in A.bgq if x[0].startswith('m1')]) > M1L: A.bg(1)
        if f'ca{lay}' not in NOD:
            pre_work(); signal16(A, 'st', F_CA[lay])
        poll(A, poll16(F_CA[lay], (F_PF4, NAUX) if lay and 'cb' in NOD else None), mid)
        if lay == 0 and not wcq: q_wc(A, VL16X, '')
        scan_phase(A, lay, (ZB, ZB3)[lay], (HB, HB2)[lay], (sAG0, sAG1)[lay], shook if lay == 0 else None)
        pstamp(A, 'stored')
        A(f's_lshl_b32 {s(st+3)}, {s(rt)}, 7\ns_add_u32 {s(st+3)}, {s(st+3)}, {F_CB[lay]}')
        pt = f'v_mov_b32 v5, {s(st+3)}\nv_mov_b32 v6, 7\ns_mov_b64 s[50:51], 1'
        if lay == 0:
            pt += f'''
s_and_b32 {s(st)}, s2, {NREP-1}
s_lshl_b32 {s(st)}, {s(st)}, 7
s_add_u32 {s(st)}, {s(st)}, {F_CD}
v_writelane_b32 v5, {s(st)}, 1
v_writelane_b32 v6, {NAUX}, 1
s_add_u32 {s(st)}, {s(st)}, {F_PF2 - F_CD & 0xffffffff}
v_writelane_b32 v5, {s(st)}, 2
v_writelane_b32 v6, {32 - NAUX}, 2
s_mov_b64 s[50:51], {7 if NOD - {''} else 3}'''
        def pre_work():
            A.bg(ND)
            if lay == 0:
                A.fq = capture(col_tables1, col_tables2, lambda B: zepi_setup(B, (PT + 6, PT + 7, 5, 6), 32, ZC2, SSQ2))
                A.fill(NW0)
            else:
                A.fq = capture(out_setup)
            proj_pre(A, lay == 1)
            proj_addr(A, (HB, HB2)[lay])
        def mid():
            if 'cb' in NOD:
                pre_work(); A('s_barrier')
            proj_init(A, lay == 1); A.bg(64)
        if 'cb' not in NOD:
            pre_work(); signal(A, 'st', st + 3)
        poll(A, pt, mid)
        if lay == 0:
            A(f's_add_u32 {s(s_sk)}, {s(s_sk)}, {WSK_L - 12288}\ns_mov_b32 {s(s_sk0)}, {s(s_sk)}')
            q_sk(A, WSC)
        proj_phase(A, lay == 1, (HB, HB2)[lay])
        if lay == 0:
            pstamp(A, 'stored')
            col_wload(A)
            A(f's_add_u32 {s(s_wc)}, {s(s_wc)}, {WC_L - 28672}')
            signal16(A, 'st', F_CC, 'cc' not in NOD)
            q_wc(A, VL16, WSC)
            poll(A, poll16(F_CC, (F_PF3, 32 - NAUX) if NOD - {''} else None), lambda: A.bg(NB2))
            A(col_poll_pre(ZC2, SSQ2))
            col_poll(A, ZC2, SSQ2, val='cc' in NOD)
            col_compute(A, ZB3, True)
            pstamp(A, 'stored')

def kend(A):
    A('KP_end:')
    if os.environ.get('RC'):
        A(f's_load_dwordx2 s[56:57], s[0:1], {DBG*8}\nv_mov_b32 v5, 4\nv_mov_b32 v6, {s(s_redo)}\ns_mov_b64 exec, 1\ns_waitcnt lgkmcnt(0)\nglobal_atomic_add v5, v6, s[56:57] sc1\ns_mov_b64 exec, -1')
    if PROBE:
        pstamp(A, 'end')
        i, j = [int(x) for x in PROBE.split(',')]
        A(f's_cmp_lg_u32 s2, {os.environ.get("DBGWG", "100")}\ns_cbranch_scc1 KP_exit')
        if i < 0:
            A(f'v_mov_b32 v5, 0\ns_mov_b32 s64, {STAMP}\nbuffer_load_dword v6, v5, {s(sW,4)}, s64 offen sc1\ns_waitcnt vmcnt(0)\nv_readfirstlane_b32 s60, v6')
        A('''s_memrealtime s[64:65]
s_waitcnt lgkmcnt(0)
s_sub_u32 s60, s62, s60
s_min_u32 s60, s60, 10000
s_mul_i32 s60, s60, 10
KP_spin:
s_memrealtime s[66:67]
s_waitcnt lgkmcnt(0)
s_sub_u32 s66, s66, s64
s_cmp_lt_u32 s66, s60
s_cbranch_scc1 KP_spin''')
    if STAMPS == 1:
        A('s_memrealtime s[100:101]\ns_waitcnt lgkmcnt(0)')
        for i in range(21): A(f'v_mov_b32 {v(8+i)}, {s(60+2*i)}')
        A(f'v_mov_b32 {v(8+21)}, {s(s_redo)}')
        A(f'''v_lshrrev_b32 v5, 6, v0
v_lshlrev_b32 v5, 7, v5
s_lshl_b32 s60, s2, 9
s_add_u32 s60, s60, {STAMP + 131072}''')
        for i in range(6): A(f'buffer_store_dwordx4 {v(8+4*i,4)}, v5, {s(sW,4)}, s60 offen offset:{16*i}')
    A('KP_exit:\ns_endpgm')


def kp():
    A = Asm()
    gen.KSTAMP = False
    A(f's_cmp_ge_u32 s2, {224+NAUX}\ns_cbranch_scc1 KP_exit')
    pstamp(A, 'entry')
    ld_ptr(A, sW, WS)
    A('s_cmp_ge_u32 s2, 224\ns_cbranch_scc1 KP_aux')
    ld_ptr(A, sO, OUT); ld_ptr(A, 40, L_RE); ld_ptr(A, 44, L_IM); ld_ptr(A, 48, LOGDT); ld_ptr(A, 52, DSKIP)
    A(f'''v_and_b32 {v(lane)}, 63, v0
v_lshrrev_b32 v2, 6, v0
v_readfirstlane_b32 {s(wave)}, v2
v_and_b32 {v(l15)}, 15, {v(lane)}
v_lshrrev_b32 {v(g)}, 4, {v(lane)}
v_lshlrev_b32 {v(VL16)}, 4, {v(lane)}
s_and_b32 {s(kh)}, {s(wave)}, 1
s_lshr_b32 {s(wm)}, {s(wave)}, 1
s_lshl_b32 {s(st)}, {s(kh)}, 7
v_xor_b32 {v(VL16X)}, {s(st)}, {v(VL16)}
s_cmp_eq_u32 s2, 0
s_cselect_b32 {s(sim)}, 0, 1.0''')
    tile_ids(A, rt, sl, st)
    A(f'''s_lshl_b32 {s(st+3)}, {s(sl)}, 2
s_add_u32 {s(st+3)}, {s(st+3)}, {s(wave)}
s_mul_i32 {s(s_m1)}, {s(st+3)}, {28*1024}
s_add_u32 {s(s_m1)}, {s(s_m1)}, {WM1}
s_mul_i32 {s(s_sk)}, {s(st+3)}, {14*1024}
s_add_u32 {s(s_sk)}, {s(s_sk)}, {WSK}
s_lshl_b32 {s(st+3)}, {s(st+3)}, 5
s_lshl_b32 {s(s_wc)}, {s(sl)}, 1
s_add_u32 {s(s_wc)}, {s(s_wc)}, {s(kh)}
s_lshl_b32 {s(s_wc)}, {s(s_wc)}, 1
s_add_u32 {s(s_wc)}, {s(s_wc)}, {s(wm)}
s_mul_i32 {s(s_wc)}, {s(s_wc)}, {28*1024}
s_add_u32 {s(s_wc)}, {s(s_wc)}, {WC}''')
    col_tables1(A)
    A('s_waitcnt lgkmcnt(0)')
    srd_ws(A, sW); srd(A, sO, S * D * 4)
    for r in (40, 44, 48, 52): srd(A, r, D * 2)
    pstamp(A, 'karg')
    col_loads(A, ZC, R0, '')
    col_wload(A)
    lre, lim, ldt = PR + 1, PR + 2, PR + 3
    A(f'v_lshlrev_b32 v6, 1, {v(l15)}')
    for r, sr in ((lre, 40), (lim, 44), (ldt, 48), (hd, 52)):
        A.t('lam', f'buffer_load_ushort {v(r)}, v6, {s(sr,4)}, {s(st+3)} offen')
    for i, r in enumerate((sAG0, sAG1)):
        A(f's_add_u32 {s(r)}, s4, {AGG + i*AGG_L}\ns_addc_u32 {s(r+1)}, s5, 0')
        srd(A, r, AGG_L)
    A(f'''v_cmp_eq_u32 s[44:45], 1, {v(g)}
v_cmp_eq_u32 s[46:47], 2, {v(g)}
v_cmp_eq_u32 s[48:49], 3, {v(g)}''')
    A(f's_mov_b32 {s(s_redo)}, 0')
    q_m1(A)
    col_tables2(A)
    A.bg(NB0)
    col_compute(A, ZB, False)
    layers(A, lre, lim, ldt)
    kend(A)
    A('KP_aux:')
    A.track = False
    A(f'''v_and_b32 {v(lane)}, 63, v0
v_lshrrev_b32 v2, 6, v0
v_readfirstlane_b32 {s(wave)}, v2''')
    aux_tail(A)
    return A.render()

def aux_tail(A, zd_wait=None, astamp=None):
    def fill(base, total, first, n, flag, nrep, wait=True):
        if not NOD - {''}: return
        lab = A.label('pf')
        A(f"""v_lshlrev_b32 v2, 4, v0
v_mov_b32 v8, -1
v_mov_b32 v9, -1
v_mov_b32 v10, -1
v_mov_b32 v11, -1
s_sub_u32 {s(st)}, s2, {224 + first}
s_lshl_b32 {s(st)}, {s(st)}, 12
s_add_u32 {s(st)}, {s(st)}, {base}
{lab}:
buffer_store_dwordx4 v[8:11], v2, {s(sW,4)}, {s(st)} offen sc1
s_add_u32 {s(st)}, {s(st)}, {n*4096}
s_cmp_lt_u32 {s(st)}, {base + total}
s_cbranch_scc1 {lab}
s_mov_b32 {s(st+1)}, {flag}""")
        signal(A, None, st + 1, nrep, 128)
        A.track = False
    fill(HB, 32 * 114688, 0, 32, F_PF1, 64)
    A(f's_cmp_ge_u32 s2, {224+28}\ns_cbranch_scc1 KP_pf')
    A('KP_m2a:')
    if STAMPS == 1: A('s_memrealtime s[66:67]')
    TS_ = 5392
    sc_ = 0.25 * math.sqrt(2.0 / 448)
    zd_wait()
    if STAMPS == 1: A('s_memrealtime s[68:69]')
    A(f's_mov_b32 {s(st)}, {ZD}')
    for i in range(3):
        x, c, sg = 16 + 8 * i, 17 + 8 * i, 18 + 8 * i
        A(f'''v_add_u32 {v(x)}, {256*i}, v0
v_subrev_u32 {v(c)}, 224, {v(x)}
v_sub_u32 {v(sg)}, 224, {v(x)}
v_max_i32 {v(c)}, {v(c)}, {v(sg)}
v_sub_u32 {v(sg)}, 448, {v(c)}
v_min_i32 {v(c)}, {v(c)}, {v(sg)}
v_lshlrev_b32 {v(sg)}, 3, {v(c)}
v_cmp_eq_u32 vcc, 224, {v(c)}
v_cndmask_b32 {v(sg)}, {v(sg)}, 0, vcc
buffer_load_dwordx2 {v(x+4,2)}, {v(sg)}, {s(sW,4)}, {s(st)} offen''')
    for i in range(3):
        x, c, sg, cc, cs, nn = 16 + 8 * i, 17 + 8 * i, 18 + 8 * i, 20 + 8 * i, 21 + 8 * i, 19 + 8 * i
        A(f'''s_waitcnt vmcnt({2-i})
v_cmp_eq_u32 vcc, 0, {v(c)}
v_cndmask_b32 {v(cc)}, {v(cc)}, {v(cs)}, vcc
v_cmp_eq_u32 s[40:41], 0, {v(c)}
v_cmp_eq_u32 vcc, 224, {v(c)}
s_or_b64 vcc, vcc, s[40:41]
v_mov_b32 {v(sg)}, {f2u(sc_)}
v_mov_b32 {v(nn)}, {f2u(sc_*math.sqrt(2.0))}
v_cndmask_b32 {v(nn)}, {v(sg)}, {v(nn)}, vcc
v_cndmask_b32 {v(cs)}, {v(cs)}, 0, vcc
v_mul_f32 {v(cc)}, {v(cc)}, {v(nn)}
v_mul_f32 {v(cs)}, {v(cs)}, {v(sg)}
v_cmp_gt_u32 vcc, 224, {v(x)}
s_mov_b64 s[40:41], vcc
v_cmp_lt_u32 vcc, 448, {v(x)}
s_or_b64 vcc, vcc, s[40:41]
v_xor_b32 {v(nn)}, 0x80000000, {v(cs)}
v_cndmask_b32 {v(cs)}, {v(cs)}, {v(nn)}, vcc
v_xor_b32 {v(nn+3)}, 0x80000000, {v(cs)}
v_mov_b32 {v(nn+4)}, {v(cc)}
v_xor_b32 {v(nn)}, 0x80000000, {v(cc)}
v_mov_b32 {v(sg)}, {v(cs)}
v_lshlrev_b32 {v(c)}, 3, {v(x)}
v_cmp_gt_u32 vcc, 673, {v(x)}
s_and_saveexec_b64 s[40:41], vcc
ds_write_b64 {v(c)}, {v(cc,2)}
ds_write_b64 {v(c)}, {v(nn+3,2)} offset:{TS_}
ds_write_b64 {v(c)}, {v(cc,2)} offset:{2*TS_}
ds_write_b64 {v(c)}, {v(sg,2)} offset:{3*TS_}
s_mov_b64 exec, s[40:41]''')
    jp, cp, pr, am, ap, fa = 5, 6, 7, 8, 9, 10
    A(f'''s_sub_u32 {s(st)}, s2, 224
s_lshl_b32 {s(st+1)}, {s(st)}, 4
s_mul_i32 {s(st)}, {s(st)}, 14
s_add_u32 {s(st)}, {s(st)}, {s(wave)}
s_lshl_b32 {s(st)}, {s(st)}, 10
s_add_u32 {s(st)}, {s(st)}, {WSK}
v_and_b32 {v(jp)}, 15, {v(lane)}
v_add_u32 {v(jp)}, {s(st+1)}, {v(jp)}
v_lshrrev_b32 {v(cp)}, 1, {v(jp)}
v_and_b32 {v(pr)}, 1, {v(jp)}
v_mov_b32 v12, 224
v_cmp_eq_u32 vcc, 0, {v(jp)}
v_cndmask_b32 {v(cp)}, {v(cp)}, v12, vcc
v_cmp_gt_u32 vcc, 2, {v(jp)}
v_cndmask_b32 {v(pr)}, {v(pr)}, 0, vcc
v_mov_b32 v12, {f2u(math.sqrt(0.5))}
v_cndmask_b32 {v(fa)}, 1.0, v12, vcc
v_mul_u32_u24 {v(pr)}, {TS_}, {v(pr)}
v_lshrrev_b32 v13, 4, {v(lane)}
v_lshlrev_b32 v14, 1, v13
s_lshl_b32 {s(st+2)}, {s(wave)}, 4
v_add_u32 v14, {s(st+2)}, v14
v_or_b32 v13, {s(wave)}, v13
v_sub_u32 {v(am)}, 224, {v(cp)}
v_add_u32 {v(ap)}, 224, {v(cp)}
v_lshl_add_u32 v15, {v(am)}, 3, {v(pr)}
v_lshl_add_u32 v12, {v(ap)}, 3, {v(pr)}
v_add_u32 {v(am)}, {v(am)}, v14
v_add_u32 {v(ap)}, {v(ap)}, v14
v_lshl_add_u32 {v(am)}, {v(am)}, 3, {v(pr)}
v_lshl_add_u32 {v(ap)}, {v(ap)}, 3, {v(pr)}
s_waitcnt lgkmcnt(0)
s_barrier
ds_read_b32 v40, v15 offset:{224*8}
ds_read_b32 v41, v12 offset:{224*8+2*TS_}''')
    if STAMPS == 1: A('s_memrealtime s[70:71]')
    O = 48
    for i in range(4):
        b = 112 + 16 * i
        for p in range(4):
            off = 8 * (64 * i + 8 * (p >> 1) + (p & 1))
            A(f'ds_read_b64 {v(b+4*p,2)}, {v(am)} offset:{off}\nds_read_b64 {v(b+4*p+2,2)}, {v(ap)} offset:{off+2*TS_}')
    A(f'v_lshlrev_b32 v6, 4, {v(lane)}')
    for i in range(4):
        A(f's_waitcnt lgkmcnt({min(15, 24-8*i)})')
        b = 112 + 16 * i
        for p in range(4):
            A(f'v_pk_add_f32 {v(b+4*p,2)}, {v(b+4*p,2)}, {v(b+4*p+2,2)}')
        if i == 0:
            A(f'''v_add_f32 v40, v40, v41
v_mul_f32 v40, {f2u(math.sqrt(0.5))}, v40
v_cmp_eq_u32 vcc, 0, v13
v_cndmask_b32 {v(b)}, {v(b)}, v40, vcc
v_cndmask_b32 {v(b+1)}, {v(b+1)}, 0, vcc''')
        for p in range(4):
            A(f'v_pk_mul_f32 {v(b+4*p,2)}, {v(b+4*p,2)}, {v(fa,2)} op_sel_hi:[1,0]')
        for p in range(4):
            A(f'v_cvt_pk_bf16_f32 {v(O+4*i+p)}, {v(b+4*p)}, {v(b+4*p+1)}')
        if i == 3: A(f's_cmp_ge_u32 {s(wave)}, 2\ns_cbranch_scc1 KP_m2s')
        A(f'buffer_store_dwordx4 {v(O+4*i,4)}, v6, {s(sW,4)}, {s(st)} offen sc1\ns_add_u32 {s(st)}, {s(st)}, 4096')
    A(f'KP_m2s:\ns_mov_b32 {s(st+1)}, {F_CE}')
    signal(A, None, st + 1, 64, 128)
    if STAMPS == 1: A('s_memrealtime s[74:75]')
    A.track = False
    ld_ptr(A, 8, C_RE); ld_ptr(A, 12, C_IM)
    A(f'''s_cmp_ge_u32 s2, {224+NAUX}
s_cbranch_scc1 KP_pf
s_cmp_lt_u32 s2, 231
s_cbranch_scc1 KP_qt
s_sub_u32 {s(st)}, s2, 231
s_and_b32 {s(st+1)}, {s(st)}, 1
s_lshr_b32 {s(st+2)}, {s(wave)}, 1
s_and_b32 {s(st+3)}, {s(wave)}, 1
s_andn2_b32 {s(st+4)}, {s(st)}, 1
s_add_u32 {s(st+4)}, {s(st+4)}, {s(st+2)}
s_mul_i32 {s(st+4)}, {s(st+4)}, {32*896}
s_mul_i32 {s(st+5)}, {s(st+3)}, {14*32}
s_add_u32 {s(st+4)}, {s(st+4)}, {s(st+5)}
s_lshl_b32 {s(st+5)}, {s(st)}, 1
s_add_u32 {s(st+5)}, {s(st+5)}, {s(st+2)}
s_lshl_b32 {s(st+5)}, {s(st+5)}, 1
s_add_u32 {s(st+5)}, {s(st+5)}, {s(st+3)}
s_mul_i32 {s(st+5)}, {s(st+5)}, {14*1024}
s_add_u32 {s(st+5)}, {s(st+5)}, {WC + WC_L}
v_and_b32 v5, 31, {v(lane)}
v_mul_u32_u24 v5, 896, v5
v_lshrrev_b32 v6, 5, {v(lane)}
v_lshl_add_u32 v5, v6, 4, v5
v_lshlrev_b32 v6, 4, {v(lane)}
s_waitcnt lgkmcnt(0)
s_cmp_eq_u32 {s(st+1)}, 0
s_cselect_b32 s8, s8, s12
s_cselect_b32 s9, s9, s13''')
    srd(A, 8, D * D * 2); srd_ws(A, sW)
    for k in range(14):
        A(f'buffer_load_dwordx4 {v(8+4*k,4)}, v5, s[8:11], {s(st+4)} offen offset:{32*k}')
    for k in range(14):
        A(f's_waitcnt vmcnt(13)\nbuffer_store_dwordx4 {v(8+4*k,4)}, v6, {s(sW,4)}, {s(st+5)} offen sc1\ns_add_u32 {s(st+5)}, {s(st+5)}, 1024')
    A('s_branch KP_auxsig')
    A('KP_qt:')
    sinv, s448 = 25, 26
    amp, df, two, c16, t, u, d0, d1, d2, tq = 6, 7, 8, 9, 10, 11, 112, 113, 114, 115
    O = 48
    a2 = math.sqrt(2.0 / 448); a1 = math.sqrt(1.0 / 448)
    A(f'''s_mov_b32 {s(sinv)}, {f2u(INV448)}
s_mov_b32 {s(s448)}, {f2u(448.0)}
s_sub_u32 {s(st)}, s2, 224
s_lshl_b32 {s(st)}, {s(st)}, 2
s_add_u32 {s(st)}, {s(st)}, {s(wave)}
s_lshl_b32 {s(st+1)}, {s(st)}, 4
s_mul_i32 {s(st)}, {s(st)}, {14*1024}
s_add_u32 {s(st)}, {s(st)}, {WSK + WSK_L}
v_and_b32 v12, 15, {v(lane)}
v_add_u32 v12, {s(st+1)}, v12
v_cvt_f32_u32 {v(df)}, v12
v_lshrrev_b32 v13, 4, {v(lane)}
v_lshlrev_b32 v14, 1, v13
v_cvt_f32_u32 v14, v14
v_add_f32 {v(t)}, {f2u(96.0)}, v14
v_mul_f32 {v(t)}, {v(t)}, {v(df)}
v_mul_f32 {v(c16)}, {f2u(16.0)}, {v(df)}
v_mul_f32 {v(d2)}, {f2u(7.0)}, {v(df)}
v_mov_b32 {v(amp)}, {f2u(a2)}''')
    for r in (t, c16, d2):
        A(f'''v_mul_f32 {v(tq)}, {s(sinv)}, {v(r)}
v_rndne_f32 {v(tq)}, {v(tq)}
v_fma_f32 {v(r)}, -{v(tq)}, {s(s448)}, {v(r)}
v_mul_f32 {v(r)}, {s(sinv)}, {v(r)}''')
    A(f'''v_cos_f32 {v(two)}, {v(c16)}
v_add_f32 {v(u)}, {v(t)}, {v(c16)}
v_mov_b32 {v(d0)}, 0x3e800000
v_mul_f32 {v(d1)}, {s(sinv)}, {v(df)}
v_subrev_f32 {v(d1)}, 0x3e800000, {v(d1)}
v_subrev_f32 {v(d2)}, 0x3e800000, {v(d2)}''')
    cheb(A, O, 16, t, u, [d0, d1, d0, d2, d0, d1, d0], amp, two, None, None)
    A(f'''v_mov_b32 {v(t)}, {f2u(a1)}
v_cvt_pk_bf16_f32 {v(t)}, {v(t)}, {v(t)}
v_and_b32 v12, 1, v12
v_lshlrev_b32 v12, 15, v12
v_xor_b32 {v(t)}, {v(t)}, v12
v_cmp_eq_u32 vcc, 0, v13
v_cndmask_b32 {v(O)}, {v(O)}, {v(t)}, vcc
v_lshlrev_b32 v6, 4, {v(lane)}
s_waitcnt lgkmcnt(0)''')
    srd_ws(A, sW)
    for k in range(14):
        A(f'buffer_store_dwordx4 {v(O+4*k,4)}, v6, {s(sW,4)}, {s(st)} offen sc1\ns_add_u32 {s(st)}, {s(st)}, 1024')
    A('KP_auxsig:')
    A(f's_mov_b32 {s(st+1)}, {F_CD}')
    signal(A, None, st + 1, NREP, 128)
    A.track = False
    fill(HB2, 32 * 114688, 0, NAUX, F_PF4, NREP)
    if astamp: astamp()
    A('s_endpgm')
    A('KP_pf:')
    fill(ZC2, 224 * 8192, NAUX, 32 - NAUX, F_PF2, NREP)
    fill(ZB3, 224 * 8192, NAUX, 32 - NAUX, F_PF3, NREP)
    if astamp: astamp()
    A('s_endpgm')

def main():
    gen.REST_BYTES = 40960; gen.K0_BYTES = 12288
    txt = build([('k0', k0(), 256, 0), ('k1', kp(), 256, 256)], [('k0', 491, 81920), ('k1', 224 + NAUX, LDS_BYTES)])
    txt = txt.replace('.amdhsa_next_free_sgpr 96', '.amdhsa_next_free_sgpr 102')
    open(sys.argv[1] if len(sys.argv) > 1 else 'k.s', 'w').write(txt)
    if PROBE: print(list(enumerate(NAMES)))
    if STAMPS == 1: open((sys.argv[1] if len(sys.argv) > 1 else 'k.s') + '.names', 'w').write(' '.join(NAMES))

if __name__ == '__main__':
    main()
```

```python
import sys
sys.path.insert(0, 'dev')
import gen, gen_p
from gen import *
from gen_p import *

K = 1024
F_P0 = FLAGS
gen_p.F_CA[0], gen_p.F_CA[1] = FLAGS + 32 * K, FLAGS + 96 * K
gen_p.F_CC = FLAGS + 64 * K
gen_p.F_CB[0], gen_p.F_CB[1] = FLAGS + 128 * K, FLAGS + 132 * K
F_W = FLAGS + 184 * K
gen_p.F_CE, gen_p.F_CD = FLAGS + 176 * K, FLAGS + 140 * K
F_M1, F_M2, F_ZD, F_NO = FLAGS + 144 * K, FLAGS + 151 * K, FLAGS + 158 * K, FLAGS + 159 * K
SSQ0 = FLAGS + 160 * K
gen_p.SSQ2 = FLAGS + 168 * K
gen_p.F_PF1, gen_p.F_PF2, gen_p.F_PF3 = FLAGS + 192 * K, FLAGS + 136 * K, FLAGS + 200 * K
gen_p.F_PF4 = FLAGS + 204 * K
NA = 32
L_XRED, L_M = 65536, 81920
QA, X0, X1, XB, CH, TM = 8, 64, 144, 190, 80, 112
vj, vd0, vt, vmb, rw, rr, ga_, gt_, ta_, ia_ = 120, 121, 122, 222, 223, 224, 225, 226, 227, 229
lre, lim, ldt = 232, 233, 234
mre, mim, mdt = 235, 236, 237
sX, sM, sD = 8, 12, 56
sinv, s448, m_off, m_step, m_xr, m_dx, role, s_k = 34, 35, 36, 37, 38, 39, 59, 33
KSIG = int(os.environ.get('KSIG', '8'))
NF0 = int(os.environ.get('NF0', '4')); NF1 = int(os.environ.get('NF1', '3'))
NDX = int(os.environ.get('NDX', '6'))
MS = int(os.environ.get('MS', '0'))
PI0 = int(os.environ.get('PI0', '0')); MD = int(os.environ.get('MD', '2')); NT2 = int(os.environ.get('NT2', '86'))
HEAD_BYTES = 12288; PF_START = 8192; PF_PART = 12288

def gemm(A, rd, nrd, mf, nf, mid=None):
    for k in range(3): rd(k)
    for k in range(14):
        if mid and k == KSIG: mid()
        if k + 3 < 14: rd(k + 3)
        A(f's_waitcnt lgkmcnt({nrd*min(3, 13-k)})')
        for i, T in enumerate((X0, X1)):
            A(f'v_mfma_f32_32x32x16_bf16 {v(T,16)}, {mf(k, i)}, {v(T,16) if k else 0}')
            A.fill(nf)
            if i == 0 or k < 4: A.bg(1)
    A.fill(999)

def gemm_rows(A, nf, mid=None):
    A(f's_mul_i32 {s(s_k)}, {s(kh)}, 448')
    def rd(k):
        b = XB + 8 * (k % 4)
        A(f'v_xor_b32 {v(gt_)}, {s(s_k)}, {v(ga_)}\ns_add_u32 {s(s_k)}, {s(s_k)}, 32')
        A(f'ds_read_b128 {v(b,4)}, {v(gt_)}\nds_read_b128 {v(b+4,4)}, {v(gt_)} offset:32768')
    gemm(A, rd, 2, lambda k, i: f'{v(QA+4*k,4)}, {v(XB+8*(k%4)+4*i,4)}', nf, mid)

CEK = int(os.environ.get('CEK', '9'))
def chk_issue(A, r, mask=3):
    A(f'v_mov_b32 {v(r+2)}, 0\ns_mov_b64 exec, {mask}')
    A.t('chk', f'buffer_atomic_or {v(r+2)}, {v(r)}, {s(sW,4)}, 0 offen sc0 sc1')
    A('s_mov_b64 exec, -1')

def chk_wait(A, r, cnt, mask=3):
    lab = A.label('chk')
    A(f's_mov_b32 {s(cnt)}, 0\ns_mov_b64 exec, {mask}')
    A.wait_vm('chk')
    A.track = False
    A(f'''{lab}:
v_cmp_gt_u32 vcc, {v(r+1)}, {v(r+2)}
s_add_u32 {s(cnt)}, {s(cnt)}, 1
s_cbranch_vccz {lab}_d
s_cmp_gt_u32 {s(cnt)}, {SPIN}
s_cbranch_scc1 {lab}_d
v_mov_b32 {v(r+2)}, 0
buffer_atomic_or {v(r+2)}, {v(r)}, {s(sW,4)}, 0 offen sc0 sc1
s_waitcnt vmcnt(0)
s_branch {lab}
{lab}_d:
s_mov_b64 exec, -1''')
    A.track = True

def km():
    A = Asm()
    gen.KSTAMP = False
    A(f's_cmp_ge_u32 s2, {224+NA}\ns_cbranch_scc1 KP_exit')
    pstamp(A, 'entry')
    ld_ptr(A, sW, WS); ld_ptr(A, sD, DBG)
    A('s_cmp_ge_u32 s2, 224\ns_cbranch_scc1 KP_aux')
    ld_ptr(A, sX, A_X); ld_ptr(A, sO, OUT)
    A(f's_load_dwordx8 s[40:47], s[0:1], {L_RE*8}\ns_load_dwordx8 s[48:55], s[0:1], {C_RE*8}')
    A('s_cmp_ge_u32 s2, 8\ns_cbranch_scc1 KM_nopf')
    A.track = False
    prefetch_code(A, 'km_kernel', HEAD_BYTES, 2, 28, 240)
    A.track = True
    A(f'''KM_nopf:
v_and_b32 {v(lane)}, 63, v0
v_lshrrev_b32 v2, 6, v0
v_readfirstlane_b32 {s(wave)}, v2
v_and_b32 {v(l15)}, 15, {v(lane)}
v_lshrrev_b32 {v(g)}, 4, {v(lane)}
v_lshlrev_b32 {v(VL16)}, 4, {v(lane)}
s_and_b32 {s(kh)}, {s(wave)}, 1
s_lshr_b32 {s(wm)}, {s(wave)}, 1
s_lshl_b32 {s(st)}, {s(kh)}, 7
v_xor_b32 {v(VL16X)}, {s(st)}, {v(VL16)}
s_cmp_eq_u32 s2, 0
s_cselect_b32 {s(sim)}, 0, 1.0''')
    tile_ids(A, rt, sl, st)
    A(f'''s_lshl_b32 {s(st+2)}, {s(rt)}, 2
s_add_u32 {s(st+2)}, {s(st+2)}, {s(wave)}
s_mul_i32 {s(st+2)}, {s(st+2)}, {16*896}
s_lshl_b32 {s(st)}, {s(wave)}, 14
s_mov_b32 m0, {s(st)}
s_min_u32 {s(role)}, {s(rt)}, 29
s_sub_u32 {s(role)}, {s(role)}, 26
s_cmp_lt_u32 {s(rt)}, 28
s_cselect_b32 {s(role)}, 1, {s(role)}
s_cmp_lt_u32 {s(rt)}, 14
s_cselect_b32 {s(role)}, 0, {s(role)}
s_lshl_b32 {s(m_off)}, {s(rt)}, 1
s_add_u32 {s(m_off)}, {s(m_off)}, {s(kh)}
s_mul_i32 {s(m_off)}, {s(m_off)}, {16*896}
s_cmp_ge_u32 {s(rt)}, 21
s_cselect_b32 {s(st+3)}, 21, 14
s_sub_u32 {s(st+3)}, {s(rt)}, {s(st+3)}
s_lshl_b32 {s(st+3)}, {s(st+3)}, 7
s_mul_i32 {s(st+4)}, {s(wave)}, {14*7168}
s_add_u32 {s(st+3)}, {s(st+3)}, {s(st+4)}
s_cmp_eq_u32 {s(role)}, 0
s_cselect_b32 {s(m_off)}, {s(m_off)}, 0
s_cselect_b32 {s(m_step)}, 896, 0
s_cmp_eq_u32 {s(role)}, 1
s_cselect_b32 {s(m_off)}, {s(st+3)}, {s(m_off)}
s_cselect_b32 {s(m_step)}, 7168, {s(m_step)}
s_cselect_b32 {s(m_dx)}, 0, 16
s_cselect_b64 vcc, -1, 0
s_mov_b32 {s(m_xr)}, 0
v_lshrrev_b32 v5, 3, {v(lane)}
v_mul_u32_u24 v5, 896, v5
v_and_b32 v6, 7, {v(lane)}
v_bfe_u32 v7, {v(lane)}, 4, 1
v_lshlrev_b32 v7, 2, v7
v_xor_b32 v6, v6, v7
v_lshl_add_u32 v5, v6, 4, v5
v_cndmask_b32 {v(vmb)}, {v(VL16)}, v5, vcc
s_mov_b32 {s(sinv)}, {f2u(INV448)}
s_mov_b32 {s(s448)}, {f2u(448.0)}''')
    A(f'''v_and_b32 {v(vj)}, 31, {v(lane)}
s_lshl_b32 {s(st)}, {s(sl)}, 6
s_lshl_b32 {s(st+1)}, {s(wm)}, 5
s_add_u32 {s(st)}, {s(st)}, {s(st+1)}
s_lshl_b32 {s(st+1)}, {s(kh)}, 3
v_xor_b32 {v(vj)}, {s(st+1)}, {v(vj)}
v_add_u32 {v(vj)}, {s(st)}, {v(vj)}
v_lshrrev_b32 {v(vd0)}, 5, {v(lane)}
v_lshlrev_b32 {v(vd0)}, 3, {v(vd0)}
s_mul_i32 {s(st)}, {s(kh)}, 224
v_add_u32 {v(vd0)}, {s(st)}, {v(vd0)}
v_cvt_f32_u32 {v(vd0)}, {v(vd0)}''')
    mq = []
    def memstart():
        A('s_waitcnt lgkmcnt(0)')
        srd(A, sX, S * D * 2); srd_ws(A, sW)
        pstamp(A, 'karg')
        for r in range(16):
            if r: A(f'v_xor_b32 {v(vt)}, {16*r}, {v(VL16)}')
            A.t('x', f'buffer_load_dwordx4 {v(vt if r else VL16)}, {s(sX,4)}, {s(st+2)} offen lds')
            if r < 15: A(f's_add_u32 m0, m0, 1024\ns_add_u32 {s(st+2)}, {s(st+2)}, 896')
        srd(A, sO, S * D * 4)
        A(f'''s_cmp_eq_u32 {s(wm)}, 0
s_cselect_b32 {s(sM)}, s44, s46
s_cselect_b32 {s(sM+1)}, s45, s47
s_cmp_ge_u32 {s(rt)}, 21
s_cselect_b32 s48, s50, s48
s_cselect_b32 s49, s51, s49
s_cmp_eq_u32 {s(role)}, 1
s_cselect_b32 {s(sM)}, s48, {s(sM)}
s_cselect_b32 {s(sM+1)}, s49, {s(sM+1)}
s_cmp_ge_u32 {s(role)}, 2
s_cselect_b32 {s(sM)}, s54, {s(sM)}
s_cselect_b32 {s(sM+1)}, s55, {s(sM+1)}
s_mov_b32 {s(sM+2)}, {D*D*2}
s_cselect_b32 {s(sM+2)}, {D*2}, {s(sM+2)}
s_cmp_eq_u32 {s(role)}, 3
s_cselect_b32 {s(sM+2)}, 0, {s(sM+2)}
s_mov_b32 {s(sM+3)}, 0x20000
s_lshl_b32 {s(st)}, {s(wave)}, 14
s_add_u32 {s(st)}, {s(st)}, {L_M}
s_mov_b32 m0, {s(st)}
s_lshl_b32 {s(st+3)}, {s(sl)}, 2
s_add_u32 {s(st+3)}, {s(st+3)}, {s(wave)}
s_mul_i32 {s(s_m1)}, {s(st+3)}, {28*1024}
s_add_u32 {s(s_m1)}, {s(s_m1)}, {WM1}
s_mul_i32 {s(s_sk)}, {s(st+3)}, {14*1024}
s_add_u32 {s(s_sk)}, {s(s_sk)}, {WSK}
s_lshl_b32 {s(st+3)}, {s(st+3)}, 5
s_lshl_b32 {s(s_wc)}, {s(sl)}, 1
s_add_u32 {s(s_wc)}, {s(s_wc)}, {s(kh)}
s_lshl_b32 {s(s_wc)}, {s(s_wc)}, 1
s_add_u32 {s(s_wc)}, {s(s_wc)}, {s(wm)}
s_mul_i32 {s(s_wc)}, {s(s_wc)}, {28*1024}
s_add_u32 {s(s_wc)}, {s(s_wc)}, {WC}
v_lshl_add_u32 v5, {v(l15)}, 1, {s(st+3)}
s_min_u32 {s(st)}, {s(rt)}, 13
s_lshl_b32 {s(st)}, {s(st)}, 6
v_and_b32 v6, 31, {v(lane)}
v_lshl_add_u32 v6, v6, 1, {s(st)}
v_lshlrev_b32 v2, 2, v0
v_mov_b32 v7, -1
s_lshl_b32 {s(st)}, s2, 10
s_add_u32 {s(st)}, {s(st)}, {AGG}''')
        for i in range(16):
            mq.append(('m', f'''v_xor_b32 {v(vt)}, {s(m_xr)}, {v(vmb)}
buffer_load_dwordx4 {v(vt)}, {s(sM,4)}, {s(m_off)} offen lds
s_add_u32 m0, m0, 1024
s_add_u32 {s(m_off)}, {s(m_off)}, {s(m_step)}
s_add_u32 {s(m_xr)}, {s(m_xr)}, {s(m_dx)}'''))
        A.t('pf', f'buffer_store_dword v7, v2, {s(sW,4)}, {s(st)} offen sc1')
        if 'ca0' in NOD:
            pf = f'buffer_store_dwordx4 v[248:251], {v(VL16)}, {s(sW,4)}, {s(st+1)} offen'
            mq.insert(0, ('pf', pf + ' offset:1024 sc1'))
            mq.insert(0, ('pf', pf + ' sc1'))
        for r, sr in ((lre, 40), (lim, 42), (ldt, 52), (hd, 54)):
            A.t('lam', f'global_load_ushort {v(r)}, v5, {s(sr,2)}')
        for r, sr in ((mre, 40), (mim, 42), (mdt, 52)):
            A.t('lam', f'global_load_ushort {v(r)}, v6, {s(sr,2)}')
    gen_q(A, QA, vj, vd0, math.sqrt(1.0 / 448), CH, TM, sinv, s448, hook=memstart)
    A.bg(64)
    A(f'''s_lshl_b32 {s(st)}, {s(wave)}, 12
s_add_u32 {s(st)}, {s(st)}, {L_XRED}
s_xor_b32 {s(st+1)}, {s(st)}, 4096
v_add_u32 {v(rw)}, {s(st)}, {v(VL16)}
v_add_u32 {v(rr)}, {s(st+1)}, {v(VL16)}
v_and_b32 {v(ga_)}, 31, {v(lane)}
v_lshrrev_b32 {v(gt_)}, 5, {v(lane)}
v_xor_b32 {v(gt_)}, {v(gt_)}, {v(l15)}
v_lshlrev_b32 {v(gt_)}, 4, {v(gt_)}
v_lshl_add_u32 {v(ga_)}, {v(ga_)}, 10, {v(gt_)}
v_cmp_eq_u32 s[44:45], 1, {v(g)}
v_cmp_eq_u32 s[46:47], 2, {v(g)}
v_cmp_eq_u32 s[48:49], 3, {v(g)}''')
    A(f'''v_mov_b32 v248, -1
v_mov_b32 v249, -1
v_mov_b32 v250, -1
v_mov_b32 v251, -1
s_lshl_b32 {s(st+1)}, s2, 2
s_add_u32 {s(st+1)}, {s(st+1)}, {s(wave)}
s_lshl_b32 {s(st+1)}, {s(st+1)}, 11
s_add_u32 {s(st+1)}, {s(st+1)}, {ZB}''')
    A('v_mov_b32 v244, 0')
    pstamp(A, 'qgen')
    A.wait_vm('x')
    A('s_barrier')
    pstamp(A, 'xin')
    zr = (ta_, ia_, 5, 6)
    A.fq = capture(col_tables1, lambda B: zepi_setup(B, zr, 128, ZC, SSQ0))
    A.bgq = mq
    gemm_rows(A, NF0)
    pstamp(A, 'xgemm')
    A(f's_load_dword {s(s_k)}, {s(sD,2)}, 0')
    ksplit_reduce(A, X0, X1, rw, rr, XB, True)
    def gate():
        lab = A.label('gate')
        A.track = False
        A(f'''s_cmp_ge_u32 {s(s_k)}, {NA}
s_cbranch_scc1 {lab}_d
v_mov_b32 v2, 0
s_mov_b32 {s(s_k)}, 0
{lab}:
global_load_dword v7, v2, {s(sD,2)} sc1
s_add_u32 {s(s_k)}, {s(s_k)}, 1
s_cmp_gt_u32 {s(s_k)}, {SPIN}
s_cbranch_scc1 {lab}_d
s_waitcnt vmcnt(0)
v_cmp_gt_u32 vcc, {NA}, v7
s_cbranch_vccnz {lab}
{lab}_d:''')
        A.track = True
    zepi(A, X0, X1, XB, zr, 128, gate)
    pstamp(A, 'stored')
    tab2 = capture(col_tables2)
    for ln in tab2[:NT2]: A(ln)
    tab3 = tab2[NT2:]; tab2 = []
    lr, li, t0, t1, gr, gi = range(238, 244)
    lam_calc(A, mre, mim, mdt, lr, li, t0, t1)
    A(f"""v_subrev_f32 {v(lr)}, 1.0, {v(lr)}
v_mul_f32 {v(t0)}, {v(mre)}, {v(mre)}
v_fmac_f32 {v(t0)}, {v(mim)}, {v(mim)}
v_rcp_f32 {v(t0)}, {v(t0)}
v_mul_f32 {v(gr)}, {v(lr)}, {v(mre)}
v_fmac_f32 {v(gr)}, {v(li)}, {v(mim)}
v_mul_f32 {v(gi)}, {v(li)}, {v(mre)}
v_fma_f32 {v(gi)}, -{v(lr)}, {v(mim)}, {v(gi)}
v_mul_f32 {v(gr)}, {v(gr)}, {v(t0)}
v_mul_f32 {v(gi)}, {v(gi)}, {v(t0)}
v_add_u32 {v(ga_)}, {L_M}, {v(ga_)}""")
    sig0 = None
    if True:
        pstamp(A, 'tab2')
        signal16(A, 'st', F_P0)
        pstamp(A, 'sig0')
    else:
        A.wait_vm('m')
        A('s_barrier')
        pstamp(A, 'tab2')
        pstamp(A, 'sig0')
        vm0 = list(A.vm)
        def sig0():
            A.vm = list(vm0)
            signal16(A, 'st', F_P0)
            A.track = False
            if STAMPS == 1 and 'sig0' in NAMES: A(f's_memrealtime {s(60+2*NAMES.index("sig0"),2)}')
    A.track = False
    A(f's_cmp_eq_u32 {s(role)}, 1\ns_cbranch_scc1 KM_m2\ns_cmp_eq_u32 {s(role)}, 3\ns_cbranch_scc1 KM_none')
    P0 = poll16(F_P0)
    A.fq = tab2 + f"""v_bfe_u32 v244, {v(lane)}, 4, 1
v_mul_u32_u24 v244, {28*1024}, v244
v_lshrrev_b32 v245, 5, {v(lane)}
v_lshl_add_u32 v244, v245, 8, v244
v_lshl_add_u32 v244, {v(l15)}, 4, v244
s_mul_i32 {s(st+2)}, {s(rt)}, 28
s_lshl_b32 {s(st+1)}, {s(sl)}, 1
s_add_u32 {s(st+2)}, {s(st+2)}, {s(st+1)}
s_add_u32 {s(st+2)}, {s(st+2)}, {s(wm)}
s_lshl_b32 {s(st+2)}, {s(st+2)}, 11
s_lshl_b32 {s(st+1)}, {s(kh)}, 9
s_add_u32 {s(st+2)}, {s(st+2)}, {s(st+1)}
s_add_u32 {s(m_off)}, {s(st+2)}, {WM1}
s_lshr_b32 {s(m_step)}, {s(rt)}, 1
s_lshl_b32 {s(m_step)}, {s(m_step)}, 10
s_add_u32 {s(m_step)}, {s(m_step)}, {F_M1}""".split('\n')
    gemm_rows(A, NF1, lambda: poll_issue(A, P0))
    A('s_branch KM_join')
    E = A; A = Asm(); A.track = False; A.nlabel = 1000
    A(f's_cmp_eq_u32 {s(role)}, 3\ns_cbranch_scc1 KM_en')
    ksplit_reduce(A, X0, X1, rw, rr, XB, True)
    A(f's_cmp_eq_u32 {s(role)}, 1\ns_cbranch_scc1 KM_e2')
    A(f"""s_cmp_eq_u32 {s(role)}, 2
s_cbranch_scc1 KM_d
s_or_b32 {s(st+1)}, {s(sl)}, {s(wave)}
s_cmp_lg_u32 {s(st+1)}, 0
s_cbranch_scc1 KM_nodc
v_cmp_gt_u32 vcc, 32, {v(lane)}
v_cndmask_b32 {v(X0+1)}, {v(X0+1)}, 0, vcc
v_cndmask_b32 {v(X1+1)}, {v(X1+1)}, 0, vcc
KM_nodc:""")
    o = XB + 16
    G = v(gr, 2)
    for i, r in enumerate((0, 2, 8, 10)):
        A(f'v_pk_mul_f32 {v(o+2*i,2)}, {v(X0+r,2)}, {G} op_sel_hi:[1,0]\nv_pk_mul_f32 {v(o+8+2*i,2)}, {v(X1+r,2)}, {G} op_sel_hi:[1,0]')
    for i, r in enumerate((0, 2, 8, 10)):
        A(f'v_pk_fma_f32 {v(o+2*i,2)}, {v(X1+r,2)}, {G}, {v(o+2*i,2)} op_sel:[0,1,0] op_sel_hi:[1,1,1] neg_lo:[1,0,0] neg_hi:[1,0,0]')
        A(f'v_pk_fma_f32 {v(o+8+2*i,2)}, {v(X0+r,2)}, {G}, {v(o+8+2*i,2)} op_sel:[0,1,0] op_sel_hi:[1,1,1]')
    for i in range(8):
        A(f'v_cvt_pk_bf16_f32 {v(XB+i)}, {v(o+2*i)}, {v(o+2*i+1)}')
    A(f"""buffer_store_dwordx4 {v(XB,4)}, v244, {s(sW,4)}, {s(m_off)} offen sc1
buffer_store_dwordx4 {v(XB+4,4)}, v244, {s(sW,4)}, {s(m_off)} offen offset:1024 sc1
s_branch KM_en
KM_d:
v_lshrrev_b32 v244, 1, {v(lane)}
s_lshl_b32 {s(st)}, {s(sl)}, 8
s_lshl_b32 {s(st+1)}, {s(wm)}, 7
s_add_u32 {s(st)}, {s(st)}, {s(st+1)}
s_lshl_b32 {s(st+1)}, {s(kh)}, 5
s_add_u32 {s(st)}, {s(st)}, {s(st+1)}
s_add_u32 {s(st)}, {s(st)}, {ZD}
s_mov_b32 {s(m_step)}, {F_ZD}
s_mov_b32 exec_lo, 1
s_mov_b32 exec_hi, 1
buffer_store_dwordx4 {v(X0,4)}, v244, {s(sW,4)}, {s(st)} offen sc1
buffer_store_dwordx4 {v(X0+8,4)}, v244, {s(sW,4)}, {s(st)} offen offset:64 sc1
s_mov_b64 exec, -1
s_branch KM_en""")
    A, E = E, A
    a0, a1 = 244, 245
    A(f"""KM_m2:
v_bfe_u32 {v(a0)}, {v(lane)}, 2, 2
v_lshrrev_b32 {v(a1)}, 5, {v(lane)}
v_lshl_add_u32 {v(a1)}, {v(a1)}, 3, {v(a0)}
v_lshlrev_b32 {v(a1)}, 7, {v(a1)}
v_lshrrev_b32 {v(a0)}, 1, {v(a0)}
v_lshl_add_u32 {v(a1)}, {v(a0)}, 6, {v(a1)}
v_bfe_u32 {v(a0)}, {v(lane)}, 1, 1
v_xor_b32 {v(a0)}, {s(kh)}, {v(a0)}
v_lshl_add_u32 {v(a1)}, {v(a0)}, 5, {v(a1)}
v_bfe_u32 {v(a0)}, {v(lane)}, 4, 1
v_lshl_add_u32 {v(a1)}, {v(a0)}, 4, {v(a1)}
v_and_b32 {v(a0)}, 1, {v(lane)}
v_lshl_add_u32 {v(a1)}, {v(a0)}, 3, {v(a1)}
s_lshl_b32 {s(st)}, {s(kh)}, 15
s_add_u32 {s(st)}, {s(st)}, {L_M}
v_add_u32 {v(a0)}, {s(st)}, {v(a1)}
v_xor_b32 {v(a1)}, 64, {v(a0)}""")
    def rd2(k):
        b = XB + 8 * (k % 4)
        for mt in range(2):
            for hf in range(2):
                A(f'ds_read_b64_tr_b16 {v(b+4*mt+2*hf,2)}, {v(a0+mt)} offset:{k*2048+(2048 if k >= 7 else 0)+hf*512}')
    A.fq = tab2 + f"""v_xor_b32 {v(rr)}, 0x80, {v(rr)}
s_min_u32 {s(st+2)}, {s(rt)}, 21
s_lshr_b32 {s(st+2)}, {s(st+2)}, 0
s_sub_u32 {s(st+2)}, {s(st+2)}, 14
s_mul_i32 {s(st+2)}, {s(st+2)}, 37
s_lshr_b32 {s(st+2)}, {s(st+2)}, 8
s_mul_i32 {s(st+1)}, {s(st+2)}, 7
s_add_u32 {s(st+1)}, {s(st+1)}, 14
s_sub_u32 {s(st+1)}, {s(rt)}, {s(st+1)}
s_lshl_b32 {s(st)}, {s(sl)}, 1
s_add_u32 {s(st)}, {s(st)}, {s(st+2)}
s_lshl_b32 {s(st)}, {s(st)}, 1
s_add_u32 {s(st)}, {s(st)}, {s(wm)}
s_mul_i32 {s(st)}, {s(st)}, 28
s_lshl_b32 {s(st+1)}, {s(st+1)}, 2
s_add_u32 {s(st)}, {s(st)}, {s(st+1)}
s_add_u32 {s(st)}, {s(st)}, {s(kh)}
s_lshl_b32 {s(st)}, {s(st)}, 10
s_add_u32 {s(m_off)}, {s(st)}, {WC}
s_lshl_b32 {s(m_step)}, {s(sl)}, 10
s_add_u32 {s(m_step)}, {s(m_step)}, {F_M2}""".split('\n')
    gemm(A, rd2, 4, lambda k, i: f'{v(XB+8*(k%4)+4*i,4)}, {v(QA+4*k,4)}', NF1, lambda: poll_issue(A, P0))
    A('s_branch KM_join')
    A, E = E, A
    A('KM_e2:')
    for mt, T in enumerate((X0, X1)):
        for i, r in enumerate((0, 2, 8, 10)):
            A(f'v_cvt_pk_bf16_f32 {v(XB+16+4*mt+i)}, {v(T+r)}, {v(T+r+1)}')
    A(f"""buffer_store_dwordx4 {v(XB+16,4)}, {v(VL16X)}, {s(sW,4)}, {s(m_off)} offen sc1
buffer_store_dwordx4 {v(XB+20,4)}, {v(VL16X)}, {s(sW,4)}, {s(m_off)} offen offset:2048 sc1
KM_en:""")
    A, E = E, A
    A('KM_none:')
    poll_issue(A, P0)
    A(f's_mov_b32 {s(m_step)}, {F_NO}\nKM_join:')
    A.track = True
    pstamp(A, 'mgemm')
    A.vm = []
    ck = 246
    def mid0():
        for i, r in enumerate((sAG0, sAG1)):
            A(f's_add_u32 {s(r)}, s4, {AGG + i*AGG_L}\ns_addc_u32 {s(r+1)}, s5, 0')
            srd(A, r, AGG_L)
        A(f"""s_mov_b32 {s(s_redo)}, 0
s_lshl_b32 {s(st+2)}, {s(sl)}, 10
s_and_b32 {s(st+3)}, s2, 7
s_lshl_b32 {s(st+3)}, {s(st+3)}, 7
s_add_u32 {s(st+2)}, {s(st+2)}, {s(st+3)}
s_add_u32 {s(st+2)}, {s(st+2)}, {F_M1}
v_mul_u32_u24 {v(ck)}, {F_M2 - F_M1}, {v(lane)}
v_add_u32 {v(ck)}, {s(st+2)}, {v(ck)}
v_mov_b32 {v(ck+1)}, 56""")
    poll_check(A, 0)
    A(col_poll_pre(ZC, SSQ0))
    cw = 250
    def mid1():
        A(f"""s_and_b32 {s(st)}, s2, 15
s_lshl_b32 {s(st)}, {s(st)}, 2
s_add_u32 {s(st)}, {s(st)}, {s(wave)}
s_lshl_b32 {s(st)}, {s(st)}, 7
s_add_u32 {s(st)}, {s(st)}, {F_W}
v_mov_b32 {v(cw)}, {s(st)}
v_mov_b32 {v(cw+1)}, {NA}""")
        chk_issue(A, cw, 1)
        A.lines.extend(E.lines)
        pstamp(A, 'mdone')
        mid0()
        for ln in tab3: A(ln)
        A(f'v_mov_b32 {v(CT+2)}, {f2u(1e-5*2048.0*2048.0)}')
    col_poll(A, ZC, SSQ0, mid1)
    lab = A.label('cw')
    A(f's_waitcnt vmcnt(2)\ns_cmp_lg_u32 {s(role)}, 3\ns_cbranch_scc1 {lab}\ns_waitcnt vmcnt(0)\n{lab}:')
    A.vm = []
    chk_wait(A, cw, st + 5, 1)
    col_wload(A, st + 5)
    def hook(i):
        if i == MS:
            A(f"""s_waitcnt vmcnt({len(A.vm)})
v_mov_b32 v5, 1
v_lshlrev_b32 v6, 7, {v(lane)}
s_mov_b64 exec, 0xff
buffer_atomic_add v5, v6, {s(sW,4)}, {s(m_step)} offen sc1
s_mov_b64 exec, -1""")
        if i == MH: chk_issue(A, ck)
        if i == MH + MD:
            chk_wait(A, ck, st + 5); q_m1(A)
    col_compute(A, ZB, True, hook)
    def pre(i):
        if i == 0 and MH + MD > 4:
            chk_wait(A, ck, st + 5); q_m1(A); A.bg(NDX)
    ce, cp = 170, 176
    def shook(ks):
        if ks == -1:
            A(f'''s_and_b32 {s(st)}, s2, 15
s_lshl_b32 {s(st)}, {s(st)}, 2
s_add_u32 {s(st)}, {s(st)}, {s(wave)}
s_lshl_b32 {s(st)}, {s(st)}, 7
s_add_u32 {s(st)}, {s(st)}, {gen_p.F_CE}
v_mov_b32 {v(ce)}, {s(st)}
v_mov_b32 {v(ce+1)}, 28''')
        if ks == 100 and 'cb' in NOD:
            A(f'v_add_u32 {v(cp)}, {gen_p.F_PF1 - gen_p.F_CE}, {v(ce)}\nv_mov_b32 {v(cp+1)}, {NA}')
        if ks == 102 and 'cb' in NOD: chk_issue(A, cp, 1)
        if ks == 101 and 'cb' in NOD: chk_wait(A, cp, st + 5, 1)
        if ks == CEK - 4: chk_issue(A, ce, 1)
        if ks == CEK:
            chk_wait(A, ce, st + 5, 1)
            rest = A.bgq; A.bgq = []; q_sk(A, WSC); A.bgq += rest
    layers(A, lre, lim, ldt, pre, shook)
    kend(A)

    A('KP_aux:')
    A.track = False
    sI, sI2 = 8, 12
    arr, w4, gq, hf, u = 41, 23, 24, 42, 27
    ld_ptr(A, sI, A_WR); ld_ptr(A, sI2, A_WI)
    A(f'''v_and_b32 {v(lane)}, 63, v0
v_lshrrev_b32 v2, 6, v0
v_readfirstlane_b32 {s(wave)}, v2
s_sub_u32 {s(u)}, s2, 224
s_and_b32 {s(hf)}, {s(u)}, 1
s_bfe_u32 {s(arr)}, {s(u)}, 0x10001
s_bfe_u32 {s(w4)}, {s(u)}, 0x20002
s_lshr_b32 {s(gq)}, {s(u)}, 4
s_lshl_b32 {s(st)}, {s(gq)}, 3
s_lshl_b32 {s(st+1)}, {s(wave)}, 1
s_add_u32 {s(st)}, {s(st)}, {s(st+1)}
s_lshl_b32 {s(st)}, {s(st)}, 2
s_add_u32 {s(st)}, {s(st)}, {s(w4)}
s_lshl_b32 {s(st)}, {s(st)}, 1
s_add_u32 {s(st)}, {s(st)}, {s(hf)}
s_mul_i32 {s(st+2)}, {s(st)}, 3600
s_lshl_b32 {s(st)}, {s(wave)}, 13
s_mov_b32 m0, {s(st)}
v_lshlrev_b32 v2, 4, {v(lane)}
v_lshlrev_b32 v3, 4, v0
v_mov_b32 v8, 0
v_mov_b32 v9, 0
v_mov_b32 v10, 0
v_mov_b32 v11, 0
s_lshl_b32 {s(st)}, {s(u)}, 13
s_add_u32 {s(st)}, {s(st)}, {FLAGS}
s_add_u32 {s(st+1)}, {s(st)}, 4096
s_waitcnt lgkmcnt(0)
s_cmp_eq_u32 {s(arr)}, 0
s_cselect_b32 {s(sI)}, {s(sI)}, {s(sI2)}
s_cselect_b32 {s(sI+1)}, {s(sI+1)}, {s(sI2+1)}''')
    srd(A, sI, S * 450); srd_ws(A, sW)
    A(f'buffer_store_dwordx4 v[8:11], v3, {s(sW,4)}, {s(st)} offen sc1\nbuffer_store_dwordx4 v[8:11], v3, {s(sW,4)}, {s(st+1)} offen sc1')
    for un in range(2):
        for e in range(2):
            for i in range(4):
                A(f'buffer_load_dwordx4 v2, {s(sI,4)}, {s(st+2)} offen offset:{i*1024} lds')
            if e == 0: A(f's_add_u32 m0, m0, 4096\ns_add_u32 {s(st+2)}, {s(st+2)}, {4*7200}')
        if un == 0: A(f's_add_u32 m0, m0, {32768-4096}\ns_add_u32 {s(st+2)}, {s(st+2)}, {128*3600-4*7200}')
    A(f'''s_waitcnt vmcnt(16)
s_barrier
s_cmp_lg_u32 {s(wave)}, 0
s_cbranch_scc1 KM_ag
v_mov_b32 v8, 1
s_mov_b64 exec, 1
global_atomic_add v9, v8, {s(sD,2)} sc1
s_mov_b64 exec, -1
KM_ag:
v_and_b32 v3, 7, {v(lane)}
v_mul_u32_u24 v4, 450, v3
v_lshrrev_b32 v5, 3, v0
v_lshl_add_u32 v4, v5, 1, v4
v_add_u32 v6, 448, v4
v_cmp_eq_u32 vcc, 0, v5
v_cndmask_b32 v6, v4, v6, vcc
v_lshlrev_b32 v5, 13, v5
v_lshl_add_u32 v5, v3, 4, v5
s_lshl_b32 {s(st)}, {s(w4)}, 1
s_add_u32 {s(st)}, {s(st)}, {s(arr)}
s_lshl_b32 {s(st)}, {s(st)}, 10
s_lshl_b32 {s(st+1)}, {s(gq)}, 8
s_add_u32 {s(st)}, {s(st)}, {s(st+1)}
s_lshl_b32 {s(st+1)}, {s(hf)}, 7
s_add_u32 {s(st)}, {s(st)}, {s(st+1)}
s_add_u32 {s(st)}, {s(st)}, {WF}
s_mov_b32 {s(st+3)}, 0
s_waitcnt vmcnt(0)
s_barrier''')
    if STAMPS == 1: A('s_memrealtime s[62:63]')
    A(f's_lshr_b32 {s(st+4)}, {s(u)}, 3\ns_mul_i32 {s(st+4)}, {s(st+4)}, {PF_PART}\ns_add_u32 {s(st+4)}, {s(st+4)}, {PF_START}')
    prefetch_code(A, 'km_kernel', PF_PART, 2, 44, 72, st + 4)
    A('KM_wt:')
    def wt_fin(it):
        b = 16 + 8 * (it % 2)
        o = 32 + 4 * it
        for i in range(4):
            A(f'v_or_b32 {v(o+i)}, {v(b+2*i)}, {v(b+2*i+1)}')
        A(f'buffer_store_dwordx4 {v(o,4)}, v5, {s(sW,4)}, {s(st)} offen sc1\ns_add_u32 {s(st)}, {s(st)}, {32*8192}')
    for it in range(7):
        b = 16 + 8 * (it % 2)
        for e in range(8):
            A(f'ds_read_u16{"_d16_hi" if e & 1 else ""} {v(b+e)}, {v(6 if it == 0 else 4)} offset:{e*4096+it*64}')
        if it >= 1:
            A('s_waitcnt lgkmcnt(8)')
            wt_fin(it - 1)
    A('s_waitcnt lgkmcnt(0)')
    wt_fin(6)
    A(f'''s_sub_u32 {s(st)}, {s(st)}, {7*32*8192-512}
v_add_u32 v4, 32768, v4
v_add_u32 v6, 32768, v6
s_add_u32 {s(st+3)}, {s(st+3)}, 1
s_cmp_lt_u32 {s(st+3)}, 2
s_cbranch_scc1 KM_wt
s_load_dword {s(s_k)}, {s(sD,2)}, 0
s_waitcnt lgkmcnt(0)''')
    if STAMPS == 1: A('s_memrealtime s[64:65]')
    gate()
    A.track = False
    A(f's_mov_b32 {s(st+1)}, {F_W}')
    signal(A, None, st + 1, 64, 128)
    A.track = False
    def astamp():
        if STAMPS != 1: return
        A('s_memrealtime s[100:101]\ns_waitcnt lgkmcnt(0)')
        for i in range(21): A(f'v_mov_b32 {v(8+i)}, {s(60+2*i)}')
        A(f'v_lshrrev_b32 v5, 6, v0\nv_lshlrev_b32 v5, 7, v5\ns_lshl_b32 s59, s2, 9\ns_add_u32 s59, s59, {STAMP + 131072}')
        for i in range(6): A(f'buffer_store_dwordx4 {v(8+4*i,4)}, v5, {s(sW,4)}, s59 offen offset:{16*i}')
    if STAMPS == 1: A('s_memrealtime s[72:73]')
    def zd_wait():
        A.track = True
        poll(A, f's_and_b32 {s(st)}, s2, 7\ns_lshl_b32 {s(st)}, {s(st)}, 7\ns_add_u32 {s(st)}, {s(st)}, {F_ZD}\nv_mov_b32 v5, {s(st)}\nv_mov_b32 v6, 28\ns_mov_b64 s[50:51], 1')
        A.track = False
    aux_tail(A, zd_wait, astamp)
    return A.render()

def main():
    txt = build([('km', km(), 256, 256)], [('km', 224 + NA, LDS_BYTES)])
    txt = txt.replace('.amdhsa_next_free_sgpr 96', '.amdhsa_next_free_sgpr 102')
    fn = sys.argv[1]
    open(fn, 'w').write(txt)
    if PROBE: print(list(enumerate(NAMES)))
    if STAMPS == 1: open(fn + '.names', 'w').write(' '.join(NAMES))

if __name__ == '__main__':
    main()
```

```python
import sys
sys.path.insert(0, 'dev')
from gen import *
import gen

NREP = int(os.environ.get('NREP', '16')); NSH = int(os.environ.get('NSH', '16')); PMASK = int(os.environ.get('PMASK', '1'))
NOD = set(os.environ.get('NOD', 'cb,cc,ca1').split(','))
F_PF1 = F_PF2 = F_PF3 = F_PF4 = None
LATE = int(os.environ.get('LATE', '0'))
F_CA = [FLAGS + 131072, FLAGS + 262144]
F_CC = FLAGS + 393216
F_CB = [FLAGS, FLAGS + 4096]
F_CD = FLAGS + 16384
F_CE = FLAGS + 20480
NAUX = 21
SPIN = 0x8000
ZSC = os.environ.get('ZSC', ' sc1'); HSC = os.environ.get('HSC', ' sc1'); WSC = os.environ.get('WSC', '')
CBG = int(os.environ.get('CBG', '2'))
MH = int(os.environ.get('MH', '3'))
QSC = os.environ.get('QSC', ' sc1')
M1L = int(os.environ.get('M1L', '16')); M1S = int(os.environ.get('M1S', '0'))
PD = os.environ.get('PD', '111')
LBK = int(os.environ.get('LBK', '8'))

L_RX = 57344
L_RED = 114688
L_COL = 131072
LDS_BYTES = 147456

lane, l15, g = 1, 3, 4
VL16, VL16X = 231, 230
WCV = 232
PR, PI = 190, 206
mgr, mgi, Lgr, Lgi, L4r, L4i, hd = range(222, 229)
sW, sAG0, sAG1, sO = 4, 8, 12, 16
wave, kh, wm, rt, sl, sim = 20, 21, 22, 23, 24, 25
s_m1, s_sk, s_wc = 26, 27, 58
st = 28
s_sk0, s_wc0, s_redo = 34, 35, 36
s_pf = 37
REDO = 256

NAMES = []
SKIP = int(os.environ.get('SSKIP', '0'))
_cnt = [0]
PROBE = os.environ.get('PROBE')
_pc = [0]
def pstamp(A, name):
    if PROBE:
        i, j = [int(x) for x in PROBE.split(',')]
        if _pc[0] == i: A('s_memrealtime s[60:61]')
        if _pc[0] == j: A('s_memrealtime s[62:63]')
        NAMES.append(name); _pc[0] += 1
        return
    if STAMPS != 1: return
    _cnt[0] += 1
    if _cnt[0] > 1 and _cnt[0] <= SKIP + 1: return
    if len(NAMES) >= 20: return
    A(f's_memrealtime {s(60+2*len(NAMES),2)}'); NAMES.append(name)

def capture(*fns):
    B = Asm()
    for f in fns: f(B)
    return [x[1].text for x in B.lines]

def wc_reg(k):
    return a(168 + 4 * k, 4) if k < 22 else v(WCV + 4 * (k - 22), 4)

def cmul(A, dr, di, ar, ai, br, bi):
    A(f'''v_mul_f32 {v(dr)}, {v(ar)}, {v(br)}
v_mul_f32 {v(di)}, {v(ar)}, {v(bi)}
v_fma_f32 {v(dr)}, -{v(ai)}, {v(bi)}, {v(dr)}
v_fmac_f32 {v(di)}, {v(ai)}, {v(br)}''')

def cfma(A, dr, di, ar, ai, br, bi):
    A(f'''v_fmac_f32 {v(dr)}, {v(ar)}, {v(br)}
v_fmac_f32 {v(di)}, {v(ar)}, {v(bi)}
v_fma_f32 {v(dr)}, -{v(ai)}, {v(bi)}, {v(dr)}
v_fmac_f32 {v(di)}, {v(ai)}, {v(br)}''')

def q_m1(A):
    for ks in range(14):
        for nt in range(2):
            i = 2 * ks + nt
            txt = f'buffer_load_dwordx4 {a(4*i,4)}, {v(VL16)}, {s(sW,4)}, {s(s_m1)} offen offset:{(i&3)*1024}'
            if (i & 3) == 3: txt += f'\ns_add_u32 {s(s_m1)}, {s(s_m1)}, 4096'
            A.bgq.append((f'm1_{ks}', txt))

def q_sk(A, sc):
    for ks in range(14):
        txt = f'buffer_load_dwordx4 {a(112+4*ks,4)}, {v(VL16)}, {s(sW,4)}, {s(s_sk)} offen offset:{(ks&3)*1024}{sc}'
        if (ks & 3) == 3: txt += f'\ns_add_u32 {s(s_sk)}, {s(s_sk)}, 4096'
        A.bgq.append(('sk', txt))

s_wce = 39
def rot_step(r, own, first=False):
    x = f's_lshl_b32 s59, {s(sl)}, 12\ns_sub_u32 {s(r)}, {s(own)}, s59' if first else f's_add_u32 {s(r)}, {s(r)}, 4096'
    return x + f'\ns_cmp_eq_u32 {s(r)}, {s(own)}\ns_cselect_b32 s59, 4096, 0\ns_add_u32 {s(r)}, {s(r)}, s59'

def q_wc(A, va, sc):
    for k in range(28):
        txt = f'buffer_load_dwordx4 {wc_reg(k)}, {v(va)}, {s(sW,4)}, {s(s_wc)} offen offset:{(k&3)*1024}{sc}'
        if (k & 3) == 3 and k < 27: txt += '\n' + rot_step(s_wc, s_wce, k == 3)
        A.bgq.append((f'wc{k//4}', txt))

XL = int(os.environ.get('XL', '0')); HST = os.environ.get('HST', ' sc1')
def signal(A, tag, addr_s, nrep=1, rstride=0, sc=' sc1', drain=True):
    if drain: A.wait_vm(tag)
    lab = A.label('sig')
    A(f's_barrier\ns_cmp_lg_u32 {s(wave)}, 0\ns_cbranch_scc1 {lab}')
    A.track = False
    A(f'''v_mov_b32 v5, 1
v_mul_u32_u24 v6, {rstride}, {v(lane)}
{exec_mask(nrep)}
buffer_atomic_add v5, v6, {s(sW,4)}, {s(addr_s)} offen{sc}
s_mov_b64 exec, -1''')
    A.track = True
    A(f'{lab}:')

def late(A, base, per_tile):
    if not LATE: return
    lab = A.label('late')
    tr = A.track; A.track = False
    if per_tile: A(f's_lshl_b32 s59, {s(rt)}, 7\ns_add_u32 s59, s59, {base}\nv_mov_b32 v7, 0')
    else: A(f's_and_b32 s59, s2, {NSH-1}\ns_lshl_b32 s59, s59, 7\ns_add_u32 s59, s59, {base}\nv_mul_u32_u24 v7, {NSH*128}, {v(lane)}')
    A(f'''s_cmp_lg_u32 {s(wave)}, 0
s_cbranch_scc1 {lab}_a
v_mov_b32 v2, 1
{exec_mask(1 if per_tile else NREP)}
buffer_atomic_add v2, v7, {s(sW,4)}, s59 offen sc1
s_mov_b64 exec, -1
{lab}_a:
s_add_u32 s59, s2, {s(wave)}
s_mul_i32 s59, s59, 37
s_and_b32 s59, s59, 7
s_cmp_lg_u32 s59, 3
s_cbranch_scc1 {lab}_b
s_mov_b32 s59, 0
{lab}_c:
s_add_u32 s59, s59, 1
s_cmp_lt_u32 s59, {LATE}
s_cbranch_scc1 {lab}_c
{lab}_b:''')
    A.track = tr

EP = dict(zip(('cb', 'cc', 'ca1', 'p0', 'ca0'), [int(x) for x in os.environ.get('EP', '1,2,1,2,1').split(',')]))
def hint(A, kind, pos, base):
    if LATE or kind not in NOD or EP[kind] != pos: return
    lab = A.label('hint')
    tr = A.track; A.track = False
    A(f's_cmp_lg_u32 {s(wave)}, 0\ns_cbranch_scc1 {lab}')
    if kind == 'cb': A(f's_lshl_b32 s59, {s(rt)}, 7\ns_add_u32 s59, s59, {base}\nv_mov_b32 v7, 0')
    else: A(f's_and_b32 s59, s2, {NSH-1}\ns_lshl_b32 s59, s59, 7\ns_add_u32 s59, s59, {base}\nv_mul_u32_u24 v7, {NSH*128}, {v(lane)}')
    A(f'''v_mov_b32 v2, 1
{exec_mask(1 if kind == 'cb' else NREP)}
buffer_atomic_add v2, v7, {s(sW,4)}, s59 offen sc1
s_mov_b64 exec, -1
{lab}:''')
    A.track = tr

def signal16(A, tag, base, drain=True):
    if not drain: return
    A(f's_and_b32 {s(st+1)}, s2, {NSH-1}\ns_lshl_b32 {s(st+1)}, {s(st+1)}, 7\ns_add_u32 {s(st+1)}, {s(st+1)}, {base}')
    signal(A, tag, st + 1, NREP, NSH * 128, drain=drain)

def poll_issue(A, setup):
    lab = A.label('pi')
    A(f's_cmp_lg_u32 {s(wave)}, 0\ns_cbranch_scc1 {lab}')
    A(setup)
    tr = A.track; A.track = False
    A(f'v_mov_b32 v2, 0\ns_mov_b64 exec, s[50:51]\nbuffer_atomic_or v2, v5, {s(sW,4)}, 0 offen sc0 sc1\ns_mov_b64 exec, -1\n{lab}:')
    A.track = tr

def poll_check(A, n, drain=False):
    lab = A.label('poll')
    A(f's_cmp_lg_u32 {s(wave)}, 0\ns_cbranch_scc1 {lab}_d')
    A.track = False
    A(f'''s_mov_b32 {s(st)}, 0
s_mov_b64 exec, s[50:51]
s_waitcnt vmcnt({n})
{lab}:
v_cmp_gt_u32 vcc, v6, v2
s_add_u32 {s(st)}, {s(st)}, 1
s_and_b64 exec, vcc, vcc
s_cbranch_scc0 {lab}_d
s_cmp_gt_u32 {s(st)}, {SPIN}
s_cbranch_scc1 {lab}_d
v_mov_b32 v2, 0
buffer_atomic_or v2, v5, {s(sW,4)}, 0 offen sc0 sc1
s_waitcnt vmcnt(0)
s_branch {lab}''')
    A.track = True
    A(f'{lab}_d:\ns_mov_b64 exec, -1')
    if drain: A.wait_vm(None)
    A('s_barrier')
    pstamp(A, 'polled')

def poll(A, setup, mid=None):
    pstamp(A, 'prepoll')
    poll_issue(A, setup)
    n0 = A.issued
    if mid: mid()
    poll_check(A, A.issued - n0)

def poll16(base, extra=None):
    t = f'''s_and_b32 {s(st)}, s2, {NREP-1}
s_mul_i32 {s(st+1)}, {s(st)}, {NSH*128}
s_add_u32 {s(st+1)}, {s(st+1)}, {base}
v_and_b32 v5, {NSH-1}, {v(lane)}
v_lshlrev_b32 v5, 7, v5
v_add_u32 v5, {s(st+1)}, v5
v_mov_b32 v6, {224//NSH}
s_mov_b32 s50, {((1 << (NSH + (1 if extra else 0))) - 1) & 0xffffffff}
s_mov_b32 s51, {((1 << (NSH + (1 if extra else 0))) - 1) >> 32}'''
    if extra: t += '\n' + poll_extra(*extra)
    return t

def poll_extra(base, target):
    return f'''s_lshl_b32 {s(st+1)}, {s(st)}, 7
s_add_u32 {s(st+1)}, {s(st+1)}, {base}
v_mov_b32 v7, {s(st+1)}
v_cmp_lt_u32 vcc, {NSH-1}, {v(lane)}
v_cndmask_b32 v5, v5, v7, vcc
v_cndmask_b32 v6, v6, {target}, vcc'''

def flag_lane(nl, base, target):
    return f'''s_and_b32 {s(st)}, s2, {NREP-1}
s_lshl_b32 {s(st)}, {s(st)}, 7
s_add_u32 {s(st)}, {s(st)}, {base}
s_sub_u32 {s(st)}, {s(st)}, {s(st+1)}
v_mov_b32 v7, {s(st)}
v_cmp_le_u32 vcc, {nl}, {v(lane)}
v_cndmask_b32 v5, v5, v7, vcc
v_cndmask_b32 v6, v6, {target+1}, vcc'''

def exec_mask(n):
    m = (1 << n) - 1
    return f's_mov_b32 exec_lo, {m & 0xffffffff}\ns_mov_b32 exec_hi, {m >> 32}'

def canary_issue(A, nl, soff):
    A(exec_mask(nl))
    A.t('can', f'buffer_load_dword v7, v5, {s(sW,4)}, {s(soff)} offen sc1')
    A('s_mov_b64 exec, -1')

def canary_wait(A, nl, soff):
    pstamp(A, 'prepoll')
    lab = A.label('can')
    A(exec_mask(nl))
    A(f's_mov_b32 {s(st)}, 0')
    A.wait_vm('can')
    A.track = False
    A(f'''{lab}:
v_add_u32 v7, 1, v7
v_cmp_gt_u32 vcc, v6, v7
s_add_u32 {s(st)}, {s(st)}, 1
s_and_b64 exec, vcc, vcc
s_cbranch_scc0 {lab}_d
s_cmp_gt_u32 {s(st)}, {SPIN}
s_cbranch_scc1 {lab}_d
buffer_load_dword v7, v5, {s(sW,4)}, {s(soff)} offen sc1
s_waitcnt vmcnt(0)
s_branch {lab}
{lab}_d:
s_mov_b64 exec, -1''')
    A.track = True
    pstamp(A, 'polled')

def redo_check(A, x, y, target):
    lab = A.label('ok')
    A(f'''v_cmp_u_f32 vcc, {v(x)}, {v(y)}
s_cbranch_vccz {lab}
s_add_u32 {s(s_redo)}, {s(s_redo)}, 1
s_cmp_gt_u32 {s(s_redo)}, {REDO}
s_cbranch_scc1 {lab}
s_waitcnt vmcnt(0) lgkmcnt(0)
s_barrier
s_branch {target}
{lab}:''')

PFV = 200
def q_prefill(A, which):
    def add(va, setup):
        A.bgq.append(('pf', setup + f'\nbuffer_store_dwordx4 {v(PFV,4)}, {v(va)}, {s(sW,4)}, {s(s_pf)} offen sc1'))
    if which in ('hb', 'hb2'):
        add(VL16, f'''s_lshl_b32 {s(s_pf)}, {s(sl)}, 2
s_add_u32 {s(s_pf)}, {s(s_pf)}, {s(wave)}
s_lshl_b32 {s(s_pf)}, {s(s_pf)}, 10
s_mul_i32 {s(s_pf+1)}, {s(rt)}, 114688
s_add_u32 {s(s_pf)}, {s(s_pf)}, {s(s_pf+1)}
s_add_u32 {s(s_pf)}, {s(s_pf)}, {HB if which == 'hb' else HB2}''')
        for i in range(3): add(VL16, f's_add_u32 {s(s_pf)}, {s(s_pf)}, 28672')
    if which == 'zc2':
        add(PFV + 4, f'''v_lshlrev_b32 {v(PFV+4)}, 13, {v(g)}
v_lshl_add_u32 {v(PFV+4)}, {v(l15)}, 4, {v(PFV+4)}
s_lshl_b32 {s(s_pf)}, {s(sl)}, 2
s_add_u32 {s(s_pf)}, {s(s_pf)}, {s(wave)}
s_lshl_b32 {s(s_pf)}, {s(s_pf)}, 16
s_lshl_b32 {s(s_pf+1)}, {s(rt)}, 8
s_add_u32 {s(s_pf)}, {s(s_pf)}, {s(s_pf+1)}
s_add_u32 {s(s_pf)}, {s(s_pf)}, {ZC2}''')
        add(PFV + 4, f's_add_u32 {s(s_pf)}, {s(s_pf)}, 32768')
        add(PFV + 4, f's_add_u32 {s(s_pf)}, {s(s_pf)}, {ZU2 - ZC2}')
        add(PFV + 4, f's_sub_u32 {s(s_pf)}, {s(s_pf)}, 32768')
        A.bgq.append(('pf', f'''s_lshl_b32 {s(s_pf)}, {s(rt)}, 3
s_add_u32 {s(s_pf)}, {s(s_pf)}, {s(sl)}
s_lshl_b32 {s(s_pf)}, {s(s_pf)}, 8
s_add_u32 {s(s_pf)}, {s(s_pf)}, {SSQP}
s_mov_b64 exec, 0xffff
buffer_store_dwordx4 {v(PFV,4)}, {v(VL16)}, {s(sW,4)}, {s(s_pf)} offen sc1
s_mov_b64 exec, -1'''))
    if which == 'zb3':
        add(189, f'''s_mul_i32 {s(s_pf)}, {s(wave)}, {8*57344}
s_lshl_b32 {s(s_pf+1)}, s2, 8
s_add_u32 {s(s_pf)}, {s(s_pf)}, {s(s_pf+1)}
s_add_u32 {s(s_pf)}, {s(s_pf)}, {ZB3}''')
        add(189, f's_add_u32 {s(s_pf)}, {s(s_pf)}, 128')

ZI, SQ, WW = 8, 16, 72
C64, S64, N64, C32, S32, N32, TC, TS = 80, 88, 96, 104, 112, 120, 128, 136
ZR, ZM = 144, 152
XA, DR, DI, BR, BI = 16, 48, 56, 64, 68
CT = 160

def col_tables1(A):
    T = CT; nf, ang, dl, gf = T, T + 1, T + 2, T + 3
    cs = T + 8
    A(f'''s_lshl_b32 {s(st)}, {s(wave)}, 4
v_add_u32 v7, {s(st)}, {v(l15)}
v_cvt_f32_u32 {v(nf)}, v7
v_cvt_f32_u32 {v(gf)}, {v(g)}
v_mul_f32 {v(dl)}, {f2u(1/64)}, {v(nf)}
v_mul_f32 {v(ang)}, 4.0, {v(gf)}
v_mul_f32 {v(ang)}, {v(ang)}, {v(dl)}
v_mul_f32 {v(T+4)}, {f2u(13.0)}, {v(dl)}''')
    for e in range(8):
        A(f'v_cos_f32 {v(cs+e)}, {v(ang)}\nv_sin_f32 {v(cs+8+e)}, {v(ang)}')
        if e < 7: A(f'v_add_f32 {v(ang)}, {v(ang)}, {v(T+4 if e == 3 else dl)}')
    A(f'v_and_b32 v7, 1, v7\nv_lshlrev_b32 v7, 15, v7\nv_lshl_or_b32 v7, v7, 16, v7')
    for i in range(4):
        A(f'v_cvt_pk_bf16_f32 {v(C64+i)}, {v(cs+2*i)}, {v(cs+2*i+1)}')
        A(f'v_cvt_pk_bf16_f32 {v(S64+i)}, {v(cs+8+2*i)}, {v(cs+9+2*i)}')
    for i in range(4):
        A(f'v_xor_b32 {v(C64+4+i)}, v7, {v(C64+i)}\nv_xor_b32 {v(S64+4+i)}, v7, {v(S64+i)}')
    for i in range(8):
        A(f'v_xor_b32 {v(N64+i)}, 0x80008000, {v(S64+i)}')

def col_tables2(A):
    T = CT; nf, ang, dl, gf = T, T + 1, T + 2, T + 3
    cs = T + 8
    for mu in range(2):
        A(f'''v_lshrrev_b32 v7, 2, {v(l15)}
v_lshlrev_b32 v7, 3, v7
v_and_or_b32 v7, {v(l15)}, 3, v7
v_add_u32 v7, {4*mu}, v7
v_cvt_f32_u32 {v(dl)}, v7
v_mul_f32 {v(dl)}, {f2u(1/32)}, {v(dl)}
v_mul_f32 {v(ang)}, {f2u(8.0)}, {v(gf)}
v_mul_f32 {v(ang)}, {v(ang)}, {v(dl)}''')
        for e in range(8):
            A(f'v_cos_f32 {v(cs+e)}, {v(ang)}\nv_sin_f32 {v(cs+8+e)}, {v(ang)}')
            if e < 7: A(f'v_add_f32 {v(ang)}, {v(ang)}, {v(dl)}')
            if e & 1: A.bg(1)
        for i in range(4):
            A(f'v_cvt_pk_bf16_f32 {v(C32+4*mu+i)}, {v(cs+2*i)}, {v(cs+2*i+1)}')
            A(f'v_cvt_pk_bf16_f32 {v(S32+4*mu+i)}, {v(cs+8+2*i)}, {v(cs+9+2*i)}')
    for i in range(8):
        A(f'v_xor_b32 {v(N32+i)}, 0x80008000, {v(S32+i)}')
    A(f'''v_mul_f32 {v(dl)}, {f2u(1/2048)}, {v(nf)}
v_mul_f32 {v(ang)}, {f2u(8.0)}, {v(gf)}
v_mul_f32 {v(ang)}, {v(ang)}, {v(dl)}''')
    for e in range(8):
        A(f'v_cos_f32 {v(TC+e)}, {v(ang)}\nv_sin_f32 {v(TS+e)}, {v(ang)}')
        if e < 7: A(f'v_add_f32 {v(ang)}, {v(ang)}, {v(dl)}')
        if e & 1: A.bg(1)
    wa0, wa1, wb, ra0, ra1, t1, t2, oa = 184, 185, 186, 187, 188, T + 2, T + 5, 189
    A(f'''v_bfe_u32 {v(t1)}, {v(l15)}, 1, 2
s_lshl_b32 {s(st)}, {s(wave)}, 10
s_add_u32 {s(st)}, {s(st)}, {L_COL}
v_lshlrev_b32 {v(t2)}, 6, {v(l15)}
v_add_u32 {v(t2)}, {s(st)}, {v(t2)}
v_xor_b32 {v(wb)}, {v(g)}, {v(t1)}
v_lshl_add_u32 {v(wb)}, {v(wb)}, 4, {v(t2)}
v_and_b32 {v(wa0)}, 1, {v(g)}
v_lshlrev_b32 {v(wa0)}, 1, {v(wa0)}
v_xor_b32 {v(wa0)}, {v(wa0)}, {v(t1)}
v_lshl_add_u32 {v(wa0)}, {v(wa0)}, 4, {v(t2)}
v_lshrrev_b32 {v(t1)}, 1, {v(g)}
v_lshl_add_u32 {v(wa0)}, {v(t1)}, 3, {v(wa0)}
v_xor_b32 {v(wa1)}, 16, {v(wa0)}
v_lshrrev_b32 {v(t1)}, 2, {v(lane)}
v_lshlrev_b32 {v(ra0)}, 6, {v(t1)}
v_bfe_u32 {v(t1)}, {v(lane)}, 3, 2
v_bfe_u32 {v(t2)}, {v(lane)}, 1, 1
v_xor_b32 {v(t1)}, {v(t1)}, {v(t2)}
v_lshl_add_u32 {v(ra0)}, {v(t1)}, 4, {v(ra0)}
v_and_b32 {v(t1)}, 1, {v(lane)}
v_lshl_add_u32 {v(ra0)}, {v(t1)}, 3, {v(ra0)}
v_add_u32 {v(ra0)}, {L_COL}, {v(ra0)}
v_xor_b32 {v(ra1)}, 32, {v(ra0)}
v_lshrrev_b32 {v(t1)}, 1, {v(l15)}
v_mul_u32_u24 {v(t1)}, 57344, {v(t1)}
v_and_b32 {v(t2)}, 1, {v(l15)}
v_lshl_add_u32 {v(t2)}, {v(g)}, 1, {v(t2)}
s_and_b32 {s(st)}, s2, 3
s_lshl_b32 {s(st)}, {s(st)}, 1
v_xor_b32 {v(t2)}, {s(st)}, {v(t2)}
v_lshl_add_u32 {v(oa)}, {v(t2)}, 4, {v(t1)}''')

def col_loads(A, zc, ssq, sc):
    A(f'''v_lshlrev_b32 v5, 7, {v(l15)}
v_lshl_add_u32 v5, {v(g)}, 4, v5
s_lshl_b32 {s(st)}, {s(wave)}, 11
v_add_u32 v5, {s(st)}, v5
s_lshl_b32 {s(st+1)}, s2, 13
s_add_u32 {s(st+1)}, {s(st+1)}, {zc}
s_mov_b32 {s(st)}, {ssq}''')
    A.t('q', f'buffer_load_dwordx4 {v(SQ,4)}, v5, {s(sW,4)}, {s(st)} offen{sc}')
    A.t('q', f'buffer_load_dwordx4 {v(SQ+4,4)}, v5, {s(sW,4)}, {s(st)} offen offset:64{sc}')
    A.t('z', f'buffer_load_dwordx4 {v(ZI,4)}, v5, {s(sW,4)}, {s(st+1)} offen{ZSC}')
    A.t('z', f'buffer_load_dwordx4 {v(ZI+4,4)}, v5, {s(sW,4)}, {s(st+1)} offen offset:64{ZSC}')

def col_poll(A, zc, ssq, mid=None, val=False):
    if not val:
        A.t('q', f'buffer_load_dwordx4 {v(SQ,4)}, v5, {s(sW,4)}, {s(st+2)} offen sc1')
        A.t('q', f'buffer_load_dwordx4 {v(SQ+4,4)}, v5, {s(sW,4)}, {s(st+2)} offen offset:64 sc1')
        A.t('z', f'buffer_load_dwordx4 {v(ZI,4)}, v5, {s(sW,4)}, {s(st+1)} offen sc1')
        A.t('z', f'buffer_load_dwordx4 {v(ZI+4,4)}, v5, {s(sW,4)}, {s(st+1)} offen offset:64 sc1')
        if mid: mid()
        A.wait_vm('q')
        for i in range(8): A(f'v_fma_f32 {v(SQ+i)}, {v(SQ+i)}, {s(st+4)}, {v(CT+2)}')
        for i in range(8): A(f'v_rsq_f32 {v(SQ+i)}, {v(SQ+i)}')
        return
    lab = A.label('cp')
    A.track = False
    if QSC != ' sc1':
        A(f'''buffer_load_dwordx4 {v(SQ,4)}, v5, {s(sW,4)}, {s(st+2)} offen{QSC}
buffer_load_dwordx4 {v(SQ+4,4)}, v5, {s(sW,4)}, {s(st+2)} offen offset:64{QSC}
s_branch {lab}_z''')
    A(f'''{lab}:
buffer_load_dwordx4 {v(SQ,4)}, v5, {s(sW,4)}, {s(st+2)} offen sc1
buffer_load_dwordx4 {v(SQ+4,4)}, v5, {s(sW,4)}, {s(st+2)} offen offset:64 sc1
{lab}_z:
buffer_load_dwordx4 {v(ZI,4)}, v5, {s(sW,4)}, {s(st+1)} offen sc1
buffer_load_dwordx4 {v(ZI+4,4)}, v5, {s(sW,4)}, {s(st+1)} offen offset:64 sc1
s_add_u32 {s(st)}, {s(st)}, 1''')
    if mid:
        A(f's_cmp_lg_u32 {s(st)}, 1\ns_cbranch_scc1 {lab}_c')
        mid()
        A(f'{lab}_c:')
    A(f'''s_waitcnt vmcnt(2)
v_min3_u32 v7, {v(SQ)}, {v(SQ+1)}, {v(SQ+2)}
v_min3_u32 v6, {v(SQ+3)}, {v(SQ+4)}, {v(SQ+5)}
v_min3_u32 v7, v7, {v(SQ+6)}, {v(SQ+7)}
v_min_u32 v7, v7, v6
v_cmp_gt_u32 s[50:51], {s(st+3)}, v7''')
    for i in range(8):
        A(f'v_lshlrev_b32 {v(SQ+i)}, 16, {v(SQ+i)}\nv_fma_f32 {v(SQ+i)}, {v(SQ+i)}, {s(st+4)}, {v(CT+2)}')
    for i in range(8):
        A(f'v_rsq_f32 {v(SQ+i)}, {v(SQ+i)}')
    A(f'''s_waitcnt vmcnt(0)
v_max3_u32 v7, {v(ZI)}, {v(ZI+1)}, {v(ZI+2)}
v_max3_u32 v6, {v(ZI+3)}, {v(ZI+4)}, {v(ZI+5)}
v_max3_u32 v7, v7, {v(ZI+6)}, {v(ZI+7)}
v_max_u32 v7, v7, v6
v_cmp_eq_u32 vcc, -1, v7
s_or_b64 vcc, vcc, s[50:51]
s_and_b64 exec, vcc, vcc
s_cbranch_scc0 {lab}_d
s_cmp_le_u32 {s(st)}, {SPIN}
s_cbranch_scc1 {lab}
{lab}_d:
s_mov_b64 exec, -1''')
    A.track = True
    A.vm = []

def col_poll_pre(zc, ssq):
    return f'''v_lshlrev_b32 v5, 7, {v(l15)}
v_lshl_add_u32 v5, {v(g)}, 4, v5
s_lshl_b32 {s(st)}, {s(wave)}, 11
v_add_u32 v5, {s(st)}, v5
s_lshl_b32 {s(st+1)}, s2, 13
s_add_u32 {s(st+1)}, {s(st+1)}, {zc}
s_mov_b32 {s(st+2)}, {ssq}
s_mov_b32 {s(st+3)}, 0x40e00000
s_mov_b32 {s(st+4)}, {f2u(2048.0*2048.0/448)}
v_mov_b32 {v(CT+2)}, {f2u(1e-5*2048.0*2048.0)}
s_mov_b32 {s(st)}, 0'''

def col_wload(A, r=st + 2, WW=WW):
    A(f'''s_lshl_b32 {s(r)}, s2, 2
s_add_u32 {s(r)}, {s(r)}, {s(wave)}
s_lshl_b32 {s(r)}, {s(r)}, 11
s_add_u32 {s(r)}, {s(r)}, {WF}''')
    A.t('w', f'buffer_load_dwordx4 {v(WW,4)}, {v(VL16)}, {s(sW,4)}, {s(r)} offen')
    A.t('w', f'buffer_load_dwordx4 {v(WW+4,4)}, {v(VL16)}, {s(sW,4)}, {s(r)} offen offset:1024')

def col_compute(A, zb, raw, hook=None, WW=WW):
    T = CT
    wa0, wa1, wb, ra0, ra1, t1, oa = 184, 185, 186, 187, 188, T + 2, 189
    def unpack():
        for i in range(8):
            A(f'v_lshlrev_b32 {v(ZR+i)}, 16, {v(ZI+i)}\nv_and_b32 {v(ZM+i)}, 0xffff0000, {v(ZI+i)}')
    A.wait_vm('z')
    pstamp(A, 'coldata')
    unpack()
    for i in range(0, 8, 2):
        A(f'v_pk_mul_f32 {v(SQ+8+i,2)}, {v(SQ+i,2)}, {v(ZR+i,2)}\nv_pk_mul_f32 {v(SQ+16+i,2)}, {v(SQ+i,2)}, {v(ZM+i,2)}')
    for i in range(4):
        A(f'v_cvt_pk_bf16_f32 {v(BR+i)}, {v(SQ+8+2*i)}, {v(SQ+9+2*i)}\nv_cvt_pk_bf16_f32 {v(BI+i)}, {v(SQ+16+2*i)}, {v(SQ+17+2*i)}')
    lab = A.label('nz')
    A(f's_cmp_lg_u32 s2, 0\ns_cbranch_scc1 {lab}')
    for i in range(4): A(f'v_mov_b32 {v(BI+i)}, 0')
    A(f'{lab}:')
    A(f'''ds_write_b64 {v(wa0)}, {v(BR,2)}
ds_write_b64 {v(wa1)}, {v(BR+2,2)}
ds_write_b64 {v(wa0)}, {v(BI,2)} offset:4096
ds_write_b64 {v(wa1)}, {v(BI+2,2)} offset:4096''')
    A.bg(CBG)
    A('s_waitcnt lgkmcnt(0)\ns_barrier')
    def big_stage(base, tab_ri, tab_ir):
        def xa(pl, mu, ks): return XA + 4 * (ks * 4 + pl * 2 + mu)
        for ks in range(2):
            for pl in range(2):
                for mu in range(2):
                    for hf in range(2):
                        A(f'ds_read_b64_tr_b16 {v(xa(pl,mu,ks)+2*hf,2)}, {v(ra0+mu)} offset:{base+pl*4096+ks*2048+hf*1024}')
        A.bg(CBG)
        for ks in range(2):
            A(f's_waitcnt lgkmcnt({12-8*ks})')
            for mu in range(2):
                c = v(DR + 4 * mu, 4) if ks else '0'
                A(f'v_mfma_f32_16x16x32_bf16 {v(DR+4*mu,4)}, {v(xa(0,mu,ks),4)}, {v(C64+4*ks,4)}, {c}')
                c = v(DI + 4 * mu, 4) if ks else '0'
                A(f'v_mfma_f32_16x16x32_bf16 {v(DI+4*mu,4)}, {v(xa(0,mu,ks),4)}, {v(tab_ri+4*ks,4)}, {c}')
            A(f's_waitcnt lgkmcnt({8-8*ks})')
            for mu in range(2):
                A(f'v_mfma_f32_16x16x32_bf16 {v(DR+4*mu,4)}, {v(xa(1,mu,ks),4)}, {v(tab_ir+4*ks,4)}, {v(DR+4*mu,4)}')
                A(f'v_mfma_f32_16x16x32_bf16 {v(DI+4*mu,4)}, {v(xa(1,mu,ks),4)}, {v(C64+4*ks,4)}, {v(DI+4*mu,4)}')
    def small_stage(tab_ri, tab_ir):
        for mu in range(2):
            A(f'v_mfma_f32_16x16x32_bf16 {v(DR+4*mu,4)}, {v(C32+4*mu,4)}, {v(BR,4)}, 0')
            A(f'v_mfma_f32_16x16x32_bf16 {v(DI+4*mu,4)}, {v(C32+4*mu,4)}, {v(BI,4)}, 0')
        for mu in range(2):
            A(f'v_mfma_f32_16x16x32_bf16 {v(DR+4*mu,4)}, {v(tab_ir+4*mu,4)}, {v(BI,4)}, {v(DR+4*mu,4)}')
            A(f'v_mfma_f32_16x16x32_bf16 {v(DI+4*mu,4)}, {v(tab_ri+4*mu,4)}, {v(BR,4)}, {v(DI+4*mu,4)}')
        A.bg(CBG)
    U = T + 8
    def rot(cr, ci, sign):
        n1, n2 = ('[1,0,0]', '[0,0,0]') if sign > 0 else ('[0,0,0]', '[1,0,0]')
        for e in range(0, 8, 2):
            A(f'''v_pk_mul_f32 {v(U+e,2)}, {v(DR+e,2)}, {v(cr+e,2)}
v_pk_mul_f32 {v(U+8+e,2)}, {v(DI+e,2)}, {v(cr+e,2)}''')
        for e in range(0, 8, 2):
            A(f'''v_pk_fma_f32 {v(U+e,2)}, {v(DI+e,2)}, {v(ci+e,2)}, {v(U+e,2)} neg_lo:{n1} neg_hi:{n1}
v_pk_fma_f32 {v(U+8+e,2)}, {v(DR+e,2)}, {v(ci+e,2)}, {v(U+8+e,2)} neg_lo:{n2} neg_hi:{n2}''')
        A.bg(CBG)
        for e in range(0, 8, 2):
            A(f'v_cvt_pk_bf16_f32 {v(BR+e//2)}, {v(U+e)}, {v(U+e+1)}\nv_cvt_pk_bf16_f32 {v(BI+e//2)}, {v(U+8+e)}, {v(U+9+e)}')
    WR, WI = 8, 176
    if hook: hook(0)
    big_stage(0, N64, S64)
    rot(TC, TS, -1)
    small_stage(N32, S32)
    WR, WI = XA, XA + 8
    A.wait_vm('w')
    if hook: hook(1)
    for i in range(4):
        A(f'''v_lshlrev_b32 {v(WR+2*i)}, 16, {v(WW+i)}
v_and_b32 {v(WR+2*i+1)}, 0xffff0000, {v(WW+i)}
v_lshlrev_b32 {v(WI+2*i)}, 16, {v(WW+4+i)}
v_and_b32 {v(WI+2*i+1)}, 0xffff0000, {v(WW+4+i)}''')
    rot(WR, WI, 1)
    if hook: hook(2)
    small_stage(S32, N32)
    rot(TC, TS, 1)
    if hook: hook(3)
    A(f'''ds_write_b128 {v(wb)}, {v(BR,4)} offset:8192
ds_write_b128 {v(wb)}, {v(BI,4)} offset:12288
s_mul_i32 {s(st)}, {s(wave)}, {8*57344}
s_lshl_b32 {s(st+1)}, s2, 8
s_add_u32 {s(st)}, {s(st)}, {s(st+1)}
s_add_u32 {s(st)}, {s(st)}, {zb}''')
    A.bg(CBG)
    A('s_waitcnt lgkmcnt(0)\ns_barrier')
    ck_ = ('ca1', F_CA[1]) if zb == ZB3 else ('ca0', F_CA[0])
    hint(A, ck_[0], 2, ck_[1])
    big_stage(8192, S64, N64)
    hint(A, ck_[0], 1, ck_[1])
    if hook: hook(4)
    for e in range(8):
        A(f'v_add_f32 {v(ZR+e)}, {v(ZR+e)}, {v(DR+e)}\nv_fma_f32 {v(ZM+e)}, {v(DI+e)}, {s(sim)}, {v(ZM+e)}')
    for i in range(4):
        A(f'v_cvt_pk_bf16_f32 {v(BR+i)}, {v(ZR+2*i)}, {v(ZR+2*i+1)}\nv_cvt_pk_bf16_f32 {v(BI+i)}, {v(ZM+2*i)}, {v(ZM+2*i+1)}')
    assert not [x for x in A.bgq if x[0] == 'pf']
    A.wait_vm('pf')
    if ck_[0] in NOD: late(A, ck_[1], False)
    A.t('st', f'buffer_store_dwordx4 {v(BR,4)}, {v(oa)}, {s(sW,4)}, {s(st)} offen sc1')
    A.t('st', f'buffer_store_dwordx4 {v(BI,4)}, {v(oa)}, {s(sW,4)}, {s(st)} offen offset:128 sc1')
    hint(A, ck_[0], 0, ck_[1])

def lam_tables(A, lre, lim, ldt, T):
    t1, t2 = T, T + 1
    lam_calc(A, lre, lim, ldt, PR, PI, t1, t2)
    A(f'v_lshlrev_b32 {v(hd)}, 16, {v(hd)}\nv_mul_f32 {v(hd)}, 0.5, {v(hd)}')
    for t in range(1, 16):
        x, y = (t - 1) // 2, t - 1 - (t - 1) // 2
        cmul(A, PR + t, PI + t, PR + x, PI + x, PR + y, PI + y)
    m1r, m1i = PR + 15, PI + 15
    m2r, m2i, m3r, m3i, L1r, L1i, L2r, L2i, L3r, L3i = range(T + 2, T + 12)
    cmul(A, m2r, m2i, m1r, m1i, m1r, m1i)
    cmul(A, m3r, m3i, m2r, m2i, m1r, m1i)
    cmul(A, L1r, L1i, m2r, m2i, m2r, m2i)
    cmul(A, L2r, L2i, L1r, L1i, L1r, L1i)
    cmul(A, L3r, L3i, L2r, L2i, L1r, L1i)
    cmul(A, L4r, L4i, L2r, L2i, L2r, L2i)
    sel4(A, mgr, '1.0', m1r, m2r, m3r); sel4(A, mgi, '0', m1i, m2i, m3i)
    sel4(A, Lgr, '1.0', L1r, L2r, L3r); sel4(A, Lgi, '0', L1i, L2i, L3i)

def sel4(A, d, c0, x1, x2, x3):
    A(f'''v_cndmask_b32 {v(d)}, {c0}, {v(x1)}, s[44:45]
v_cndmask_b32 {v(d)}, {v(d)}, {v(x2)}, s[46:47]
v_cndmask_b32 {v(d)}, {v(d)}, {v(x3)}, s[48:49]''')

AR, AI, AS, GR, FA, RA, R2, MM, LB = 8, 24, 40, 56, 60, 100, 106, 122, 138
cgr, cgi = 154, 155
ST = 156

def scan_pre(A):
    t1 = ST
    A(f'''v_lshrrev_b32 {v(t1)}, 2, {v(lane)}
v_lshlrev_b32 {v(RA)}, 7, {v(t1)}
v_bfe_u32 {v(t1)}, {v(lane)}, 3, 2
v_lshl_add_u32 {v(RA)}, {v(t1)}, 5, {v(RA)}
v_and_b32 {v(t1)}, 3, {v(lane)}
v_lshl_add_u32 {v(RA)}, {v(t1)}, 3, {v(RA)}
v_xor_b32 {v(RA+1)}, 32, {v(RA)}
v_xor_b32 {v(RA+2)}, 64, {v(RA)}
v_xor_b32 {v(RA+3)}, 0x60, {v(RA)}
s_lshl_b32 {s(st+1)}, {s(wave)}, 5
v_xor_b32 {v(RA+4)}, {s(st+1)}, {v(RA)}''')

def scan_canary(A, zb, flag):
    A(f'''v_lshrrev_b32 v5, 2, {v(lane)}
v_lshlrev_b32 v5, 12, v5
v_and_b32 v6, 3, {v(lane)}
v_lshl_add_u32 v5, v6, 8, v5
v_add_u32 v5, 252, v5
v_mov_b32 v6, 1
s_lshl_b32 {s(st)}, {s(wave)}, 10
s_mul_i32 {s(st+1)}, {s(rt)}, 57344
s_add_u32 {s(st+1)}, {s(st+1)}, {s(st)}
s_add_u32 {s(st+1)}, {s(st+1)}, {zb}''')
    if flag: A(flag_lane(56, *flag))
    A(f's_mov_b32 {s(s_pf)}, {s(st+1)}')
    canary_issue(A, 57 if flag else 56, s_pf)

def scan_phase(A, lay, zb, hb, sAG, hook=None):
    T = ST; t1, t2 = T + 3, T + 4
    sz = st + 2
    A(f's_mov_b32 {s(s_sk0)}, {s(s_sk)}\ns_mov_b32 {s(s_wc0)}, {s(s_wc)}')
    A(f's_mov_b32 s3, {s(s_m1)}')
    A(f'SC_redo{lay}:\ns_mov_b32 {s(s_m1)}, s3\ns_mov_b32 {s(s_sk)}, {s(s_sk0)}\ns_mov_b32 {s(s_wc)}, {s(s_wc0)}')
    A(f'''s_lshl_b32 {s(st+1)}, {s(wave)}, 10
s_mov_b32 m0, {s(st+1)}
s_mul_i32 {s(sz)}, {s(rt)}, 57344
s_add_u32 {s(sz)}, {s(sz)}, {s(st+1)}
s_add_u32 {s(sz)}, {s(sz)}, {zb}''')
    starts = [0, 2, 4, 9]
    grp = lambda ks: max(i for i, x in enumerate(starts) if x <= ks)
    for ks in range(14):
        A.t(f'z{grp(ks)}', f'buffer_load_dwordx4 {v(VL16)}, {s(sW,4)}, {s(sz)} offen{ZSC} lds')
        if ks < 13: A(f's_add_u32 m0, m0, 4096\ns_add_u32 {s(sz)}, {s(sz)}, 4096')
    if hook: hook(-1)
    def rd1(ks, mt, hf):
        A(f'ds_read_b64_tr_b16 {v(FA+20*(ks&1)+4*mt+2*hf,2)}, {v(RA+mt)} offset:{ks*4096+hf*2048}')
    A.wait_vm('z0')
    A('s_barrier')
    pstamp(A, 'grp0')
    for mt in range(5):
        rd1(0, mt, 0); rd1(0, mt, 1)
    for ks in range(14):
        nxt = ks + 1 < 14
        if hook: hook(ks)
        if ks + 1 in starts:
            A.wait_vm(f'z{grp(ks+1)}'); A('s_barrier')
        b = FA + 20 * (ks & 1)
        assert not [x for x in A.bgq if x[0] == f'm1_{ks}']
        A.wait_vm(f'm1_{ks}')
        for mt in range(4):
            A(f's_waitcnt lgkmcnt({8 if nxt else 8-2*mt})')
            c = v(AR + 4 * mt, 4) if ks else '0'
            A(f'v_mfma_f32_16x16x32_bf16 {v(AR+4*mt,4)}, {v(b+4*mt,4)}, {a(8*ks,4)}, {c}')
            if nxt: rd1(ks + 1, mt, 0)
            c = v(AI + 4 * mt, 4) if ks else '0'
            A(f'v_mfma_f32_16x16x32_bf16 {v(AI+4*mt,4)}, {v(b+4*mt,4)}, {a(8*ks+4,4)}, {c}')
            if nxt: rd1(ks + 1, mt, 1)
            if (mt & 1 or A.bgq and A.bgq[0][0].startswith('m1') and mt < M1S) and (ks >= 6 or A.bgq and A.bgq[0][0].startswith('m1')): A.bg(1)
        A(f's_waitcnt lgkmcnt({8 if nxt else 0})')
        c = v(GR, 4) if ks else '0'
        A(f'v_mfma_f32_16x16x32_bf16 {v(GR,4)}, {v(b+16,4)}, {v(b+16,4)}, {c}')
        if nxt:
            rd1(ks + 1, 4, 0); rd1(ks + 1, 4, 1)
    pstamp(A, 'loopend')
    dc, sq, ad = T, T + 1, T + 2
    A(f'''v_and_b32 {v(t1)}, 3, {v(lane)}
v_lshlrev_b32 {v(ad)}, 3, {v(g)}
v_lshl_add_u32 {v(ad)}, {v(t1)}, 1, {v(ad)}
s_lshl_b32 {s(st)}, {s(wave)}, 5
v_add_u32 {v(ad)}, {s(st)}, {v(ad)}
ds_read_u16 {v(dc)}, {v(ad)} offset:128
v_cmp_eq_u32 s[50:51], 1, {v(t1)}
v_cmp_eq_u32 s[52:53], 2, {v(t1)}
v_cmp_eq_u32 s[54:55], 3, {v(t1)}
v_lshlrev_b32 {v(ad)}, 6, {v(g)}
v_lshl_add_u32 {v(ad)}, {v(t1)}, 2, {v(ad)}
s_lshl_b32 {s(st)}, {s(wave)}, 4
v_add_u32 {v(ad)}, {s(st)}, {v(ad)}
v_lshrrev_b32 {v(t2)}, 2, {v(l15)}
v_cmp_eq_u32 vcc, {v(t2)}, {v(g)}
v_cndmask_b32 {v(sq)}, {v(GR)}, {v(GR+1)}, s[50:51]
v_cndmask_b32 {v(sq)}, {v(sq)}, {v(GR+2)}, s[52:53]
v_cndmask_b32 {v(sq)}, {v(sq)}, {v(GR+3)}, s[54:55]
s_waitcnt lgkmcnt(0)
v_lshlrev_b32 {v(dc)}, 16, {v(dc)}
v_fma_f32 {v(sq)}, -{v(dc)}, {v(dc)}, {v(sq)}
v_max_f32 {v(sq)}, 0, {v(sq)}
v_mov_b32 {v(t2)}, {f2u(0.25e-5)}
v_fmac_f32 {v(t2)}, {f2u(0.25/448)}, {v(sq)}
v_rsq_f32 {v(t2)}, {v(t2)}
v_mul_f32 {v(dc)}, {f2u(math.sqrt(1.0/448))}, {v(dc)}
s_and_saveexec_b64 s[56:57], vcc
ds_write2st64_b32 {v(ad)}, {v(t2)}, {v(dc)} offset0:{L_RX//256} offset1:{L_RX//256+1}
s_mov_b64 exec, s[56:57]
v_lshlrev_b32 {v(ad)}, 6, {v(g)}
s_waitcnt lgkmcnt(0)
s_barrier''')
    for i in range(4):
        A(f'ds_read_b128 {v(R2+4*i,4)}, {v(ad)} offset:{L_RX+16*i}')
    if lay:
        for i in range(4):
            A(f'ds_read_b128 {v(MM+4*i,4)}, {v(ad)} offset:{L_RX+256+16*i}')
    for i in range(4):
        A(f's_waitcnt lgkmcnt({(7 if lay else 3)-i})')
        for e in range(0, 4, 2):
            t = 4 * i + e
            A(f'v_pk_mul_f32 {v(AR+t,2)}, {v(AR+t,2)}, {v(R2+t,2)}\nv_pk_mul_f32 {v(AI+t,2)}, {v(AI+t,2)}, {v(R2+t,2)}')
        for e in range(4):
            t = 4 * i + e
            if t: cfma(A, AR + t, AI + t, PR, PI, AR + t - 1, AI + t - 1)
        A.bg(1)
    m1r, m1i = PR + 15, PI + 15
    e0r, e1r, e2r, e3r, e0i, e1i, e2i, e3i = T, T + 1, T + 2, T + 8, T + 4, T + 5, T + 6, T + 9
    for (x0, x1, src) in ((e0r, e1r, AR + 15), (e0i, e1i, AI + 15)):
        A(f'v_mov_b32 {v(x0)}, {v(src)}\nv_mov_b32 {v(x1)}, {v(src)}')
    pa = T + 10
    sag = st + 5
    A(f'''s_lshl_b32 {s(st)}, {s(sl)}, 2
s_add_u32 {s(st)}, {s(st)}, {s(wave)}
s_lshl_b32 {s(st)}, {s(st)}, 7
s_mul_i32 {s(sag)}, {s(rt)}, 3584
s_add_u32 {s(sag)}, {s(sag)}, {s(st)}''')
    A(f'v_permlane16_swap_b32 {v(e0r)}, {v(e1r)}\nv_permlane16_swap_b32 {v(e0i)}, {v(e1i)}')
    A(f'v_mov_b32 {v(e2r)}, {v(e0r)}\nv_mov_b32 {v(e3r)}, {v(e1r)}\nv_mov_b32 {v(e2i)}, {v(e0i)}\nv_mov_b32 {v(e3i)}, {v(e1i)}')
    A(f'v_lshlrev_b32 {v(pa)}, 3, {v(l15)}')
    A(f'v_permlane32_swap_b32 {v(e0r)}, {v(e2r)}\nv_permlane32_swap_b32 {v(e1r)}, {v(e3r)}')
    A(f'v_permlane32_swap_b32 {v(e0i)}, {v(e2i)}\nv_permlane32_swap_b32 {v(e1i)}, {v(e3i)}')
    cfma(A, e1r, e1i, m1r, m1i, e0r, e0i)
    cfma(A, e2r, e2i, m1r, m1i, e1r, e1i)
    cfma(A, e3r, e3i, m1r, m1i, e2r, e2i)
    if f'ca{lay}' in NOD: redo_check(A, e3r, e3i, f'SC_redo{lay}')
    A('s_mov_b64 exec, 0xffff')
    A.t('pub', f'buffer_store_dwordx2 {v(e3r,2)}, {v(pa)}, {s(sAG,4)}, {s(sag)} offen sc1')
    A('s_mov_b64 exec, -1')
    pstamp(A, 'pub')
    if hook: hook(100)
    sel4(A, cgr, '0', e0r, e1r, e2r); sel4(A, cgi, '0', e0i, e1i, e2i)
    LA = T + 12
    A(f'''v_mul_u32_u24 {v(t1)}, 3584, {v(g)}
v_sub_u32 {v(LA)}, {v(pa)}, {v(t1)}
s_sub_u32 {s(sag)}, {s(sag)}, 3584
v_add_u32 {v(LA)}, {s(sag)}, {v(LA)}''')
    for i in range(1, 8):
        A(f'v_subrev_u32 {v(LA+i)}, {4*3584*i}, {v(LA)}')
    def lb_issue():
        for i in range(8):
            A.t('lb', f'buffer_load_dwordx2 {v(LB+2*i,2)}, {v(LA+i)}, {s(sAG,4)}, 0 offen sc1')
    while [x for x in A.bgq if x[0] == 'sk']: A.bg(1)
    A.wait_vm('sk')
    for mt in range(4):
        rd1(0, mt, 0); rd1(0, mt, 1)
    for ks in range(14):
        nxt = ks + 1 < 14
        b = FA + 20 * (ks & 1)
        for mt in range(4):
            A(f's_waitcnt lgkmcnt({6 if nxt else 6-2*mt})')
            c = v(AS + 4 * mt, 4) if ks else '0'
            A(f'v_mfma_f32_16x16x32_bf16 {v(AS+4*mt,4)}, {v(b+4*mt,4)}, {a(112+4*ks,4)}, {c}')
            if nxt:
                rd1(ks + 1, mt, 0); rd1(ks + 1, mt, 1)
        if ks == LBK: lb_issue()
        else: A.bg(1)
    pstamp(A, 'skipend')
    if hook: hook(102)
    hint(A, 'cb', 3, F_CB[lay])
    zt = FA
    if lay == 0:
        A(f'''s_lshl_b32 {s(st)}, {s(sl)}, 2
s_add_u32 {s(st)}, {s(st)}, {s(wave)}
s_lshl_b32 {s(st)}, {s(st)}, 11
v_lshlrev_b32 {v(t1)}, 7, {v(l15)}
v_add_u32 {v(t1)}, {s(st)}, {v(t1)}
v_bfe_u32 {v(t2)}, {v(l15)}, 1, 2
v_lshl_add_u32 {v(t1)}, {v(t2)}, 5, {v(t1)}
v_lshl_add_u32 {v(t1)}, {v(g)}, 3, {v(t1)}''')
        for mt in range(4):
            if mt: A(f'v_xor_b32 {v(t2)}, {32*mt}, {v(t1)}')
            A(f'ds_read_b64 {v(zt+2*mt,2)}, {v(t2 if mt else t1)}')
        A(f'''v_lshlrev_b32 {v(t1)}, 12, {v(g)}
v_lshl_add_u32 {v(t1)}, {v(l15)}, 2, {v(t1)}
s_lshl_b32 {s(st)}, {s(wave)}, 6
s_add_u32 {s(st)}, {s(st)}, {L_RED}
v_add_u32 {v(t1)}, {s(st)}, {v(t1)}
s_waitcnt lgkmcnt(0)''')
        for t in range(16):
            d = zt + 8 + t
            src = zt + t // 2
            A(f'v_and_b32 {v(d)}, 0xffff0000, {v(src)}' if t & 1 else f'v_lshlrev_b32 {v(d)}, 16, {v(src)}')
            A(f'v_fmac_f32 {v(d)}, {v(R2+t)}, {v(AS+t)}')
            if t: A(f'v_xor_b32 {v(t2)}, {16*t}, {v(t1)}')
            A(f'ds_write_b32 {v(t2 if t else t1)}, {v(d)} offset:{256*t}')
            if (t & 3) == 1: A.bg(1)
    else:
        A(f'''v_lshlrev_b32 {v(t1)}, 2, {v(g)}
v_xor_b32 {v(t1)}, {v(t1)}, {v(l15)}
v_lshlrev_b32 {v(t1)}, 4, {v(t1)}
v_lshl_add_u32 {v(t1)}, {v(l15)}, 8, {v(t1)}
s_lshl_b32 {s(st)}, {s(wave)}, 12
s_add_u32 {s(st)}, {s(st)}, {L_RED}
v_add_u32 {v(t1)}, {s(st)}, {v(t1)}''')
        for t in range(16):
            A(f'''v_sub_f32 {v(MM+t)}, {v(AS+t)}, {v(MM+t)}
v_mul_f32 {v(R2+t)}, {v(R2+t)}, {v(hd)}
v_fmac_f32 {v(AS+t)}, {v(R2+t)}, {v(MM+t)}''')
            if (t & 3) == 3:
                mt = t // 4
                if mt: A(f'v_xor_b32 {v(t2)}, {16*mt}, {v(t1)}')
                A(f'ds_write_b128 {v(t2 if mt else t1)}, {v(AS+t-3,4)}')
                A.bg(1)
    ha = T + 4
    xr, xi = T + 2, T + 3
    A(f'''v_lshlrev_b32 {v(ha)}, 6, {v(l15)}
v_lshl_add_u32 {v(ha)}, {v(g)}, 4, {v(ha)}
s_lshl_b32 {s(st+1)}, {s(sl)}, 2
s_add_u32 {s(st+1)}, {s(st+1)}, {s(wave)}
s_lshl_b32 {s(st+1)}, {s(st+1)}, 10
s_mul_i32 {s(st+2)}, {s(rt)}, 114688
s_add_u32 {s(st+1)}, {s(st+1)}, {s(st+2)}
s_add_u32 {s(st+1)}, {s(st+1)}, {hb}
s_add_u32 {s(st+2)}, {s(st+1)}, 28672
s_add_u32 {s(st+3)}, {s(st+1)}, 57344
s_add_u32 {s(st+4)}, {s(st+1)}, {57344+28672}
s_mov_b32 {s(st)}, 0''')
    A.wait_vm('lb')
    pstamp(A, 'lbw')
    lab = A.label('lb')
    A(f'{lab}:')
    mx = T
    A(f'v_max3_u32 {v(mx)}, {v(LB)}, {v(LB+1)}, {v(LB+2)}')
    for i in range(3, 15, 2):
        A(f'v_max3_u32 {v(mx)}, {v(mx)}, {v(LB+i)}, {v(LB+i+1)}')
    A(f'''v_max_u32 {v(mx)}, {v(mx)}, {v(LB+15)}
v_cmp_eq_u32 vcc, -1, {v(mx)}
s_cbranch_vccz {lab}_r
s_add_u32 {s(st)}, {s(st)}, 1
s_cmp_gt_u32 {s(st)}, {SPIN}
s_cbranch_scc1 {lab}_r''')
    A.track = False
    lb_issue()
    A.track = True
    A(f's_waitcnt vmcnt(0)\ns_branch {lab}')
    A(f'{lab}_r:')
    pstamp(A, 'lbr')
    hint(A, 'cb', 2, F_CB[lay])
    for i in range(6, -1, -1):
        cfma(A, LB + 2 * i, LB + 2 * i + 1, L4r, L4i, LB + 2 * i + 2, LB + 2 * i + 3)
    cr, ci = T, T + 1
    cmul(A, cr, ci, Lgr, Lgi, LB, LB + 1)
    for sw in ('16', '32'):
        A(f'''v_mov_b32 {v(xr)}, {v(cr)}
v_mov_b32 {v(xi)}, {v(ci)}
v_permlane{sw}_swap_b32 {v(cr)}, {v(xr)}
v_permlane{sw}_swap_b32 {v(ci)}, {v(xi)}
v_add_f32 {v(cr)}, {v(cr)}, {v(xr)}
v_add_f32 {v(ci)}, {v(ci)}, {v(xi)}''')
    cfma(A, cgr, cgi, mgr, mgi, cr, ci)
    if hook: hook(101)
    if 'cb' in NOD: late(A, F_CB[lay], True)
    hint(A, 'cb', 1, F_CB[lay])
    o = FA
    cg = v(cgr, 2)
    for hh in range(2):
        for t in range(8 * hh, 8 * hh + 8, 2):
            A(f'''v_pk_fma_f32 {v(AR+t,2)}, {v(PR+t,2)}, {cg}, {v(AR+t,2)} op_sel_hi:[1,0,1]
v_pk_fma_f32 {v(AI+t,2)}, {v(PR+t,2)}, {cg}, {v(AI+t,2)} op_sel:[0,1,0] op_sel_hi:[1,1,1]''')
        for t in range(8 * hh, 8 * hh + 8, 2):
            A(f'''v_pk_fma_f32 {v(AR+t,2)}, {v(PI+t,2)}, {cg}, {v(AR+t,2)} op_sel:[0,1,0] op_sel_hi:[1,1,1] neg_lo:[1,0,0] neg_hi:[1,0,0]
v_pk_fma_f32 {v(AI+t,2)}, {v(PI+t,2)}, {cg}, {v(AI+t,2)} op_sel_hi:[1,0,1]''')
        for t in range(8 * hh, 8 * hh + 8, 2):
            A(f'v_cvt_pk_bf16_f32 {v(o+t//2)}, {v(AR+t)}, {v(AR+t+1)}')
            A(f'v_cvt_pk_bf16_f32 {v(o+8+t//2)}, -{v(AI+t)}, -{v(AI+t+1)}')
        A.t('st', f'buffer_store_dwordx4 {v(o+4*hh,4)}, {v(ha)}, {s(sW,4)}, {s(st+1+2*hh)} offen{HST}')
        A.t('st', f'buffer_store_dwordx4 {v(o+8+4*hh,4)}, {v(ha)}, {s(sW,4)}, {s(st+2+2*hh)} offen{HST}')
    hint(A, 'cb', 0, F_CB[lay])
    A('s_waitcnt lgkmcnt(0)')

T0, T1, BF, PT = 8, 24, 40, 72
INIT = 144

def proj_pre(A, last):
    ra0, ra1, rw, rr, t1, t2, za = range(PT, PT + 7)
    A(f'''v_bfe_u32 {v(t1)}, {v(lane)}, 2, 2
v_lshrrev_b32 {v(t2)}, 5, {v(lane)}
v_lshl_add_u32 {v(ra0)}, {v(t2)}, {3 if last else 2}, {v(t1)}
v_lshlrev_b32 {v(ra0)}, 6, {v(ra0)}
v_bfe_u32 {v(t1)}, {v(lane)}, 4, 1
v_lshl_add_u32 {v(ra0)}, {v(t1)}, 5, {v(ra0)}
v_and_b32 {v(t1)}, 3, {v(lane)}''')
    if last:
        A(f's_lshl_b32 {s(st+1)}, {s(kh)}, 1\nv_xor_b32 {v(t1)}, {s(st+1)}, {v(t1)}')
    A(f'''v_lshl_add_u32 {v(ra0)}, {v(t1)}, 3, {v(ra0)}
s_mul_i32 {s(st+1)}, {s(kh)}, 28672
v_add_u32 {v(ra0)}, {s(st+1)}, {v(ra0)}
v_add_u32 {v(ra1)}, 57344, {v(ra0)}
s_lshl_b32 {s(st+1)}, {s(wave)}, 12
s_add_u32 {s(st+1)}, {s(st+1)}, {L_RED}
s_xor_b32 {s(st+2)}, {s(st+1)}, 4096
v_add_u32 {v(rw)}, {s(st+1)}, {v(VL16)}
v_add_u32 {v(rr)}, {s(st+2)}, {v(VL16)}''')
    if last:
        A(f'''s_lshl_b32 {s(st+1)}, {s(kh)}, 2
v_add_u32 {v(t2)}, {s(st+1)}, {v(t2)}
v_xor_b32 {v(t2)}, {v(t2)}, {v(l15)}
v_and_b32 {v(t1)}, 31, {v(lane)}
v_lshlrev_b32 {v(t1)}, 8, {v(t1)}
v_lshl_add_u32 {v(za)}, {v(t2)}, 4, {v(t1)}
s_lshl_b32 {s(st+1)}, {s(wm)}, 13
s_add_u32 {s(st+1)}, {s(st+1)}, {L_RED}
v_add_u32 {v(za)}, {s(st+1)}, {v(za)}''')
    else:
        A(f'''s_lshl_b32 {s(st+1)}, {s(kh)}, 1
s_lshl_b32 {s(st+2)}, {s(wm)}, 3
s_add_u32 {s(st+1)}, {s(st+1)}, {s(st+2)}
v_add_u32 {v(t2)}, {s(st+1)}, {v(t2)}
v_and_b32 {v(t1)}, 7, {v(lane)}
v_xor_b32 {v(t2)}, {v(t2)}, {v(t1)}
v_lshlrev_b32 {v(t1)}, 8, {v(t1)}
v_lshl_add_u32 {v(za)}, {v(t2)}, 4, {v(t1)}
v_bfe_u32 {v(t1)}, {v(lane)}, 3, 2
v_lshl_add_u32 {v(za)}, {v(t1)}, 12, {v(za)}
v_add_u32 {v(za)}, {L_RED}, {v(za)}''')

def proj_init(A, last):
    ra0, ra1, rw, rr, t1, t2, za = range(PT, PT + 7)
    for nt, Tn in enumerate((T0, T1)):
        for q in (0, 2):
            x = (64 * q + 32 * nt) if last else (32 * q + 128 * nt)
            off = 0 if last else 2048 * nt
            d = INIT + 8 * nt + 2 * q
            if x:
                A(f'v_xor_b32 {v(t1)}, {x}, {v(za)}\nds_read_b128 {v(d,4)}, {v(t1)} offset:{off}')
            else:
                A(f'ds_read_b128 {v(d,4)}, {v(za)} offset:{off}')

def proj_addr(A, hb):
    A(f'''s_mul_i32 {s(s_pf+1)}, {s(kh)}, 57344
s_mul_i32 {s(st+1)}, {s(wm)}, 28672
s_add_u32 {s(s_pf+1)}, {s(s_pf+1)}, {s(st+1)}
s_mul_i32 {s(st+1)}, {s(rt)}, 114688
s_add_u32 {s(s_pf)}, {s(s_pf+1)}, {s(st+1)}
s_add_u32 {s(s_pf)}, {s(s_pf)}, {hb}''')

CBG = int(os.environ.get('CBG', '2'))
NFILL = int(os.environ.get('NFILL', '2')); NG0 = int(os.environ.get('NG0', '75')); NW0 = int(os.environ.get('NW0', '58'))
NB2 = int(os.environ.get('NB2', '7'))
NB1 = int(os.environ.get('NB1', '6')); NB0 = int(os.environ.get('NB0', '6'))
NUP = int(os.environ.get('NUP', '13'))
def add_init(A):
    for i, r in enumerate((T0, T0 + 8, T1, T1 + 8)):
        for e in (0, 2): A(f'v_pk_add_f32 {v(r+e,2)}, {v(r+e,2)}, {v(INIT+4*i+e,2)}')

def proj_rd(A, last, k, nt):
    b = BF + 8 * (k % 4)
    for hf in range(2):
        A(f'ds_read_b64_tr_b16 {v(b+4*nt+2*hf,2)}, {v(PT+nt)} offset:{k*1024+hf*(256 if last else 512)}')

def proj_step(A, last, k, nt, end):
    Tn = (T0, T1)[nt]
    A(f's_waitcnt lgkmcnt({min(6, 4 * (end - 1 - k) + 2 * (1 - nt))})')
    x, y = wc_reg(k), v(BF + 8 * (k % 4) + 4 * nt, 4)
    if last: x, y = y, x
    A(f'v_mfma_f32_32x32x16_bf16 {v(Tn,16)}, {x}, {y}, {v(Tn,16) if k else 0}')
    if k + 2 < end: proj_rd(A, last, k + 2, nt)

def proj_own(A, last):
    for k in (0, 1):
        proj_rd(A, last, k, 0); proj_rd(A, last, k, 1)
    for k in range(4):
        for nt in range(2): proj_step(A, last, k, nt, 4)

def own_to_lds(A):
    ha, t = ST + 4, ST + 5
    A(f's_lshl_b32 {s(st+1)}, {s(wave)}, 10\nv_add_u32 {v(ha)}, {s(st+1)}, {v(ha)}\nv_add_u32 {v(t)}, 57344, {v(ha)}\ns_barrier')
    for hh in range(2):
        A(f'ds_write_b128 {v((ha, t)[hh])}, {v(FA+4*hh,4)}\nds_write_b128 {v((ha, t)[hh])}, {v(FA+8+4*hh,4)} offset:28672')

def proj_phase(A, last, hb):
    ra0, ra1, rw, rr, t1, t2 = range(PT, PT + 6)
    sh, she = st + 4, st + 5
    A(f'''PJ_dma{int(last)}:
s_lshl_b32 {s(she)}, {s(sl)}, 12
s_add_u32 {s(she)}, {s(she)}, {s(s_pf)}
{rot_step(sh, she, True)}
s_add_u32 m0, {s(s_pf+1)}, 4096''')
    if not last: A(f's_mov_b32 {s(s_sk)}, {s(s_sk0)}')
    def dma(k):
        A.t(f'h{k//4}', f'buffer_load_dwordx4 {v(VL16)}, {s(sW,4)}, {s(sh)} offen offset:{(k&3)*1024}{HSC} lds')
        if (k & 3) == 3 and k < 27: A(f's_add_u32 m0, m0, 4096\n' + rot_step(sh, she))
    for k in range(4, 4 + NUP): dma(k)
    A.fill(NG0)
    A.wait_vm('h1')
    A('s_barrier')
    pstamp(A, 'grp0')
    for k in (4, 5):
        proj_rd(A, last, k, 0); proj_rd(A, last, k, 1)
    for k in range(4, 28):
        if (k & 3) == 2 and k + 2 < 28:
            A.wait_vm(f'h{(k+2)//4}'); A('s_barrier')
        for nt in range(2):
            proj_step(A, last, k, nt, 28)
            if nt == 0:
                if k + NUP < 28: dma(k + NUP)
                else: A.bg(1)
            A.fill(NFILL)
    A.bg(64); A.fill(999)
    pstamp(A, 'loopend')
    if last:
        c = BF + 16
        if 'cb' in NOD:
          for i in range(0, 16, 2): A(f'v_pk_add_f32 {v(c+i,2)}, {v(T0+i,2)}, {v(T1+i,2)}')
          for n in (8, 4, 2):
            for i in range(0, n, 2): A(f'v_pk_add_f32 {v(c+i,2)}, {v(c+i,2)}, {v(c+n+i,2)}')
          A(f'''v_cmp_u_f32 vcc, {v(c)}, {v(c+1)}
s_cmp_lg_u64 vcc, 0
s_cselect_b32 {s(st+5)}, 0x7fc00000, 0
v_add_f32 {v(T0)}, {s(st+5)}, {v(T0)}
v_add_f32 {v(T0+4)}, {s(st+5)}, {v(T0+4)}''')
        ksplit_reduce(A, T0, T1, rw, rr, BF, True)
        if 'cb' in NOD: redo_check(A, T0, T0, 'PJ_redo1')
        add_init(A)
        for mt, Tn in enumerate((T0, T1)):
            for q in (0, 2):
                for i in range(4):
                    A(f'buffer_store_dword {v(Tn+4*q+i)}, {v(t1 if i < 2 else t2)}, {s(sO,4)}, {s(st+2*mt+q//2)} offen offset:{1792*(i&1)}{os.environ.get("OSC","")}')
        return
    ksplit_reduce(A, T0, T1, rw, rr, BF, True)
    if 'cb' in NOD: redo_check(A, T0, T1, 'PJ_redo0')
    add_init(A)
    zepi(A, T0, T1, BF, (PT + 6, PT + 7, 5, 6), 32, cnt='cc' in NOD)

def out_setup(A):
    t1, t2 = PT + 4, PT + 5
    A(f'''v_lshrrev_b32 {v(t1)}, 5, {v(lane)}
v_mul_u32_u24 {v(t1)}, {4*1792}, {v(t1)}
v_and_b32 {v(t2)}, 31, {v(lane)}
v_lshl_add_u32 {v(t1)}, {v(t2)}, 2, {v(t1)}
v_add_u32 {v(t2)}, 3584, {v(t1)}
s_lshl_b32 {s(st)}, {s(rt)}, 2
s_add_u32 {s(st)}, {s(st)}, {s(kh)}
s_mul_i32 {s(st)}, {s(st)}, {16*1792}
s_lshl_b32 {s(st+1)}, {s(sl)}, 8
s_add_u32 {s(st)}, {s(st)}, {s(st+1)}
s_lshl_b32 {s(st+1)}, {s(wm)}, 7
s_add_u32 {s(st)}, {s(st)}, {s(st+1)}
s_add_u32 {s(st+1)}, {s(st)}, {32*1792}
s_add_u32 {s(st+2)}, {s(st)}, {8*1792}
s_add_u32 {s(st+3)}, {s(st)}, {40*1792}''')

def zepi_setup(A, regs, ntoff, zc, ssq):
    ta, ia, ga, t2 = regs
    if ntoff == 32:
        A(f'''v_and_b32 {v(ta)}, 7, {v(lane)}
v_bfe_u32 {v(t2)}, {v(lane)}, 3, 2
v_lshl_add_u32 {v(ta)}, {v(t2)}, 4, {v(ta)}''')
    else:
        A(f'v_and_b32 {v(ta)}, 31, {v(lane)}')
    A(f'''v_lshlrev_b32 {v(ta)}, 2, {v(ta)}
v_lshrrev_b32 {v(t2)}, 5, {v(lane)}
v_lshl_add_u32 {v(ia)}, {v(t2)}, 9, {v(ta)}
v_lshl_add_u32 {v(ta)}, {v(t2)}, {5 if ntoff == 32 else 7}, {v(ta)}
s_lshl_b32 {s(st)}, {s(wm)}, 12
s_lshl_b32 {s(st+1)}, {s(kh)}, 10
s_add_u32 {s(st)}, {s(st)}, {s(st+1)}
v_add_u32 {v(ia)}, {s(st)}, {v(ia)}
s_lshl_b32 {s(st)}, {s(wave)}, 8
v_add_u32 {v(ta)}, {s(st)}, {v(ta)}
v_lshlrev_b32 {v(ga)}, 13, {v(g)}
v_lshl_add_u32 {v(ga)}, {v(l15)}, 4, {v(ga)}
s_lshl_b32 {s(st)}, {s(wave)}, 11
v_add_u32 {v(t2)}, {s(st)}, {v(VL16)}
s_lshl_b32 {s(st)}, {s(sl)}, 2
s_add_u32 {s(st)}, {s(st)}, {s(wave)}
s_lshl_b32 {s(st)}, {s(st)}, 16
s_lshl_b32 {s(st+1)}, {s(rt)}, 8
s_add_u32 {s(st)}, {s(st)}, {s(st+1)}
s_add_u32 {s(st)}, {s(st)}, {zc}
s_add_u32 {s(st+2)}, {s(st)}, 32768
s_add_u32 {s(st+1)}, {s(st+1)}, {ssq}''')

def zepi(A, T0, T1, BF, regs, ntoff, gate=None, cnt=False, hk=None):
    ta, ia, ga, t2 = regs
    pk, s0, s1 = BF + 16, BF + 24, BF + 25
    hk = hk or ('cc', F_CC)
    if cnt: hint(A, hk[0], 2, hk[1])
    k = 0
    for nt, Tn in enumerate((T0, T1)):
        for q in (0, 2):
            for ip in range(2):
                r = Tn + 4 * q + 2 * ip
                A(f'v_cvt_pk_bf16_f32 {v(pk+k)}, {v(r)}, {v(r+1)}')
                A(f'ds_write_b32 {v(ia)}, {v(pk+k)} offset:{(4*q+ip)*256+ntoff*nt}')
                k += 1
    lab = A.label('nodc')
    A(f'''s_or_b32 {s(st+3)}, {s(sl)}, {s(wave)}
s_cmp_lg_u32 {s(st+3)}, 0
s_cbranch_scc1 {lab}
v_cmp_gt_u32 vcc, 32, {v(lane)}
v_cndmask_b32 {v(T0+1)}, {v(T0+1)}, 0, vcc
v_cndmask_b32 {v(T1+1)}, {v(T1+1)}, 0, vcc
{lab}:''')
    for sreg, Tn in ((s0, T0), (s1, T1)):
        A(f'v_mul_f32 {v(sreg)}, {v(Tn)}, {v(Tn)}')
    for r in (1, 2, 3, 8, 9, 10, 11):
        for sreg, Tn in ((s0, T0), (s1, T1)):
            A(f'v_fmac_f32 {v(sreg)}, {v(Tn+r)}, {v(Tn+r)}')
    A(f'''v_permlane32_swap_b32 {v(s0)}, {v(s1)}
v_add_f32 {v(s0)}, {v(s0)}, {v(s1)}
ds_write_b32 {v(ta)}, {v(s0)} offset:8192
v_lshlrev_b32 {v(ta)}, 2, {v(lane)}''')
    A('s_waitcnt lgkmcnt(0)')
    if gate: gate()
    A('s_barrier')
    lab = A.label('ssq')
    A(f'''ds_read_b128 {v(T0,4)}, {v(t2)}
ds_read_b128 {v(T0+4,4)}, {v(t2)} offset:1024''')
    A.track = False
    A(f'''s_cmp_lg_u32 {s(wave)}, 1
s_cbranch_scc1 {lab}
ds_read2st64_b32 {v(pk,2)}, {v(ta)} offset0:32 offset1:33
ds_read2st64_b32 {v(pk+2,2)}, {v(ta)} offset0:34 offset1:35
s_waitcnt lgkmcnt(0)
v_pk_add_f32 {v(pk,2)}, {v(pk,2)}, {v(pk+2,2)}
v_add_f32 {v(pk)}, {v(pk)}, {v(pk+1)}
{'' if not cnt else 'v_cvt_pk_bf16_f32 %s, %s, 1.0' % (v(pk), v(pk))}
buffer_atomic_{'pk_add_bf16' if cnt else 'add_f32'} {v(pk)}, {v(ta)}, {s(sW,4)}, {s(st+1)} offen sc1
{lab}:''')
    A.track = True
    if cnt: late(A, hk[1], False)
    if cnt: hint(A, hk[0], 1, hk[1])
    A('s_waitcnt lgkmcnt(1)')
    A.t('st', f'buffer_store_dwordx4 {v(T0,4)}, {v(ga)}, {s(sW,4)}, {s(st)} offen sc1')
    A('s_waitcnt lgkmcnt(0)')
    A.t('st', f'buffer_store_dwordx4 {v(T0+4,4)}, {v(ga)}, {s(sW,4)}, {s(st+2)} offen sc1')
    if cnt: hint(A, hk[0], 0, hk[1])

ND = int(os.environ.get('ND', '2'))
def layers(A, lre, lim, ldt, pre=None, shook=None, wcq=False):
    pstamp(A, 'stored')
    for lay in range(2):
        def pre_work():
            if lay == 0:
                if pre: pre(0)
                assert len([x for x in A.bgq if x[0].startswith('wc')]) in range(6, 29) or not wcq
                A.wait_vm('lam')
                A(f'v_mov_b32 v8, {v(lre)}\nv_mov_b32 v9, {v(lim)}\nv_mov_b32 v10, {v(ldt)}')
                lam_tables(A, 8, 9, 10, 12)
            A.bg(ND)
            scan_pre(A)
        def mid():
            if f'ca{lay}' in NOD: pre_work()
            if wcq or lay: A.bg(NB1 if lay else NB0)
            while len([x for x in A.bgq if x[0].startswith('m1')]) > M1L: A.bg(1)
        if f'ca{lay}' not in NOD:
            pre_work(); signal16(A, 'st', F_CA[lay])
        if PD[0] == '1' and lay:
            mid(); mid = None
        poll(A, poll16(F_CA[lay], (F_PF4, NAUX) if lay and 'cb' in NOD else None), mid)
        if lay == 0 and not wcq: q_wc(A, VL16X, '')
        scan_phase(A, lay, (ZB, ZB3)[lay], (HB, HB2)[lay], (sAG0, sAG1)[lay], shook if lay == 0 else None)
        pstamp(A, 'stored')
        A(f's_lshl_b32 {s(st+3)}, {s(rt)}, 7\ns_add_u32 {s(st+3)}, {s(st+3)}, {F_CB[lay]}')
        pt = f'v_mov_b32 v5, {s(st+3)}\nv_mov_b32 v6, 7\ns_mov_b64 s[50:51], 1'
        if lay == 0:
            pt += f'''
s_and_b32 {s(st)}, s2, {NREP-1}
s_lshl_b32 {s(st)}, {s(st)}, 7
s_add_u32 {s(st)}, {s(st)}, {F_CD}
v_writelane_b32 v5, {s(st)}, 1
v_writelane_b32 v6, {NAUX}, 1
s_add_u32 {s(st)}, {s(st)}, {F_PF2 - F_CD & 0xffffffff}
v_writelane_b32 v5, {s(st)}, 2
v_writelane_b32 v6, {32 - NAUX}, 2
s_mov_b64 s[50:51], {7 if NOD - {''} else 3}'''
        def pre_work():
            A.bg(ND)
            if lay == 0:
                A.fq = capture(col_tables1, col_tables2, lambda B: zepi_setup(B, (PT + 6, PT + 7, 5, 6), 32, ZC2, SSQ2))
                A.fill(NW0)
            else:
                A.fq = capture(out_setup)
            proj_pre(A, lay == 1)
            proj_addr(A, (HB, HB2)[lay])
        def mid():
            if PD[1] != '1':
                own_to_lds(A); pre_work()
            A('s_waitcnt lgkmcnt(0)\ns_barrier')
            proj_init(A, lay == 1)
            A.wait_vm('wc0')
            proj_own(A, lay == 1)
            A.bg(64)
        if 'cb' not in NOD: signal(A, 'st', st + 3)
        if PD[1] == '1':
            own_to_lds(A); pre_work()
        poll(A, pt, mid)
        if lay == 0:
            A(f's_add_u32 {s(s_sk)}, {s(s_sk)}, {WSK_L - 12288}\ns_mov_b32 {s(s_sk0)}, {s(s_sk)}')
            q_sk(A, WSC)
        proj_phase(A, lay == 1, (HB, HB2)[lay])
        if lay == 0:
            pstamp(A, 'stored')
            col_wload(A)
            A(f's_add_u32 {s(s_wce)}, {s(s_wce)}, {WC_L}\ns_mov_b32 {s(s_wc)}, {s(s_wce)}')
            signal16(A, 'st', F_CC, 'cc' not in NOD)
            q_wc(A, VL16, WSC)
            if PD[2] == '1': A.bg(NB2)
            poll(A, poll16(F_CC, (F_PF3, 32 - NAUX) if NOD - {''} else None), None if PD[2] == '1' else lambda: A.bg(NB2))
            A(col_poll_pre(ZC2, SSQ2))
            col_poll(A, ZC2, SSQ2, val='cc' in NOD)
            col_compute(A, ZB3, True)
            pstamp(A, 'stored')

def kend(A):
    A('KP_end:')
    if os.environ.get('RC'):
        A(f's_load_dwordx2 s[56:57], s[0:1], {DBG*8}\nv_mov_b32 v5, 4\nv_mov_b32 v6, {s(s_redo)}\ns_mov_b64 exec, 1\ns_waitcnt lgkmcnt(0)\nglobal_atomic_add v5, v6, s[56:57] sc1\ns_mov_b64 exec, -1')
    if PROBE:
        pstamp(A, 'end')
        i, j = [int(x) for x in PROBE.split(',')]
        A(f's_cmp_lg_u32 s2, {os.environ.get("DBGWG", "100")}\ns_cbranch_scc1 KP_exit')
        if i < 0:
            A(f'v_mov_b32 v5, 0\ns_mov_b32 s64, {STAMP}\nbuffer_load_dword v6, v5, {s(sW,4)}, s64 offen sc1\ns_waitcnt vmcnt(0)\nv_readfirstlane_b32 s60, v6')
        A('''s_memrealtime s[64:65]
s_waitcnt lgkmcnt(0)
s_sub_u32 s60, s62, s60
s_min_u32 s60, s60, 10000
s_mul_i32 s60, s60, 10
KP_spin:
s_memrealtime s[66:67]
s_waitcnt lgkmcnt(0)
s_sub_u32 s66, s66, s64
s_cmp_lt_u32 s66, s60
s_cbranch_scc1 KP_spin''')
    if STAMPS == 1:
        A('s_memrealtime s[100:101]\ns_waitcnt lgkmcnt(0)')
        for i in range(21): A(f'v_mov_b32 {v(8+i)}, {s(60+2*i)}')
        A(f'v_mov_b32 {v(8+21)}, {s(s_redo)}')
        A(f'''v_lshrrev_b32 v5, 6, v0
v_lshlrev_b32 v5, 7, v5
s_lshl_b32 s60, s2, 9
s_add_u32 s60, s60, {STAMP + 131072}''')
        for i in range(6): A(f'buffer_store_dwordx4 {v(8+4*i,4)}, v5, {s(sW,4)}, s60 offen offset:{16*i}')
    A('KP_exit:\ns_endpgm')
    for last in (0, 1):
        A(f'PJ_redo{last}:')
        proj_own(A, last)
        A(f's_branch PJ_dma{last}')


def kp():
    A = Asm()
    gen.KSTAMP = False
    A(f's_cmp_ge_u32 s2, {224+NAUX}\ns_cbranch_scc1 KP_exit')
    pstamp(A, 'entry')
    ld_ptr(A, sW, WS)
    A('s_cmp_ge_u32 s2, 224\ns_cbranch_scc1 KP_aux')
    ld_ptr(A, sO, OUT); ld_ptr(A, 40, L_RE); ld_ptr(A, 44, L_IM); ld_ptr(A, 48, LOGDT); ld_ptr(A, 52, DSKIP)
    A(f'''v_and_b32 {v(lane)}, 63, v0
v_lshrrev_b32 v2, 6, v0
v_readfirstlane_b32 {s(wave)}, v2
v_and_b32 {v(l15)}, 15, {v(lane)}
v_lshrrev_b32 {v(g)}, 4, {v(lane)}
v_lshlrev_b32 {v(VL16)}, 4, {v(lane)}
s_and_b32 {s(kh)}, {s(wave)}, 1
s_lshr_b32 {s(wm)}, {s(wave)}, 1
s_lshl_b32 {s(st)}, {s(kh)}, 7
v_xor_b32 {v(VL16X)}, {s(st)}, {v(VL16)}
s_cmp_eq_u32 s2, 0
s_cselect_b32 {s(sim)}, 0, 1.0''')
    tile_ids(A, rt, sl, st)
    A(f'''s_lshl_b32 {s(st+3)}, {s(sl)}, 2
s_add_u32 {s(st+3)}, {s(st+3)}, {s(wave)}
s_mul_i32 {s(s_m1)}, {s(st+3)}, {28*1024}
s_add_u32 {s(s_m1)}, {s(s_m1)}, {WM1}
s_mul_i32 {s(s_sk)}, {s(st+3)}, {14*1024}
s_add_u32 {s(s_sk)}, {s(s_sk)}, {WSK}
s_lshl_b32 {s(st+3)}, {s(st+3)}, 5
s_lshl_b32 {s(s_wc)}, {s(sl)}, 1
s_add_u32 {s(s_wc)}, {s(s_wc)}, {s(kh)}
s_lshl_b32 {s(s_wc)}, {s(s_wc)}, 1
s_add_u32 {s(s_wc)}, {s(s_wc)}, {s(wm)}
s_mul_i32 {s(s_wc)}, {s(s_wc)}, {28*1024}
s_add_u32 {s(s_wc)}, {s(s_wc)}, {WC}''')
    col_tables1(A)
    A('s_waitcnt lgkmcnt(0)')
    srd_ws(A, sW); srd(A, sO, S * D * 4)
    for r in (40, 44, 48, 52): srd(A, r, D * 2)
    pstamp(A, 'karg')
    col_loads(A, ZC, R0, '')
    col_wload(A)
    lre, lim, ldt = PR + 1, PR + 2, PR + 3
    A(f'v_lshlrev_b32 v6, 1, {v(l15)}')
    for r, sr in ((lre, 40), (lim, 44), (ldt, 48), (hd, 52)):
        A.t('lam', f'buffer_load_ushort {v(r)}, v6, {s(sr,4)}, {s(st+3)} offen')
    for i, r in enumerate((sAG0, sAG1)):
        A(f's_add_u32 {s(r)}, s4, {AGG + i*AGG_L}\ns_addc_u32 {s(r+1)}, s5, 0')
        srd(A, r, AGG_L)
    A(f'''v_cmp_eq_u32 s[44:45], 1, {v(g)}
v_cmp_eq_u32 s[46:47], 2, {v(g)}
v_cmp_eq_u32 s[48:49], 3, {v(g)}''')
    A(f's_mov_b32 {s(s_redo)}, 0')
    q_m1(A)
    col_tables2(A)
    A.bg(NB0)
    col_compute(A, ZB, False)
    layers(A, lre, lim, ldt)
    kend(A)
    A('KP_aux:')
    A.track = False
    A(f'''v_and_b32 {v(lane)}, 63, v0
v_lshrrev_b32 v2, 6, v0
v_readfirstlane_b32 {s(wave)}, v2''')
    aux_tail(A)
    return A.render()

def aux_tail(A, zd_wait=None, astamp=None):
    def fill(base, total, first, n, flag, nrep, wait=True):
        if not NOD - {''}: return
        lab = A.label('pf')
        A(f"""v_lshlrev_b32 v2, 4, v0
v_mov_b32 v8, -1
v_mov_b32 v9, -1
v_mov_b32 v10, -1
v_mov_b32 v11, -1
s_sub_u32 {s(st)}, s2, {224 + first}
s_lshl_b32 {s(st)}, {s(st)}, 12
s_add_u32 {s(st)}, {s(st)}, {base}
{lab}:
buffer_store_dwordx4 v[8:11], v2, {s(sW,4)}, {s(st)} offen sc1
s_add_u32 {s(st)}, {s(st)}, {n*4096}
s_cmp_lt_u32 {s(st)}, {base + total}
s_cbranch_scc1 {lab}
s_mov_b32 {s(st+1)}, {flag}""")
        signal(A, None, st + 1, nrep, 128)
        A.track = False
    fill(HB, 32 * 114688, 0, 32, F_PF1, 64)
    A(f's_cmp_ge_u32 s2, {224+28}\ns_cbranch_scc1 KP_pf')
    A('KP_m2a:')
    if STAMPS == 1: A('s_memrealtime s[66:67]')
    TS_ = 5392
    sc_ = 0.25 * math.sqrt(2.0 / 448)
    zd_wait()
    if STAMPS == 1: A('s_memrealtime s[68:69]')
    A(f's_mov_b32 {s(st)}, {ZD}')
    for i in range(3):
        x, c, sg = 16 + 8 * i, 17 + 8 * i, 18 + 8 * i
        A(f'''v_add_u32 {v(x)}, {256*i}, v0
v_subrev_u32 {v(c)}, 224, {v(x)}
v_sub_u32 {v(sg)}, 224, {v(x)}
v_max_i32 {v(c)}, {v(c)}, {v(sg)}
v_sub_u32 {v(sg)}, 448, {v(c)}
v_min_i32 {v(c)}, {v(c)}, {v(sg)}
v_lshlrev_b32 {v(sg)}, 3, {v(c)}
v_cmp_eq_u32 vcc, 224, {v(c)}
v_cndmask_b32 {v(sg)}, {v(sg)}, 0, vcc
buffer_load_dwordx2 {v(x+4,2)}, {v(sg)}, {s(sW,4)}, {s(st)} offen''')
    for i in range(3):
        x, c, sg, cc, cs, nn = 16 + 8 * i, 17 + 8 * i, 18 + 8 * i, 20 + 8 * i, 21 + 8 * i, 19 + 8 * i
        A(f'''s_waitcnt vmcnt({2-i})
v_cmp_eq_u32 vcc, 0, {v(c)}
v_cndmask_b32 {v(cc)}, {v(cc)}, {v(cs)}, vcc
v_cmp_eq_u32 s[40:41], 0, {v(c)}
v_cmp_eq_u32 vcc, 224, {v(c)}
s_or_b64 vcc, vcc, s[40:41]
v_mov_b32 {v(sg)}, {f2u(sc_)}
v_mov_b32 {v(nn)}, {f2u(sc_*math.sqrt(2.0))}
v_cndmask_b32 {v(nn)}, {v(sg)}, {v(nn)}, vcc
v_cndmask_b32 {v(cs)}, {v(cs)}, 0, vcc
v_mul_f32 {v(cc)}, {v(cc)}, {v(nn)}
v_mul_f32 {v(cs)}, {v(cs)}, {v(sg)}
v_cmp_gt_u32 vcc, 224, {v(x)}
s_mov_b64 s[40:41], vcc
v_cmp_lt_u32 vcc, 448, {v(x)}
s_or_b64 vcc, vcc, s[40:41]
v_xor_b32 {v(nn)}, 0x80000000, {v(cs)}
v_cndmask_b32 {v(cs)}, {v(cs)}, {v(nn)}, vcc
v_xor_b32 {v(nn+3)}, 0x80000000, {v(cs)}
v_mov_b32 {v(nn+4)}, {v(cc)}
v_xor_b32 {v(nn)}, 0x80000000, {v(cc)}
v_mov_b32 {v(sg)}, {v(cs)}
v_lshlrev_b32 {v(c)}, 3, {v(x)}
v_cmp_gt_u32 vcc, 673, {v(x)}
s_and_saveexec_b64 s[40:41], vcc
ds_write_b64 {v(c)}, {v(cc,2)}
ds_write_b64 {v(c)}, {v(nn+3,2)} offset:{TS_}
ds_write_b64 {v(c)}, {v(cc,2)} offset:{2*TS_}
ds_write_b64 {v(c)}, {v(sg,2)} offset:{3*TS_}
s_mov_b64 exec, s[40:41]''')
    jp, cp, pr, am, ap, fa = 5, 6, 7, 8, 9, 10
    A(f'''s_sub_u32 {s(st)}, s2, 224
s_lshl_b32 {s(st+1)}, {s(st)}, 4
s_mul_i32 {s(st)}, {s(st)}, 14
s_add_u32 {s(st)}, {s(st)}, {s(wave)}
s_lshl_b32 {s(st)}, {s(st)}, 10
s_add_u32 {s(st)}, {s(st)}, {WSK}
v_and_b32 {v(jp)}, 15, {v(lane)}
v_add_u32 {v(jp)}, {s(st+1)}, {v(jp)}
v_lshrrev_b32 {v(cp)}, 1, {v(jp)}
v_and_b32 {v(pr)}, 1, {v(jp)}
v_mov_b32 v12, 224
v_cmp_eq_u32 vcc, 0, {v(jp)}
v_cndmask_b32 {v(cp)}, {v(cp)}, v12, vcc
v_cmp_gt_u32 vcc, 2, {v(jp)}
v_cndmask_b32 {v(pr)}, {v(pr)}, 0, vcc
v_mov_b32 v12, {f2u(math.sqrt(0.5))}
v_cndmask_b32 {v(fa)}, 1.0, v12, vcc
v_mul_u32_u24 {v(pr)}, {TS_}, {v(pr)}
v_lshrrev_b32 v13, 4, {v(lane)}
v_lshlrev_b32 v14, 1, v13
s_lshl_b32 {s(st+2)}, {s(wave)}, 4
v_add_u32 v14, {s(st+2)}, v14
v_or_b32 v13, {s(wave)}, v13
v_sub_u32 {v(am)}, 224, {v(cp)}
v_add_u32 {v(ap)}, 224, {v(cp)}
v_lshl_add_u32 v15, {v(am)}, 3, {v(pr)}
v_lshl_add_u32 v12, {v(ap)}, 3, {v(pr)}
v_add_u32 {v(am)}, {v(am)}, v14
v_add_u32 {v(ap)}, {v(ap)}, v14
v_lshl_add_u32 {v(am)}, {v(am)}, 3, {v(pr)}
v_lshl_add_u32 {v(ap)}, {v(ap)}, 3, {v(pr)}
s_waitcnt lgkmcnt(0)
s_barrier
ds_read_b32 v40, v15 offset:{224*8}
ds_read_b32 v41, v12 offset:{224*8+2*TS_}''')
    if STAMPS == 1: A('s_memrealtime s[70:71]')
    O = 48
    for i in range(4):
        b = 112 + 16 * i
        for p in range(4):
            off = 8 * (64 * i + 8 * (p >> 1) + (p & 1))
            A(f'ds_read_b64 {v(b+4*p,2)}, {v(am)} offset:{off}\nds_read_b64 {v(b+4*p+2,2)}, {v(ap)} offset:{off+2*TS_}')
    A(f'v_lshlrev_b32 v6, 4, {v(lane)}')
    for i in range(4):
        A(f's_waitcnt lgkmcnt({min(15, 24-8*i)})')
        b = 112 + 16 * i
        for p in range(4):
            A(f'v_pk_add_f32 {v(b+4*p,2)}, {v(b+4*p,2)}, {v(b+4*p+2,2)}')
        if i == 0:
            A(f'''v_add_f32 v40, v40, v41
v_mul_f32 v40, {f2u(math.sqrt(0.5))}, v40
v_cmp_eq_u32 vcc, 0, v13
v_cndmask_b32 {v(b)}, {v(b)}, v40, vcc
v_cndmask_b32 {v(b+1)}, {v(b+1)}, 0, vcc''')
        for p in range(4):
            A(f'v_pk_mul_f32 {v(b+4*p,2)}, {v(b+4*p,2)}, {v(fa,2)} op_sel_hi:[1,0]')
        for p in range(4):
            A(f'v_cvt_pk_bf16_f32 {v(O+4*i+p)}, {v(b+4*p)}, {v(b+4*p+1)}')
        if i == 3: A(f's_cmp_ge_u32 {s(wave)}, 2\ns_cbranch_scc1 KP_m2s')
        A(f'buffer_store_dwordx4 {v(O+4*i,4)}, v6, {s(sW,4)}, {s(st)} offen sc1\ns_add_u32 {s(st)}, {s(st)}, 4096')
    A(f'KP_m2s:\ns_mov_b32 {s(st+1)}, {F_CE}')
    signal(A, None, st + 1, 64, 128)
    if STAMPS == 1: A('s_memrealtime s[74:75]')
    A.track = False
    ld_ptr(A, 8, C_RE); ld_ptr(A, 12, C_IM)
    A(f'''s_cmp_ge_u32 s2, {224+NAUX}
s_cbranch_scc1 KP_pf
s_cmp_lt_u32 s2, 231
s_cbranch_scc1 KP_qt
s_sub_u32 {s(st)}, s2, 231
s_and_b32 {s(st+1)}, {s(st)}, 1
s_lshr_b32 {s(st+2)}, {s(wave)}, 1
s_and_b32 {s(st+3)}, {s(wave)}, 1
s_andn2_b32 {s(st+4)}, {s(st)}, 1
s_add_u32 {s(st+4)}, {s(st+4)}, {s(st+2)}
s_mul_i32 {s(st+4)}, {s(st+4)}, {32*896}
s_mul_i32 {s(st+5)}, {s(st+3)}, {14*32}
s_add_u32 {s(st+4)}, {s(st+4)}, {s(st+5)}
s_lshl_b32 {s(st+5)}, {s(st)}, 1
s_add_u32 {s(st+5)}, {s(st+5)}, {s(st+2)}
s_lshl_b32 {s(st+5)}, {s(st+5)}, 1
s_add_u32 {s(st+5)}, {s(st+5)}, {s(st+3)}
s_mul_i32 {s(st+5)}, {s(st+5)}, {14*1024}
s_add_u32 {s(st+5)}, {s(st+5)}, {WC + WC_L}
v_and_b32 v5, 31, {v(lane)}
v_mul_u32_u24 v5, 896, v5
v_lshrrev_b32 v6, 5, {v(lane)}
v_lshl_add_u32 v5, v6, 4, v5
v_lshlrev_b32 v6, 4, {v(lane)}
s_waitcnt lgkmcnt(0)
s_cmp_eq_u32 {s(st+1)}, 0
s_cselect_b32 s8, s8, s12
s_cselect_b32 s9, s9, s13''')
    srd(A, 8, D * D * 2); srd_ws(A, sW)
    for k in range(14):
        A(f'buffer_load_dwordx4 {v(8+4*k,4)}, v5, s[8:11], {s(st+4)} offen offset:{32*k}')
    for k in range(14):
        A(f's_waitcnt vmcnt(13)\nbuffer_store_dwordx4 {v(8+4*k,4)}, v6, {s(sW,4)}, {s(st+5)} offen sc1\ns_add_u32 {s(st+5)}, {s(st+5)}, 1024')
    A('s_branch KP_auxsig')
    A('KP_qt:')
    sinv, s448 = 25, 26
    amp, df, two, c16, t, u, d0, d1, d2, tq = 6, 7, 8, 9, 10, 11, 112, 113, 114, 115
    O = 48
    a2 = math.sqrt(2.0 / 448); a1 = math.sqrt(1.0 / 448)
    A(f'''s_mov_b32 {s(sinv)}, {f2u(INV448)}
s_mov_b32 {s(s448)}, {f2u(448.0)}
s_sub_u32 {s(st)}, s2, 224
s_lshl_b32 {s(st)}, {s(st)}, 2
s_add_u32 {s(st)}, {s(st)}, {s(wave)}
s_lshl_b32 {s(st+1)}, {s(st)}, 4
s_mul_i32 {s(st)}, {s(st)}, {14*1024}
s_add_u32 {s(st)}, {s(st)}, {WSK + WSK_L}
v_and_b32 v12, 15, {v(lane)}
v_add_u32 v12, {s(st+1)}, v12
v_cvt_f32_u32 {v(df)}, v12
v_lshrrev_b32 v13, 4, {v(lane)}
v_lshlrev_b32 v14, 1, v13
v_cvt_f32_u32 v14, v14
v_add_f32 {v(t)}, {f2u(96.0)}, v14
v_mul_f32 {v(t)}, {v(t)}, {v(df)}
v_mul_f32 {v(c16)}, {f2u(16.0)}, {v(df)}
v_mul_f32 {v(d2)}, {f2u(7.0)}, {v(df)}
v_mov_b32 {v(amp)}, {f2u(a2)}''')
    for r in (t, c16, d2):
        A(f'''v_mul_f32 {v(tq)}, {s(sinv)}, {v(r)}
v_rndne_f32 {v(tq)}, {v(tq)}
v_fma_f32 {v(r)}, -{v(tq)}, {s(s448)}, {v(r)}
v_mul_f32 {v(r)}, {s(sinv)}, {v(r)}''')
    A(f'''v_cos_f32 {v(two)}, {v(c16)}
v_add_f32 {v(u)}, {v(t)}, {v(c16)}
v_mov_b32 {v(d0)}, 0x3e800000
v_mul_f32 {v(d1)}, {s(sinv)}, {v(df)}
v_subrev_f32 {v(d1)}, 0x3e800000, {v(d1)}
v_subrev_f32 {v(d2)}, 0x3e800000, {v(d2)}''')
    cheb(A, O, 16, t, u, [d0, d1, d0, d2, d0, d1, d0], amp, two, None, None)
    A(f'''v_mov_b32 {v(t)}, {f2u(a1)}
v_cvt_pk_bf16_f32 {v(t)}, {v(t)}, {v(t)}
v_and_b32 v12, 1, v12
v_lshlrev_b32 v12, 15, v12
v_xor_b32 {v(t)}, {v(t)}, v12
v_cmp_eq_u32 vcc, 0, v13
v_cndmask_b32 {v(O)}, {v(O)}, {v(t)}, vcc
v_lshlrev_b32 v6, 4, {v(lane)}
s_waitcnt lgkmcnt(0)''')
    srd_ws(A, sW)
    for k in range(14):
        A(f'buffer_store_dwordx4 {v(O+4*k,4)}, v6, {s(sW,4)}, {s(st)} offen sc1\ns_add_u32 {s(st)}, {s(st)}, 1024')
    A('KP_auxsig:')
    A(f's_mov_b32 {s(st+1)}, {F_CD}')
    signal(A, None, st + 1, NREP, 128)
    A.track = False
    fill(HB2, 32 * 114688, 0, NAUX, F_PF4, NREP)
    if astamp: astamp()
    A('s_endpgm')
    A('KP_pf:')
    fill(ZC2, 224 * 8192, NAUX, 32 - NAUX, F_PF2, NREP)
    fill(ZB3, 224 * 8192, NAUX, 32 - NAUX, F_PF3, NREP)
    if astamp: astamp()
    A('s_endpgm')

def main():
    gen.REST_BYTES = 40960; gen.K0_BYTES = 12288
    txt = build([('k0', k0(), 256, 0), ('k1', kp(), 256, 256)], [('k0', 491, 81920), ('k1', 224 + NAUX, LDS_BYTES)])
    txt = txt.replace('.amdhsa_next_free_sgpr 96', '.amdhsa_next_free_sgpr 102')
    open(sys.argv[1] if len(sys.argv) > 1 else 'k.s', 'w').write(txt)
    if PROBE: print(list(enumerate(NAMES)))
    if STAMPS == 1: open((sys.argv[1] if len(sys.argv) > 1 else 'k.s') + '.names', 'w').write(' '.join(NAMES))

if __name__ == '__main__':
    main()
```

```python
import sys
sys.path.insert(0, 'dev')
import gen, gen_p
from gen import *
from gen_p import *

K = 1024
F_P0 = FLAGS
gen_p.F_CA[0], gen_p.F_CA[1] = FLAGS + 32 * K, FLAGS + 96 * K
gen_p.F_CC = FLAGS + 64 * K
gen_p.F_CB[0], gen_p.F_CB[1] = FLAGS + 128 * K, FLAGS + 132 * K
F_W = FLAGS + 184 * K
gen_p.F_CE, gen_p.F_CD = FLAGS + 176 * K, FLAGS + 140 * K
F_M1, F_M2, F_ZD, F_NO = FLAGS + 144 * K, FLAGS + 151 * K, FLAGS + 158 * K, FLAGS + 159 * K
SSQ0 = FLAGS + 160 * K
gen_p.SSQ2 = FLAGS + 168 * K
gen_p.F_PF1, gen_p.F_PF2, gen_p.F_PF3 = FLAGS + 192 * K, FLAGS + 136 * K, FLAGS + 200 * K
gen_p.F_PF4 = FLAGS + 204 * K
NA = 32
L_XRED, L_M = 65536, 81920
QA, X0, X1, XB, CH, TM = 8, 64, 144, 190, 80, 112
vj, vd0, vt, vmb, rw, rr, ga_, gt_, ta_, ia_ = 120, 121, 122, 222, 223, 224, 225, 226, 227, 229
lre, lim, ldt = 232, 233, 234
mre, mim, mdt = 235, 236, 237
sX, sM, sD = 8, 12, 56
sinv, s448, m_off, m_step, m_xr, m_dx, role, s_k = 34, 35, 36, 37, 38, 39, 59, 33
KSIG = int(os.environ.get('KSIG', '8'))
NF0 = int(os.environ.get('NF0', '4')); NF1 = int(os.environ.get('NF1', '3'))
NDX = int(os.environ.get('NDX', '6'))
MS = int(os.environ.get('MS', '0'))
PI0 = int(os.environ.get('PI0', '0')); MD = int(os.environ.get('MD', '2')); NT2 = int(os.environ.get('NT2', '86'))
HEAD_BYTES = 12288; PF_START = 8192; PF_PART = 12288

def gemm(A, rd, nrd, mf, nf, mid=None):
    for k in range(3): rd(k)
    for k in range(14):
        if mid and k == KSIG: mid()
        if k + 3 < 14: rd(k + 3)
        A(f's_waitcnt lgkmcnt({nrd*min(3, 13-k)})')
        for i, T in enumerate((X0, X1)):
            A(f'v_mfma_f32_32x32x16_bf16 {v(T,16)}, {mf(k, i)}, {v(T,16) if k else 0}')
            A.fill(nf)
            if i == 0 or k < 4: A.bg(1)
    A.fill(999)

def gemm_rows(A, nf, mid=None):
    A(f's_mul_i32 {s(s_k)}, {s(kh)}, 448')
    def rd(k):
        b = XB + 8 * (k % 4)
        A(f'v_xor_b32 {v(gt_)}, {s(s_k)}, {v(ga_)}\ns_add_u32 {s(s_k)}, {s(s_k)}, 32')
        A(f'ds_read_b128 {v(b,4)}, {v(gt_)}\nds_read_b128 {v(b+4,4)}, {v(gt_)} offset:32768')
    gemm(A, rd, 2, lambda k, i: f'{v(QA+4*k,4)}, {v(XB+8*(k%4)+4*i,4)}', nf, mid)

CEK = int(os.environ.get('CEK', '9'))
def chk_issue(A, r, mask=3):
    A(f'v_mov_b32 {v(r+2)}, 0\ns_mov_b64 exec, {mask}')
    A.t('chk', f'buffer_atomic_or {v(r+2)}, {v(r)}, {s(sW,4)}, 0 offen sc0 sc1')
    A('s_mov_b64 exec, -1')

def chk_wait(A, r, cnt, mask=3):
    lab = A.label('chk')
    A(f's_mov_b32 {s(cnt)}, 0\ns_mov_b64 exec, {mask}')
    A.wait_vm('chk')
    A.track = False
    A(f'''{lab}:
v_cmp_gt_u32 vcc, {v(r+1)}, {v(r+2)}
s_add_u32 {s(cnt)}, {s(cnt)}, 1
s_cbranch_vccz {lab}_d
s_cmp_gt_u32 {s(cnt)}, {SPIN}
s_cbranch_scc1 {lab}_d
v_mov_b32 {v(r+2)}, 0
buffer_atomic_or {v(r+2)}, {v(r)}, {s(sW,4)}, 0 offen sc0 sc1
s_waitcnt vmcnt(0)
s_branch {lab}
{lab}_d:
s_mov_b64 exec, -1''')
    A.track = True

def km():
    A = Asm()
    gen.KSTAMP = False
    A(f's_cmp_ge_u32 s2, {224+NA}\ns_cbranch_scc1 KP_exit')
    pstamp(A, 'entry')
    ld_ptr(A, sW, WS); ld_ptr(A, sD, DBG)
    A('s_cmp_ge_u32 s2, 224\ns_cbranch_scc1 KP_aux')
    ld_ptr(A, sX, A_X); ld_ptr(A, sO, OUT)
    A(f's_load_dwordx8 s[40:47], s[0:1], {L_RE*8}\ns_load_dwordx8 s[48:55], s[0:1], {C_RE*8}')
    A('s_cmp_ge_u32 s2, 8\ns_cbranch_scc1 KM_nopf')
    A.track = False
    prefetch_code(A, 'km_kernel', HEAD_BYTES, 2, 28, 240)
    A.track = True
    A(f'''KM_nopf:
v_and_b32 {v(lane)}, 63, v0
v_lshrrev_b32 v2, 6, v0
v_readfirstlane_b32 {s(wave)}, v2
v_and_b32 {v(l15)}, 15, {v(lane)}
v_lshrrev_b32 {v(g)}, 4, {v(lane)}
v_lshlrev_b32 {v(VL16)}, 4, {v(lane)}
s_and_b32 {s(kh)}, {s(wave)}, 1
s_lshr_b32 {s(wm)}, {s(wave)}, 1
s_lshl_b32 {s(st)}, {s(kh)}, 7
v_xor_b32 {v(VL16X)}, {s(st)}, {v(VL16)}
s_cmp_eq_u32 s2, 0
s_cselect_b32 {s(sim)}, 0, 1.0''')
    tile_ids(A, rt, sl, st)
    A(f'''s_lshl_b32 {s(st+2)}, {s(rt)}, 2
s_add_u32 {s(st+2)}, {s(st+2)}, {s(wave)}
s_mul_i32 {s(st+2)}, {s(st+2)}, {16*896}
s_lshl_b32 {s(st)}, {s(wave)}, 14
s_mov_b32 m0, {s(st)}
s_min_u32 {s(role)}, {s(rt)}, 29
s_sub_u32 {s(role)}, {s(role)}, 26
s_cmp_lt_u32 {s(rt)}, 28
s_cselect_b32 {s(role)}, 1, {s(role)}
s_cmp_lt_u32 {s(rt)}, 14
s_cselect_b32 {s(role)}, 0, {s(role)}
s_lshl_b32 {s(m_off)}, {s(rt)}, 1
s_add_u32 {s(m_off)}, {s(m_off)}, {s(kh)}
s_mul_i32 {s(m_off)}, {s(m_off)}, {16*896}
s_cmp_ge_u32 {s(rt)}, 21
s_cselect_b32 {s(st+3)}, 21, 14
s_sub_u32 {s(st+3)}, {s(rt)}, {s(st+3)}
s_lshl_b32 {s(st+3)}, {s(st+3)}, 7
s_mul_i32 {s(st+4)}, {s(wave)}, {14*7168}
s_add_u32 {s(st+3)}, {s(st+3)}, {s(st+4)}
s_cmp_eq_u32 {s(role)}, 0
s_cselect_b32 {s(m_off)}, {s(m_off)}, 0
s_cselect_b32 {s(m_step)}, 896, 0
s_cmp_eq_u32 {s(role)}, 1
s_cselect_b32 {s(m_off)}, {s(st+3)}, {s(m_off)}
s_cselect_b32 {s(m_step)}, 7168, {s(m_step)}
s_cselect_b32 {s(m_dx)}, 0, 16
s_cselect_b64 vcc, -1, 0
s_mov_b32 {s(m_xr)}, 0
v_lshrrev_b32 v5, 3, {v(lane)}
v_mul_u32_u24 v5, 896, v5
v_and_b32 v6, 7, {v(lane)}
v_bfe_u32 v7, {v(lane)}, 4, 1
v_lshlrev_b32 v7, 2, v7
v_xor_b32 v6, v6, v7
v_lshl_add_u32 v5, v6, 4, v5
v_cndmask_b32 {v(vmb)}, {v(VL16)}, v5, vcc
s_mov_b32 {s(sinv)}, {f2u(INV448)}
s_mov_b32 {s(s448)}, {f2u(448.0)}''')
    A(f'''v_and_b32 {v(vj)}, 31, {v(lane)}
s_lshl_b32 {s(st)}, {s(sl)}, 6
s_lshl_b32 {s(st+1)}, {s(wm)}, 5
s_add_u32 {s(st)}, {s(st)}, {s(st+1)}
s_lshl_b32 {s(st+1)}, {s(kh)}, 3
v_xor_b32 {v(vj)}, {s(st+1)}, {v(vj)}
v_add_u32 {v(vj)}, {s(st)}, {v(vj)}
v_lshrrev_b32 {v(vd0)}, 5, {v(lane)}
v_lshlrev_b32 {v(vd0)}, 3, {v(vd0)}
s_mul_i32 {s(st)}, {s(kh)}, 224
v_add_u32 {v(vd0)}, {s(st)}, {v(vd0)}
v_cvt_f32_u32 {v(vd0)}, {v(vd0)}''')
    mq = []
    def memstart():
        A('s_waitcnt lgkmcnt(0)')
        srd(A, sX, S * D * 2); srd_ws(A, sW)
        pstamp(A, 'karg')
        for r in range(16):
            if r: A(f'v_xor_b32 {v(vt)}, {16*r}, {v(VL16)}')
            A.t('x', f'buffer_load_dwordx4 {v(vt if r else VL16)}, {s(sX,4)}, {s(st+2)} offen lds')
            if r < 15: A(f's_add_u32 m0, m0, 1024\ns_add_u32 {s(st+2)}, {s(st+2)}, 896')
        srd(A, sO, S * D * 4)
        A(f'''s_cmp_eq_u32 {s(wm)}, 0
s_cselect_b32 {s(sM)}, s44, s46
s_cselect_b32 {s(sM+1)}, s45, s47
s_cmp_ge_u32 {s(rt)}, 21
s_cselect_b32 s48, s50, s48
s_cselect_b32 s49, s51, s49
s_cmp_eq_u32 {s(role)}, 1
s_cselect_b32 {s(sM)}, s48, {s(sM)}
s_cselect_b32 {s(sM+1)}, s49, {s(sM+1)}
s_cmp_ge_u32 {s(role)}, 2
s_cselect_b32 {s(sM)}, s54, {s(sM)}
s_cselect_b32 {s(sM+1)}, s55, {s(sM+1)}
s_mov_b32 {s(sM+2)}, {D*D*2}
s_cselect_b32 {s(sM+2)}, {D*2}, {s(sM+2)}
s_cmp_eq_u32 {s(role)}, 3
s_cselect_b32 {s(sM+2)}, 0, {s(sM+2)}
s_mov_b32 {s(sM+3)}, 0x20000
s_lshl_b32 {s(st)}, {s(wave)}, 14
s_add_u32 {s(st)}, {s(st)}, {L_M}
s_mov_b32 m0, {s(st)}
s_lshl_b32 {s(st+3)}, {s(sl)}, 2
s_add_u32 {s(st+3)}, {s(st+3)}, {s(wave)}
s_mul_i32 {s(s_m1)}, {s(st+3)}, {28*1024}
s_add_u32 {s(s_m1)}, {s(s_m1)}, {WM1}
s_mul_i32 {s(s_sk)}, {s(st+3)}, {14*1024}
s_add_u32 {s(s_sk)}, {s(s_sk)}, {WSK}
s_lshl_b32 {s(st+3)}, {s(st+3)}, 5
s_lshl_b32 {s(s_wc)}, {s(sl)}, 1
s_add_u32 {s(s_wc)}, {s(s_wc)}, {s(kh)}
s_lshl_b32 {s(s_wc)}, {s(s_wc)}, 1
s_add_u32 {s(s_wc)}, {s(s_wc)}, {s(wm)}
s_mul_i32 {s(s_wc)}, {s(s_wc)}, {28*1024}
s_add_u32 {s(s_wc)}, {s(s_wc)}, {WC}
v_lshl_add_u32 v5, {v(l15)}, 1, {s(st+3)}
s_min_u32 {s(st)}, {s(rt)}, 13
s_lshl_b32 {s(st)}, {s(st)}, 6
v_and_b32 v6, 31, {v(lane)}
v_lshl_add_u32 v6, v6, 1, {s(st)}
v_lshlrev_b32 v2, 2, v0
v_mov_b32 v7, -1
s_lshl_b32 {s(st)}, s2, 10
s_add_u32 {s(st)}, {s(st)}, {AGG}''')
        for i in range(16):
            mq.append(('m', f'''v_xor_b32 {v(vt)}, {s(m_xr)}, {v(vmb)}
buffer_load_dwordx4 {v(vt)}, {s(sM,4)}, {s(m_off)} offen lds
s_add_u32 m0, m0, 1024
s_add_u32 {s(m_off)}, {s(m_off)}, {s(m_step)}
s_add_u32 {s(m_xr)}, {s(m_xr)}, {s(m_dx)}'''))
        A.t('pf', f'buffer_store_dword v7, v2, {s(sW,4)}, {s(st)} offen sc1')
        if 'ca0' in NOD:
            pf = f'buffer_store_dwordx4 v[248:251], {v(VL16)}, {s(sW,4)}, {s(st+1)} offen'
            mq.insert(0, ('pf', pf + ' offset:1024 sc1'))
            mq.insert(0, ('pf', pf + ' sc1'))
        for r, sr in ((lre, 40), (lim, 42), (ldt, 52), (hd, 54)):
            A.t('lam', f'global_load_ushort {v(r)}, v5, {s(sr,2)}')
        for r, sr in ((mre, 40), (mim, 42), (mdt, 52)):
            A.t('lam', f'global_load_ushort {v(r)}, v6, {s(sr,2)}')
    gen_q(A, QA, vj, vd0, math.sqrt(1.0 / 448), CH, TM, sinv, s448, hook=memstart)
    A.bg(64)
    A(f'''s_lshl_b32 {s(st)}, {s(wave)}, 12
s_add_u32 {s(st)}, {s(st)}, {L_XRED}
s_xor_b32 {s(st+1)}, {s(st)}, 4096
v_add_u32 {v(rw)}, {s(st)}, {v(VL16)}
v_add_u32 {v(rr)}, {s(st+1)}, {v(VL16)}
v_and_b32 {v(ga_)}, 31, {v(lane)}
v_lshrrev_b32 {v(gt_)}, 5, {v(lane)}
v_xor_b32 {v(gt_)}, {v(gt_)}, {v(l15)}
v_lshlrev_b32 {v(gt_)}, 4, {v(gt_)}
v_lshl_add_u32 {v(ga_)}, {v(ga_)}, 10, {v(gt_)}
v_cmp_eq_u32 s[44:45], 1, {v(g)}
v_cmp_eq_u32 s[46:47], 2, {v(g)}
v_cmp_eq_u32 s[48:49], 3, {v(g)}''')
    A(f'''v_mov_b32 v248, -1
v_mov_b32 v249, -1
v_mov_b32 v250, -1
v_mov_b32 v251, -1
s_lshl_b32 {s(st+1)}, s2, 2
s_add_u32 {s(st+1)}, {s(st+1)}, {s(wave)}
s_lshl_b32 {s(st+1)}, {s(st+1)}, 11
s_add_u32 {s(st+1)}, {s(st+1)}, {ZB}''')
    A('v_mov_b32 v244, 0')
    pstamp(A, 'qgen')
    A.wait_vm('x')
    A('s_barrier')
    pstamp(A, 'xin')
    zr = (ta_, ia_, 5, 6)
    A.fq = capture(col_tables1, lambda B: zepi_setup(B, zr, 128, ZC, SSQ0))
    A.bgq = mq
    gemm_rows(A, NF0)
    pstamp(A, 'xgemm')
    ksplit_reduce(A, X0, X1, rw, rr, XB, True)
    gload = f's_load_dword {s(s_k)}, {s(sD,2)}, 0\ns_load_dword {s(m_xr)}, {s(sD,2)}, 128'
    A(gload)
    def gate():
        lab = A.label('gate')
        A.track = False
        A(f'''s_add_u32 {s(s_k)}, {s(s_k)}, {s(m_xr)}
s_cmp_ge_u32 {s(s_k)}, {NA}
s_cbranch_scc1 {lab}_d
v_and_b32 v2, 1, {v(lane)}
v_lshlrev_b32 v2, 7, v2
s_mov_b32 {s(s_k)}, 0
{lab}:
global_load_dword v7, v2, {s(sD,2)} sc1
s_add_u32 {s(s_k)}, {s(s_k)}, 1
s_cmp_gt_u32 {s(s_k)}, {SPIN}
s_cbranch_scc1 {lab}_d
s_waitcnt vmcnt(0)
v_cmp_gt_u32 vcc, {NA//2}, v7
s_cbranch_vccnz {lab}
{lab}_d:''')
        A.track = True
    zepi(A, X0, X1, XB, zr, 128, gate)
    pstamp(A, 'stored')
    tab2 = capture(col_tables2)
    for ln in tab2[:NT2]: A(ln)
    tab3 = tab2[NT2:]; tab2 = []
    lr, li, t0, t1, gr, gi = range(238, 244)
    lam_calc(A, mre, mim, mdt, lr, li, t0, t1)
    A(f"""v_subrev_f32 {v(lr)}, 1.0, {v(lr)}
v_mul_f32 {v(t0)}, {v(mre)}, {v(mre)}
v_fmac_f32 {v(t0)}, {v(mim)}, {v(mim)}
v_rcp_f32 {v(t0)}, {v(t0)}
v_mul_f32 {v(gr)}, {v(lr)}, {v(mre)}
v_fmac_f32 {v(gr)}, {v(li)}, {v(mim)}
v_mul_f32 {v(gi)}, {v(li)}, {v(mre)}
v_fma_f32 {v(gi)}, -{v(lr)}, {v(mim)}, {v(gi)}
v_mul_f32 {v(gr)}, {v(gr)}, {v(t0)}
v_mul_f32 {v(gi)}, {v(gi)}, {v(t0)}
v_add_u32 {v(ga_)}, {L_M}, {v(ga_)}""")
    sig0 = None
    if True:
        pstamp(A, 'tab2')
        signal16(A, 'st', F_P0)
        pstamp(A, 'sig0')
    else:
        A.wait_vm('m')
        A('s_barrier')
        pstamp(A, 'tab2')
        pstamp(A, 'sig0')
        vm0 = list(A.vm)
        def sig0():
            A.vm = list(vm0)
            signal16(A, 'st', F_P0)
            A.track = False
            if STAMPS == 1 and 'sig0' in NAMES: A(f's_memrealtime {s(60+2*NAMES.index("sig0"),2)}')
    A.track = False
    A(f's_cmp_eq_u32 {s(role)}, 1\ns_cbranch_scc1 KM_m2\ns_cmp_eq_u32 {s(role)}, 3\ns_cbranch_scc1 KM_none')
    P0 = poll16(F_P0)
    A.fq = tab2 + f"""v_bfe_u32 v244, {v(lane)}, 4, 1
v_mul_u32_u24 v244, {28*1024}, v244
v_lshrrev_b32 v245, 5, {v(lane)}
v_lshl_add_u32 v244, v245, 8, v244
v_lshl_add_u32 v244, {v(l15)}, 4, v244
s_mul_i32 {s(st+2)}, {s(rt)}, 28
s_lshl_b32 {s(st+1)}, {s(sl)}, 1
s_add_u32 {s(st+2)}, {s(st+2)}, {s(st+1)}
s_add_u32 {s(st+2)}, {s(st+2)}, {s(wm)}
s_lshl_b32 {s(st+2)}, {s(st+2)}, 11
s_lshl_b32 {s(st+1)}, {s(kh)}, 9
s_add_u32 {s(st+2)}, {s(st+2)}, {s(st+1)}
s_add_u32 {s(m_off)}, {s(st+2)}, {WM1}
s_lshr_b32 {s(m_step)}, {s(rt)}, 1
s_lshl_b32 {s(m_step)}, {s(m_step)}, 10
s_add_u32 {s(m_step)}, {s(m_step)}, {F_M1}""".split('\n')
    gemm_rows(A, NF1, lambda: poll_issue(A, P0))
    A('s_branch KM_join')
    E = A; A = Asm(); A.track = False; A.nlabel = 1000
    A(f's_cmp_eq_u32 {s(role)}, 3\ns_cbranch_scc1 KM_en')
    ksplit_reduce(A, X0, X1, rw, rr, XB, True)
    A(f's_cmp_eq_u32 {s(role)}, 1\ns_cbranch_scc1 KM_e2')
    A(f"""s_cmp_eq_u32 {s(role)}, 2
s_cbranch_scc1 KM_d
s_or_b32 {s(st+1)}, {s(sl)}, {s(wave)}
s_cmp_lg_u32 {s(st+1)}, 0
s_cbranch_scc1 KM_nodc
v_cmp_gt_u32 vcc, 32, {v(lane)}
v_cndmask_b32 {v(X0+1)}, {v(X0+1)}, 0, vcc
v_cndmask_b32 {v(X1+1)}, {v(X1+1)}, 0, vcc
KM_nodc:""")
    o = XB + 16
    G = v(gr, 2)
    for i, r in enumerate((0, 2, 8, 10)):
        A(f'v_pk_mul_f32 {v(o+2*i,2)}, {v(X0+r,2)}, {G} op_sel_hi:[1,0]\nv_pk_mul_f32 {v(o+8+2*i,2)}, {v(X1+r,2)}, {G} op_sel_hi:[1,0]')
    for i, r in enumerate((0, 2, 8, 10)):
        A(f'v_pk_fma_f32 {v(o+2*i,2)}, {v(X1+r,2)}, {G}, {v(o+2*i,2)} op_sel:[0,1,0] op_sel_hi:[1,1,1] neg_lo:[1,0,0] neg_hi:[1,0,0]')
        A(f'v_pk_fma_f32 {v(o+8+2*i,2)}, {v(X0+r,2)}, {G}, {v(o+8+2*i,2)} op_sel:[0,1,0] op_sel_hi:[1,1,1]')
    for i in range(8):
        A(f'v_cvt_pk_bf16_f32 {v(XB+i)}, {v(o+2*i)}, {v(o+2*i+1)}')
    A(f"""buffer_store_dwordx4 {v(XB,4)}, v244, {s(sW,4)}, {s(m_off)} offen sc1
buffer_store_dwordx4 {v(XB+4,4)}, v244, {s(sW,4)}, {s(m_off)} offen offset:1024 sc1
s_branch KM_en
KM_d:
v_lshrrev_b32 v244, 1, {v(lane)}
s_lshl_b32 {s(st)}, {s(sl)}, 8
s_lshl_b32 {s(st+1)}, {s(wm)}, 7
s_add_u32 {s(st)}, {s(st)}, {s(st+1)}
s_lshl_b32 {s(st+1)}, {s(kh)}, 5
s_add_u32 {s(st)}, {s(st)}, {s(st+1)}
s_add_u32 {s(st)}, {s(st)}, {ZD}
s_mov_b32 {s(m_step)}, {F_ZD}
s_mov_b32 exec_lo, 1
s_mov_b32 exec_hi, 1
buffer_store_dwordx4 {v(X0,4)}, v244, {s(sW,4)}, {s(st)} offen sc1
buffer_store_dwordx4 {v(X0+8,4)}, v244, {s(sW,4)}, {s(st)} offen offset:64 sc1
s_mov_b64 exec, -1
s_branch KM_en""")
    A, E = E, A
    a0, a1 = 244, 245
    A(f"""KM_m2:
v_bfe_u32 {v(a0)}, {v(lane)}, 2, 2
v_lshrrev_b32 {v(a1)}, 5, {v(lane)}
v_lshl_add_u32 {v(a1)}, {v(a1)}, 3, {v(a0)}
v_lshlrev_b32 {v(a1)}, 7, {v(a1)}
v_lshrrev_b32 {v(a0)}, 1, {v(a0)}
v_lshl_add_u32 {v(a1)}, {v(a0)}, 6, {v(a1)}
v_bfe_u32 {v(a0)}, {v(lane)}, 1, 1
v_xor_b32 {v(a0)}, {s(kh)}, {v(a0)}
v_lshl_add_u32 {v(a1)}, {v(a0)}, 5, {v(a1)}
v_bfe_u32 {v(a0)}, {v(lane)}, 4, 1
v_lshl_add_u32 {v(a1)}, {v(a0)}, 4, {v(a1)}
v_and_b32 {v(a0)}, 1, {v(lane)}
v_lshl_add_u32 {v(a1)}, {v(a0)}, 3, {v(a1)}
s_lshl_b32 {s(st)}, {s(kh)}, 15
s_add_u32 {s(st)}, {s(st)}, {L_M}
v_add_u32 {v(a0)}, {s(st)}, {v(a1)}
v_xor_b32 {v(a1)}, 64, {v(a0)}""")
    def rd2(k):
        b = XB + 8 * (k % 4)
        for mt in range(2):
            for hf in range(2):
                A(f'ds_read_b64_tr_b16 {v(b+4*mt+2*hf,2)}, {v(a0+mt)} offset:{k*2048+(2048 if k >= 7 else 0)+hf*512}')
    A.fq = tab2 + f"""v_xor_b32 {v(rr)}, 0x80, {v(rr)}
s_min_u32 {s(st+2)}, {s(rt)}, 21
s_lshr_b32 {s(st+2)}, {s(st+2)}, 0
s_sub_u32 {s(st+2)}, {s(st+2)}, 14
s_mul_i32 {s(st+2)}, {s(st+2)}, 37
s_lshr_b32 {s(st+2)}, {s(st+2)}, 8
s_mul_i32 {s(st+1)}, {s(st+2)}, 7
s_add_u32 {s(st+1)}, {s(st+1)}, 14
s_sub_u32 {s(st+1)}, {s(rt)}, {s(st+1)}
s_lshl_b32 {s(st)}, {s(sl)}, 1
s_add_u32 {s(st)}, {s(st)}, {s(st+2)}
s_lshl_b32 {s(st)}, {s(st)}, 1
s_add_u32 {s(st)}, {s(st)}, {s(wm)}
s_mul_i32 {s(st)}, {s(st)}, 28
s_lshl_b32 {s(st+1)}, {s(st+1)}, 2
s_add_u32 {s(st)}, {s(st)}, {s(st+1)}
s_add_u32 {s(st)}, {s(st)}, {s(kh)}
s_lshl_b32 {s(st)}, {s(st)}, 10
s_add_u32 {s(m_off)}, {s(st)}, {WC}
s_lshl_b32 {s(m_step)}, {s(sl)}, 10
s_add_u32 {s(m_step)}, {s(m_step)}, {F_M2}""".split('\n')
    gemm(A, rd2, 4, lambda k, i: f'{v(XB+8*(k%4)+4*i,4)}, {v(QA+4*k,4)}', NF1, lambda: poll_issue(A, P0))
    A('s_branch KM_join')
    A, E = E, A
    A('KM_e2:')
    for mt, T in enumerate((X0, X1)):
        for i, r in enumerate((0, 2, 8, 10)):
            A(f'v_cvt_pk_bf16_f32 {v(XB+16+4*mt+i)}, {v(T+r)}, {v(T+r+1)}')
    A(f"""buffer_store_dwordx4 {v(XB+16,4)}, {v(VL16X)}, {s(sW,4)}, {s(m_off)} offen sc1
buffer_store_dwordx4 {v(XB+20,4)}, {v(VL16X)}, {s(sW,4)}, {s(m_off)} offen offset:2048 sc1
KM_en:""")
    A, E = E, A
    A('KM_none:')
    poll_issue(A, P0)
    A(f's_mov_b32 {s(m_step)}, {F_NO}\nKM_join:')
    A.track = True
    pstamp(A, 'mgemm')
    A.vm = []
    ck = 246
    def mid0():
        for i, r in enumerate((sAG0, sAG1)):
            A(f's_add_u32 {s(r)}, s4, {AGG + i*AGG_L}\ns_addc_u32 {s(r+1)}, s5, 0')
            srd(A, r, AGG_L)
        A(f"""s_mov_b32 {s(s_redo)}, 0
s_lshl_b32 {s(st+2)}, {s(sl)}, 12
s_add_u32 {s(s_wc)}, {s(s_wc)}, {s(st+2)}
s_mov_b32 {s(s_wce)}, {s(s_wc)}
s_lshl_b32 {s(st+2)}, {s(sl)}, 10
s_and_b32 {s(st+3)}, s2, 7
s_lshl_b32 {s(st+3)}, {s(st+3)}, 7
s_add_u32 {s(st+2)}, {s(st+2)}, {s(st+3)}
s_add_u32 {s(st+2)}, {s(st+2)}, {F_M1}
v_mul_u32_u24 {v(ck)}, {F_M2 - F_M1}, {v(lane)}
v_add_u32 {v(ck)}, {s(st+2)}, {v(ck)}
v_mov_b32 {v(ck+1)}, 56""")
    poll_check(A, 0)
    A(col_poll_pre(ZC, SSQ0))
    cw = 250
    def mid1():
        A(f"""s_and_b32 {s(st)}, s2, 15
s_lshl_b32 {s(st)}, {s(st)}, 2
s_add_u32 {s(st)}, {s(st)}, {s(wave)}
s_lshl_b32 {s(st)}, {s(st)}, 7
s_add_u32 {s(st)}, {s(st)}, {F_W}
v_mov_b32 {v(cw)}, {s(st)}
v_mov_b32 {v(cw+1)}, {NA}""")
        chk_issue(A, cw, 1)
        A.lines.extend(E.lines)
        pstamp(A, 'mdone')
        mid0()
        for ln in tab3: A(ln)
        A(f'v_mov_b32 {v(CT+2)}, {f2u(1e-5*2048.0*2048.0)}')
    col_poll(A, ZC, SSQ0, mid1)
    lab = A.label('cw')
    A(f's_waitcnt vmcnt(2)\ns_cmp_lg_u32 {s(role)}, 3\ns_cbranch_scc1 {lab}\ns_waitcnt vmcnt(0)\n{lab}:')
    A.vm = []
    WL = int(os.environ.get('WL', '0'))
    if not WL:
        chk_wait(A, cw, st + 5, 1); col_wload(A, st + 5)
    def hook(i):
        if i == 0 and WL:
            chk_wait(A, cw, st + 5, 1); col_wload(A, st + 5)
        if i == MS:
            A(f"""s_waitcnt vmcnt({len(A.vm)})
v_mov_b32 v5, 1
v_lshlrev_b32 v6, 7, {v(lane)}
s_mov_b64 exec, 0xff
buffer_atomic_add v5, v6, {s(sW,4)}, {s(m_step)} offen sc1
s_mov_b64 exec, -1""")
        if i == MH: chk_issue(A, ck)
        if i == MH + MD:
            chk_wait(A, ck, st + 5); q_m1(A)
    col_compute(A, ZB, True, hook)
    def pre(i):
        if i == 0 and MH + MD > 4:
            chk_wait(A, ck, st + 5); q_m1(A); A.bg(NDX)
    ce, cp = 170, 176
    def shook(ks):
        if ks == -1:
            A(f'''s_and_b32 {s(st)}, s2, 15
s_lshl_b32 {s(st)}, {s(st)}, 2
s_add_u32 {s(st)}, {s(st)}, {s(wave)}
s_lshl_b32 {s(st)}, {s(st)}, 7
s_add_u32 {s(st)}, {s(st)}, {gen_p.F_CE}
v_mov_b32 {v(ce)}, {s(st)}
v_mov_b32 {v(ce+1)}, 28''')
        if ks == 100 and 'cb' in NOD:
            A(f'v_add_u32 {v(cp)}, {gen_p.F_PF1 - gen_p.F_CE}, {v(ce)}\nv_mov_b32 {v(cp+1)}, {NA}')
        if ks == 102 and 'cb' in NOD: chk_issue(A, cp, 1)
        if ks == 101 and 'cb' in NOD: chk_wait(A, cp, st + 5, 1)
        if ks == CEK - 4: chk_issue(A, ce, 1)
        if ks == CEK:
            chk_wait(A, ce, st + 5, 1)
            rest = A.bgq; A.bgq = []; q_sk(A, WSC); A.bgq += rest
    layers(A, lre, lim, ldt, pre, shook)
    kend(A)

    A('KP_aux:')
    A.track = False
    sI, sI2 = 8, 12
    arr, w4, gq, hf, u = 41, 23, 24, 42, 27
    ld_ptr(A, sI, A_WR); ld_ptr(A, sI2, A_WI)
    A(f'''v_and_b32 {v(lane)}, 63, v0
v_lshrrev_b32 v2, 6, v0
v_readfirstlane_b32 {s(wave)}, v2
s_sub_u32 {s(u)}, s2, 224
s_and_b32 {s(hf)}, {s(u)}, 1
s_bfe_u32 {s(arr)}, {s(u)}, 0x10001
s_bfe_u32 {s(w4)}, {s(u)}, 0x20002
s_lshr_b32 {s(gq)}, {s(u)}, 4
s_lshl_b32 {s(st)}, {s(gq)}, 3
s_lshl_b32 {s(st+1)}, {s(wave)}, 1
s_add_u32 {s(st)}, {s(st)}, {s(st+1)}
s_lshl_b32 {s(st)}, {s(st)}, 2
s_add_u32 {s(st)}, {s(st)}, {s(w4)}
s_lshl_b32 {s(st)}, {s(st)}, 1
s_add_u32 {s(st)}, {s(st)}, {s(hf)}
s_mul_i32 {s(st+2)}, {s(st)}, 3600
s_lshl_b32 {s(st)}, {s(wave)}, 13
s_mov_b32 m0, {s(st)}
v_lshlrev_b32 v2, 4, {v(lane)}
v_lshlrev_b32 v3, 4, v0
v_mov_b32 v8, 0
v_mov_b32 v9, 0
v_mov_b32 v10, 0
v_mov_b32 v11, 0
s_lshl_b32 {s(st)}, {s(u)}, 13
s_add_u32 {s(st)}, {s(st)}, {FLAGS}
s_add_u32 {s(st+1)}, {s(st)}, 4096
s_waitcnt lgkmcnt(0)
s_cmp_eq_u32 {s(arr)}, 0
s_cselect_b32 {s(sI)}, {s(sI)}, {s(sI2)}
s_cselect_b32 {s(sI+1)}, {s(sI+1)}, {s(sI2+1)}''')
    srd(A, sI, S * 450); srd_ws(A, sW)
    A(f'buffer_store_dwordx4 v[8:11], v3, {s(sW,4)}, {s(st)} offen sc1\nbuffer_store_dwordx4 v[8:11], v3, {s(sW,4)}, {s(st+1)} offen sc1')
    NG = int(os.environ.get('NG', '1'))
    def agate():
        if STAMPS == 1: A('s_memrealtime s[76:77]')
        A(f'''s_waitcnt vmcnt({NG})
{'s_memrealtime s[78:79]' if STAMPS == 1 else ''}
s_barrier
s_cmp_lg_u32 {s(wave)}, 0
s_cbranch_scc1 KM_ag
v_mov_b32 v12, 1
s_lshr_b32 {s(st)}, {s(u)}, 4
s_lshl_b32 {s(st)}, {s(st)}, 7
v_mov_b32 v13, {s(st)}
s_mov_b64 exec, 1
global_atomic_add v13, v12, {s(sD,2)} sc1
s_mov_b64 exec, -1
KM_ag:''')
    n = 0
    if NG == 0: agate()
    for un in range(2):
        for e in range(2):
            for i in range(4):
                A(f'buffer_load_dwordx4 v2, {s(sI,4)}, {s(st+2)} offen offset:{i*1024} lds')
                n += 1
                if n == NG: agate()
            if e == 0: A(f's_add_u32 m0, m0, 4096\ns_add_u32 {s(st+2)}, {s(st+2)}, {4*7200}')
        if un == 0: A(f's_add_u32 m0, m0, {32768-4096}\ns_add_u32 {s(st+2)}, {s(st+2)}, {128*3600-4*7200}')
    A(f'''
v_and_b32 v3, 7, {v(lane)}
v_mul_u32_u24 v4, 450, v3
v_lshrrev_b32 v5, 3, v0
v_lshl_add_u32 v4, v5, 1, v4
v_add_u32 v6, 448, v4
v_cmp_eq_u32 vcc, 0, v5
v_cndmask_b32 v6, v4, v6, vcc
v_lshlrev_b32 v5, 13, v5
v_lshl_add_u32 v5, v3, 4, v5
s_lshl_b32 {s(st)}, {s(w4)}, 1
s_add_u32 {s(st)}, {s(st)}, {s(arr)}
s_lshl_b32 {s(st)}, {s(st)}, 10
s_lshl_b32 {s(st+1)}, {s(gq)}, 8
s_add_u32 {s(st)}, {s(st)}, {s(st+1)}
s_lshl_b32 {s(st+1)}, {s(hf)}, 7
s_add_u32 {s(st)}, {s(st)}, {s(st+1)}
s_add_u32 {s(st)}, {s(st)}, {WF}
s_mov_b32 {s(st+3)}, 0
s_waitcnt vmcnt(8)
s_barrier''')
    if STAMPS == 1: A('s_memrealtime s[62:63]')
    A(f's_lshr_b32 {s(st+4)}, {s(u)}, 3\ns_mul_i32 {s(st+4)}, {s(st+4)}, {PF_PART}\ns_add_u32 {s(st+4)}, {s(st+4)}, {PF_START}')
    prefetch_code(A, 'km_kernel', PF_PART, 2, 44, 72, st + 4)
    A('KM_wt:')
    def wt_fin(it):
        b = 16 + 8 * (it % 2)
        o = 32 + 4 * it
        for i in range(4):
            A(f'v_or_b32 {v(o+i)}, {v(b+2*i)}, {v(b+2*i+1)}')
        A(f'buffer_store_dwordx4 {v(o,4)}, v5, {s(sW,4)}, {s(st)} offen sc1\ns_add_u32 {s(st)}, {s(st)}, {32*8192}')
    for it in range(7):
        b = 16 + 8 * (it % 2)
        for e in range(8):
            A(f'ds_read_u16{"_d16_hi" if e & 1 else ""} {v(b+e)}, {v(6 if it == 0 else 4)} offset:{e*4096+it*64}')
        if it >= 1:
            A('s_waitcnt lgkmcnt(8)')
            wt_fin(it - 1)
    A('s_waitcnt lgkmcnt(0)')
    wt_fin(6)
    A(f'''s_sub_u32 {s(st)}, {s(st)}, {7*32*8192-512}
v_add_u32 v4, 32768, v4
v_add_u32 v6, 32768, v6
s_add_u32 {s(st+3)}, {s(st+3)}, 1
s_waitcnt vmcnt({7 + (PF_PART + 4095) // 4096})
s_barrier
s_cmp_lt_u32 {s(st+3)}, 2
s_cbranch_scc1 KM_wt
{gload}
s_waitcnt lgkmcnt(0)''')
    if STAMPS == 1: A('s_memrealtime s[64:65]')
    gate()
    A.track = False
    A(f's_mov_b32 {s(st+1)}, {F_W}')
    signal(A, None, st + 1, 64, 128)
    A.track = False
    def astamp():
        if STAMPS != 1: return
        A('s_memrealtime s[100:101]\ns_waitcnt lgkmcnt(0)')
        for i in range(21): A(f'v_mov_b32 {v(8+i)}, {s(60+2*i)}')
        A(f'v_lshrrev_b32 v5, 6, v0\nv_lshlrev_b32 v5, 7, v5\ns_lshl_b32 s59, s2, 9\ns_add_u32 s59, s59, {STAMP + 131072}')
        for i in range(6): A(f'buffer_store_dwordx4 {v(8+4*i,4)}, v5, {s(sW,4)}, s59 offen offset:{16*i}')
    if STAMPS == 1: A('s_memrealtime s[72:73]')
    def zd_wait():
        A.track = True
        poll(A, f's_and_b32 {s(st)}, s2, 7\ns_lshl_b32 {s(st)}, {s(st)}, 7\ns_add_u32 {s(st)}, {s(st)}, {F_ZD}\nv_mov_b32 v5, {s(st)}\nv_mov_b32 v6, 28\ns_mov_b64 s[50:51], 1')
        A.track = False
    aux_tail(A, zd_wait, astamp)
    return A.render()

def main():
    txt = build([('km', km(), 256, 256)], [('km', 224 + NA, LDS_BYTES)])
    txt = txt.replace('.amdhsa_next_free_sgpr 96', '.amdhsa_next_free_sgpr 102')
    fn = sys.argv[1]
    open(fn, 'w').write(txt)
    if PROBE: print(list(enumerate(NAMES)))
    if STAMPS == 1: open(fn + '.names', 'w').write(' '.join(NAMES))

if __name__ == '__main__':
    main()
```

```python
import sys
sys.path.insert(0, 'dev')
import gen, gen_p
from gen import *
from gen_p import *

K = 1024
F_P0 = FLAGS
gen_p.F_CA[0], gen_p.F_CA[1] = FLAGS + 32 * K, FLAGS + 96 * K
gen_p.F_CC = FLAGS + 64 * K
gen_p.F_CB[0], gen_p.F_CB[1] = FLAGS + 128 * K, FLAGS + 132 * K
F_W = FLAGS + 184 * K
gen_p.F_CE, gen_p.F_CD = FLAGS + 176 * K, FLAGS + 140 * K
F_M1, F_M2, F_ZD, F_NO = FLAGS + 144 * K, FLAGS + 151 * K, FLAGS + 158 * K, FLAGS + 159 * K
SSQ0 = FLAGS + 160 * K
gen_p.SSQ2 = FLAGS + 168 * K
gen_p.F_PF1, gen_p.F_PF2, gen_p.F_PF3 = FLAGS + 192 * K, FLAGS + 136 * K, FLAGS + 200 * K
gen_p.F_PF4 = FLAGS + 204 * K
NA = 32
L_XRED, L_M = 65536, 81920
QA, X0, X1, XB, CH, TM = 8, 64, 144, 190, 80, 112
vj, vd0, vt, vmb, rw, rr, ga_, gt_, ta_, ia_ = 120, 121, 2, 222, 223, 224, 225, 226, 227, 229
lre, lim, ldt = 232, 233, 234
mre, mim, mdt = 235, 236, 237
sX, sM, sD = 8, 12, 56
sinv, s448, m_off, m_step, m_xr, m_dx, role, s_k = 34, 35, 36, 37, 38, 39, 59, 33
KSIG = int(os.environ.get('KSIG', '8'))
NF0 = int(os.environ.get('NF0', '1')); NF1 = int(os.environ.get('NF1', '3'))
NDX = int(os.environ.get('NDX', '6'))
MS = int(os.environ.get('MS', '0'))
XPF = int(os.environ.get('XPF', '1'))
MPF = int(os.environ.get('MPF', '1'))
PI0 = int(os.environ.get('PI0', '0')); MD = int(os.environ.get('MD', '2')); NT2 = int(os.environ.get('NT2', '86'))
HEAD_BYTES = int(os.environ.get('HB_', '12288')); PF_START = 8192; PF_PART = 12288

def gemm(A, rd, nrd, mf, nf, mid=None):
    for k in range(3): rd(k)
    for k in range(14):
        if mid and k == KSIG: mid()
        if k + 3 < 14: rd(k + 3)
        A(f's_waitcnt lgkmcnt({nrd*min(3, 13-k)})')
        for i, T in enumerate((X0, X1)):
            A(f'v_mfma_f32_32x32x16_bf16 {v(T,16)}, {mf(k, i)}, {v(T,16) if k else 0}')
            A.fill(nf)
            if i == 0 or k < 4: A.bg(1)
    A.fill(999)

def gemm_rows(A, nf, mid=None):
    A(f's_mul_i32 {s(s_k)}, {s(kh)}, 448')
    def rd(k):
        b = XB + 8 * (k % 4)
        A(f'v_xor_b32 {v(gt_)}, {s(s_k)}, {v(ga_)}\ns_add_u32 {s(s_k)}, {s(s_k)}, 32')
        A(f'ds_read_b128 {v(b,4)}, {v(gt_)}\nds_read_b128 {v(b+4,4)}, {v(gt_)} offset:32768')
    gemm(A, rd, 2, lambda k, i: f'{v(QA+4*k,4)}, {v(XB+8*(k%4)+4*i,4)}', nf, mid)

CEK = int(os.environ.get('CEK', '9'))
def chk_issue(A, r, mask=3):
    A(f'v_mov_b32 {v(r+2)}, 0\ns_mov_b64 exec, {mask}')
    A.t('chk', f'buffer_atomic_or {v(r+2)}, {v(r)}, {s(sW,4)}, 0 offen sc0 sc1')
    A('s_mov_b64 exec, -1')

def chk_wait(A, r, cnt, mask=3):
    lab = A.label('chk')
    A(f's_mov_b32 {s(cnt)}, 0\ns_mov_b64 exec, {mask}')
    A.wait_vm('chk')
    A.track = False
    A(f'''{lab}:
v_cmp_gt_u32 vcc, {v(r+1)}, {v(r+2)}
s_add_u32 {s(cnt)}, {s(cnt)}, 1
s_cbranch_vccz {lab}_d
s_cmp_gt_u32 {s(cnt)}, {SPIN}
s_cbranch_scc1 {lab}_d
v_mov_b32 {v(r+2)}, 0
buffer_atomic_or {v(r+2)}, {v(r)}, {s(sW,4)}, 0 offen sc0 sc1
s_waitcnt vmcnt(0)
s_branch {lab}
{lab}_d:
s_mov_b64 exec, -1''')
    A.track = True

def km():
    A = Asm()
    gen.KSTAMP = False
    A(f's_cmp_ge_u32 s2, {224+NA}\ns_cbranch_scc1 KP_exit')
    pstamp(A, 'entry')
    ld_ptr(A, sW, WS); ld_ptr(A, sD, DBG)
    A('s_cmp_ge_u32 s2, 224\ns_cbranch_scc1 KP_aux')
    ld_ptr(A, sX, A_X); ld_ptr(A, sO, OUT)
    A(f's_load_dwordx8 s[40:47], s[0:1], {L_RE*8}\ns_load_dwordx8 s[48:55], s[0:1], {C_RE*8}')
    A(f"s_cmp_ge_u32 s2, {os.environ.get('NPF', '8')}\ns_cbranch_scc1 KM_nopf")
    A.track = False
    prefetch_code(A, 'km_kernel', HEAD_BYTES, 2, 28, 240)
    A.track = True
    A(f'''KM_nopf:
v_and_b32 {v(lane)}, 63, v0
v_lshrrev_b32 v2, 6, v0
v_readfirstlane_b32 {s(wave)}, v2
v_and_b32 {v(l15)}, 15, {v(lane)}
v_lshrrev_b32 {v(g)}, 4, {v(lane)}
v_lshlrev_b32 {v(VL16)}, 4, {v(lane)}
s_and_b32 {s(kh)}, {s(wave)}, 1
s_lshr_b32 {s(wm)}, {s(wave)}, 1
s_lshl_b32 {s(st)}, {s(kh)}, 7
v_xor_b32 {v(VL16X)}, {s(st)}, {v(VL16)}
s_cmp_eq_u32 s2, 0
s_cselect_b32 {s(sim)}, 0, 1.0''')
    tile_ids(A, rt, sl, st)
    A(f'''s_lshl_b32 {s(st+2)}, {s(rt)}, 2
s_add_u32 {s(st+2)}, {s(st+2)}, {s(wave)}
s_mul_i32 {s(st+2)}, {s(st+2)}, {16*896}
s_lshl_b32 {s(st)}, {s(wave)}, 14
s_mov_b32 m0, {s(st)}
s_min_u32 {s(role)}, {s(rt)}, 29
s_sub_u32 {s(role)}, {s(role)}, 26
s_cmp_lt_u32 {s(rt)}, 28
s_cselect_b32 {s(role)}, 1, {s(role)}
s_cmp_lt_u32 {s(rt)}, 14
s_cselect_b32 {s(role)}, 0, {s(role)}
s_lshl_b32 {s(m_off)}, {s(rt)}, 1
s_add_u32 {s(m_off)}, {s(m_off)}, {s(kh)}
s_mul_i32 {s(m_off)}, {s(m_off)}, {16*896}
s_cmp_ge_u32 {s(rt)}, 21
s_cselect_b32 {s(st+3)}, 21, 14
s_sub_u32 {s(st+3)}, {s(rt)}, {s(st+3)}
s_lshl_b32 {s(st+3)}, {s(st+3)}, 7
s_mul_i32 {s(st+4)}, {s(wave)}, {14*7168}
s_add_u32 {s(st+3)}, {s(st+3)}, {s(st+4)}
s_cmp_eq_u32 {s(role)}, 0
s_cselect_b32 {s(m_off)}, {s(m_off)}, 0
s_cselect_b32 {s(m_step)}, 896, 0
s_cmp_eq_u32 {s(role)}, 1
s_cselect_b32 {s(m_off)}, {s(st+3)}, {s(m_off)}
s_cselect_b32 {s(m_step)}, 7168, {s(m_step)}
s_cselect_b32 {s(m_dx)}, 0, 16
s_cselect_b64 vcc, -1, 0
s_mov_b32 {s(m_xr)}, 0
v_lshrrev_b32 v5, 3, {v(lane)}
v_mul_u32_u24 v5, 896, v5
v_and_b32 v6, 7, {v(lane)}
v_bfe_u32 v7, {v(lane)}, 4, 1
v_lshlrev_b32 v7, 2, v7
v_xor_b32 v6, v6, v7
v_lshl_add_u32 v5, v6, 4, v5
v_cndmask_b32 {v(vmb)}, {v(VL16)}, v5, vcc
s_mov_b32 {s(sinv)}, {f2u(INV448)}
s_mov_b32 {s(s448)}, {f2u(448.0)}''')
    A(f'''v_and_b32 {v(vj)}, 31, {v(lane)}
s_lshl_b32 {s(st)}, {s(sl)}, 6
s_lshl_b32 {s(st+1)}, {s(wm)}, 5
s_add_u32 {s(st)}, {s(st)}, {s(st+1)}
s_lshl_b32 {s(st+1)}, {s(kh)}, 3
v_xor_b32 {v(vj)}, {s(st+1)}, {v(vj)}
v_add_u32 {v(vj)}, {s(st)}, {v(vj)}
v_lshrrev_b32 {v(vd0)}, 5, {v(lane)}
v_lshlrev_b32 {v(vd0)}, 3, {v(vd0)}
s_mul_i32 {s(st)}, {s(kh)}, 224
v_add_u32 {v(vd0)}, {s(st)}, {v(vd0)}
v_cvt_f32_u32 {v(vd0)}, {v(vd0)}''')
    mq = []
    def memstart():
        A(f'''s_mul_i32 {s(st+1)}, {s(rt)}, 7
s_add_u32 {s(st+1)}, {s(st+1)}, {s(sl)}
s_lshl_b32 {s(st+1)}, {s(st+1)}, 1
s_add_u32 {s(st+1)}, {s(st+1)}, {s(kh)}
s_lshl_b32 {s(st+1)}, {s(st+1)}, 11
s_lshl_b32 {s(st+3)}, {s(sl)}, 2
s_add_u32 {s(st+3)}, {s(st+3)}, {s(wave)}
s_mul_i32 {s(st+3)}, {s(st+3)}, {16*896}
s_mul_i32 {s(st)}, {s(wave)}, {14*7168}
s_sub_u32 {s(st)}, {s(m_off)}, {s(st)}
s_add_u32 {s(st+3)}, {s(st+3)}, {s(st)}
s_cmp_eq_u32 {s(role)}, 1
s_cselect_b32 {s(st+1)}, {s(st+3)}, {s(st+1)}
s_cselect_b32 {s(st+3)}, {s(m_step)}, 1024
s_add_u32 {s(st+3)}, {s(st+3)}, {s(st+1)}''')
        A(f"s_mul_i32 {s(st+4)}, {s(rt)}, 7\ns_add_u32 {s(st+4)}, {s(st+4)}, {s(sl)}\ns_lshl_b32 {s(st+4)}, {s(st+4)}, 2\ns_add_u32 {s(st+4)}, {s(st+4)}, {s(wave)}\ns_lshl_b32 {s(st+4)}, {s(st+4)}, 11")
        A('s_waitcnt lgkmcnt(0)')
        srd(A, sX, S * D * 2); srd_ws(A, sW)
        pstamp(A, 'karg')
        srd(A, sO, S * D * 4)
        A(f'''s_cmp_eq_u32 {s(wm)}, 0
s_cselect_b32 {s(sM)}, s44, s46
s_cselect_b32 {s(sM+1)}, s45, s47
s_cmp_ge_u32 {s(rt)}, 21
s_cselect_b32 s48, s50, s48
s_cselect_b32 s49, s51, s49
s_cmp_eq_u32 {s(role)}, 1
s_cselect_b32 {s(sM)}, s48, {s(sM)}
s_cselect_b32 {s(sM+1)}, s49, {s(sM+1)}
s_cmp_ge_u32 {s(role)}, 2
s_cselect_b32 {s(sM)}, s54, {s(sM)}
s_cselect_b32 {s(sM+1)}, s55, {s(sM+1)}
s_mov_b32 {s(sM+2)}, {D*D*2}
s_cselect_b32 {s(sM+2)}, {D*2}, {s(sM+2)}
s_cmp_eq_u32 {s(role)}, 3
s_cselect_b32 {s(sM+2)}, 0, {s(sM+2)}
s_mov_b32 {s(sM+3)}, 0x20000
''')
        if XPF:
            A(f"""buffer_load_dwordx4 v[248:251], {v(VL16)}, {s(sX,4)}, {s(st+4)} offen
buffer_load_dwordx4 v[252:255], {v(VL16)}, {s(sX,4)}, {s(st+4)} offen offset:1024""")
        def mp():
            if MPF:
                A(f'''buffer_load_dwordx4 v[240:243], {v(vmb)}, {s(sM,4)}, {s(st+1)} offen
buffer_load_dwordx4 v[244:247], {v(vmb)}, {s(sM,4)}, {s(st+3)} offen''')
        if MPF == 2: mp()
        for r in range(16):
            if r: A(f'v_xor_b32 {v(vt)}, {16*r}, {v(VL16)}')
            A.t('x', f'buffer_load_dwordx4 {v(vt if r else VL16)}, {s(sX,4)}, {s(st+2)} offen lds')
            if r < 15: A(f's_add_u32 m0, m0, 1024\ns_add_u32 {s(st+2)}, {s(st+2)}, 896')
        if MPF == 1: mp()
        A(f'''s_lshl_b32 {s(st)}, {s(wave)}, 14
s_add_u32 {s(st)}, {s(st)}, {L_M}
s_mov_b32 m0, {s(st)}
s_lshl_b32 {s(st+3)}, {s(sl)}, 2
s_add_u32 {s(st+3)}, {s(st+3)}, {s(wave)}
s_mul_i32 {s(s_m1)}, {s(st+3)}, {28*1024}
s_add_u32 {s(s_m1)}, {s(s_m1)}, {WM1}
s_mul_i32 {s(s_sk)}, {s(st+3)}, {14*1024}
s_add_u32 {s(s_sk)}, {s(s_sk)}, {WSK}
s_lshl_b32 {s(st+3)}, {s(st+3)}, 5
s_lshl_b32 {s(s_wc)}, {s(sl)}, 1
s_add_u32 {s(s_wc)}, {s(s_wc)}, {s(kh)}
s_lshl_b32 {s(s_wc)}, {s(s_wc)}, 1
s_add_u32 {s(s_wc)}, {s(s_wc)}, {s(wm)}
s_mul_i32 {s(s_wc)}, {s(s_wc)}, {28*1024}
s_add_u32 {s(s_wc)}, {s(s_wc)}, {WC}
v_lshl_add_u32 v5, {v(l15)}, 1, {s(st+3)}
s_min_u32 {s(st)}, {s(rt)}, 13
s_lshl_b32 {s(st)}, {s(st)}, 6
v_and_b32 v6, 31, {v(lane)}
v_lshl_add_u32 v6, v6, 1, {s(st)}
''')
        for i in range(16):
            mq.append(('m', f'''v_xor_b32 {v(vt)}, {s(m_xr)}, {v(vmb)}
buffer_load_dwordx4 {v(vt)}, {s(sM,4)}, {s(m_off)} offen lds
s_add_u32 m0, m0, 1024
s_add_u32 {s(m_off)}, {s(m_off)}, {s(m_step)}
s_add_u32 {s(m_xr)}, {s(m_xr)}, {s(m_dx)}'''))
    def memlate():
        A(f'v_lshlrev_b32 v2, 2, v0\nv_mov_b32 v7, -1\ns_lshl_b32 {s(st)}, s2, 10\ns_add_u32 {s(st)}, {s(st)}, {AGG}')
        A.t('pf', f'buffer_store_dword v7, v2, {s(sW,4)}, {s(st)} offen sc1')
        if 'ca0' in NOD:
            pf = f'buffer_store_dwordx4 v[248:251], {v(VL16)}, {s(sW,4)}, {s(st+1)} offen'
            mq.insert(0, ('pf', pf + ' offset:1024 sc1'))
            mq.insert(0, ('pf', pf + ' sc1'))
        for r, sr in ((lre, 40), (lim, 42), (ldt, 52), (hd, 54)):
            A.t('lam', f'global_load_ushort {v(r)}, v5, {s(sr,2)}')
        for r, sr in ((mre, 40), (mim, 42), (mdt, 52)):
            A.t('lam', f'global_load_ushort {v(r)}, v6, {s(sr,2)}')
    gen_q(A, QA, vj, vd0, math.sqrt(1.0 / 448), CH, TM, sinv, s448, hook=memstart)
    A.bg(64)
    A(f'''s_lshl_b32 {s(st)}, {s(wave)}, 12
s_add_u32 {s(st)}, {s(st)}, {L_XRED}
s_xor_b32 {s(st+1)}, {s(st)}, 4096
v_add_u32 {v(rw)}, {s(st)}, {v(VL16)}
v_add_u32 {v(rr)}, {s(st+1)}, {v(VL16)}
v_and_b32 {v(ga_)}, 31, {v(lane)}
v_lshrrev_b32 {v(gt_)}, 5, {v(lane)}
v_xor_b32 {v(gt_)}, {v(gt_)}, {v(l15)}
v_lshlrev_b32 {v(gt_)}, 4, {v(gt_)}
v_lshl_add_u32 {v(ga_)}, {v(ga_)}, 10, {v(gt_)}
v_cmp_eq_u32 s[44:45], 1, {v(g)}
v_cmp_eq_u32 s[46:47], 2, {v(g)}
v_cmp_eq_u32 s[48:49], 3, {v(g)}''')
    A(f'''v_mov_b32 v248, -1
v_mov_b32 v249, -1
v_mov_b32 v250, -1
v_mov_b32 v251, -1
s_lshl_b32 {s(st+1)}, s2, 2
s_add_u32 {s(st+1)}, {s(st+1)}, {s(wave)}
s_lshl_b32 {s(st+1)}, {s(st+1)}, 11
s_add_u32 {s(st+1)}, {s(st+1)}, {ZB}''')
    A.bgq = mq; A.bg(int(os.environ.get('NMQ', '0'))); mq = A.bgq; A.bgq = []
    TQ = int(os.environ.get('TQ', '1'))
    if TQ: col_tables1(A)
    if TQ > 1:
        for ln in capture(col_tables2)[:NT2]: A(ln)
    memlate()
    pstamp(A, 'qgen')
    A.wait_vm('x')
    A('s_barrier')
    pstamp(A, 'xin')
    zr = (ta_, ia_, 5, 6)
    A.fq = ([] if TQ else capture(col_tables1)) + capture(lambda B: zepi_setup(B, zr, 128, ZC, SSQ0))
    A.bgq = mq
    gemm_rows(A, NF0)
    pstamp(A, 'xgemm')
    ksplit_reduce(A, X0, X1, rw, rr, XB, True)
    gload = f's_load_dword {s(s_k)}, {s(sD,2)}, 0\ns_load_dword {s(m_xr)}, {s(sD,2)}, 128'
    A(gload)
    def gate():
        lab = A.label('gate')
        A.track = False
        A(f'''s_add_u32 {s(s_k)}, {s(s_k)}, {s(m_xr)}
s_cmp_ge_u32 {s(s_k)}, {NA}
s_cbranch_scc1 {lab}_d
v_and_b32 v2, 1, {v(lane)}
v_lshlrev_b32 v2, 7, v2
s_mov_b32 {s(s_k)}, 0
{lab}:
global_load_dword v7, v2, {s(sD,2)} sc1
s_add_u32 {s(s_k)}, {s(s_k)}, 1
s_cmp_gt_u32 {s(s_k)}, {SPIN}
s_cbranch_scc1 {lab}_d
s_waitcnt vmcnt(0)
v_cmp_gt_u32 vcc, {NA//2}, v7
s_cbranch_vccnz {lab}
{lab}_d:''')
        A.track = True
    zepi(A, X0, X1, XB, zr, 128, gate)
    pstamp(A, 'stored')
    tab2 = capture(col_tables2)
    for ln in (tab2[:NT2] if TQ < 2 else tab2[NT2:]): A(ln)
    tab3 = tab2[NT2:] if TQ < 2 else []; tab2 = []
    lr, li, t0, t1, gr, gi = range(238, 244)
    A.wait_vm('lam')
    lam_calc(A, mre, mim, mdt, lr, li, t0, t1)
    A(f"""v_subrev_f32 {v(lr)}, 1.0, {v(lr)}
v_mul_f32 {v(t0)}, {v(mre)}, {v(mre)}
v_fmac_f32 {v(t0)}, {v(mim)}, {v(mim)}
v_rcp_f32 {v(t0)}, {v(t0)}
v_mul_f32 {v(gr)}, {v(lr)}, {v(mre)}
v_fmac_f32 {v(gr)}, {v(li)}, {v(mim)}
v_mul_f32 {v(gi)}, {v(li)}, {v(mre)}
v_fma_f32 {v(gi)}, -{v(lr)}, {v(mim)}, {v(gi)}
v_mul_f32 {v(gr)}, {v(gr)}, {v(t0)}
v_mul_f32 {v(gi)}, {v(gi)}, {v(t0)}
v_add_u32 {v(ga_)}, {L_M}, {v(ga_)}""")
    sig0 = None
    if True:
        A('v_mov_b32 v244, 0')
        pstamp(A, 'tab2')
        signal16(A, 'st', F_P0)
        pstamp(A, 'sig0')
    else:
        A.wait_vm('m')
        A('s_barrier')
        pstamp(A, 'tab2')
        pstamp(A, 'sig0')
        vm0 = list(A.vm)
        def sig0():
            A.vm = list(vm0)
            signal16(A, 'st', F_P0)
            A.track = False
            if STAMPS == 1 and 'sig0' in NAMES: A(f's_memrealtime {s(60+2*NAMES.index("sig0"),2)}')
    A.track = False
    A(f's_cmp_eq_u32 {s(role)}, 1\ns_cbranch_scc1 KM_m2\ns_cmp_eq_u32 {s(role)}, 3\ns_cbranch_scc1 KM_none')
    P0 = poll16(F_P0)
    A.fq = tab2 + f"""v_bfe_u32 v244, {v(lane)}, 4, 1
v_mul_u32_u24 v244, {28*1024}, v244
v_lshrrev_b32 v245, 5, {v(lane)}
v_lshl_add_u32 v244, v245, 8, v244
v_lshl_add_u32 v244, {v(l15)}, 4, v244
s_mul_i32 {s(st+2)}, {s(rt)}, 28
s_lshl_b32 {s(st+1)}, {s(sl)}, 1
s_add_u32 {s(st+2)}, {s(st+2)}, {s(st+1)}
s_add_u32 {s(st+2)}, {s(st+2)}, {s(wm)}
s_lshl_b32 {s(st+2)}, {s(st+2)}, 11
s_lshl_b32 {s(st+1)}, {s(kh)}, 9
s_add_u32 {s(st+2)}, {s(st+2)}, {s(st+1)}
s_add_u32 {s(m_off)}, {s(st+2)}, {WM1}
s_lshr_b32 {s(m_step)}, {s(rt)}, 1
s_lshl_b32 {s(m_step)}, {s(m_step)}, 10
s_add_u32 {s(m_step)}, {s(m_step)}, {F_M1}""".split('\n')
    gemm_rows(A, NF1, lambda: poll_issue(A, P0))
    A('s_branch KM_join')
    E = A; A = Asm(); A.track = False; A.nlabel = 1000
    A(f's_cmp_eq_u32 {s(role)}, 3\ns_cbranch_scc1 KM_en')
    ksplit_reduce(A, X0, X1, rw, rr, XB, True)
    A(f's_cmp_eq_u32 {s(role)}, 1\ns_cbranch_scc1 KM_e2')
    A(f"""s_cmp_eq_u32 {s(role)}, 2
s_cbranch_scc1 KM_d
s_or_b32 {s(st+1)}, {s(sl)}, {s(wave)}
s_cmp_lg_u32 {s(st+1)}, 0
s_cbranch_scc1 KM_nodc
v_cmp_gt_u32 vcc, 32, {v(lane)}
v_cndmask_b32 {v(X0+1)}, {v(X0+1)}, 0, vcc
v_cndmask_b32 {v(X1+1)}, {v(X1+1)}, 0, vcc
KM_nodc:""")
    o = XB + 16
    G = v(gr, 2)
    for i, r in enumerate((0, 2, 8, 10)):
        A(f'v_pk_mul_f32 {v(o+2*i,2)}, {v(X0+r,2)}, {G} op_sel_hi:[1,0]\nv_pk_mul_f32 {v(o+8+2*i,2)}, {v(X1+r,2)}, {G} op_sel_hi:[1,0]')
    for i, r in enumerate((0, 2, 8, 10)):
        A(f'v_pk_fma_f32 {v(o+2*i,2)}, {v(X1+r,2)}, {G}, {v(o+2*i,2)} op_sel:[0,1,0] op_sel_hi:[1,1,1] neg_lo:[1,0,0] neg_hi:[1,0,0]')
        A(f'v_pk_fma_f32 {v(o+8+2*i,2)}, {v(X0+r,2)}, {G}, {v(o+8+2*i,2)} op_sel:[0,1,0] op_sel_hi:[1,1,1]')
    for i in range(8):
        A(f'v_cvt_pk_bf16_f32 {v(XB+i)}, {v(o+2*i)}, {v(o+2*i+1)}')
    A(f"""buffer_store_dwordx4 {v(XB,4)}, v244, {s(sW,4)}, {s(m_off)} offen sc1
buffer_store_dwordx4 {v(XB+4,4)}, v244, {s(sW,4)}, {s(m_off)} offen offset:1024 sc1
s_branch KM_en
KM_d:
v_lshrrev_b32 v244, 1, {v(lane)}
s_lshl_b32 {s(st)}, {s(sl)}, 8
s_lshl_b32 {s(st+1)}, {s(wm)}, 7
s_add_u32 {s(st)}, {s(st)}, {s(st+1)}
s_lshl_b32 {s(st+1)}, {s(kh)}, 5
s_add_u32 {s(st)}, {s(st)}, {s(st+1)}
s_add_u32 {s(st)}, {s(st)}, {ZD}
s_mov_b32 {s(m_step)}, {F_ZD}
s_mov_b32 exec_lo, 1
s_mov_b32 exec_hi, 1
buffer_store_dwordx4 {v(X0,4)}, v244, {s(sW,4)}, {s(st)} offen sc1
buffer_store_dwordx4 {v(X0+8,4)}, v244, {s(sW,4)}, {s(st)} offen offset:64 sc1
s_mov_b64 exec, -1
s_branch KM_en""")
    A, E = E, A
    a0, a1 = 244, 245
    A(f"""KM_m2:
v_bfe_u32 {v(a0)}, {v(lane)}, 2, 2
v_lshrrev_b32 {v(a1)}, 5, {v(lane)}
v_lshl_add_u32 {v(a1)}, {v(a1)}, 3, {v(a0)}
v_lshlrev_b32 {v(a1)}, 7, {v(a1)}
v_lshrrev_b32 {v(a0)}, 1, {v(a0)}
v_lshl_add_u32 {v(a1)}, {v(a0)}, 6, {v(a1)}
v_bfe_u32 {v(a0)}, {v(lane)}, 1, 1
v_xor_b32 {v(a0)}, {s(kh)}, {v(a0)}
v_lshl_add_u32 {v(a1)}, {v(a0)}, 5, {v(a1)}
v_bfe_u32 {v(a0)}, {v(lane)}, 4, 1
v_lshl_add_u32 {v(a1)}, {v(a0)}, 4, {v(a1)}
v_and_b32 {v(a0)}, 1, {v(lane)}
v_lshl_add_u32 {v(a1)}, {v(a0)}, 3, {v(a1)}
s_lshl_b32 {s(st)}, {s(kh)}, 15
s_add_u32 {s(st)}, {s(st)}, {L_M}
v_add_u32 {v(a0)}, {s(st)}, {v(a1)}
v_xor_b32 {v(a1)}, 64, {v(a0)}""")
    def rd2(k):
        b = XB + 8 * (k % 4)
        for mt in range(2):
            for hf in range(2):
                A(f'ds_read_b64_tr_b16 {v(b+4*mt+2*hf,2)}, {v(a0+mt)} offset:{k*2048+(2048 if k >= 7 else 0)+hf*512}')
    A.fq = tab2 + f"""v_xor_b32 {v(rr)}, 0x80, {v(rr)}
s_min_u32 {s(st+2)}, {s(rt)}, 21
s_lshr_b32 {s(st+2)}, {s(st+2)}, 0
s_sub_u32 {s(st+2)}, {s(st+2)}, 14
s_mul_i32 {s(st+2)}, {s(st+2)}, 37
s_lshr_b32 {s(st+2)}, {s(st+2)}, 8
s_mul_i32 {s(st+1)}, {s(st+2)}, 7
s_add_u32 {s(st+1)}, {s(st+1)}, 14
s_sub_u32 {s(st+1)}, {s(rt)}, {s(st+1)}
s_lshl_b32 {s(st)}, {s(sl)}, 1
s_add_u32 {s(st)}, {s(st)}, {s(st+2)}
s_lshl_b32 {s(st)}, {s(st)}, 1
s_add_u32 {s(st)}, {s(st)}, {s(wm)}
s_mul_i32 {s(st)}, {s(st)}, 28
s_lshl_b32 {s(st+1)}, {s(st+1)}, 2
s_add_u32 {s(st)}, {s(st)}, {s(st+1)}
s_add_u32 {s(st)}, {s(st)}, {s(kh)}
s_lshl_b32 {s(st)}, {s(st)}, 10
s_add_u32 {s(m_off)}, {s(st)}, {WC}
s_lshl_b32 {s(m_step)}, {s(sl)}, 10
s_add_u32 {s(m_step)}, {s(m_step)}, {F_M2}""".split('\n')
    gemm(A, rd2, 4, lambda k, i: f'{v(XB+8*(k%4)+4*i,4)}, {v(QA+4*k,4)}', NF1, lambda: poll_issue(A, P0))
    A('s_branch KM_join')
    A, E = E, A
    A('KM_e2:')
    for mt, T in enumerate((X0, X1)):
        for i, r in enumerate((0, 2, 8, 10)):
            A(f'v_cvt_pk_bf16_f32 {v(XB+16+4*mt+i)}, {v(T+r)}, {v(T+r+1)}')
    A(f"""buffer_store_dwordx4 {v(XB+16,4)}, {v(VL16X)}, {s(sW,4)}, {s(m_off)} offen sc1
buffer_store_dwordx4 {v(XB+20,4)}, {v(VL16X)}, {s(sW,4)}, {s(m_off)} offen offset:2048 sc1
KM_en:""")
    A, E = E, A
    A('KM_none:')
    poll_issue(A, P0)
    A(f's_mov_b32 {s(m_step)}, {F_NO}\nKM_join:')
    A.track = True
    pstamp(A, 'mgemm')
    A.vm = []
    ck = 246
    def mid0():
        for i, r in enumerate((sAG0, sAG1)):
            A(f's_add_u32 {s(r)}, s4, {AGG + i*AGG_L}\ns_addc_u32 {s(r+1)}, s5, 0')
            srd(A, r, AGG_L)
        A(f"""s_mov_b32 {s(s_redo)}, 0
s_lshl_b32 {s(st+2)}, {s(sl)}, 12
s_add_u32 {s(s_wc)}, {s(s_wc)}, {s(st+2)}
s_mov_b32 {s(s_wce)}, {s(s_wc)}
s_lshl_b32 {s(st+2)}, {s(sl)}, 10
s_and_b32 {s(st+3)}, s2, 7
s_lshl_b32 {s(st+3)}, {s(st+3)}, 7
s_add_u32 {s(st+2)}, {s(st+2)}, {s(st+3)}
s_add_u32 {s(st+2)}, {s(st+2)}, {F_M1}
v_mul_u32_u24 {v(ck)}, {F_M2 - F_M1}, {v(lane)}
v_add_u32 {v(ck)}, {s(st+2)}, {v(ck)}
v_mov_b32 {v(ck+1)}, 56""")
    poll_check(A, 0)
    A(col_poll_pre(ZC, SSQ0))
    cw = 250
    def mid1():
        A(f"""s_and_b32 {s(st)}, s2, 15
s_lshl_b32 {s(st)}, {s(st)}, 2
s_add_u32 {s(st)}, {s(st)}, {s(wave)}
s_lshl_b32 {s(st)}, {s(st)}, 7
s_add_u32 {s(st)}, {s(st)}, {F_W}
v_mov_b32 {v(cw)}, {s(st)}
v_mov_b32 {v(cw+1)}, {NA}""")
        chk_issue(A, cw, 1)
        A.lines.extend(E.lines)
        pstamp(A, 'mdone')
        mid0()
        for ln in tab3: A(ln)
        A(f'v_mov_b32 {v(CT+2)}, {f2u(1e-5*2048.0*2048.0)}')
    col_poll(A, ZC, SSQ0, mid1)
    lab = A.label('cw')
    A(f's_waitcnt vmcnt(2)\ns_cmp_lg_u32 {s(role)}, 3\ns_cbranch_scc1 {lab}\ns_waitcnt vmcnt(0)\n{lab}:')
    A.vm = []
    WL = int(os.environ.get('WL', '0'))
    if not WL:
        chk_wait(A, cw, st + 5, 1); col_wload(A, st + 5)
    def hook(i):
        if i == 0 and WL:
            chk_wait(A, cw, st + 5, 1); col_wload(A, st + 5)
        if i == MS:
            A(f"""s_waitcnt vmcnt({len(A.vm)})
v_mov_b32 v5, 1
v_lshlrev_b32 v6, 7, {v(lane)}
s_mov_b64 exec, 0xff
buffer_atomic_add v5, v6, {s(sW,4)}, {s(m_step)} offen sc1
s_mov_b64 exec, -1""")
        if i == MH: chk_issue(A, ck)
        if i == MH + MD:
            chk_wait(A, ck, st + 5); q_m1(A)
    col_compute(A, ZB, True, hook)
    def pre(i):
        if i == 0 and MH + MD > 4:
            chk_wait(A, ck, st + 5); q_m1(A); A.bg(NDX)
    ce, cp = 170, 176
    def shook(ks):
        if ks == -1:
            A(f'''s_and_b32 {s(st)}, s2, 15
s_lshl_b32 {s(st)}, {s(st)}, 2
s_add_u32 {s(st)}, {s(st)}, {s(wave)}
s_lshl_b32 {s(st)}, {s(st)}, 7
s_add_u32 {s(st)}, {s(st)}, {gen_p.F_CE}
v_mov_b32 {v(ce)}, {s(st)}
v_mov_b32 {v(ce+1)}, 28''')
        if ks == 100 and 'cb' in NOD:
            A(f'v_add_u32 {v(cp)}, {gen_p.F_PF1 - gen_p.F_CE}, {v(ce)}\nv_mov_b32 {v(cp+1)}, {NA}')
        if ks == 102 and 'cb' in NOD: chk_issue(A, cp, 1)
        if ks == 101 and 'cb' in NOD: chk_wait(A, cp, st + 5, 1)
        if ks == CEK - 4: chk_issue(A, ce, 1)
        if ks == CEK:
            chk_wait(A, ce, st + 5, 1)
            rest = A.bgq; A.bgq = []; q_sk(A, WSC); A.bgq += rest
    layers(A, lre, lim, ldt, pre, shook)
    kend(A)

    A('KP_aux:')
    A.track = False
    sI, sI2 = 8, 12
    arr, w4, gq, hf, u = 41, 23, 24, 42, 27
    ld_ptr(A, sI, A_WR); ld_ptr(A, sI2, A_WI)
    A(f'''v_and_b32 {v(lane)}, 63, v0
v_lshrrev_b32 v2, 6, v0
v_readfirstlane_b32 {s(wave)}, v2
s_sub_u32 {s(u)}, s2, 224
s_and_b32 {s(hf)}, {s(u)}, 1
s_bfe_u32 {s(arr)}, {s(u)}, 0x10001
s_bfe_u32 {s(w4)}, {s(u)}, 0x20002
s_lshr_b32 {s(gq)}, {s(u)}, 4
s_lshl_b32 {s(st)}, {s(gq)}, 3
s_lshl_b32 {s(st+1)}, {s(wave)}, 1
s_add_u32 {s(st)}, {s(st)}, {s(st+1)}
s_lshl_b32 {s(st)}, {s(st)}, 2
s_add_u32 {s(st)}, {s(st)}, {s(w4)}
s_lshl_b32 {s(st)}, {s(st)}, 1
s_add_u32 {s(st)}, {s(st)}, {s(hf)}
s_mul_i32 {s(st+2)}, {s(st)}, 3600
s_lshl_b32 {s(st)}, {s(wave)}, 13
s_mov_b32 m0, {s(st)}
v_lshlrev_b32 v2, 4, {v(lane)}
v_lshlrev_b32 v3, 4, v0
v_mov_b32 v8, 0
v_mov_b32 v9, 0
v_mov_b32 v10, 0
v_mov_b32 v11, 0
s_lshl_b32 {s(st)}, {s(u)}, 13
s_add_u32 {s(st)}, {s(st)}, {FLAGS}
s_add_u32 {s(st+1)}, {s(st)}, 4096
s_waitcnt lgkmcnt(0)
s_cmp_eq_u32 {s(arr)}, 0
s_cselect_b32 {s(sI)}, {s(sI)}, {s(sI2)}
s_cselect_b32 {s(sI+1)}, {s(sI+1)}, {s(sI2+1)}''')
    srd(A, sI, S * 450); srd_ws(A, sW)
    A(f'buffer_store_dwordx4 v[8:11], v3, {s(sW,4)}, {s(st)} offen sc1\nbuffer_store_dwordx4 v[8:11], v3, {s(sW,4)}, {s(st+1)} offen sc1')
    NG = int(os.environ.get('NG', '8'))
    def agate():
        if STAMPS == 1: A('s_memrealtime s[76:77]')
        A(f'''s_waitcnt vmcnt({NG})
{'s_memrealtime s[78:79]' if STAMPS == 1 else ''}
s_barrier
s_cmp_lg_u32 {s(wave)}, 0
s_cbranch_scc1 KM_ag
v_mov_b32 v12, 1
s_lshr_b32 {s(st)}, {s(u)}, 4
s_lshl_b32 {s(st)}, {s(st)}, 7
v_mov_b32 v13, {s(st)}
s_mov_b64 exec, 1
global_atomic_add v13, v12, {s(sD,2)} sc1
s_mov_b64 exec, -1
KM_ag:''')
    n = 0
    if NG == 0: agate()
    for un in range(2):
        for e in range(2):
            for i in range(4):
                A(f'buffer_load_dwordx4 v2, {s(sI,4)}, {s(st+2)} offen offset:{i*1024} lds')
                n += 1
                if n == NG: agate()
            if e == 0: A(f's_add_u32 m0, m0, 4096\ns_add_u32 {s(st+2)}, {s(st+2)}, {4*7200}')
        if un == 0: A(f's_add_u32 m0, m0, {32768-4096}\ns_add_u32 {s(st+2)}, {s(st+2)}, {128*3600-4*7200}')
    A(f'''
v_and_b32 v3, 7, {v(lane)}
v_mul_u32_u24 v4, 450, v3
v_lshrrev_b32 v5, 3, v0
v_lshl_add_u32 v4, v5, 1, v4
v_add_u32 v6, 448, v4
v_cmp_eq_u32 vcc, 0, v5
v_cndmask_b32 v6, v4, v6, vcc
v_lshlrev_b32 v5, 13, v5
v_lshl_add_u32 v5, v3, 4, v5
s_lshl_b32 {s(st)}, {s(w4)}, 1
s_add_u32 {s(st)}, {s(st)}, {s(arr)}
s_lshl_b32 {s(st)}, {s(st)}, 10
s_lshl_b32 {s(st+1)}, {s(gq)}, 8
s_add_u32 {s(st)}, {s(st)}, {s(st+1)}
s_lshl_b32 {s(st+1)}, {s(hf)}, 7
s_add_u32 {s(st)}, {s(st)}, {s(st+1)}
s_add_u32 {s(st)}, {s(st)}, {WF}
s_mov_b32 {s(st+3)}, 0
s_waitcnt vmcnt(8)
s_barrier''')
    if STAMPS == 1: A('s_memrealtime s[62:63]')
    A(f's_lshr_b32 {s(st+4)}, {s(u)}, 3\ns_min_u32 {s(st+4)}, {s(st+4)}, 2\ns_mul_i32 {s(st+4)}, {s(st+4)}, {PF_PART}\ns_add_u32 {s(st+4)}, {s(st+4)}, {PF_START}')
    prefetch_code(A, 'km_kernel', PF_PART, 2, 44, 72, st + 4)
    A('KM_wt:')
    def wt_fin(it):
        b = 16 + 8 * (it % 2)
        o = 32 + 4 * it
        for i in range(4):
            A(f'v_or_b32 {v(o+i)}, {v(b+2*i)}, {v(b+2*i+1)}')
        A(f'buffer_store_dwordx4 {v(o,4)}, v5, {s(sW,4)}, {s(st)} offen sc1\ns_add_u32 {s(st)}, {s(st)}, {32*8192}')
    for it in range(7):
        b = 16 + 8 * (it % 2)
        for e in range(8):
            A(f'ds_read_u16{"_d16_hi" if e & 1 else ""} {v(b+e)}, {v(6 if it == 0 else 4)} offset:{e*4096+it*64}')
        if it >= 1:
            A('s_waitcnt lgkmcnt(8)')
            wt_fin(it - 1)
    A('s_waitcnt lgkmcnt(0)')
    wt_fin(6)
    A(f'''s_sub_u32 {s(st)}, {s(st)}, {7*32*8192-512}
v_add_u32 v4, 32768, v4
v_add_u32 v6, 32768, v6
s_add_u32 {s(st+3)}, {s(st+3)}, 1
s_waitcnt vmcnt({7 + (PF_PART + 4095) // 4096})
s_barrier
s_cmp_lt_u32 {s(st+3)}, 2
s_cbranch_scc1 KM_wt
{gload}
s_waitcnt lgkmcnt(0)''')
    if STAMPS == 1: A('s_memrealtime s[64:65]')
    gate()
    A.track = False
    A(f's_mov_b32 {s(st+1)}, {F_W}')
    signal(A, None, st + 1, 64, 128)
    A.track = False
    def astamp():
        if STAMPS != 1: return
        A('s_memrealtime s[100:101]\ns_waitcnt lgkmcnt(0)')
        for i in range(21): A(f'v_mov_b32 {v(8+i)}, {s(60+2*i)}')
        A(f'v_lshrrev_b32 v5, 6, v0\nv_lshlrev_b32 v5, 7, v5\ns_lshl_b32 s59, s2, 9\ns_add_u32 s59, s59, {STAMP + 131072}')
        for i in range(6): A(f'buffer_store_dwordx4 {v(8+4*i,4)}, v5, {s(sW,4)}, s59 offen offset:{16*i}')
    if STAMPS == 1: A('s_memrealtime s[72:73]')
    def zd_wait():
        A.track = True
        poll(A, f's_and_b32 {s(st)}, s2, 7\ns_lshl_b32 {s(st)}, {s(st)}, 7\ns_add_u32 {s(st)}, {s(st)}, {F_ZD}\nv_mov_b32 v5, {s(st)}\nv_mov_b32 v6, 28\ns_mov_b64 s[50:51], 1')
        A.track = False
    aux_tail(A, zd_wait, astamp)
    return A.render()

def main():
    txt = build([('km', km(), 256, 256)], [('km', 224 + NA, LDS_BYTES)])
    txt = txt.replace('.amdhsa_next_free_sgpr 96', '.amdhsa_next_free_sgpr 102')
    fn = sys.argv[1]
    open(fn, 'w').write(txt)
    if PROBE: print(list(enumerate(NAMES)))
    if STAMPS == 1: open(fn + '.names', 'w').write(' '.join(NAMES))

if __name__ == '__main__':
    main()
```
